```python
import torch

def _softmax(x, axis=-1):
    return torch.softmax(x, dim=axis)
def _gelu(x):
    return torch.nn.functional.gelu(x, approximate="tanh")
def _silu(x):
    return torch.nn.functional.silu(x)
def _sigmoid(x):
    return torch.sigmoid(x)
def _layernorm(x, axis=-1, eps=1e-5):
    m = x.mean(dim=axis, keepdim=True)
    v = x.var(dim=axis, keepdim=True, unbiased=False)
    return (x - m) / torch.sqrt(v + eps)
def _scatter_add(tgt, idx, src, axis=0):
    return tgt.clone().index_add_(axis, idx, src)
def _segment_sum(src, seg, n):
    out = torch.zeros((n,) + src.shape[1:], dtype=src.dtype)
    return out.index_add_(0, seg, src)
def _pad(x, pw):
    flat = tuple(v for pair in reversed(pw) for v in pair)
    return torch.nn.functional.pad(x, flat)

kernel_name = 'parallel_sum__sliding_block__moe_arch_mod__prompt'

def setup_inputs():

    _w = (lambda a: (lambda t: t.to(torch.bfloat16) if t.is_floating_point() else t)(torch.as_tensor(a)))
    def _A_setup():
        B, S, D = 1, 2048, 512
        return {
            "x": _w((lambda *s: torch.randn(*s, dtype=torch.bfloat16) * 0.05)(B, S, D)),
            "wqkv": _w((lambda *s: torch.randn(*s, dtype=torch.bfloat16) * 0.05)(D, 3 * D)),
            "wo": _w((lambda *s: torch.randn(*s, dtype=torch.bfloat16) * 0.05)(D, D)),
        }
    _A_in = _A_setup()

    def _B_setup():
        B, S, D, F, C = 1, 2048, 512, 1376, 1
        return {
            "x": _w((lambda *s: torch.randn(*s, dtype=torch.bfloat16) * 0.05)(B, S, D)),
            "w_r": _w((lambda *s: torch.randn(*s, dtype=torch.bfloat16) * 0.05)(D)),
            "w_gate": _w((lambda *s: torch.randn(*s, dtype=torch.bfloat16) * 0.05)(D, F)),
            "w_up": _w((lambda *s: torch.randn(*s, dtype=torch.bfloat16) * 0.05)(D, F)),
            "w_down": _w((lambda *s: torch.randn(*s, dtype=torch.bfloat16) * 0.05)(F, D)),
        }
    _B_in = _B_setup()

    return {
        "A_x": _A_in["x"],
        "A_wqkv": _A_in["wqkv"],
        "A_wo": _A_in["wo"],
        "B_x": _B_in["x"],
        "B_w_r": _B_in["w_r"],
        "B_w_gate": _B_in["w_gate"],
        "B_w_up": _B_in["w_up"],
        "B_w_down": _B_in["w_down"],
    }

def reference(A_x, A_wqkv, A_wo, B_x, B_w_r, B_w_gate, B_w_up, B_w_down):
    def _A_ref(x, wqkv, wo):
        B, S, D = x.shape
        H = 32; Dh = D // H; W = 256
        qkv = (lambda x, *d: x.permute(*d))((x @ wqkv).reshape(B, S, 3, H, Dh), 2, 0, 3, 1, 4)
        q, k, v = qkv[0], qkv[1], qkv[2]
        scores = torch.einsum("bhqd,bhkd->bhqk", q, k) * (Dh ** -0.5)
        idx = torch.arange(S)
        mask = (idx[:, None] - idx[None, :] >= 0) & (idx[:, None] - idx[None, :] < W)
        scores = torch.where(mask[None, None], scores, -1e9)
        p = _softmax(scores, axis=-1)
        o = torch.einsum("bhqk,bhkd->bhqd", p, v)
        return (lambda x, *d: x.permute(*d))(o, 0, 2, 1, 3).reshape(B, S, D) @ wo

    def _B_ref(x, w_r, w_gate, w_up, w_down):
        B, S, D = x.shape
        C = 1
        r = x @ w_r
        idx = torch.argsort(-r, axis=-1)[:, :C]
        idx_e = (lambda x, n, axis: torch.repeat_interleave(x, n, dim=axis))(idx.reshape(B, C, 1), D, axis=2)
        x_sel = (lambda x, i, axis: torch.take_along_dim(x, i, dim=axis))(x, idx_e, axis=1)
        g = _silu(x_sel @ w_gate)
        u = x_sel @ w_up
        y = (g * u) @ w_down
        r_sel = _sigmoid((lambda x, i, axis: torch.take_along_dim(x, i, dim=axis))(r, idx, axis=1))
        y = y * r_sel.reshape(B, C, 1)
        b_off = (torch.arange(B) * S).reshape(B, 1)
        flat_idx = (idx + b_off).reshape(B * C)
        zero = (x * 0.0).reshape(B * S, D)
        upd = _scatter_add(zero, flat_idx, y.reshape(B * C, D), axis=0)
        return x + upd.reshape(B, S, D)

    x = A_x
    xn = _layernorm(x, axis=-1)
    return x + _A_ref(xn, A_wqkv, A_wo) + _B_ref(xn, B_w_r, B_w_gate, B_w_up, B_w_down)
```

```python
import re

def v(n, c=1):
    return f"v{n}" if c == 1 else f"v[{n}:{n+c-1}]"
def s(n, c=1):
    return f"s{n}" if c == 1 else f"s[{n}:{n+c-1}]"

_REG = re.compile(r"^(-|\|)?(abs\()?([vsa])(\d+|\[(\d+):(\d+)\])\)?\|?$")
TRANS = ("v_exp_f32", "v_log_f32", "v_rcp_f32", "v_rsq_f32", "v_sqrt_f32", "v_sin_f32", "v_cos_f32", "v_rcp_iflag_f32")

def regs_of(op):
    op = op.strip()
    if op == "vcc": return {("s", 106), ("s", 107)}
    if op == "vcc_lo": return {("s", 106)}
    if op == "vcc_hi": return {("s", 107)}
    if op == "exec": return {("s", 126), ("s", 127)}
    if op == "m0": return {("s", 124)}
    m = _REG.match(op)
    if not m: return set()
    k = m.group(3)
    if m.group(5) is not None:
        return {(k, i) for i in range(int(m.group(5)), int(m.group(6)) + 1)}
    return {(k, int(m.group(4)))}

class Ins:
    def __init__(self, text):
        self.text = text
        t = text.split(";")[0].strip()
        self.is_label = t.endswith(":")
        self.label = t[:-1] if self.is_label else None
        self.op = None; self.wr = set(); self.rd = set()
        self.cls = None; self.states = 0; self.target = None
        self.srcC = set(); self.srcAB = set(); self.passes = 0
        self.dpp = False; self.store_data = set(); self.wide_store = False
        if self.is_label or not t or t.startswith("."):
            return
        parts = t.split(None, 1)
        op = parts[0]; self.op = op
        rest = parts[1] if len(parts) > 1 else ""
        ops = [o.strip() for o in re.split(r",(?![^\[]*\])", rest)] if rest else []
        mods = ""
        if ops:
            sp = ops[-1].split(None, 1)
            if len(sp) > 1:
                ops[-1] = sp[0]; mods = sp[1]
        self.states = 1
        R = [regs_of(o) for o in ops]
        if op == "s_nop":
            self.states = int(ops[0], 0) + 1; self.cls = "salu"; return
        if op.startswith("s_cbranch") or op == "s_branch":
            self.cls = "branch"; self.target = ops[0]; return
        if op.startswith("s_"):
            self.cls = "salu"
            if op in ("s_waitcnt", "s_barrier", "s_endpgm", "s_setprio", "s_sleep"): return
            if op.startswith("s_cmp") or op.startswith("s_bitcmp"):
                for r in R: self.rd |= r
                return
            if R:
                self.wr |= R[0]
                for r in R[1:]: self.rd |= r
            if "saveexec" in op: self.wr |= regs_of("exec")
            return
        if op.startswith("v_mfma"):
            self.cls = "mfma"
            self.wr |= R[0]; self.srcAB = R[1] | R[2]; self.srcC = R[3]
            self.rd = self.srcAB | self.srcC
            self.passes = 8 if "32x32" in op else 4
            return
        if op.startswith("v_"):
            self.cls = "valu"
            self.dpp = ("_dpp" in op) or ("quad_perm" in mods) or ("row_" in mods)
            if op.startswith("v_cmp"):
                self.wr |= R[0]
                for r in R[1:]: self.rd |= r
            elif op.startswith("v_permlane"):
                self.wr |= R[0] | R[1]; self.rd |= R[0] | R[1]
            elif op in ("v_add_co_u32", "v_addc_co_u32", "v_sub_co_u32"):
                self.wr |= R[0] | R[1]
                for r in R[2:]: self.rd |= r
            else:
                self.wr |= R[0]
                for r in R[1:]: self.rd |= r
                if op.startswith("v_fmac") or op.startswith("v_dot2c") or self.dpp or op.startswith("v_writelane"):
                    self.rd |= R[0]
                if op.startswith("v_cndmask") and len(ops) == 3:
                    self.rd |= regs_of("vcc")
            return
        if op.startswith("buffer_") or op.startswith("global_"):
            self.cls = "vmem"
            lds = " lds" in (" " + mods) or "_lds_" in op
            self.lds_dma = lds
            if lds:
                for r in R: self.rd |= r
                self.rd |= regs_of("m0")
            elif "load" in op:
                self.wr |= R[0]
                for r in R[1:]: self.rd |= r
            else:
                for r in R: self.rd |= r
                d = R[0] if op.startswith("buffer_") else R[1]
                self.store_data = d
                self.wide_store = op.endswith("x3") or op.endswith("x4")
            return
        if op.startswith("ds_"):
            self.cls = "ds"
            if "read" in op or "permute" in op or "swizzle" in op:
                self.wr |= R[0]
                for r in R[1:]: self.rd |= r
            else:
                for r in R: self.rd |= r
            return
        raise ValueError("unknown instruction class: " + text)

def vg(x): return {r for r in x if r[0] in "va"}
def sg(x): return {r for r in x if r[0] == "s"}

def need(p, c):
    n = 0
    if p.cls == "valu":
        w = vg(p.wr); ws = sg(p.wr)
        if c.cls == "mfma" and w & c.rd: n = max(n, 2)
        if c.cls == "valu":
            if p.op in TRANS and (w & c.rd) : n = max(n, 1)
            if c.dpp and w & c.rd: n = max(n, 2)
            if c.op.startswith("v_permlane") and w & c.rd: n = max(n, 2)
            if c.op.startswith("v_readlane") or c.op.startswith("v_readfirstlane"):
                if w & c.rd: n = max(n, 1)
                if ws & c.rd: n = max(n, 4)
            if ws & c.rd: n = max(n, 2)
            if p.op.startswith("v_dot") and (w & (c.rd | c.wr)):
                if not (c.op == p.op): n = max(n, 3)
            if ("op_sel" in p.text or "sdwa" in p.text) and not p.op.startswith("v_pk_") and w & (c.rd | c.wr): n = max(n, 1)
        if p.op.startswith("v_dot") and c.cls in ("mfma", "vmem", "ds") and (w & c.rd): n = max(n, 3)
        if c.cls == "vmem" and ws & c.rd: n = max(n, 5)
        if c.cls in ("salu",) and ws & c.rd: n = max(n, 1)
    if p.cls == "mfma":
        d = p.wr
        big = 12 if p.passes == 8 else 8
        if c.cls in ("valu", "vmem", "ds") and d & (c.rd | c.wr): n = max(n, big)
        if c.cls == "mfma":
            if d & c.srcAB: n = max(n, big)
            if d & c.srcC and not (c.srcC == d and c.passes == p.passes): n = max(n, big - 2)
            if d & c.wr and not (c.srcC == d): n = max(n, big - 2)
        if c.cls == "valu" and p.srcC & c.wr: n = max(n, 7 if p.passes == 8 else 3)
        if c.cls in ("vmem", "ds") and p.srcC & c.wr: n = max(n, 7 if p.passes == 8 else 3)
    if p.cls == "salu" and ("s", 124) in p.wr and c.cls == "vmem" and getattr(c, "lds_dma", False): n = max(n, 1)
    if p.cls == "vmem" and p.wide_store and p.store_data & c.wr:
        n = max(n, 2 if c.cls == "valu" else 1)
    return n

class Asm:
    def __init__(self):
        self.ins = []
        self.uid = 0
    def __call__(self, text):
        for line in text.split("\n"):
            line = line.strip()
            if line: self.ins.append(Ins(line))
    def label(self, name): self.ins.append(Ins(name + ":"))
    def newlabel(self, base="L"):
        self.uid += 1
        return f"{base}_{self.uid}"
    def finalize(self):
        ins = self.ins
        out = []
        MAXD = 12
        br = {}
        for x in ins:
            if x.cls == "branch": br.setdefault(x.target, []).append(x)
        pos_orig = {id(x): i for i, x in enumerate(ins)}
        def walk(seq, idx, dist, c, seen):
            req = 0
            while idx >= 0 and dist < MAXD:
                p = seq[idx]
                if p.is_label:
                    for b in br.get(p.label, []):
                        key = (id(b), dist)
                        if key in seen: continue
                        seen.add(key)
                        if id(b) in pos_out:
                            req = max(req, walk(out, pos_out[id(b)] - 1, dist + 1, c, seen))
                        else:
                            req = max(req, walk(ins, pos_orig[id(b)] - 1, dist + 1, c, seen))
                    idx -= 1
                    continue
                if p.op is None:
                    idx -= 1; continue
                if p.op in ("s_branch", "s_endpgm", "s_setpc_b64"):
                    break
                n = need(p, c)
                if n > dist: req = max(req, n - dist)
                dist += p.states
                idx -= 1
            return req
        pos_out = {}
        nnop = 0
        for c in ins:
            if c.op is not None and c.cls != "branch":
                req = walk(out, len(out) - 1, 0, c, set())
                if req > 0:
                    out.append(Ins(f"s_nop {req-1}")); nnop += 1
            pos_out[id(c)] = len(out)
            out.append(c)
        self.nnop = nnop
        return "\n".join((x.text if x.is_label or x.text.startswith(".") else "  " + x.text) for x in out)
```

```python
import sys, struct
from asmlib import Asm, v, s

NAME = "parallel_sum__sliding_block__moe_arch_mod__prompt"
opts = dict(a.split("=") if "=" in a else (a, "1") for a in sys.argv[2:])
PROF = int(opts.get("prof", 0))
STOP = opts.get("stop", "")

def f32(x): return "0x%08x" % struct.unpack("<I", struct.pack("<f", x))[0]

WS_STATS = 0x0
WS_BEST  = 0x8000
WS_GP    = 0x10000
WS_YP    = 0x40000
WS_KV    = 0x100000
WS_KVC   = 0x500000
WS_O     = 0x600000
WS_OC    = 0x800000
WS_TS    = 0x900000
WS_SIZE  = 0x1000000
L_X = 0; L_RING = 65536; L_MISC = 147456
L_QF = L_MISC
L_SM = L_MISC + 8192
L_ST = L_SM
L_NONCE = L_SM + 128
L_IDX = L_SM + 136
L_XSEL = L_SM + 256
L_RINV = L_SM + 512
L_GW = L_RING + 2 * 16384
L_OWN = L_RING + 3 * 16384
L_TAIL = 131072
SX, SW, SWS, SDBG, SWR = 40, 44, 48, 52, 56
SWO, SOUT, SWG, SWU, SWD = 60, 64, 68, 72, 76
sI, sC, sW, sROT, sNONCE, sP, sKEY = 3, 4, 5, 6, 7, 8, 9
sXO, sWOFF, sKC, sONES, sHH, sROLE, sH1, sH2 = 10, 11, 12, 13, 14, 15, 16, 17
sT = 20
sB1, sB2 = 80, 81
sWOD = 82
sM0 = 83
sVM = 84
sEX = 86
sRETRY = 88
vL = 1
vTS = 7
A = Asm()

def TS(n):
    if PROF:
        A(f"s_memtime s[98:99]\ns_waitcnt lgkmcnt(0)\nv_writelane_b32 v{vTS}, s98, {n}")

def srd(base, size):
    A(f"s_mov_b32 s{base+2}, {size}\ns_mov_b32 s{base+3}, 0x20000")

def allreduce32(x, t, op):
    for m in ("quad_perm:[1,0,3,2]", "quad_perm:[2,3,0,1]", "row_half_mirror", "row_mirror"):
        A(f"{op}_dpp v{x}, v{x}, v{x} {m} row_mask:0xf bank_mask:0xf")
    A(f"v_mov_b32 v{t}, v{x}\nv_permlane16_swap_b32 v{x}, v{t}\n{op} v{x}, v{x}, v{t}")

def bf16round(dst, src):
    A(f"v_cvt_pk_bf16_f32 v{dst}, v{src}, v{src}\nv_and_b32 v{dst}, 0xffff0000, v{dst}")

def retry_check(lbl):
    A(f"s_add_u32 s{sRETRY}, s{sRETRY}, 1\ns_cmp_gt_u32 s{sRETRY}, 20000\ns_cbranch_scc1 L_end")
    A(f"s_cbranch_vccnz {lbl}")

A(f"s_cmp_ge_u32 s2, 256\ns_cbranch_scc1 L_exit")
A(f"s_load_dwordx2 s[{SX}:{SX+1}], s[0:1], 0")
A(f"s_load_dwordx2 s[{SW}:{SW+1}], s[0:1], 8")
A(f"s_load_dwordx2 s[{SWR}:{SWR+1}], s[0:1], 32")
A(f"s_load_dwordx2 s[{SDBG}:{SDBG+1}], s[0:1], 72")
A(f"s_load_dwordx2 s[{SWS}:{SWS+1}], s[0:1], 80")
A(f"""v_lshrrev_b32 v2, 6, v0
v_and_b32 v{vL}, 63, v0
s_and_b32 s20, s2, 3
s_lshr_b32 s21, s2, 3
v_readfirstlane_b32 s{sW}, v2
s_lshl_b32 s20, s20, 3
s_and_b32 s22, s21, 7
s_add_u32 s{sI}, s20, s22
s_bfe_u32 s20, s2, 0x10002
s_lshl_b32 s20, s20, 2
s_lshr_b32 s22, s21, 3
s_add_u32 s{sC}, s20, s22
s_lshl_b32 s20, s{sC}, 1
s_add_u32 s20, s20, s{sI}
s_and_b32 s{sROT}, s20, 7
s_lshl_b32 s{sP}, s{sI}, 3
s_add_u32 s{sP}, s{sP}, s{sC}
s_mov_b32 s{sRETRY}, 0""")
srd(SX, 2048 * 1024); srd(SW, 512 * 3072); srd(SWS, WS_SIZE)
if PROF:
    A(f"v_mov_b32 v{vTS}, 0\ns_memrealtime s[96:97]\ns_waitcnt lgkmcnt(0)\nv_writelane_b32 v{vTS}, s96, 63")
    TS(0)
A(f"s_cmp_lt_u32 s{sW}, 4\ns_cbranch_scc1 L_cwave")

vX0, vX1, vW0, vW1 = 96, 97, 98, 99
A(f"""s_sub_u32 s{sHH}, s{sW}, 4
v_lshrrev_b32 v2, 3, v{vL}
v_and_b32 v3, 7, v{vL}
v_lshrrev_b32 v4, 1, v2
v_xor_b32 v5, v3, v4
v_lshlrev_b32 v5, 4, v5
v_lshl_add_u32 v{vX0}, v2, 10, v5
v_xor_b32 v5, 64, v5
v_lshl_add_u32 v{vX1}, v2, 10, v5
v_add_u32 v{vX1}, {8192-1024}, v{vX1}
v_and_b32 v4, 1, v4
v_lshlrev_b32 v4, 2, v4
v_xor_b32 v5, v3, v4
v_lshlrev_b32 v5, 4, v5
v_mul_u32_u24 v{vW0}, 3072, v2
v_add_u32 v{vW0}, v{vW0}, v5
v_add_u32 v{vW1}, {24576-2048}, v{vW0}
s_lshl_b32 s{sXO}, s{sI}, 16
s_lshl_b32 s20, s{sHH}, 14
s_add_u32 s{sXO}, s{sXO}, s20
s_lshl_b32 s{sWOFF}, s{sC}, 7
s_mul_i32 s20, s{sHH}, {16*3072}
s_add_u32 s{sWOFF}, s{sWOFF}, s20
s_lshl_b32 s21, s{sHH}, 11
s_lshl_b32 s22, s{sHH}, 12
s_waitcnt lgkmcnt(0)""")
def issue_unit(u):
    slot = u % 5
    if u < 8:
        A(f"""s_add_u32 s23, s{sROT}, {u}
s_and_b32 s23, s23, 7
s_lshl_b32 s24, s23, 7
s_add_u32 s24, s24, s{sXO}
s_add_u32 m0, s21, {L_X + u*8192}
s_mul_i32 s25, s23, {64*3072}
buffer_load_dwordx4 v{vX0}, s[{SX}:{SX+3}], s24 offen lds
buffer_load_dwordx4 v{vX1}, s[{SX}:{SX+3}], s24 offen offset:1024 lds
s_add_u32 s25, s25, s{sWOFF}
s_add_u32 m0, s22, {L_RING + slot*16384}
s_add_u32 s25, s25, 1024
buffer_load_dwordx4 v{vW0}, s[{SW}:{SW+3}], s25 offen lds
buffer_load_dwordx4 v{vW0}, s[{SW}:{SW+3}], s25 offen offset:1024 lds
buffer_load_dwordx4 v{vW1}, s[{SW}:{SW+3}], s25 offen offset:2048 lds
buffer_load_dwordx4 v{vW1}, s[{SW}:{SW+3}], s25 offen offset:3072 lds""")
    else:
        t = 2 * (u - 8)
        A(f"""s_add_u32 s23, s{sROT}, {t}
s_and_b32 s23, s23, 7
s_mul_i32 s25, s23, {64*3072}
s_add_u32 s25, s25, s{sWOFF}
s_add_u32 s23, s{sROT}, {t+1}
s_and_b32 s23, s23, 7
s_mul_i32 s26, s23, {64*3072}
s_add_u32 s26, s26, s{sWOFF}
s_add_u32 m0, s22, {L_RING + slot*16384}
s_nop 0
buffer_load_dwordx4 v{vW0}, s[{SW}:{SW+3}], s25 offen lds
buffer_load_dwordx4 v{vW1}, s[{SW}:{SW+3}], s25 offen offset:2048 lds
s_add_u32 m0, s22, {L_RING + slot*16384 + 1024}
s_nop 0
buffer_load_dwordx4 v{vW0}, s[{SW}:{SW+3}], s26 offen lds
buffer_load_dwordx4 v{vW1}, s[{SW}:{SW+3}], s26 offen offset:2048 lds""")
def ucount(u): return 6 if u < 8 else 4
for u in range(5): issue_unit(u)
TS(1)
vXA = 100
vWA0, vWA1 = 104, 105
def frag_addrs(qb_sgpr_shift12, seg_ct):
    A(f"""v_and_b32 v2, 31, v{vL}
v_lshrrev_b32 v3, 5, v{vL}
v_bfe_u32 v4, v2, 1, 3
v_xor_b32 v4, v4, v3
v_lshlrev_b32 v4, 4, v4
v_lshl_add_u32 v4, v2, 7, v4
v_add_u32 v{vXA}, s28, v4
v_xor_b32 v{vXA+1}, 32, v{vXA}
v_xor_b32 v{vXA+2}, 64, v{vXA}
v_xor_b32 v{vXA+3}, 96, v{vXA}
v_bfe_u32 v4, v{vL}, 2, 2
v_lshlrev_b32 v4, 7, v4
v_lshl_add_u32 v4, v3, 11, v4
v_bfe_u32 v5, v{vL}, 3, 1
v_xor_b32 v5, s27, v5
v_lshl_add_u32 v4, v5, 6, v4
v_bfe_u32 v5, v{vL}, 4, 1
v_lshl_add_u32 v4, v5, 5, v4
v_and_b32 v5, 3, v{vL}
v_lshl_add_u32 v4, v5, 3, v4
v_add_u32 v{vWA0}, s29, v4
v_add_u32 v{vWA1}, {3*16384}, v{vWA0}""")
def wa(slot, off):
    return (vWA0, slot * 16384 + off) if slot < 3 else (vWA1, (slot - 3) * 16384 + off)
ACC, XF, WF = 160, 192, 224
vCS0, vCS1 = 106, 107
ST0, ST1 = 240, 244
A(f"""s_and_b32 s27, s{sHH}, 1
s_lshr_b32 s28, s{sHH}, 1
s_lshl_b32 s28, s28, 12
s_mov_b32 s29, {L_RING}
s_mov_b32 s{sONES}, 0x3f803f80""")
frag_addrs(None, None)
for r in range(16): A(f"v_mov_b32 v{ACC+r}, 0")
A(f"v_mov_b32 v{vCS0}, 0\nv_mov_b32 v{vCS1}, 0")
issued = 5
for u in range(8):
    younger = sum(ucount(x) for x in range(u + 1, issued))
    A(f"s_waitcnt vmcnt({younger})\ns_barrier")
    if u >= 1:
        issue_unit(u + 4); issued += 1
TS(2)
A(f"""v_and_b32 v2, 31, v{vL}
v_lshlrev_b32 v108, 4, v2
s_lshl_b32 s30, s{sI}, 10
s_lshr_b32 s31, s28, 3
s_add_u32 s30, s30, s31
s_add_u32 s30, s30, {WS_STATS}
buffer_load_dwordx4 v[{ST0}:{ST0+3}], v108, s[{SWS}:{SWS+3}], s30 offen sc1
v_mov_b32 v2, {L_NONCE}
ds_read_b32 v3, v2
s_waitcnt lgkmcnt(0)
v_readfirstlane_b32 s{sNONCE}, v3""")
def q_unit(u):
    slot = u % 5
    for e in range(2):
        t = 2 * (u - 8) + e
        for st in range(4):
            A(f"ds_read_b128 v[{XF+4*st}:{XF+4*st+3}], v{vXA+st} offset:{t*8192}")
            for j in range(2):
                r, o = wa(slot, e * 1024 + st * 4096 + j * 512)
                A(f"ds_read_b64_tr_b16 v[{WF+4*st+2*j}:{WF+4*st+2*j+1}], v{r} offset:{o}")
        for st in range(4):
            A(f"s_waitcnt lgkmcnt({9-3*st})")
            A(f"v_mfma_f32_32x32x16_bf16 v[{ACC}:{ACC+15}], v[{WF+4*st}:{WF+4*st+3}], v[{XF+4*st}:{XF+4*st+3}], v[{ACC}:{ACC+15}]")
            for j in range(4):
                cs = vCS0 if j % 2 == 0 else vCS1
                A(f"v_dot2_f32_bf16 v{cs}, v{WF+4*st+j}, s{sONES}, v{cs}")
A(f"s_waitcnt vmcnt(9)\ns_barrier")
TS(3)
q_unit(8); q_unit(9)
A(f"s_waitcnt vmcnt(1)\ns_barrier")
q_unit(10); q_unit(11)
TS(4)

def corr_w(dst):
    A(f"""v_add_f32 v2, v{vCS0}, v{vCS1}""")
    bf16round(3, 2)
    A("v_sub_f32 v2, v2, v3")
    bf16round(4, 2)
    A(f"""v_sub_f32 v2, v2, v4
v_cvt_pk_bf16_f32 v{dst}, v3, v4
v_cvt_pk_bf16_f32 v{dst+1}, v2, 0
v_mov_b32 v{dst+2}, 0
v_mov_b32 v{dst+3}, 0""")
def corr_x(dst, m):
    A(f"""v_cvt_pk_bf16_f32 v{dst}, -v{m}, -v{m}
v_cvt_pk_bf16_f32 v{dst+1}, -v{m}, 0
v_mov_b32 v{dst+2}, 0
v_mov_b32 v{dst+3}, 0""")
lb = A.newlabel("L_qst")
lb2 = A.newlabel("L_qst_ok")
A("s_waitcnt vmcnt(0)")
A(f"v_cmp_ne_u32 vcc, s{sNONCE}, v{ST0+3}\ns_cbranch_vccz {lb2}")
A.label(lb)
A(f"buffer_load_dwordx4 v[{ST0}:{ST0+3}], v108, s[{SWS}:{SWS+3}], s30 offen sc1\ns_waitcnt vmcnt(0)")
A(f"v_cmp_ne_u32 vcc, s{sNONCE}, v{ST0+3}")
retry_check(lb)
A.label(lb2)
corr_w(WF); corr_x(XF, ST0)
A(f"v_mfma_f32_32x32x16_bf16 v[{ACC}:{ACC+15}], v[{WF}:{WF+3}], v[{XF}:{XF+3}], v[{ACC}:{ACC+15}]")
A(f"v_mul_f32 v2, {f32(0.25*1.4426950408889634)}, v{ST0+1}")
A(f"""s_lshl_b32 s30, s{sHH}, 11
v_lshlrev_b32 v3, 4, v{vL}
v_add_u32 v3, s30, v3""")
for r in range(16): A(f"v_mul_f32 v{ACC+r}, v{ACC+r}, v2")
for k in range(8): A(f"v_cvt_pk_bf16_f32 v{XF+k}, v{ACC+2*k}, v{ACC+2*k+1}")
A(f"v_add_u32 v3, {L_QF}, v3")
A(f"ds_write_b128 v3, v[{XF}:{XF+3}]\nds_write_b128 v3, v[{XF+4}:{XF+7}] offset:1024")
A(f"s_mov_b32 s{sROLE}, 1")
A("s_branch L_join")

A.label("L_cwave")
srd(SWR, 1024); srd(SDBG, 256)
A(f"""v_and_b32 v2, 31, v{vL}
v_lshlrev_b32 v2, 4, v2
v_lshrrev_b32 v3, 5, v{vL}
v_lshl_add_u32 v4, v3, 10, v2
s_lshl_b32 s20, s{sP}, 3
s_lshl_b32 s21, s{sW}, 1
s_add_u32 s20, s20, s21
s_lshl_b32 s21, s20, 10
s_getpc_b64 s[22:23]
L_pcref:
s_sub_u32 s22, s22, PC_OFF
s_subb_u32 s23, s23, 0
v_lshlrev_b32 v5, 7, v0
v_min_u32 v5, CODE_PF_MAX, v5
v_mov_b32 v6, 0
s_waitcnt lgkmcnt(0)
buffer_load_dwordx4 v[8:11], v4, s[{SX}:{SX+3}], s21 offen
buffer_load_dwordx4 v[12:15], v4, s[{SX}:{SX+3}], s21 offen offset:512
buffer_load_dwordx4 v[16:19], v2, s[{SWR}:{SWR+3}], 0 offen
buffer_load_dwordx4 v[20:23], v2, s[{SWR}:{SWR+3}], 0 offen offset:512""")
A(f"s_or_b32 s24, s2, s{sW}\ns_cmp_lg_u32 s24, 0\ns_cbranch_scc1 L_nononce")
A(f"s_memrealtime s[24:25]\ns_waitcnt lgkmcnt(0)\ns_or_b32 s24, s24, 1\nv_mov_b32 v60, s24")
A(f"buffer_store_dword v60, v6, s[{SDBG}:{SDBG+3}], 0 offen sc1")
A.label("L_nononce")
A(f"global_load_dword v61, v5, s[22:23]")
A(f"s_load_dwordx2 s[{SWG}:{SWG+1}], s[0:1], 40")
A(f"s_load_dwordx2 s[{SWU}:{SWU+1}], s[0:1], 48")
A(f"""s_and_b32 s27, s{sW}, 1
s_mov_b32 s28, 0
s_lshr_b32 s29, s{sW}, 1
s_lshl_b32 s29, s29, 10
s_add_u32 s29, s29, {L_RING}
s_mov_b32 s{sONES}, 0x3f803f80
v_add_u32 v62, s20, v3""")
frag_addrs(None, None)
for r in range(32): A(f"v_mov_b32 v{ACC+r}, 0")
A(f"v_mov_b32 v{vCS0}, 0\nv_mov_b32 v{vCS1}, 0")
srd(SWG, 512 * 2752); srd(SWU, 512 * 2752)
A("s_waitcnt vmcnt(1)")
TS(1)
XU = 24
for k in range(8):
    A(f"v_lshlrev_b32 v{XU+2*k}, 16, v{8+k}\nv_and_b32 v{XU+2*k+1}, 0xffff0000, v{8+k}")
A(f"v_add_f32 v40, v{XU}, v{XU+1}\nv_add_f32 v41, v{XU+2}, v{XU+3}")
for k in range(4, 16, 2):
    A(f"v_add_f32 v40, v40, v{XU+k}\nv_add_f32 v41, v41, v{XU+k+1}")
A("v_add_f32 v40, v40, v41")
allreduce32(40, 41, "v_add_f32")
A(f"v_mul_f32 v40, {f32(1.0/512)}, v40")
bf16round(42, 40)
A("v_mov_b32 v43, 0\nv_mov_b32 v44, 0")
for k in range(0, 16, 2):
    A(f"v_sub_f32 v45, v{XU+k}, v40\nv_sub_f32 v46, v{XU+k+1}, v40\nv_fmac_f32 v43, v45, v45\nv_fmac_f32 v44, v46, v46")
A("v_add_f32 v43, v43, v44")
allreduce32(43, 41, "v_add_f32")
A(f"v_mul_f32 v43, {f32(1.0/512)}, v43")
bf16round(43, 43)
A(f"v_add_f32 v43, {f32(1e-5)}, v43")
bf16round(43, 43)
A("v_sqrt_f32 v43, v43")
bf16round(43, 43)
A("v_rcp_f32 v43, v43")
for k in range(16): A(f"v_sub_f32 v{XU+k}, v{XU+k}, v42")
for k in range(8): A(f"v_cvt_pk_bf16_f32 v{8+k}, v{XU+2*k}, v{XU+2*k+1}")
for k in range(8):
    A(f"v_lshlrev_b32 v{XU+2*k}, 16, v{8+k}\nv_and_b32 v{XU+2*k+1}, 0xffff0000, v{8+k}")
for k in range(16): A(f"v_mul_f32 v{XU+k}, v{XU+k}, v43")
for k in range(8): A(f"v_cvt_pk_bf16_f32 v{8+k}, v{XU+2*k}, v{XU+2*k+1}")
A("v_mov_b32 v44, 0")
for k in range(8): A(f"v_dot2_f32_bf16 v44, v{8+k}, v{16+k}, v44")
allreduce32(44, 41, "v_add_f32")
bf16round(44, 44)
A(f"""v_ashrrev_i32 v45, 31, v44
v_or_b32 v45, 0x80000000, v45
v_xor_b32 v44, v44, v45
v_and_b32 v44, 0xffff0000, v44
v_sub_u32 v45, 2047, v62
v_or_b32 v44, v44, v45
v_and_b32 v46, 7, v62
v_lshlrev_b32 v46, 4, v46
v_add_u32 v46, {L_ST}, v46
ds_write_b96 v46, v[42:44]""")
A(f"s_cmp_lg_u32 s{sW}, 0\ns_cbranch_scc1 L_b0")
lb = A.newlabel("L_np")
A.label(lb)
A(f"buffer_load_dword v60, v6, s[{SDBG}:{SDBG+3}], 0 offen sc1\ns_waitcnt vmcnt(0)\nv_cmp_eq_u32 vcc, 0, v60")
retry_check(lb)
A(f"v_mov_b32 v2, {L_NONCE}\nds_write_b32 v2, v60")
A.label("L_b0")
TS(2)
A("s_waitcnt lgkmcnt(0)")
A(f"s_cmp_ge_u32 s{sW}, 2\ns_cbranch_scc1 L_vwave")

GW = 144; OWN = 128
def kv_unit(u, isK):
    slot = u % 5
    for st in range(4):
        for qb in range(2):
            b = XF + 8 * st + 4 * qb
            A(f"ds_read_b128 v[{b}:{b+3}], v{vXA+st} offset:{u*8192 + qb*4096}")
        for j in range(2):
            r, o = wa(slot, st * 4096 + j * 512)
            A(f"ds_read_b64_tr_b16 v[{WF+4*st+2*j}:{WF+4*st+2*j+1}], v{r} offset:{o}")
    for st in range(4):
        A(f"s_waitcnt lgkmcnt({12-4*st})")
        for qb in range(2):
            b = XF + 8 * st + 4 * qb
            xf = f"v[{b}:{b+3}]"; wf = f"v[{WF+4*st}:{WF+4*st+3}]"
            acc = f"v[{ACC+16*qb}:{ACC+16*qb+15}]"
            A(f"v_mfma_f32_32x32x16_bf16 {acc}, {wf if isK else xf}, {xf if isK else wf}, {acc}")
            for j in range(2):
                jj = 2 * qb + j
                cs = vCS0 if j == 0 else vCS1
                A(f"v_dot2_f32_bf16 v{cs}, v{WF+4*st+jj}, s{sONES}, v{cs}")

def get_nonce():
    A(f"v_mov_b32 v2, {L_NONCE}\nds_read_b32 v3, v2\ns_waitcnt lgkmcnt(0)\nv_readfirstlane_b32 s{sNONCE}, v3")

def sib_issue():
    A(f"""buffer_load_dwordx4 v[{ST0}:{ST0+3}], v108, s[{SWS}:{SWS+3}], s30 offen sc1
buffer_load_dwordx4 v[{ST1}:{ST1+3}], v108, s[{SWS}:{SWS+3}], s30 offen offset:512 sc1""")
def sib_setup():
    A(f"""v_and_b32 v2, 31, v{vL}
v_lshlrev_b32 v108, 4, v2
s_lshl_b32 s30, s{sI}, 10
s_add_u32 s30, s30, {WS_STATS}""")
def sib_check(first_wait):
    lb = A.newlabel("L_sib"); lb2 = A.newlabel("L_sib_ok")
    chk = f"v_xor_b32 v2, s{sNONCE}, v{ST0+3}\nv_xor_b32 v3, s{sNONCE}, v{ST1+3}\nv_or_b32 v2, v2, v3\nv_cmp_ne_u32 vcc, 0, v2"
    A(f"s_waitcnt vmcnt({first_wait})"); A(chk); A(f"s_cbranch_vccz {lb2}")
    A.label(lb)
    sib_issue(); A("s_waitcnt vmcnt(0)"); A(chk)
    retry_check(lb)
    A.label(lb2)
def gw_issue():
    A(f"""v_lshrrev_b32 v2, 3, v{vL}
v_mul_u32_u24 v3, 2752, v2
v_and_b32 v4, 7, v{vL}
v_lshl_add_u32 v109, v4, 4, v3
s_and_b32 s31, s{sP}, 7
s_lshl_b32 s31, s31, 6
s_lshl_b32 s32, s{sW}, 4
s_add_u32 s31, s31, s32
s_mul_i32 s31, s31, 2752
s_lshr_b32 s32, s{sP}, 3
s_lshl_b32 s32, s32, 7
s_add_u32 s31, s31, s32
s_cmp_ge_u32 s{sP}, 176
s_cselect_b32 s31, 0x40000000, s31
s_add_u32 s32, s31, {8*2752}
buffer_load_dwordx4 v[{GW}:{GW+3}], v109, s[{SWG}:{SWG+3}], s31 offen
buffer_load_dwordx4 v[{GW+4}:{GW+7}], v109, s[{SWU}:{SWU+3}], s31 offen
buffer_load_dwordx4 v[{GW+8}:{GW+11}], v109, s[{SWG}:{SWG+3}], s32 offen
buffer_load_dwordx4 v[{GW+12}:{GW+15}], v109, s[{SWU}:{SWU+3}], s32 offen""")

def kv_store_setup():
    A(f"""s_lshl_b32 s33, s{sP}, 14
s_add_u32 s33, s33, {WS_KV}
s_lshl_b32 s34, s{sP}, 12
s_add_u32 s34, s34, {WS_KVC}""")

for u in range(8):
    A("s_barrier")
    if u == 0:
        get_nonce()
        lb = A.newlabel("L_nopub")
        A(f"s_cmp_lg_u32 s{sW}, 0\ns_cbranch_scc1 {lb}")
        A(f"""v_and_b32 v2, 7, v{vL}
v_lshlrev_b32 v2, 4, v2
v_add_u32 v3, {L_ST}, v2
ds_read_b96 v[8:10], v3
v_mov_b32 v11, s{sNONCE}
s_lshl_b32 s20, s{sP}, 7
s_add_u32 s20, s20, {WS_STATS}
s_lshl_b32 s21, s{sP}, 3
s_add_u32 s21, s21, {WS_BEST}
s_mov_b64 exec, 0xff
s_waitcnt lgkmcnt(0)
buffer_store_dwordx4 v[8:11], v2, s[{SWS}:{SWS+3}], s20 offen sc1
v_mov_b32 v12, v10""")
        for m in ("quad_perm:[1,0,3,2]", "quad_perm:[2,3,0,1]", "row_half_mirror"):
            A(f"v_max_u32_dpp v12, v12, v12 {m} row_mask:0xf bank_mask:0xf")
        A(f"""v_mov_b32 v13, s{sNONCE}
s_mov_b64 exec, 1
buffer_store_dwordx2 v[12:13], v6, s[{SWS}:{SWS+3}], s21 offen sc1
s_mov_b64 exec, -1""")
        A.label(lb)
    kv_unit(u, True)
    if u == 4:
        sib_setup(); sib_issue()
        lb = A.newlabel("L_nb")
        A(f"s_cmp_lg_u32 s{sW}, 1\ns_cbranch_scc1 {lb}")
        A(f"""v_lshlrev_b32 v110, 4, v{vL}
s_mov_b32 s35, {WS_BEST}
buffer_load_dwordx4 v[8:11], v110, s[{SWS}:{SWS+3}], s35 offen sc1
buffer_load_dwordx4 v[12:15], v110, s[{SWS}:{SWS+3}], s35 offen offset:1024 sc1""")
        A.label(lb)
    if u == 5:
        lb = A.newlabel("L_nb"); lr = A.newlabel("L_br"); lo = A.newlabel("L_bok")
        A(f"s_cmp_lg_u32 s{sW}, 1\ns_cbranch_scc1 {lb}")
        chk = f"""v_xor_b32 v2, s{sNONCE}, v9
v_xor_b32 v3, s{sNONCE}, v11
v_or_b32 v2, v2, v3
v_xor_b32 v3, s{sNONCE}, v13
v_or_b32 v2, v2, v3
v_xor_b32 v3, s{sNONCE}, v15
v_or_b32 v2, v2, v3
v_cmp_ne_u32 vcc, 0, v2"""
        A("s_waitcnt vmcnt(0)"); A(chk); A(f"s_cbranch_vccz {lo}")
        A.label(lr)
        A(f"""buffer_load_dwordx4 v[8:11], v110, s[{SWS}:{SWS+3}], s35 offen sc1
buffer_load_dwordx4 v[12:15], v110, s[{SWS}:{SWS+3}], s35 offen offset:1024 sc1
s_waitcnt vmcnt(0)""")
        A(chk); retry_check(lr)
        A.label(lo)
        A("v_max3_u32 v8, v8, v10, v12\nv_max_u32 v8, v8, v14")
        allreduce32(8, 9, "v_max_u32")
        A(f"""v_mov_b32 v9, v8
v_permlane32_swap_b32 v8, v9
v_max_u32 v8, v8, v9
v_mov_b32 v2, {L_IDX}
v_readfirstlane_b32 s{sKEY}, v8
ds_write_b32 v2, v8
s_and_b32 s36, s{sKEY}, 0x7ff
s_sub_u32 s36, 2047, s36
s_lshl_b32 s37, s36, 4
s_add_u32 s37, s37, {WS_STATS}
s_lshl_b32 s36, s36, 10
s_and_b32 s38, s{sP}, 7
s_lshl_b32 s38, s38, 7
s_add_u32 s36, s36, s38
v_and_b32 v110, 31, v{vL}
v_lshlrev_b32 v110, 2, v110
buffer_load_dword v16, v110, s[{SX}:{SX+3}], s36 offen
buffer_load_dwordx4 v[12:15], v6, s[{SWS}:{SWS+3}], s37 offen sc1""")
        A.label(lb)
        gw_issue()
TS(3)
kv_store_setup()
sib_check(4)
corr_w(WF); corr_x(XF, ST0); corr_x(XF + 4, ST1)
for qb in range(2):
    acc = f"v[{ACC+16*qb}:{ACC+16*qb+15}]"
    A(f"v_mfma_f32_32x32x16_bf16 {acc}, v[{WF}:{WF+3}], v[{XF+4*qb}:{XF+4*qb+3}], {acc}")
vKA, vKC = 111, 112
A(f"""s_lshl_b32 s20, s27, 11
v_lshlrev_b32 v{vKA}, 4, v{vL}
v_add_u32 v{vKA}, s20, v{vKA}
v_lshrrev_b32 v{vKC}, 2, v{vKA}
s_add_u32 s35, s33, 4096""")
for qb in range(2):
    st = ST0 if qb == 0 else ST1
    for r in range(16): A(f"v_mul_f32 v{ACC+16*qb+r}, v{ACC+16*qb+r}, v{st+1}")
    for k in range(8): A(f"v_cvt_pk_bf16_f32 v{OWN+8*qb+k}, v{ACC+16*qb+2*k}, v{ACC+16*qb+2*k+1}")
    for e in range(2):
        b = OWN + 8 * qb + 4 * e; c_ = XF + 8 + 2 * qb + e
        A(f"buffer_store_dwordx4 v[{b}:{b+3}], v{vKA}, s[{SWS}:{SWS+3}], s{33 if qb == 0 else 35} offen offset:{e*1024} sc1")
        A(f"v_add3_u32 v{c_}, v{b}, v{b+1}, v{b+2}\nv_add3_u32 v{c_}, v{c_}, v{b+3}, s{sNONCE}")
        A(f"buffer_store_dword v{c_}, v{vKC}, s[{SWS}:{SWS+3}], s34 offen offset:{qb*1024+e*256} sc1")
TS(4)
A("s_mov_b32 s39, 1024")
A("s_branch L_cpost")

A.label("L_vwave")
for u in range(8):
    A("s_barrier")
    if u == 0: get_nonce()
    kv_unit(u, False)
    if u == 4:
        sib_setup(); sib_issue()
    if u == 5:
        gw_issue()
TS(3)
kv_store_setup()
sib_check(4)
A(f"""s_lshl_b32 s20, s27, 8
s_add_u32 s20, s20, {L_RINV}
v_lshrrev_b32 v5, 2, v108
v_add_u32 v5, s20, v5
ds_write_b32 v5, v{ST0+1}
ds_write_b32 v5, v{ST1+1} offset:128
v_lshrrev_b32 v5, 5, v{vL}
v_lshlrev_b32 v5, 4, v5
v_add_u32 v5, s20, v5""")
RI = 8
for qb in range(2):
    for a in range(4):
        b = RI + 16 * qb + 4 * a
        A(f"ds_read_b128 v[{b}:{b+3}], v5 offset:{qb*128 + a*32}")
corr_w(WF); corr_x(XF, ST0); corr_x(XF + 4, ST1)
for qb in range(2):
    acc = f"v[{ACC+16*qb}:{ACC+16*qb+15}]"
    A(f"v_mfma_f32_32x32x16_bf16 {acc}, v[{XF+4*qb}:{XF+4*qb+3}], v[{WF}:{WF+3}], {acc}")
A(f"""v_and_b32 v2, 15, v{vL}
v_lshrrev_b32 v3, 5, v{vL}
v_lshl_add_u32 v2, v3, 4, v2
v_bfe_u32 v3, v{vL}, 4, 1
s_lshl_b32 s20, s27, 1
v_add_u32 v3, s20, v3
v_lshlrev_b32 v{vKA}, 4, v2
v_lshl_add_u32 v{vKA}, v3, 10, v{vKA}
v_add_u32 v{vKA}, 8192, v{vKA}
v_lshlrev_b32 v{vKC}, 2, v2
v_lshl_add_u32 v{vKC}, v3, 7, v{vKC}
s_add_u32 s35, s33, 4096
s_waitcnt lgkmcnt(0)""")
for qb in range(2):
    for r in range(16): A(f"v_mul_f32 v{ACC+16*qb+r}, v{ACC+16*qb+r}, v{RI+16*qb+r}")
    for k in range(8): A(f"v_cvt_pk_bf16_f32 v{OWN+8*qb+k}, v{ACC+16*qb+2*k}, v{ACC+16*qb+2*k+1}")
    b = OWN + 8 * qb; c_ = XF + 8 + qb
    for g in range(2):
        A(f"buffer_store_dwordx4 v[{b+4*g}:{b+4*g+3}], v{vKA}, s[{SWS}:{SWS+3}], s{33 if qb == 0 else 35} offen offset:{g*512} sc1")
    A(f"""v_add3_u32 v{c_}, v{b}, v{b+1}, v{b+2}
v_add3_u32 v{c_}, v{c_}, v{b+3}, v{b+4}
v_add3_u32 v{c_}, v{c_}, v{b+5}, v{b+6}
v_add3_u32 v{c_}, v{c_}, v{b+7}, s{sNONCE}
buffer_store_dword v{c_}, v{vKC}, s[{SWS}:{SWS+3}], s34 offen offset:{2048+qb*512} sc1""")
TS(4)
A("s_mov_b32 s39, 512")

A.label("L_cpost")
vPM, vPR = 248, 249
A(f"""s_cmp_ge_u32 s{sC}, 4
s_cselect_b64 s[20:21], -1, 0
v_cndmask_b32_e64 v{vPM}, v{ST0}, v{ST1}, s[20:21]
v_cndmask_b32_e64 v{vPR}, v{ST0+1}, v{ST1+1}, s[20:21]
v_lshrrev_b32 v2, 3, v{vL}
v_and_b32 v3, 7, v{vL}
v_bfe_u32 v4, v{vL}, 4, 1
v_lshlrev_b32 v4, 2, v4
v_xor_b32 v3, v3, v4
v_lshlrev_b32 v3, 4, v3
v_lshl_add_u32 v3, v2, 7, v3
s_lshl_b32 s20, s{sW}, 12
s_add_u32 s20, s20, {L_GW}
v_add_u32 v113, s20, v3""")
A("s_barrier")
A("s_waitcnt vmcnt(6)")
for k in range(4):
    A(f"ds_write_b128 v113, v[{GW+4*k}:{GW+4*k+3}] offset:{k*1024}")
lb = A.newlabel("L_nx"); lr = A.newlabel("L_xr"); lo = A.newlabel("L_xok")
A(f"s_cmp_lg_u32 s{sW}, 1\ns_cbranch_scc1 {lb}")
A(f"v_cmp_ne_u32 vcc, s{sNONCE}, v15\ns_cbranch_vccz {lo}")
A.label(lr)
A(f"buffer_load_dwordx4 v[12:15], v6, s[{SWS}:{SWS+3}], s37 offen sc1\ns_waitcnt vmcnt(0)\nv_cmp_ne_u32 vcc, s{sNONCE}, v15")
retry_check(lr)
A.label(lo)
A(f"""v_lshlrev_b32 v2, 16, v16
v_and_b32 v3, 0xffff0000, v16
v_sub_f32 v2, v2, v12
v_sub_f32 v3, v3, v12
v_cvt_pk_bf16_f32 v4, v2, v3
v_lshlrev_b32 v2, 16, v4
v_and_b32 v3, 0xffff0000, v4
v_mul_f32 v2, v2, v13
v_mul_f32 v3, v3, v13
v_cvt_pk_bf16_f32 v4, v2, v3
v_add_u32 v110, {L_XSEL}, v110
ds_write_b32 v110, v4""")
A.label(lb)
A("s_waitcnt lgkmcnt(0)\ns_barrier")
A(f"""v_add_u32 v2, {L_OWN}, v{vKA}
v_add_u32 v3, s39, v2
ds_write_b128 v2, v[{OWN}:{OWN+3}]
ds_write_b128 v3, v[{OWN+4}:{OWN+7}]
ds_write_b128 v2, v[{OWN+8}:{OWN+11}] offset:4096
ds_write_b128 v3, v[{OWN+12}:{OWN+15}] offset:4096""")
lb = A.newlabel("L_nog")
A(f"s_cmp_ge_u32 s{sW}, 2\ns_cbranch_scc1 {lb}\ns_cmp_ge_u32 s{sP}, 176\ns_cbranch_scc1 {lb}")
A(f"""v_lshrrev_b32 v2, 5, v{vL}
v_lshlrev_b32 v2, 4, v2
v_add_u32 v2, {L_XSEL}, v2""")
for st in range(4):
    A(f"ds_read_b128 v[{WF+4*st}:{WF+4*st+3}], v2 offset:{st*32}")
for m in range(2):
    for st in range(4):
        for j in range(2):
            b = XF + 16 * m + 4 * st + 2 * j
            A(f"ds_read_b64_tr_b16 v[{b}:{b+1}], v{vWA0} offset:{2*16384 + m*1024 + st*4096 + j*512}")
A(f"""s_and_b32 s20, s{sP}, 7
s_mul_i32 s20, s20, {1408*16}
s_lshr_b32 s21, s{sP}, 3
s_lshl_b32 s21, s21, 10
s_add_u32 s20, s20, s21
s_lshl_b32 s21, s{sW}, 9
s_add_u32 s20, s20, s21
s_add_u32 s20, s20, {WS_GP}
s_waitcnt lgkmcnt(0)""")
for st in range(4):
    for m in range(2):
        acc = f"v[{ACC+16*m}:{ACC+16*m+15}]"
        b = XF + 16 * m + 4 * st
        A(f"v_mfma_f32_32x32x16_bf16 {acc}, v[{WF+4*st}:{WF+4*st+3}], v[{b}:{b+3}], {acc if st else 0}")
A(f"""v_mov_b32 v{ST0}, v{ACC}
v_mov_b32 v{ST0+1}, v{ACC+16}
v_mov_b32 v{ST0+2}, s{sNONCE}
v_mov_b32 v{ST0+3}, s{sNONCE}
s_mov_b64 exec, 0xffffffff
buffer_store_dwordx4 v[{ST0}:{ST0+3}], v108, s[{SWS}:{SWS+3}], s20 offen sc1
s_mov_b64 exec, -1""")
A.label(lb)
A(f"s_mov_b32 s{sHH}, s{sW}\ns_mov_b32 s{sROLE}, 0")

A.label("L_join")
TS(5)
SL = 8
def Kf(k): return f"v[{SL+12*k}:{SL+12*k+3}]"
def Vf(k, g): return f"v[{SL+12*k+4+4*g}:{SL+12*k+7+4*g}]"
KC, VC = 80, 84
QF = 88; NM = 96; OA = 128; SB = 160; WD = 208; MK = 232
vM0, vM1 = 240, 241
vRK, vRV, vRKC, vRVC = 242, 243, 244, 245
vWO = 250
A(f"s_load_dwordx2 s[{SWD}:{SWD+1}], s[0:1], 56\ns_load_dwordx2 s[{SOUT}:{SOUT+1}], s[0:1], 64\ns_load_dwordx2 s[{SWO}:{SWO+1}], s[0:1], 16")
A(f"""s_sub_u32 s20, 3, s{sROLE}
s_cmp_eq_u32 s{sROLE}, 0
s_cselect_b32 s21, 4, 1
s_sub_u32 s22, s{sI}, s20
s_lshl_b32 s22, s22, 3
s_add_u32 s22, s22, s{sC}
s_cmp_ge_u32 s{sI}, s20
s_cselect_b32 s{sH1}, -1, 0
s_cselect_b32 s22, s22, 0x10000
s_sub_u32 s23, s{sI}, s21
s_lshl_b32 s23, s23, 3
s_add_u32 s23, s23, s{sC}
s_cmp_ge_u32 s{sI}, s21
s_cselect_b32 s{sH2}, -1, 0
s_cselect_b32 s23, s23, 0x10000
s_lshl_b32 s24, s22, 14
s_add_u32 s24, s24, {WS_KV}
s_add_u32 s25, s24, 4096
s_lshl_b32 s26, s23, 14
s_add_u32 s26, s26, {WS_KV}
s_add_u32 s27, s26, 4096
s_lshl_b32 s28, s22, 12
s_add_u32 s28, s28, {WS_KVC}
s_lshl_b32 s29, s23, 12
s_add_u32 s29, s29, {WS_KVC}
s_lshl_b32 s20, s{sHH}, 10
v_lshlrev_b32 v{vRK}, 4, v{vL}
v_add_u32 v{vRK}, s20, v{vRK}
v_lshrrev_b32 v{vRKC}, 2, v{vRK}
v_and_b32 v2, 15, v{vL}
v_lshrrev_b32 v3, 5, v{vL}
v_lshl_add_u32 v2, v3, 4, v2
v_lshlrev_b32 v{vRV}, 4, v2
s_add_u32 s21, s20, 8192
v_add_u32 v{vRV}, s21, v{vRV}
v_lshlrev_b32 v{vRVC}, 2, v2
s_lshl_b32 s21, s{sHH}, 7
s_add_u32 s21, s21, 2048
v_add_u32 v{vRVC}, s21, v{vRVC}
s_mov_b32 s{sVM}, 0x0000ffff
s_mov_b32 s{sVM+1}, 0x0000ffff""")
for k in range(6):
    for r in range(8): A(f"v_mov_b32 v{SL+12*k+4+r}, 0x3f803f80")
def k_issue():
    for k in range(4):
        A(f"buffer_load_dwordx4 {Kf(k)}, v{vRK}, s[{SWS}:{SWS+3}], s{24+k} offen sc1")
    for k in range(4):
        A(f"buffer_load_dword v{KC+k}, v{vRKC}, s[{SWS}:{SWS+3}], s{28+k//2} offen offset:{(k%2)*1024} sc1")
def v_issue():
    A(f"s_mov_b64 exec, s[{sVM}:{sVM+1}]")
    for k in range(4):
        for g in range(2):
            A(f"buffer_load_dwordx4 {Vf(k,g)}, v{vRV}, s[{SWS}:{SWS+3}], s{24+k} offen offset:{g*512} sc1")
    for k in range(4):
        A(f"buffer_load_dword v{VC+k}, v{vRVC}, s[{SWS}:{SWS+3}], s{28+k//2} offen offset:{(k%2)*512} sc1")
    A("s_mov_b64 exec, -1")
k_issue(); v_issue()
A("s_waitcnt lgkmcnt(0)\ns_barrier")
srd(SWD, 1376 * 1024); srd(SOUT, 2048 * 1024); srd(SWO, 512 * 1024)
A(f"""s_lshl_b32 s20, s{sROLE}, 12
s_add_u32 s21, s20, {L_QF}
s_xor_b32 s20, s20, 4096
s_add_u32 s20, s20, {L_QF}
v_add_u32 v2, s21, v{vRK}
v_add_u32 v3, s20, v{vRK}
ds_read_b128 v[{QF}:{QF+3}], v2
ds_read_b128 v[{QF+4}:{QF+7}], v3
v_mov_b32 v4, {L_IDX}
ds_read_b32 v5, v4""")
lb = A.newlabel("L_noown")
A(f"s_cmp_lg_u32 s{sROLE}, 0\ns_cbranch_scc1 {lb}")
A(f"""v_add_u32 v2, {L_OWN}, v{vRK}
v_add_u32 v3, {L_OWN}, v{vRV}
ds_read_b128 {Kf(4)}, v2
ds_read_b128 {Kf(5)}, v2 offset:4096
s_mov_b64 exec, s[{sVM}:{sVM+1}]
ds_read_b128 {Vf(4,0)}, v3
ds_read_b128 {Vf(4,1)}, v3 offset:512
ds_read_b128 {Vf(5,0)}, v3 offset:4096
ds_read_b128 {Vf(5,1)}, v3 offset:4608
s_mov_b64 exec, -1""")
A(f"""v_and_b32 v2, 31, v{vL}
v_lshrrev_b32 v3, 5, v{vL}
v_lshlrev_b32 v3, 2, v3
v_sub_u32 v2, v2, v3
v_mov_b32 v{SB}, -1
v_mov_b32 v{SB+1}, -1""")
for k in range(8):
    j0 = 8 * (k // 2) + 2 * (k % 2)
    A(f"""v_add_u32 v3, {1 - j0}, v2
v_med3_i32 v3, v3, 0, 2
v_lshlrev_b32 v3, 4, v3
v_lshlrev_b64 v[{SB+2}:{SB+3}], v3, v[{SB}:{SB+1}]
v_mov_b32 v{MK+k}, v{SB+2}""")
A.label(lb)
A(f"""v_lshrrev_b32 v2, 4, v{vL}
v_and_b32 v3, 15, v{vL}
v_lshlrev_b32 v4, 2, v2
v_xor_b32 v3, v3, v4
v_lshlrev_b32 v3, 4, v3
v_lshl_add_u32 v{vWO}, v2, 10, v3
v_add_u32 v{vWO+1}, 3072, v{vWO}
v_add_u32 v{vWO+2}, 6144, v{vWO}
v_add_u32 v{vWO+3}, 9216, v{vWO}
s_lshl_b32 s{sWOD}, s{sW}, 16
s_and_b32 s20, s{sC}, 3
s_lshl_b32 s20, s20, 8
s_add_u32 s{sWOD}, s{sWOD}, s20
s_lshl_b32 s{sM0}, s{sW}, 14
v_mov_b32 v{vM0}, {f32(-1e30)}
v_mov_b32 v{vM1}, {f32(-1e30)}
s_waitcnt lgkmcnt(0)
v_readfirstlane_b32 s{sKEY}, v5
s_barrier""")
TS(6)
if STOP == "p1":
    A("s_branch L_end")

def wo_dma4():
    A(f"s_mov_b32 m0, s{sM0}\ns_add_u32 s{sM0}, s{sM0}, 4096")
    for k in range(4):
        A(f"buffer_load_dwordx4 v{vWO+k}, s[{SWO}:{SWO+3}], s{sWOD} offen offset:{k*1024} lds")
    A(f"s_add_u32 s{sWOD}, s{sWOD}, 16384")

def k_check():
    for k in range(4):
        b = SL + 12 * k
        A(f"v_add3_u32 v{2+k}, v{b}, v{b+1}, v{b+2}\nv_add3_u32 v{2+k}, v{2+k}, v{b+3}, s{sNONCE}\nv_xor_b32 v{2+k}, v{2+k}, v{KC+k}")
    A(f"""v_or_b32 v2, v2, v3
v_or_b32 v4, v4, v5
v_and_b32 v2, s{sH1}, v2
v_and_b32 v4, s{sH2}, v4
v_or_b32 v2, v2, v4
v_cmp_ne_u32 vcc, 0, v2""")
def v_check():
    A(f"s_mov_b64 exec, s[{sVM}:{sVM+1}]")
    for k in range(4):
        b = SL + 12 * k + 4
        A(f"""v_add3_u32 v{2+k}, v{b}, v{b+1}, v{b+2}
v_add3_u32 v{2+k}, v{2+k}, v{b+3}, v{b+4}
v_add3_u32 v{2+k}, v{2+k}, v{b+5}, v{b+6}
v_add3_u32 v{2+k}, v{2+k}, v{b+7}, s{sNONCE}
v_xor_b32 v{2+k}, v{2+k}, v{VC+k}""")
    A(f"""v_or_b32 v2, v2, v3
v_or_b32 v4, v4, v5
v_and_b32 v2, s{sH1}, v2
v_and_b32 v4, s{sH2}, v4
v_or_b32 v2, v2, v4
v_cmp_ne_u32 vcc, 0, v2
s_mov_b64 exec, -1""")
lr = A.newlabel("L_kr"); lo = A.newlabel("L_kok")
A("s_waitcnt vmcnt(12)")
k_check()
A(f"s_cbranch_vccz {lo}")
A.label(lr)
k_issue(); v_issue()
A("s_waitcnt vmcnt(12)")
k_check()
retry_check(lr)
A.label(lo)
TS(7)

def Q(q): return f"v[{QF+4*q}:{QF+4*q+3}]"
def buf(b): return f"v[{b}:{b+15}]"
def smfma(dst, k, q, c): A(f"v_mfma_f32_32x32x16_bf16 {buf(dst)}, {Kf(k)}, {Q(q)}, {c}")
def maxblk(b, q):
    m = vM0 if q == 0 else vM1
    for r in range(0, 16, 2): A(f"v_max3_f32 v{m}, v{b+r}, v{b+r+1}, v{m}")
T4 = [NM, NM + 16, OA, OA + 16]
def seg_max(k0):
    jobs = [(k0, 0), (k0, 1), (k0 + 1, 0), (k0 + 1, 1)]
    for t, (k, q) in zip(T4, jobs): smfma(t, k, q, 0)
    for t, (k, q) in zip(T4, jobs): maxblk(t, q)
lb = A.newlabel("L_p1a")
A(f"s_cmp_eq_u32 s{sH1}, 0\ns_cbranch_scc1 {lb}")
seg_max(0)
A.label(lb)
A(f"s_cmp_eq_u32 s{sROLE}, 0\ns_cbranch_scc1 L_p1A")
A(f"s_cmp_eq_u32 s{sH2}, 0\ns_cbranch_scc1 L_p1done")
seg_max(2)
A("s_branch L_p1done")
A.label("L_p1A")
MA0, MA1 = SB + 16, SB + 32
smfma(MA0, 4, 0, 0); smfma(MA1, 5, 1, 0); smfma(T4[0], 4, 1, 0)
lb = A.newlabel("L_p1n2"); lb2 = A.newlabel("L_p1m")
A(f"s_cmp_eq_u32 s{sH2}, 0\ns_cbranch_scc1 {lb}")
smfma(T4[1], 2, 0, 0); smfma(T4[2], 3, 1, 0); smfma(T4[3], 3, 0, 0)
maxblk(T4[0], 1); maxblk(T4[3], 0)
A(f"s_branch {lb2}")
A.label(lb)
for r in range(16): A(f"v_mov_b32 v{T4[1]+r}, {f32(-1e30)}\nv_mov_b32 v{T4[2]+r}, {f32(-1e30)}")
maxblk(T4[0], 1)
A.label(lb2)
for r in range(16):
    j0 = 8 * (r // 4) + r % 4
    A(f"s_lshl_b32 s20, -1, {j0}\ns_lshl_b32 s21, -1, {j0+4}")
    A(f"v_cndmask_b32_e64 v{MA0+r}, v{T4[1]+r}, v{MA0+r}, s[20:21]")
    A(f"v_cndmask_b32_e64 v{MA1+r}, v{T4[2]+r}, v{MA1+r}, s[20:21]")
maxblk(MA0, 0); maxblk(MA1, 1)
A.label("L_p1done")
for m in (vM0, vM1):
    A(f"v_mov_b32 v2, v{m}\nv_permlane32_swap_b32 v{m}, v2\nv_max_f32 v{m}, v{m}, v2")
for q, m in enumerate((vM0, vM1)):
    for r in range(16): A(f"v_sub_f32 v{NM+16*q+r}, 0, v{m}")
for r in range(32): A(f"v_mov_b32 v{OA+r}, 0")
TS(8)
lr = A.newlabel("L_vr"); lo = A.newlabel("L_vok")
A("s_waitcnt vmcnt(0)")
v_check()
A(f"s_cbranch_vccz {lo}")
A.label(lr)
v_issue()
A("s_waitcnt vmcnt(0)")
v_check()
retry_check(lr)
A.label(lo)
lb = A.newlabel("L_nowd")
A(f"s_cmp_ge_u32 s{sI}, 4\ns_cbranch_scc1 {lb}")
A(f"""s_mul_i32 s20, s{sP}, 43
s_add_u32 s20, s20, s{sW}
s_lshl_b32 s20, s20, 10
v_lshlrev_b32 v2, 4, v{vL}""")
for j in range(6):
    A(f"buffer_load_dwordx4 v[{WD+4*j}:{WD+4*j+3}], v2, s[{SWD}:{SWD+3}], s20 offen\ns_add_u32 s20, s20, 8192")
A.label(lb)
TS(9)
def nm(q): return buf(NM + 16 * q)
def expcvt(b):
    for r in range(16): A(f"v_exp_f32 v{b+r}, v{b+r}")
    for k in range(8): A(f"v_cvt_pk_bf16_f32 v{b+k}, v{b+2*k}, v{b+2*k+1}")
def pv(b, k, q):
    for g in range(2):
        A(f"v_mfma_f32_32x32x16_bf16 {buf(OA+16*q)}, {Vf(k,g)}, v[{b+4*g}:{b+4*g+3}], {buf(OA+16*q)}")
def run_blocks(jobs, bufs, dma_at):
    n = len(jobs)
    smfma(bufs[0], jobs[0][0], jobs[0][1], nm(jobs[0][1]))
    for t in range(n):
        if t + 1 < n:
            k, q = jobs[t + 1]
            smfma(bufs[(t + 1) % len(bufs)], k, q, nm(q))
        b = bufs[t % len(bufs)]
        expcvt(b)
        pv(b, jobs[t][0], jobs[t][1])
        if t in dma_at: wo_dma4()
A(f"s_cmp_eq_u32 s{sROLE}, 0\ns_cbranch_scc1 L_p2A")
lb = A.newlabel("L_p2b")
A(f"s_cmp_eq_u32 s{sH2}, 0\ns_cbranch_scc1 {lb}")
run_blocks([(2, 0), (2, 1), (3, 0), (3, 1)], [SB, SB + 16, SB + 32], (0, 2))
A("s_branch L_p2seg0")
A.label(lb)
wo_dma4(); wo_dma4()
A("s_branch L_p2seg0")
A.label("L_p2A")
smfma(SB, 4, 1, nm(1))
for (ma, q, kd, ko) in ((MA0, 0, 4, 2), (MA1, 1, 5, 3)):
    for r in range(16): A(f"v_add_f32 v{ma+r}, v{ma+r}, v{NM+16*q}")
    expcvt(ma)
    for k in range(8): A(f"v_and_b32 v{ma+8+k}, v{ma+k}, v{MK+k}")
    for k in range(8): A(f"v_xor_b32 v{ma+k}, v{ma+k}, v{ma+8+k}")
    pv(ma + 8, ko, q); pv(ma, kd, q)
    wo_dma4()
lb = A.newlabel("L_p2n2")
A(f"s_cmp_eq_u32 s{sH2}, 0\ns_cbranch_scc1 {lb}")
smfma(MA0, 3, 0, nm(0))
expcvt(SB); pv(SB, 4, 1)
expcvt(MA0); pv(MA0, 3, 0)
A("s_branch L_p2seg0")
A.label(lb)
expcvt(SB); pv(SB, 4, 1)
A.label("L_p2seg0")
lb = A.newlabel("L_p2c"); lb2 = A.newlabel("L_p2d")
A(f"s_cmp_eq_u32 s{sH1}, 0\ns_cbranch_scc1 {lb}")
run_blocks([(0, 0), (0, 1), (1, 0), (1, 1)], [SB + 32, SB, SB + 16], (0, 2))
A(f"s_branch {lb2}")
A.label(lb)
wo_dma4(); wo_dma4()
A.label(lb2)
TS(10)
A(f"""s_xor_b32 s20, s{sW}, 4
s_lshl_b32 s20, s20, 12
s_add_u32 s20, s20, {L_TAIL}
s_lshl_b32 s21, s{sW}, 12
s_add_u32 s21, s21, {L_TAIL}
v_lshlrev_b32 v2, 4, v{vL}
v_add_u32 v3, s20, v2
v_add_u32 v246, s21, v2
v_mov_b32 v{OA+25}, v{vM1}
ds_write_b128 v3, v[{OA+16}:{OA+19}]
ds_write_b128 v3, v[{OA+20}:{OA+23}] offset:1024
ds_write_b64 v3, v[{OA+24}:{OA+25}] offset:2048
s_waitcnt vmcnt(0) lgkmcnt(0)
s_barrier
ds_read_b64 v[{SB+8}:{SB+9}], v246 offset:2048
ds_read_b128 v[{SB}:{SB+3}], v246
ds_read_b128 v[{SB+4}:{SB+7}], v246 offset:1024
s_lshl_b32 s20, s{sI}, 1
s_add_u32 s20, s20, s{sROLE}
s_lshl_b32 s20, s20, 3
s_add_u32 s20, s20, s{sC}
s_lshl_b32 s21, s20, 10
s_add_u32 s21, s21, {WS_OC}
s_lshl_b32 s20, s20, 12
s_add_u32 s20, s20, {WS_O}
s_lshl_b32 s22, s{sHH}, 2
v_add_u32 v5, s22, v2
s_waitcnt lgkmcnt(2)
v_max_f32 v3, v{vM0}, v{SB+9}
v_sub_f32 v4, v{vM0}, v3
v_sub_f32 v3, v{SB+9}, v3
v_exp_f32 v4, v4
v_exp_f32 v3, v3
v_mul_f32 v6, v4, v{OA+8}
v_fmac_f32 v6, v3, v{SB+8}
v_rcp_f32 v6, v6
v_mul_f32 v4, v4, v6
v_mul_f32 v3, v3, v6
v_mov_b32 v6, 0
s_waitcnt lgkmcnt(0)""")
for r in range(8): A(f"v_mul_f32 v{OA+r}, v{OA+r}, v4\nv_fmac_f32 v{OA+r}, v{SB+r}, v3")
for k in range(4): A(f"v_cvt_pk_bf16_f32 v{SB+12+k}, v{OA+2*k}, v{OA+2*k+1}")
A(f"""buffer_store_dwordx4 v[{SB+12}:{SB+15}], v{vRK}, s[{SWS}:{SWS+3}], s20 offen sc1
v_add3_u32 v4, v{SB+12}, v{SB+13}, v{SB+14}
v_add3_u32 v4, v4, v{SB+15}, s{sNONCE}
buffer_store_dword v4, v5, s[{SWS}:{SWS+3}], s21 offen sc1""")
TS(11)

A(f"s_cmp_ge_u32 s{sI}, 4\ns_cbranch_scc1 L_nod")
L_DG = L_TAIL + 3072
A(f"""s_mul_i32 s20, s{sW}, {1408*16}
s_mul_i32 s21, s{sP}, {43*16}
s_add_u32 s20, s20, s21
s_add_u32 s20, s20, {WS_GP}
v_min_u32 v3, 42, v{vL}
v_lshlrev_b32 v3, 4, v3""")
lr = A.newlabel("L_gr")
A.label(lr)
A(f"buffer_load_dwordx4 v[8:11], v3, s[{SWS}:{SWS+3}], s20 offen sc1\ns_waitcnt vmcnt(0)\nv_cmp_ne_u32 vcc, s{sNONCE}, v10")
retry_check(lr)
A(f"""v_lshlrev_b32 v4, 3, v{vL}
s_lshl_b32 s21, s{sW}, 12
s_add_u32 s21, s21, {L_DG}
v_add_u32 v5, s21, v4
ds_write_b64 v5, v[8:9]
v_add_u32 v4, {L_DG}, v4
s_waitcnt lgkmcnt(0)
s_barrier""")
for k in range(8): A(f"ds_read_b64 v[{16+2*k}:{17+2*k}], v4 offset:{k*4096}")
A("s_waitcnt lgkmcnt(0)")
for k in range(1, 8): A(f"v_add_f32 v16, v16, v{16+2*k}\nv_add_f32 v17, v17, v{17+2*k}")
bf16round(16, 16); bf16round(17, 17)
A(f"""v_mul_f32 v18, {f32(-1.4426950408889634)}, v16
v_exp_f32 v18, v18
v_add_f32 v18, 1.0, v18
v_rcp_f32 v18, v18
v_mul_f32 v16, v16, v18""")
bf16round(16, 16)
A("v_mul_f32 v16, v16, v17")
bf16round(16, 16)
A(f"v_cmp_gt_u32 s[20:21], 43, v{vL}\nv_cndmask_b32_e64 v16, 0, v16, s[20:21]")
for r in range(8): A(f"v_mov_b32 v{24+r}, 0")
for j in range(6):
    A(f"s_add_u32 s22, s{sW}, {8*j}\nv_readlane_b32 s23, v16, s22")
    for d in range(4):
        A(f"""v_lshlrev_b32 v18, 16, v{WD+4*j+d}
v_and_b32 v19, 0xffff0000, v{WD+4*j+d}
v_fmac_f32 v{24+2*d}, s23, v18
v_fmac_f32 v{25+2*d}, s23, v19""")
A(f"""v_lshlrev_b32 v4, 5, v{vL}
s_lshl_b32 s21, s{sW}, 12
s_add_u32 s21, s21, {L_TAIL}
v_add_u32 v5, s21, v4
ds_write_b128 v5, v[24:27]
ds_write_b128 v5, v[28:31] offset:16
s_waitcnt lgkmcnt(0)
s_barrier""")
lb = A.newlabel("L_dn")
A(f"s_cmp_ge_u32 s{sW}, 4\ns_cbranch_scc1 {lb}")
A(f"v_lshlrev_b32 v4, 3, v0\nv_add_u32 v4, {L_TAIL}, v4")
for k in range(8): A(f"ds_read_b64 v[{16+2*k}:{17+2*k}], v4 offset:{k*4096}")
A(f"""s_lshl_b32 s20, s{sP}, 12
s_add_u32 s20, s20, {WS_YP}
v_lshlrev_b32 v5, 4, v0
s_waitcnt lgkmcnt(0)""")
for k in range(1, 8): A(f"v_add_f32 v16, v16, v{16+2*k}\nv_add_f32 v17, v17, v{17+2*k}")
A(f"""v_mov_b32 v18, s{sNONCE}
v_mov_b32 v19, s{sNONCE}
buffer_store_dwordx4 v[16:19], v5, s[{SWS}:{SWS+3}], s20 offen sc1""")
A.label(lb)
A("s_barrier")
A.label("L_nod")
TS(12)
if STOP == "attn":
    A("s_branch L_end")

WOF = 8; XB = 136; PA = 160; OF = 176; OL = 208; OLC = 224
A(f"""s_lshl_b32 s30, s{sI}, 1
s_lshr_b32 s20, s{sC}, 2
s_add_u32 s30, s30, s20
s_lshl_b32 s20, s30, 3
s_add_u32 s20, s20, s{sW}
s_lshl_b32 s32, s20, 10
s_add_u32 s32, s32, {WS_OC}
s_lshl_b32 s31, s20, 12
s_add_u32 s31, s31, {WS_O}
v_lshlrev_b32 v2, 4, v{vL}
s_and_b32 s33, s{sKEY}, 0x7ff
s_sub_u32 s33, 2047, s33
s_lshr_b32 s34, s33, 5""")
def o_issue():
    for k in range(4):
        A(f"buffer_load_dwordx4 v[{OL+4*k}:{OL+4*k+3}], v2, s[{SWS}:{SWS+3}], s31 offen offset:{k*1024} sc1")
    A(f"buffer_load_dwordx4 v[{OLC}:{OLC+3}], v2, s[{SWS}:{SWS+3}], s32 offen sc1")
def o_check():
    for k in range(4):
        b = OL + 4 * k
        A(f"v_add3_u32 v{228+k}, v{b}, v{b+1}, v{b+2}\nv_add3_u32 v{228+k}, v{228+k}, v{b+3}, s{sNONCE}\nv_xor_b32 v{228+k}, v{228+k}, v{OLC+k}")
    A("v_or3_b32 v228, v228, v229, v230\nv_or_b32 v228, v228, v231\nv_cmp_ne_u32 vcc, 0, v228")
lb = A.newlabel("L_p3l")
A(f"s_cmp_ge_u32 s{sW}, 4\ns_cbranch_scc1 {lb}")
vOUT = 247
A(f"""v_and_b32 v3, 31, v{vL}
v_lshrrev_b32 v4, 5, v{vL}
v_lshlrev_b32 v{vOUT}, 10, v3
v_lshl_add_u32 v5, v4, 3, v{vOUT}
v_lshl_add_u32 v{vOUT}, v4, 4, v{vOUT}
s_lshl_b32 s35, s30, 15
s_and_b32 s20, s{sC}, 3
s_lshl_b32 s20, s20, 8
s_add_u32 s35, s35, s20
s_lshl_b32 s20, s{sW}, 6
s_add_u32 s35, s35, s20""")
for a in range(4):
    A(f"buffer_load_dwordx2 v[{XB+2*a}:{XB+2*a+1}], v5, s[{SX}:{SX+3}], s35 offen offset:{a*16}")
o_issue()
A(f"""v_bfe_u32 v3, v{vL}, 2, 2
v_lshl_add_u32 v5, v4, 2, v3
v_lshlrev_b32 v5, 8, v5
v_xor_b32 v3, s{sW}, v3
v_lshl_add_u32 v5, v3, 6, v5
v_bfe_u32 v3, v{vL}, 4, 1
v_lshl_add_u32 v5, v3, 5, v5
v_and_b32 v3, 3, v{vL}
v_lshl_add_u32 v5, v3, 3, v5
v_add_u32 v3, 65536, v5""")
for g in range(32):
    for j in range(2):
        o = g * 4096 + j * 2048
        r = 5 if o < 65536 else 3
        A(f"ds_read_b64_tr_b16 v[{WOF+4*g+2*j}:{WOF+4*g+2*j+1}], v{r} offset:{o % 65536}")
A("s_waitcnt vmcnt(5)")
for a in range(4):
    for d in range(2):
        x = XB + 2 * a + d; p = PA + 4 * a + 2 * d
        A(f"""v_lshlrev_b32 v{p}, 16, v{x}
v_and_b32 v{p+1}, 0xffff0000, v{x}
v_sub_f32 v{XB+8}, v{p}, v{vPM}
v_sub_f32 v{XB+9}, v{p+1}, v{vPM}
v_cvt_pk_bf16_f32 v{XB+10}, v{XB+8}, v{XB+9}
v_lshlrev_b32 v{XB+8}, 16, v{XB+10}
v_and_b32 v{XB+9}, 0xffff0000, v{XB+10}
v_mul_f32 v{XB+8}, v{XB+8}, v{vPR}
v_mul_f32 v{XB+9}, v{XB+9}, v{vPR}
v_cvt_pk_bf16_f32 v{XB+10}, v{XB+8}, v{XB+9}
v_lshlrev_b32 v{XB+8}, 16, v{XB+10}
v_and_b32 v{XB+9}, 0xffff0000, v{XB+10}
v_add_f32 v{p}, v{p}, v{XB+8}
v_add_f32 v{p+1}, v{p+1}, v{XB+9}""")
lo = A.newlabel("L_ochk")
A(f"s_branch {lo}")
A.label(lb)
o_issue()
A.label(lo)
A("s_waitcnt vmcnt(0)")
o_check()
retry_check(lb)
for k in range(4):
    A(f"ds_write_b128 v246, v[{OL+4*k}:{OL+4*k+3}] offset:{k*1024}")
TS(13)
A("s_waitcnt lgkmcnt(0)\ns_barrier")
TS(14)
A(f"s_cmp_ge_u32 s{sW}, 4\ns_cbranch_scc1 L_p3help")
A(f"v_add_u32 v2, {L_TAIL}, v2")
def of_read(g):
    b = OF + 4 * (g % 8)
    A(f"ds_read_b128 v[{b}:{b+3}], v2 offset:{g*1024}")
for g in range(8): of_read(g)
for g in range(32):
    A(f"s_waitcnt lgkmcnt({min(7, 31-g)})")
    b = OF + 4 * (g % 8)
    A(f"v_mfma_f32_32x32x16_bf16 {buf(PA)}, v[{WOF+4*g}:{WOF+4*g+3}], v[{b}:{b+3}], {buf(PA)}")
    if g + 8 < 32: of_read(g + 8)
lb = A.newlabel("L_noz")
A(f"s_cmp_lg_u32 s34, s30\ns_cbranch_scc1 {lb}")
A(f"""s_barrier
s_lshl_b32 s20, s{sW}, 7
v_lshlrev_b32 v3, 4, v4
v_add_u32 v3, s20, v3""")
for a in range(4): A(f"ds_read_b128 v[{OF+4*a}:{OF+4*a+3}], v3 offset:{a*32}")
A(f"""s_and_b32 s20, s33, 31
v_and_b32 v3, 31, v{vL}
v_cmp_eq_u32 vcc, s20, v3
s_and_saveexec_b64 s[{sEX}:{sEX+1}], vcc
s_waitcnt lgkmcnt(0)""")
for r in range(16): A(f"v_add_f32 v{PA+r}, v{PA+r}, v{OF+r}")
A(f"s_mov_b64 exec, s[{sEX}:{sEX+1}]")
A.label(lb)
for k in range(8): A(f"v_cvt_pk_bf16_f32 v{XB+k}, v{PA+2*k}, v{PA+2*k+1}")
for pr in range(2):
    b = XB + 4 * pr
    A(f"v_permlane32_swap_b32 v{b}, v{b+2}\nv_permlane32_swap_b32 v{b+1}, v{b+3}")
    A(f"buffer_store_dwordx4 v[{b}:{b+3}], v{vOUT}, s[{SOUT}:{SOUT+3}], s35 offen offset:{pr*32}")
A("s_branch L_end")
A.label("L_p3help")
A(f"s_cmp_lg_u32 s34, s30\ns_cbranch_scc1 L_end")
lb = A.newlabel("L_hb")
A(f"s_cmp_lg_u32 s{sW}, 4\ns_cbranch_scc1 {lb}")
A(f"""s_and_b32 s20, s{sC}, 3
s_lshl_b32 s20, s20, 10
s_add_u32 s36, s20, {WS_YP}""")
lr = A.newlabel("L_yr")
A.label(lr)
A("s_mov_b32 s20, s36")
for k in range(32):
    A(f"buffer_load_dwordx4 v[{8+4*k}:{11+4*k}], v2, s[{SWS}:{SWS+3}], s20 offen sc1\ns_add_u32 s20, s20, 4096")
A("s_waitcnt vmcnt(0)\nv_mov_b32 v3, 0")
for k in range(32):
    A(f"v_xor_b32 v4, s{sNONCE}, v{10+4*k}\nv_or_b32 v3, v3, v4")
A("v_cmp_ne_u32 vcc, 0, v3")
retry_check(lr)
for k in range(1, 32): A(f"v_add_f32 v8, v8, v{8+4*k}\nv_add_f32 v9, v9, v{9+4*k}")
bf16round(8, 8); bf16round(9, 9)
A(f"""s_and_b32 s20, s{sKEY}, 0xffff0000
s_ashr_i32 s21, s20, 31
s_not_b32 s21, s21
s_or_b32 s21, s21, 0x80000000
s_xor_b32 s20, s20, s21
s_and_b32 s20, s20, 0xffff0000
v_mov_b32 v3, s20
v_mul_f32 v3, {f32(-1.4426950408889634)}, v3
v_exp_f32 v3, v3
v_add_f32 v3, 1.0, v3
v_rcp_f32 v3, v3""")
bf16round(3, 3)
A("v_mul_f32 v8, v8, v3\nv_mul_f32 v9, v9, v3")
bf16round(8, 8); bf16round(9, 9)
A(f"v_lshlrev_b32 v3, 3, v{vL}\nds_write_b64 v3, v[8:9]\ns_waitcnt lgkmcnt(0)")
A.label(lb)
A("s_barrier")
A.label("L_end")
if PROF:
    TS(15)
    A(f"""s_mov_b64 exec, -1
v_writelane_b32 v{vTS}, s{sRETRY}, 62
s_lshl_b32 s20, s2, 3
s_add_u32 s20, s20, s{sW}
s_lshl_b32 s20, s20, 8
s_add_u32 s20, s20, {WS_TS}
v_lshlrev_b32 v2, 2, v{vL}
buffer_store_dword v{vTS}, v2, s[{SWS}:{SWS+3}], s20 offen""")
A.label("L_exit")
A("s_endpgm")
A.label("L_codeend")

body = A.finalize()
hdr = open("cdna_kernels/" + NAME + ".s.ref").read().split("; Override launch")[0]
out = hdr + f"""; Fused single kernel: LN stats + router, QKV GEMM, sliding-window attention, MoD FFN, output projection.
; Generated by gen/gen.py (hand-written generator).
; @launch grid=(256,1,1) block=(512,1,1) lds=163840
.amdgcn_target "amdgcn-amd-amdhsa--gfx950"
.text
.globl {NAME}_kernel
.p2align 8
.type {NAME}_kernel,@function
{NAME}_kernel:
L_start:
{body}
.section .rodata,"a"
.p2align 6
.amdhsa_kernel {NAME}_kernel
  .amdhsa_next_free_vgpr 256
  .amdhsa_next_free_sgpr 102
  .amdhsa_accum_offset 256
  .amdhsa_group_segment_fixed_size 0
  .amdhsa_kernarg_size 88
  .amdhsa_user_sgpr_count 2
  .amdhsa_user_sgpr_kernarg_segment_ptr 1
  .amdhsa_system_sgpr_workgroup_id_x 1
  .amdhsa_float_denorm_mode_32 3
.end_amdhsa_kernel
"""
import subprocess, re
def labels(text):
    open("_g.s", "w").write(text)
    r = subprocess.run(["clang", "-x", "assembler", "-target", "amdgcn-amd-amdhsa", "-mcpu=gfx950", "-c", "_g.s", "-o", "_g.o"], capture_output=True, text=True)
    if r.returncode:
        print("\n".join(r.stderr.split("\n")[:30])); sys.exit(1)
    t = subprocess.run(["llvm-objdump", "-t", "_g.o"], capture_output=True, text=True).stdout
    return {m.group(2): int(m.group(1), 16) for m in re.finditer(r"^([0-9a-f]{16}) .*\s(L_\w+)$", t, re.M)}
lab = labels(out.replace("CODE_PF_MAX", "0x11111").replace("PC_OFF", "0x11111"))
out = out.replace("CODE_PF_MAX", hex((lab["L_codeend"] - 4) & ~127)).replace("PC_OFF", hex(lab["L_pcref"]))
assert labels(out) == lab
print("code bytes", lab["L_codeend"])
open(sys.argv[1], "w").write(out)
print("instrs", len(A.ins), "nops inserted", A.nnop)
```

```python
import sys, struct
from asmlib import Asm

NAME = "parallel_sum__sliding_block__moe_arch_mod__prompt"
opts = dict(a.split("=") if "=" in a else (a, "1") for a in sys.argv[2:])
PROF = int(opts.get("prof", 0))
LOOPTS = int(opts.get('loopts', 0))
DEPTH = int(opts.get('depth', 3))
FAST = int(opts.get('fast', 1))
SIBU = int(opts.get('sibu', 4))
GWP = int(opts.get('gwp', 2))
PUBU = int(opts.get('pubu', 1))

def f32(x): return "0x%08x" % struct.unpack("<I", struct.pack("<f", x))[0]
LOG2E = 1.4426950408889634

WS_BEST  = 0x0
WS_STATS = 0x8000
WS_YP    = 0x10000
WS_GP    = 0x40000
WS_KV    = 0x100000
WS_KVC   = 0x500000
WS_O     = 0x600000
WS_OC    = 0x800000
WS_TS    = 0x900000
WS_SIZE  = 0x1000000
L_X = 0; L_RING = 65536; L_MISC = 147456; L_TAIL = 131072
def slot_of(u): return (u + 2) % 5
L_QF = L_MISC
L_SM = L_MISC + 8192
L_RT = L_SM
L_NONCE = L_SM + 128
L_IDX = L_SM + 144
L_XSEL = L_SM + 1024
L_STAT = L_SM + 256
L_RINV = L_SM + 768
L_GW = L_RING + 4 * 16384
L_OWN = L_RING + slot_of(8) * 16384
SX, SW, SWS, SDBG, SWR = 40, 44, 48, 52, 56
SWO, SOUT, SWG, SWU, SWD = 60, 64, 68, 72, 76
sI, sC, sW, sROT, sNONCE, sP, sKEY = 3, 4, 5, 6, 7, 8, 9
sXO, sWOFF, sCT, sWB, sHH, sROLE, sH1, sH2 = 10, 11, 12, 13, 14, 15, 16, 17
sSM, sSR = 18, 19
sOUTO, sQK, sWOD, sM0, sWE, sEX, sRETRY = 80, 81, 82, 83, 84, 86, 88
sGU = 89
sDI = 85
DG = [208, 212, 216, 220, 228, 232, 236, 76]
sRB = 90
vL, vZ, vTS = 1, 6, 7
vXA, vWA0, vWA1 = 88, 92, 93
vX0, vX1, vW0, vW1 = 80, 81, 82, 83
vSA, vKA, vKC, vBA = 80, 81, 82, 83
ACC = 96; STB = 128; CS = 200; SEL = 204; GW = 208; ST0, ST1 = 224, 226; XS = 228
OWN = 128; SL = 8
KC, VC, QF, NM, OA, SB, WD, MK = 80, 84, 88, 96, 128, 160, 208, 232
vM0, vM1, vRK, vRV, vRKC, vGA, vEX, vOUT, vPM, vPR, vWO = 240, 241, 242, 243, 244, 245, 246, 247, 248, 249, 250
A = Asm()

def TS(n):
    if PROF: A(f"s_memtime s[98:99]\ns_waitcnt lgkmcnt(0)\nv_writelane_b32 v{vTS}, s98, {n}")
def TSL(n):
    if LOOPTS: TS(n)
def RC(n):
    if PROF: A(f"v_writelane_b32 v{vTS}, s{sRETRY}, {n}")
def srd(base, size): A(f"s_mov_b32 s{base+2}, {size}\ns_mov_b32 s{base+3}, 0x20000")
def R(b, n): return f"v[{b}:{b+n-1}]"
def SR(b): return f"s[{b}:{b+3}]"
DPP8 = ("quad_perm:[1,0,3,2]", "quad_perm:[2,3,0,1]", "row_half_mirror")
def dpp(op, x, m): return f"{op}_dpp v{x}, v{x}, v{x} {m} row_mask:0xf bank_mask:0xf"
def allreduce32(x, t, op):
    for m in DPP8 + ("row_mirror",): A(dpp(op, x, m))
    A(f"v_mov_b32 v{t}, v{x}\nv_permlane16_swap_b32 v{x}, v{t}\n{op} v{x}, v{x}, v{t}")
def bf16round(dst, src):
    A(f"v_cvt_pk_bf16_f32 v{dst}, v{src}, v{src}\nv_and_b32 v{dst}, 0xffff0000, v{dst}")
def retry_check(lbl):
    A(f"s_add_u32 s{sRETRY}, s{sRETRY}, 1\ns_cmp_gt_u32 s{sRETRY}, 20000\ns_cbranch_scc1 L_end")
    A(f"s_cbranch_vccnz {lbl}")
def validated(issue, check, first_wait, retry_wait=0):
    lr = A.newlabel("L_rt"); lo = A.newlabel("L_ok")
    A(f"s_waitcnt vmcnt({first_wait})"); check(); A(f"s_cbranch_vccz {lo}")
    A.label(lr)
    issue(); A(f"s_waitcnt vmcnt({retry_wait})"); check()
    retry_check(lr)
    A.label(lo)
def capture(fn):
    n = len(A.ins); fn(); out = [x.text for x in A.ins[n:]]; del A.ins[n:]
    return out
def emit(l):
    for x in l: A(x)
def split(l, n): return [l[len(l)*k//n: len(l)*(k+1)//n] for k in range(n)]
def mfma32(d, a, b, c=None):
    return f"v_mfma_f32_32x32x16_bf16 {R(d,16)}, {R(a,4)}, {R(b,4)}, {R(d,16) if c is None else c}"
def var_to_rinv(v):
    bf16round(v, v)
    A(f"v_add_f32 v{v}, {f32(1e-5)}, v{v}")
    bf16round(v, v)
    A(f"v_sqrt_f32 v{v}, v{v}")
    bf16round(v, v)
    A(f"v_rcp_f32 v{v}, v{v}")

A("s_cmp_ge_u32 s2, 256\ns_cbranch_scc1 L_exit")
for b, off in ((SX, 0), (SW, 8), (SWR, 32), (SDBG, 72), (SWS, 80), (SWO, 16), (SWG, 40), (SWU, 48), (SWD, 56), (SOUT, 64)):
    A(f"s_load_dwordx2 s[{b}:{b+1}], s[0:1], {off}")
A(f"""s_getpc_b64 s[22:23]
v_lshrrev_b32 v2, 6, v0
v_and_b32 v{vL}, 63, v0
s_and_b32 s20, s2, 3
s_lshr_b32 s21, s2, 3
v_readfirstlane_b32 s{sW}, v2
s_lshl_b32 s20, s20, 3
s_and_b32 s24, s21, 7
s_add_u32 s{sI}, s20, s24
s_bfe_u32 s20, s2, 0x10002
s_lshl_b32 s20, s20, 2
s_lshr_b32 s24, s21, 3
s_add_u32 s{sC}, s20, s24
s_lshl_b32 s{sP}, s{sI}, 3
s_add_u32 s{sP}, s{sP}, s{sC}
s_sub_u32 s{sGU}, s{sP}, 32
s_sub_u32 s{sDI}, s{sP}, 176
s_cmp_lt_u32 s{sGU}, 176
s_cselect_b32 s{sDI}, 255, s{sDI}
s_cmp_lt_u32 s{sP}, 32
s_cselect_b32 s{sDI}, s{sP}, s{sDI}
s_mov_b32 s{sRETRY}, 0""")
srd(SX, 2048 * 1024)
if PROF:
    A(f"v_mov_b32 v{vTS}, 0\ns_memrealtime s[96:97]\ns_waitcnt lgkmcnt(0)\nv_writelane_b32 v{vTS}, s96, 63")
    TS(0)
A(f"s_cmp_ge_u32 s{sW}, 4\ns_cbranch_scc1 L_lwave")
srd(SWR, 1024)
A(f"""v_and_b32 v2, 31, v{vL}
v_lshlrev_b32 v{vSA}, 4, v2
v_lshrrev_b32 v3, 5, v{vL}
v_lshl_add_u32 v4, v3, 10, v{vSA}
s_lshl_b32 s20, s{sP}, 3
s_lshl_b32 s21, s{sW}, 1
s_add_u32 s20, s20, s21
s_lshl_b32 s21, s20, 10
s_waitcnt lgkmcnt(0)
buffer_load_dwordx4 v[8:11], v4, {SR(SX)}, s21 offen
buffer_load_dwordx4 v[12:15], v4, {SR(SX)}, s21 offen offset:512
buffer_load_dwordx4 v[16:19], v{vSA}, {SR(SWR)}, 0 offen
buffer_load_dwordx4 v[20:23], v{vSA}, {SR(SWR)}, 0 offen offset:512
s_branch L_cwave""")

def frag_addrs():
    A(f"""v_and_b32 v2, 31, v{vL}
v_lshrrev_b32 v3, 5, v{vL}
v_bfe_u32 v4, v2, 1, 3
v_xor_b32 v4, v4, v3
v_lshlrev_b32 v4, 4, v4
v_lshl_add_u32 v4, v2, 7, v4
v_add_u32 v{vXA}, s28, v4
v_xor_b32 v{vXA+1}, 32, v{vXA}
v_xor_b32 v{vXA+2}, 64, v{vXA}
v_xor_b32 v{vXA+3}, 96, v{vXA}
v_bfe_u32 v4, v{vL}, 2, 2
v_lshlrev_b32 v4, 7, v4
v_lshl_add_u32 v4, v3, 11, v4
v_bfe_u32 v5, v{vL}, 3, 1
v_lshl_add_u32 v4, v5, 6, v4
v_bfe_u32 v5, v{vL}, 4, 1
v_lshl_add_u32 v4, v5, 5, v4
v_and_b32 v5, 3, v{vL}
v_lshl_add_u32 v{vGA}, v5, 3, v4
s_lshl_b32 s20, s{sCT}, 6
v_xor_b32 v4, s20, v{vGA}
v_add_u32 v{vWA0}, s29, v4
v_add_u32 v{vWA1}, {3*16384}, v{vWA0}
v_lshrrev_b32 v4, 4, v{vL}
v_xor_b32 v4, v4, v{vL}
v_and_b32 v4, 1, v4
v_add_u32 v4, -1, v4
v_and_b32 v{SEL}, 0x3f803f80, v4
v_mov_b32 v{SEL+1}, v{SEL}
v_mov_b32 v{SEL+2}, v{SEL}
v_mov_b32 v{SEL+3}, v{SEL}""")
    for r in range(4): A(f"v_mov_b32 v{CS+r}, 0")
def wa(slot, off):
    return (vWA0, slot * 16384 + off) if slot < 3 else (vWA1, (slot - 3) * 16384 + off)
def csum_mfma(wf): return f"v_mfma_f32_16x16x32_bf16 {R(CS,4)}, {R(SEL,4)}, {R(wf,4)}, {R(CS,4)}"
def corr_w(dst):
    A(f"""s_mov_b32 s20, 0xffff0000
s_mov_b32 s21, 0xffff0000
v_cndmask_b32_e64 v2, v{CS}, v{CS+1}, s[20:21]
v_mul_f32 v2, 0.5, v2""")
    bf16round(3, 2)
    A("v_sub_f32 v2, v2, v3")
    bf16round(4, 2)
    A(f"""v_sub_f32 v2, v2, v4
v_cvt_pk_bf16_f32 v{dst}, v3, v4
v_cvt_pk_bf16_f32 v{dst+1}, v2, 0""")
def corr_x(dst, m):
    A(f"""v_cvt_pk_bf16_f32 v{dst}, -v{m}, -v{m}
v_cvt_pk_bf16_f32 v{dst+1}, -v{m}, 0
v_mov_b32 v{dst+2}, 0
v_mov_b32 v{dst+3}, 0""")
def Kf(k): return SL + 12 * k
def Vf(k, g): return SL + 12 * k + 4 + 4 * g
def attn_setup_s():
    A(f"""s_sub_u32 s20, 3, s{sROLE}
s_cmp_eq_u32 s{sROLE}, 0
s_cselect_b32 s21, 4, 1
s_sub_u32 s22, s{sI}, s20
s_lshl_b32 s22, s22, 3
s_add_u32 s22, s22, s{sC}
s_cmp_ge_u32 s{sI}, s20
s_cselect_b32 s{sH1}, -1, 0
s_cselect_b32 s22, s22, 0x10000
s_sub_u32 s23, s{sI}, s21
s_lshl_b32 s23, s23, 3
s_add_u32 s23, s23, s{sC}
s_cmp_ge_u32 s{sI}, s21
s_cselect_b32 s{sH2}, -1, 0
s_cselect_b32 s23, s23, 0x10000
s_lshl_b32 s{sRB}, s22, 14
s_add_u32 s{sRB}, s{sRB}, {WS_KV}
s_add_u32 s{sRB+1}, s{sRB}, 4096
s_lshl_b32 s{sRB+2}, s23, 14
s_add_u32 s{sRB+2}, s{sRB+2}, {WS_KV}
s_add_u32 s{sRB+3}, s{sRB+2}, 4096
s_lshl_b32 s{sRB+4}, s22, 12
s_add_u32 s{sRB+4}, s{sRB+4}, {WS_KVC}
s_lshl_b32 s{sRB+5}, s23, 12
s_add_u32 s{sRB+5}, s{sRB+5}, {WS_KVC}
s_lshl_b32 s{sWOD}, s{sW}, 16
s_and_b32 s20, s{sC}, 3
s_lshl_b32 s20, s20, 8
s_add_u32 s{sWOD}, s{sWOD}, s20
s_lshl_b32 s{sM0}, s{sW}, 14
s_mov_b32 s{sWB}, s{sI}
s_add_u32 s{sWE}, s{sI}, 4
s_lshl_b32 s{sQK}, s{sI}, 1
s_lshr_b32 s21, s{sC}, 2
s_add_u32 s{sQK}, s{sQK}, s21
s_lshl_b32 s{sOUTO}, s{sQK}, 15
s_add_u32 s{sOUTO}, s{sOUTO}, s20
s_lshl_b32 s20, s{sHH}, 6
s_add_u32 s{sOUTO}, s{sOUTO}, s20""")
    srd(SWD, 1376 * 1024); srd(SOUT, 2048 * 1024); srd(SWO, 0 if opts.get('nowo') else 512 * 1024); srd(SWS, WS_SIZE)
def attn_setup_v():
    A(f"""s_lshl_b32 s20, s{sHH}, 10
v_lshlrev_b32 v{vRK}, 4, v{vL}
s_lshl_b32 s21, s{sW}, 12
s_add_u32 s21, s21, {L_TAIL}
v_add_u32 v{vEX}, s21, v{vRK}
v_add_u32 v{vRK}, s20, v{vRK}
v_lshrrev_b32 v{vRKC}, 1, v{vRK}
v_add_u32 v{vRV}, 8192, v{vRK}
v_lshrrev_b32 v2, 4, v{vL}
v_and_b32 v3, 15, v{vL}
v_lshlrev_b32 v4, 2, v2
v_xor_b32 v3, v3, v4
v_lshlrev_b32 v3, 4, v3
v_lshl_add_u32 v{vWO}, v2, 10, v3
v_add_u32 v{vWO+1}, 3072, v{vWO}
v_add_u32 v{vWO+2}, 6144, v{vWO}
v_add_u32 v{vWO+3}, 9216, v{vWO}
v_and_b32 v3, 31, v{vL}
v_lshrrev_b32 v4, 5, v{vL}
v_lshlrev_b32 v{vOUT}, 10, v3
v_lshl_add_u32 v{vOUT}, v4, 4, v{vOUT}
v_mul_u32_u24 v4, {1408*16}, v4
v_lshl_add_u32 v255, v3, 4, v4
v_mov_b32 v{vM0}, 0
v_mov_b32 v{vM1}, 0""")
def mk_setup():
    A(f"""v_and_b32 v2, 31, v{vL}
v_lshrrev_b32 v3, 5, v{vL}
v_lshlrev_b32 v3, 2, v3
v_sub_u32 v2, v2, v3
v_mov_b32 v192, -1
v_mov_b32 v193, -1""")
    for k in range(8):
        j0 = 8 * (k // 2) + 2 * (k % 2)
        A(f"""v_add_u32 v3, {1 - j0}, v2
v_med3_i32 v3, v3, 0, 2
v_lshlrev_b32 v3, 4, v3
v_lshlrev_b64 v[194:195], v3, v[192:193]
v_mov_b32 v{MK+k}, v194""")
def v_prefill(n):
    A(f"v_mov_b32 v{Vf(0,1)}, 0x3f803f80")
    for k in range(n):
        for r in range(4):
            if k or r: A(f"v_mov_b32 v{Vf(k,1)+r}, v{Vf(0,1)}")
def k_issue():
    for k in range(4):
        A(f"buffer_load_dwordx4 {R(Kf(k),4)}, v{vRK}, {SR(SWS)}, s{sRB+k} offen sc1")
    for p in range(2):
        A(f"buffer_load_dwordx2 {R(KC+2*p,2)}, v{vRKC}, {SR(SWS)}, s{sRB+4+p} offen sc1")
def v_issue():
    for k in range(4):
        A(f"buffer_load_dwordx4 {R(Vf(k,0),4)}, v{vRV}, {SR(SWS)}, s{sRB+k} offen sc1")
    for p in range(2):
        A(f"buffer_load_dwordx2 {R(VC+2*p,2)}, v{vRKC}, {SR(SWS)}, s{sRB+4+p} offen offset:2048 sc1")

A.label("L_lwave")
srd(SW, 512 * 3072)
A(f"""s_add_u32 s20, s{sC}, s{sI}
s_and_b32 s20, s20, 3
s_lshl_b32 s{sROT}, s20, 1
s_sub_u32 s{sHH}, s{sW}, 4
v_lshrrev_b32 v2, 3, v{vL}
v_and_b32 v3, 7, v{vL}
v_lshrrev_b32 v4, 1, v2
v_xor_b32 v5, v3, v4
v_lshlrev_b32 v5, 4, v5
v_lshl_add_u32 v{vX0}, v2, 10, v5
v_xor_b32 v5, 64, v5
v_lshl_add_u32 v{vX1}, v2, 10, v5
v_add_u32 v{vX1}, {8192-1024}, v{vX1}
v_and_b32 v4, 1, v4
v_lshlrev_b32 v4, 2, v4
v_xor_b32 v5, v3, v4
v_lshlrev_b32 v84, 4, v5
v_mul_u32_u24 v{vW0}, 3072, v2
v_add_u32 v{vW0}, v{vW0}, v84
v_add_u32 v{vW1}, {24576-2048}, v{vW0}
s_lshl_b32 s{sXO}, s{sI}, 16
s_lshl_b32 s20, s{sHH}, 14
s_add_u32 s{sXO}, s{sXO}, s20
s_lshl_b32 s{sWOFF}, s{sC}, 7
s_mul_i32 s20, s{sHH}, {16*3072}
s_add_u32 s{sWOFF}, s{sWOFF}, s20
s_lshl_b32 s31, s{sHH}, 11
s_lshl_b32 s32, s{sHH}, 12
s_lshr_b32 s20, s2, 3
s_lshl_b32 s20, s20, 10
s_lshl_b32 s21, s{sHH}, 8
s_add_u32 s20, s20, s21
s_min_u32 s20, s20, CODE_PF_MAX
s_add_u32 s22, s22, s20
s_addc_u32 s23, s23, 0
s_waitcnt lgkmcnt(0)
s_load_dword s100, s[22:23], 0
s_load_dword s100, s[22:23], 64
s_load_dword s100, s[22:23], 128
s_load_dword s100, s[22:23], 192""")
lb = A.newlabel("L_nt")
A(f"s_cmp_lg_u32 s{sW}, 7\ns_cbranch_scc1 {lb}")
for b in (SWR, SWG, SWU, SWO, SWD, SOUT):
    A(f"s_load_dword s100, s[{b}:{b+1}], 0")
A(f"s_load_dword s100, s[{SDBG}:{SDBG+1}], 128")
for off in (0xF000, 0x2FF000 , 0x4FF000, 0x6FF000, 0x8FF000):
    A(f"s_mov_b32 s20, {off}\ns_load_dword s100, s[{SWS}:{SWS+1}], s20")
A.label(lb)
XOF = {u: [u] for u in range(8)}
def issue_unit(u):
    slot = slot_of(u)
    for t in XOF.get(u, []):
        A(f"""s_add_u32 s33, s{sROT}, {t}
s_and_b32 s33, s33, 7
s_lshl_b32 s34, s33, 7
s_add_u32 m0, s31, {L_X + t*8192}
s_add_u32 s34, s34, s{sXO}
buffer_load_dwordx4 v{vX0}, {SR(SX)}, s34 offen lds
buffer_load_dwordx4 v{vX1}, {SR(SX)}, s34 offen offset:1024 lds""")
    if u < 8:
        A(f"""s_add_u32 s33, s{sROT}, {u}
s_and_b32 s33, s33, 7
s_mul_i32 s35, s33, {64*3072}
s_add_u32 s35, s35, s{sWOFF}
s_add_u32 m0, s32, {L_RING + slot*16384}
s_add_u32 s35, s35, 1024
buffer_load_dwordx4 v{vW0}, {SR(SW)}, s35 offen lds
buffer_load_dwordx4 v{vW0}, {SR(SW)}, s35 offen offset:1024 lds
buffer_load_dwordx4 v{vW1}, {SR(SW)}, s35 offen offset:2048 lds
buffer_load_dwordx4 v{vW1}, {SR(SW)}, s35 offen offset:3072 lds""")
    else:
        for e in range(2):
            A(f"""s_add_u32 s33, s{sROT}, {2*(u-8)+e}
s_and_b32 s33, s33, 7
s_mul_i32 s35, s33, {64*3072}
s_add_u32 m0, s32, {L_RING + slot*16384 + e*1024}
s_add_u32 s35, s35, s{sWOFF}
buffer_load_dwordx4 v{vW0}, {SR(SW)}, s35 offen lds
buffer_load_dwordx4 v{vW1}, {SR(SW)}, s35 offen offset:2048 lds""")
def ucount(u): return 4 + 2 * len(XOF.get(u, []))
for u in range(DEPTH): issue_unit(u)
TS(1)
SA = 112
A(f"""s_and_b32 s{sCT}, s{sHH}, 1
s_lshr_b32 s28, s{sHH}, 1
s_lshl_b32 s28, s28, 12
s_mov_b32 s29, {L_RING}
s_mov_b32 s{sROLE}, 0
v_lshlrev_b32 v85, 4, v{vL}
s_lshl_b32 s30, s{sI}, 10
s_add_u32 s30, s30, {WS_STATS}
s_cmp_lg_u32 s{sHH}, 0
s_cselect_b32 s30, 0x40000000, s30
s_mov_b32 s36, {WS_BEST}
s_cmp_lg_u32 s{sHH}, 1
s_cselect_b32 s36, 0x40000000, s36""")
attn_setup_s()
def sib_issue(): A(f"buffer_load_dwordx4 {R(SA,4)}, v85, {SR(SWS)}, s30 offen sc1")
lp = split(capture(lambda: (frag_addrs(), attn_setup_v(), v_prefill(6), mk_setup())), 6)
lpieces = {0: lp[0], 1: lp[1], 2: lp[2], 3: lp[3], 4: lp[4], 5: lp[5]}
ops = []
for u in range(DEPTH): ops += [u] * ucount(u)
def younger_than(tag): return len(ops) - 1 - max(k for k, x in enumerate(ops) if x == tag)
issued = DEPTH
for u in range(8):
    TSL(32 + u)
    A(f"s_waitcnt vmcnt({younger_than(u)})")
    TSL(16 + u)
    A("s_barrier")
    TSL(24 + u)
    if u == SIBU:
        sib_issue(); ops.append("sib")
    tgt = min(12, u + 1 + DEPTH + max(0, u - 1 - DEPTH), u + 5)
    while issued < tgt:
        issue_unit(issued); ops += [issued] * ucount(issued); issued += 1
    emit(lpieces.get(u, []))
    if u == 6:
        lb = A.newlabel("L_nsib")
        A(f"""v_mov_b32 v122, {L_NONCE}
ds_read_b32 v123, v122
s_waitcnt lgkmcnt(0)
v_readfirstlane_b32 s{sNONCE}, v123
s_cmp_lg_u32 s{sHH}, 0
s_cbranch_scc1 {lb}""")
        validated(sib_issue, lambda: A(f"v_cmp_ne_u32 vcc, s{sNONCE}, v{SA+3}"), younger_than("sib"))
        A(f"""v_lshrrev_b32 v122, 1, v85
v_lshrrev_b32 v123, 2, v85
v_add_u32 v122, {L_STAT}, v122
v_add_u32 v123, {L_RINV}, v123
ds_write_b64 v122, {R(SA,2)}
ds_write_b32 v123, v{SA+1}
s_waitcnt lgkmcnt(0)""")
        A.label(lb)
assert issued == 12, issued
TS(2)
LST, LSC, LCX, LCW = 116, 118, 120, 124
for r in range(16): A(f"v_mov_b32 v{ACC+r}, 0")
A(f"""v_and_b32 v2, 31, v{vL}
v_lshlrev_b32 v2, 3, v2
s_lshr_b32 s20, s28, 4
s_add_u32 s20, s20, {L_STAT}
v_add_u32 v2, s20, v2
ds_read_b64 {R(LST,2)}, v2
s_waitcnt lgkmcnt(0)""")
corr_x(LCX, LST)
A(f"""v_mul_f32 v{LSC}, {f32(0.25*LOG2E)}, v{LST+1}
v_mov_b32 v{LCW+2}, 0
v_mov_b32 v{LCW+3}, 0
s_lshl_b32 s30, s{sHH}, 11
s_add_u32 s30, s30, {L_QF}
v_lshlrev_b32 v5, 4, v{vL}
v_add_u32 v5, s30, v5""")
def q_reads(n):
    u = 8 + n // 8; e = (n // 4) % 2; st = n % 4; b = STB + 8 * (n % 8)
    out = [f"ds_read_b128 {R(b,4)}, v{vXA+st} offset:{(n//4)*8192}"]
    for j in range(2):
        r, o = wa(slot_of(u), e * 1024 + st * 4096 + j * 512)
        out.append(f"ds_read_b64_tr_b16 {R(b+4+2*j,2)}, v{r} offset:{o}")
    return out
def q_span(n0, n1, depth=4, fill=()):
    fill = list(fill)
    for n in range(n0, min(n0 + depth, n1)): emit(q_reads(n))
    for n in range(n0, n1):
        ahead = min(n + depth, n1) - n - 1
        A(f"s_waitcnt lgkmcnt({3*ahead})")
        b = STB + 8 * (n % 8)
        A(csum_mfma(b + 4))
        A(mfma32(ACC, b + 4, b))
        if n + depth < n1: emit(q_reads(n + depth))
        if n - n0 >= 2: emit(fill[:1]); fill = fill[1:]
A("s_waitcnt vmcnt(4)\ns_barrier")
TS(3)
TS(48)
q_span(0, 24)
TS(49)
A("s_waitcnt vmcnt(0)\ns_barrier")
q_span(24, 32)
TS(4)
corr_w(LCW)
A(mfma32(ACC, LCW, LCX))
for r in range(16): A(f"v_mul_f32 v{ACC+r}, v{ACC+r}, v{LSC}")
for k in range(8): A(f"v_cvt_pk_bf16_f32 v{STB+k}, v{ACC+2*k}, v{ACC+2*k+1}")
A(f"ds_write_b128 v5, {R(STB,4)}\nds_write_b128 v5, {R(STB+4,4)} offset:1024")
TS(50)
A("s_branch L_join")

A.label("L_cwave")
srd(SDBG, 256); srd(SWG, 512 * 2752); srd(SWU, 512 * 2752)
A(f"v_mov_b32 v{vZ}, 0\nv_add_u32 v62, s20, v3")
A(f"s_lshr_b32 s24, s2, 3\ns_or_b32 s24, s24, s{sW}\ns_cmp_lg_u32 s24, 0\ns_cbranch_scc1 L_nononce")
A(f"s_memrealtime s[24:25]\ns_waitcnt lgkmcnt(0)\ns_or_b32 s24, s24, 1\nv_mov_b32 v58, s24\nv_mov_b32 v59, 0\ns_mov_b64 exec, 1")
A(f"buffer_atomic_cmpswap v[58:59], v{vZ}, {SR(SDBG)}, 0 offen sc1\ns_mov_b64 exec, -1")
A.label("L_nononce")
A(f"""s_and_b32 s{sCT}, s{sW}, 1
s_mov_b32 s28, 0
s_lshr_b32 s29, s{sW}, 1
s_lshl_b32 s29, s29, 10
s_add_u32 s29, s29, {L_RING}
s_mov_b32 s{sHH}, s{sW}
s_mov_b32 s{sROLE}, 1
v_lshlrev_b32 v{vBA}, 4, v{vL}
s_lshl_b32 s35, s{sW}, 10
s_add_u32 s35, s35, {WS_BEST}
s_lshl_b32 s33, s{sP}, 14
s_add_u32 s33, s33, {WS_KV}
s_add_u32 s36, s33, 4096
s_lshl_b32 s34, s{sP}, 12
s_add_u32 s34, s34, {WS_KVC}""")
frag_addrs()
for r in range(32): A(f"v_mov_b32 v{ACC+r}, 0")
attn_setup_s(); attn_setup_v()
A(f"""v_lshrrev_b32 v2, 3, v{vL}
v_mul_u32_u24 v3, 2752, v2
v_and_b32 v4, 7, v{vL}
v_lshl_add_u32 v5, v4, 4, v3
s_and_b32 s31, s{sP}, 7
s_lshl_b32 s31, s31, 6
s_lshl_b32 s32, s{sW}, 4
s_add_u32 s31, s31, s32
s_mul_i32 s31, s31, 2752
s_lshr_b32 s32, s{sGU}, 3
s_lshl_b32 s32, s32, 7
s_add_u32 s31, s31, s32
s_cmp_ge_u32 s{sGU}, {0 if opts.get("nogw") else 176}
s_cselect_b32 s31, 0x40000000, s31
s_add_u32 s32, s31, {8*2752}""")
A(f"""s_lshl_b32 s37, s{sDI}, 15
s_lshl_b32 s38, s{sW}, 8
s_add_u32 s37, s37, s38
v_lshrrev_b32 v2, 4, v{vL}
v_and_b32 v3, 15, v{vL}
v_lshlrev_b32 v3, 4, v3
v_lshl_add_u32 v63, v2, 10, v3""")
def gw_issue():
    l1 = A.newlabel("L_gw"); l2 = A.newlabel("L_gw")
    A(f"s_cmp_lt_u32 s{sDI}, 43\ns_cbranch_scc1 {l1}")
    A(f"""buffer_load_dwordx4 {R(GW,4)}, v5, {SR(SWG)}, s31 offen
buffer_load_dwordx4 {R(GW+4,4)}, v5, {SR(SWU)}, s31 offen
buffer_load_dwordx4 {R(GW+8,4)}, v5, {SR(SWG)}, s32 offen
buffer_load_dwordx4 {R(GW+12,4)}, v5, {SR(SWU)}, s32 offen
s_branch {l2}""")
    A.label(l1)
    for n in range(8):
        A(f"buffer_load_dwordx4 {R(DG[n],4)}, v63, {SR(SWD)}, s37 offen\ns_add_u32 s37, s37, 4096")
    A.label(l2)
assert GWP == 2
if GWP == 0:
    gw_issue(); A("s_waitcnt vmcnt(4)")
else:
    A("s_waitcnt vmcnt(2)")
    if GWP == 1: gw_issue()
TS(1)
XU = 24
for k in range(8):
    A(f"v_lshlrev_b32 v{XU+2*k}, 16, v{8+k}\nv_and_b32 v{XU+2*k+1}, 0xffff0000, v{8+k}")
A(f"v_pk_add_f32 v[40:41], {R(XU,2)}, {R(XU+2,2)}")
for k in range(4, 16, 2): A(f"v_pk_add_f32 v[40:41], v[40:41], {R(XU+k,2)}")
A("v_add_f32 v40, v40, v41")
allreduce32(40, 41, "v_add_f32")
A(f"v_mul_f32 v40, {f32(-1.0/512)}, v40")
A("v_cvt_pk_bf16_f32 v42, -v40, -v40\nv_and_b32 v42, 0xffff0000, v42")
A(f"v_pk_add_f32 v[46:47], {R(XU,2)}, v[40:41] op_sel_hi:[1,0]\nv_pk_mul_f32 v[44:45], v[46:47], v[46:47]")
for k in range(2, 16, 2):
    A(f"v_pk_add_f32 v[46:47], {R(XU+k,2)}, v[40:41] op_sel_hi:[1,0]\nv_pk_fma_f32 v[44:45], v[46:47], v[46:47], v[44:45]")
A("v_add_f32 v43, v44, v45")
allreduce32(43, 41, "v_add_f32")
for k in range(0, 16, 2): A(f"v_pk_add_f32 {R(XU+k,2)}, {R(XU+k,2)}, v[42:43] op_sel_hi:[1,0] neg_lo:[0,1] neg_hi:[0,1]")
A(f"v_mul_f32 v43, {f32(1.0/512)}, v43")
for k in range(8): A(f"v_cvt_pk_bf16_f32 v{8+k}, v{XU+2*k}, v{XU+2*k+1}")
var_to_rinv(43)
for k in range(8):
    A(f"v_lshlrev_b32 v{XU+2*k}, 16, v{8+k}\nv_and_b32 v{XU+2*k+1}, 0xffff0000, v{8+k}")
for k in range(0, 16, 2): A(f"v_pk_mul_f32 {R(XU+k,2)}, {R(XU+k,2)}, v[42:43] op_sel:[0,1]")
for k in range(8): A(f"v_cvt_pk_bf16_f32 v{8+k}, v{XU+2*k}, v{XU+2*k+1}")
A("v_mov_b32 v44, 0\ns_waitcnt vmcnt(0)")
for k in range(8): A(f"v_dot2_f32_bf16 v44, v{8+k}, v{16+k}, v44")
allreduce32(44, 41, "v_add_f32")
bf16round(44, 44)
A(f"""v_ashrrev_i32 v45, 31, v44
v_or_b32 v45, 0x80000000, v45
v_xor_b32 v44, v44, v45
v_and_b32 v44, 0xffff0000, v44
v_sub_u32 v45, 2047, v62
v_or_b32 v44, v44, v45
v_and_b32 v46, 7, v62
v_lshlrev_b32 v46, 4, v46
v_add_u32 v46, {L_RT}, v46
ds_write_b96 v46, v[42:44]
s_lshl_b32 s24, s{sW}, 8
buffer_load_dword v60, v{vZ}, {SR(SDBG)}, s24 offen sc1
s_setprio {int(opts.get("prio", 2))}""")
if GWP == 2: gw_issue()
TS(2)
A("s_waitcnt lgkmcnt(0)")
A(f"s_cmp_ge_u32 s{sW}, 2\ns_cbranch_scc1 L_vwave")

def kv_reads(n):
    u = n // 4; st = n % 4; b = STB + 12 * (n % 6)
    out = [f"ds_read_b128 {R(b+4*qb,4)}, v{vXA+st} offset:{u*8192 + qb*4096}" for qb in range(2)]
    for j in range(2):
        r, o = wa(slot_of(u), st * 4096 + j * 512)
        out.append(f"ds_read_b64_tr_b16 {R(b+8+2*j,2)}, v{r} offset:{o}")
    return out
def kv_mm(n, isK, cs=True):
    b = STB + 12 * (n % 6)
    out = [csum_mfma(b + 8)] if cs else []
    for qb in range(2):
        out.append(mfma32(ACC + 16 * qb, b + 8, b + 4 * qb) if isK else mfma32(ACC + 16 * qb, b + 4 * qb, b + 8))
    return out
def kv_interval(u, isK, fill=(), post_reads=()):
    rd = [x for n in range(4 * u, 4 * u + 4) for x in kv_reads(n)]
    old = [x for n in (4 * u - 2, 4 * u - 1) if n >= 0 for x in kv_mm(n, isK)]
    fill = list(fill)
    per = (len(fill) + 5) // 6
    emit(rd[:4])
    rest = rd[4:]
    for m in old:
        A(m); emit(rest[:2]); rest = rest[2:]
    emit(rest)
    for k, n in enumerate((4 * u, 4 * u + 1)):
        A(f"s_waitcnt lgkmcnt({12 - 4*k})")
        for m in kv_mm(n, isK):
            A(m); emit(fill[:per]); fill = fill[per:]
    emit(post_reads)
    A("s_waitcnt lgkmcnt(0)")
BT = 68
def best_issue(): A(f"buffer_load_dwordx4 {R(BT,4)}, v{vBA}, {SR(SWS)}, s35 offen sc1")
def nonce_issue(): A(f"buffer_load_dword v60, v{vZ}, {SR(SDBG)}, 0 offen sc1")
CX0, CX1, CW = 40, 44, 56
def publish():
    lb = A.newlabel("L_np")
    A(f"s_cmp_lg_u32 s{sW}, 0\ns_cbranch_scc1 {lb}")
    A(f"""v_and_b32 v2, 7, v{vL}
v_lshlrev_b32 v2, 4, v2
v_add_u32 v2, {L_RT}, v2
ds_read_b96 v[48:50], v2""")
    validated(nonce_issue, lambda: A("v_cmp_eq_u32 vcc, 0, v60"), 4 if GWP == 2 else 0)
    A(f"""v_mov_b32 v2, {L_NONCE}
ds_write_b32 v2, v60
v_mov_b32 v51, v60
s_lshl_b32 s20, s{sP}, 4
s_add_u32 s20, s20, {WS_BEST}
s_lshl_b32 s21, s{sP}, 7
s_add_u32 s21, s21, {WS_STATS}
s_mov_b64 exec, 0xff
s_waitcnt lgkmcnt(0)
buffer_store_dwordx4 v[48:51], v{vBA}, {SR(SWS)}, s21 offen sc1
v_mov_b32 v52, v50""")
    for m in DPP8: A(dpp("v_max_u32", 52, m))
    A(f"""v_cmp_eq_u32 vcc, v52, v50
s_and_b32 s22, vcc_lo, 0xff
s_mov_b32 s23, 0
s_mov_b64 exec, s[22:23]
buffer_store_dwordx4 v[48:51], v{vZ}, {SR(SWS)}, s20 offen sc1
s_mov_b64 exec, -1""")
    A.label(lb)
def cw_loop(isK):
    for u in range(8):
        TSL(16 + u)
        A("s_barrier")
        TSL(24 + u)
        fill = []; post = []
        if u == 3:
            fill = capture(lambda: A(f"""v_mov_b32 v{CW+2}, 0
v_mov_b32 v{CW+3}, 0
v_lshrrev_b32 v64, 1, v{vSA}
v_add_u32 v64, {L_STAT}, v64
v_mov_b32 v66, {L_NONCE}"""))
            if isK:
                fill += capture(lambda: A(f"""s_lshl_b32 s20, s{sCT}, 11
v_add_u32 v{vKA}, s20, v{vBA}
v_lshrrev_b32 v{vKC}, 1, v{vKA}"""))
            else:
                fill += capture(lambda: A(f"""v_and_b32 v2, 0x2f, v{vL}
v_bfe_u32 v3, v{vL}, 4, 1
s_lshl_b32 s20, s{sCT}, 1
v_add_u32 v3, s20, v3
v_lshlrev_b32 v{vKA}, 4, v2
v_lshl_add_u32 v{vKA}, v3, 10, v{vKA}
v_lshrrev_b32 v{vKC}, 1, v{vKA}
v_add_u32 v{vKA}, 8192, v{vKA}
v_lshrrev_b32 v65, 5, v{vL}
v_lshlrev_b32 v65, 4, v65
v_add_u32 v65, {L_RINV}, v65"""))
        if u == 7:
            fill = capture(best_issue)
            post = [f"ds_read_b64 {R(ST0,2)}, v64", f"ds_read_b64 {R(ST1,2)}, v64 offset:256", "ds_read_b32 v67, v66"]
            if not isK:
                post += [f"ds_read_b128 {R(8+16*qb+4*a,4)}, v65 offset:{qb*128 + a*32}" for qb in range(2) for a in range(4)]
        kv_interval(u, isK, fill, post)
        TSL(32 + u)
        if u == PUBU and isK: publish()
    A("s_barrier")
    TS(3)
    A(csum_mfma(STB + 12 * (30 % 6) + 8)); A(csum_mfma(STB + 12 * (31 % 6) + 8))
    mm = kv_mm(30, isK, False) + kv_mm(31, isK, False)
    A(mm[0]); corr_x(CX0, ST0)
    A(mm[1]); corr_x(CX1, ST1)
    A(f"v_readfirstlane_b32 s{sNONCE}, v67")
    cw = capture(lambda: corr_w(CW))
    A(mm[2]); emit(cw[:6]); A(mm[3]); emit(cw[6:])
    for qb, cx in enumerate((CX0, CX1)):
        A(mfma32(ACC + 16 * qb, CW, cx) if isK else mfma32(ACC + 16 * qb, cx, CW))
CSR = 144
def kv_store(isK):
    for qb in range(2):
        st = ST0 if qb == 0 else ST1
        for e in range(2):
            for r in range(8 * e, 8 * e + 8):
                A(f"v_mul_f32 v{ACC+16*qb+r}, v{ACC+16*qb+r}, v{st+1 if isK else 8+16*qb+r}")
            for k in range(4 * e, 4 * e + 4): A(f"v_cvt_pk_bf16_f32 v{OWN+8*qb+k}, v{ACC+16*qb+2*k}, v{ACC+16*qb+2*k+1}")
            b = OWN + 8 * qb + 4 * e; c_ = CSR + 2 * e + qb
            A(f"buffer_store_dwordx4 {R(b,4)}, v{vKA}, {SR(SWS)}, s{33 if qb == 0 else 36} offen offset:{e*(1024 if isK else 256)} sc1")
            A(f"v_add3_u32 v{c_}, v{b}, v{b+1}, v{b+2}\nv_add3_u32 v{c_}, v{c_}, v{b+3}, s{sNONCE}")
    for e in range(2):
        A(f"buffer_store_dwordx2 {R(CSR+2*e,2)}, v{vKC}, {SR(SWS)}, s34 offen offset:{e*512 if isK else 2048+e*128} sc1")

cw_loop(True); kv_store(True)
A("s_mov_b32 s39, 1024\ns_branch L_cpost")
A.label("L_vwave")
cw_loop(False); kv_store(False)
A("s_mov_b32 s39, 256")
A.label("L_cpost")
TS(4)
A("s_setprio 0")
A(f"""s_cmp_ge_u32 s{sC}, 4
s_cselect_b64 s[20:21], -1, 0
v_cndmask_b32_e64 v{vPM}, v{ST0}, v{ST1}, s[20:21]
v_cndmask_b32_e64 v{vPR}, v{ST0+1}, v{ST1+1}, s[20:21]
""")
validated(best_issue, lambda: A(f"v_cmp_ne_u32 vcc, s{sNONCE}, v{BT+3}"), 6)
A(f"v_mov_b32 v{BT+4}, v{BT+2}")
allreduce32(BT + 4, BT + 5, "v_max_u32")
A(f"""v_mov_b32 v{BT+5}, v{BT+4}
v_permlane32_swap_b32 v{BT+4}, v{BT+5}
v_max_u32 v{BT+4}, v{BT+4}, v{BT+5}
s_lshl_b32 s20, s{sW}, 4
s_add_u32 s20, s20, {L_IDX}
v_mov_b32 v2, s20
v_cmp_eq_u32 vcc, v{BT+4}, v{BT+2}
s_mov_b64 exec, vcc
ds_write_b128 v2, {R(BT,4)}
s_mov_b64 exec, -1
s_cmp_lt_u32 s{sDI}, 43
s_cbranch_scc1 L_dprep""")
A(f"""v_bfe_u32 v4, v{vL}, 4, 1
v_lshlrev_b32 v4, 6, v4
v_xor_b32 v2, v{vEX}, v4""")
for k in range(4): A(f"ds_write_b128 v2, {R(GW+4*k,4)} offset:{k*1024}")
A("s_branch L_b9")
A.label("L_dprep")
A(f"""v_lshrrev_b32 v3, 4, v{vL}
v_lshlrev_b32 v3, 6, v3
v_xor_b32 v2, v{vEX}, v3
v_lshrrev_b32 v3, 5, v{vL}
v_bfe_u32 v4, v{vL}, 2, 2
v_lshlrev_b32 v5, 8, v4
v_lshl_add_u32 v5, v3, 11, v5
v_lshl_add_u32 v5, v4, 6, v5
v_bfe_u32 v3, v{vL}, 4, 1
v_lshl_add_u32 v5, v3, 5, v5
v_and_b32 v3, 3, v{vL}
v_lshl_add_u32 v5, v3, 3, v5
s_lshl_b32 s20, s{sW}, 12
s_add_u32 s20, s20, {L_GW}
v_add_u32 v68, s20, v5
v_xor_b32 v69, 64, v68
v_xor_b32 v70, 128, v68
v_xor_b32 v71, 192, v68""")
for rd in range(2):
    for k in range(4): A(f"ds_write_b128 v2, {R(DG[4*rd+k],4)} offset:{k*1024}")
    for t in range(4):
        for j in range(2): A(f"ds_read_b64_tr_b16 {R(DG[4*rd+t]+2*j,2)}, v{68+t} offset:{j*1024}")
A.label("L_b9")
v_prefill(4)
def winner():
    A(f"v_mov_b32 v5, v{SB+2}")
    for m in DPP8[:2]: A(dpp("v_max_u32", 5, m))
    A(f"""v_cmp_eq_u32 vcc, v5, v{SB+2}
v_readfirstlane_b32 s{sKEY}, v5
s_ff1_i32_b32 s20, vcc_lo
v_readlane_b32 s{sSM}, v{SB}, s20
v_readlane_b32 s{sSR}, v{SB+1}, s20""")
A(f"""v_and_b32 v4, 3, v{vL}
v_lshlrev_b32 v4, 4, v4
v_add_u32 v4, {L_IDX}, v4
v_add_u32 v2, {L_OWN}, v{vKA}
v_add_u32 v3, s39, v2
v_and_b32 v72, 7, v{vL}
v_lshlrev_b32 v72, 2, v72
v_mov_b32 v74, v{vSA}
s_waitcnt lgkmcnt(0)
s_barrier""")
TS(48)
A(f"""ds_read_b128 {R(SB,4)}, v4
ds_write_b128 v2, {R(OWN,4)}
ds_write_b128 v3, {R(OWN+4,4)}
ds_write_b128 v2, {R(OWN+8,4)} offset:4096
ds_write_b128 v3, {R(OWN+12,4)} offset:4096
s_waitcnt lgkmcnt(4)""")
winner()
A(f"""s_and_b32 s24, s{sKEY}, 0x7ff
s_sub_u32 s24, 2047, s24
s_lshl_b32 s24, s24, 10
s_and_b32 s25, s{sP}, 7
s_lshl_b32 s25, s25, 7
s_add_u32 s24, s24, s25
s_lshl_b32 s25, s{sW}, 5
s_add_u32 s24, s24, s25
buffer_load_dword v73, v72, {SR(SX)}, s24 offen
s_waitcnt vmcnt(1)""")
TS(49)
k_issue()
TS(50)
v_issue()
TS(51)
A(f"""s_waitcnt vmcnt(12)
v_lshlrev_b32 v2, 16, v73
v_and_b32 v3, 0xffff0000, v73
v_subrev_f32 v2, s{sSM}, v2
v_subrev_f32 v3, s{sSM}, v3
v_cvt_pk_bf16_f32 v4, v2, v3
v_lshlrev_b32 v2, 16, v4
v_and_b32 v3, 0xffff0000, v4
v_mul_f32 v2, s{sSR}, v2
v_mul_f32 v3, s{sSR}, v3
v_cvt_pk_bf16_f32 v4, v2, v3
s_add_u32 s25, s25, {L_XSEL}
v_add_u32 v72, s25, v72
ds_write_b32 v72, v4
v_mov_b32 v75, v{vWA1}""")

A.label("L_join")
TS(5); RC(41)
A("s_waitcnt lgkmcnt(0)\ns_barrier")
A(f"""s_lshl_b32 s20, s{sROLE}, 12
s_add_u32 s21, s20, {L_QF}
s_xor_b32 s20, s20, 4096
s_add_u32 s20, s20, {L_QF}
v_add_u32 v2, s21, v{vRK}
v_add_u32 v3, s20, v{vRK}
ds_read_b128 {R(QF,4)}, v2
ds_read_b128 {R(QF+4,4)}, v3""")
lb = A.newlabel("L_noown"); lb2 = A.newlabel("L_noown2")
A(f"s_cmp_lg_u32 s{sROLE}, 0\ns_cbranch_scc1 {lb}")
A(f"""v_add_u32 v2, {L_OWN}, v{vRK}
v_and_b32 v4, 3, v{vL}
v_lshlrev_b32 v4, 4, v4
v_add_u32 v4, {L_IDX}, v4
ds_read_b128 {R(SB,4)}, v4
ds_read_b128 {R(Kf(4),4)}, v2
ds_read_b128 {R(Kf(5),4)}, v2 offset:4096
ds_read_b128 {R(Vf(4,0),4)}, v2 offset:8192
ds_read_b128 {R(Vf(5,0),4)}, v2 offset:12288
s_branch {lb2}""")
A.label(lb)
GX = 144; GF = 160
A(f"""s_cmp_ge_u32 s{sGU}, 176
s_cbranch_scc1 {lb2}
s_cmp_ge_u32 s{sW}, 2
s_cbranch_scc1 {lb2}
v_lshrrev_b32 v2, 5, v{vL}
v_lshlrev_b32 v2, 4, v2
v_add_u32 v2, {L_XSEL}, v2""")
for st in range(4): A(f"ds_read_b128 {R(GX+4*st,4)}, v2 offset:{st*32}")
for st in range(4):
    for m in range(2):
        for j in range(2):
            A(f"ds_read_b64_tr_b16 {R(GF+8*st+4*m+2*j,2)}, v75 offset:{16384 + m*1024 + st*4096 + j*512}")
A.label(lb2)
A("s_waitcnt lgkmcnt(0)\ns_barrier")
TS(6)
def g_stage():
    lb = A.newlabel("L_nog"); lb2 = A.newlabel("L_nog2")
    A(f"s_cmp_ge_u32 s{sGU}, 176\ns_cbranch_scc1 {lb}\ns_cmp_ge_u32 s{sW}, 2\ns_cbranch_scc1 {lb}")
    for st in range(4):
        for m in range(2): A(mfma32(ACC + 16 * m, GX + 4 * st, GF + 8 * st + 4 * m, None if st else 0))
    A(f"""s_and_b32 s20, s{sP}, 7
s_mul_i32 s20, s20, {1408*16}
s_lshr_b32 s21, s{sGU}, 3
s_lshl_b32 s21, s21, 10
s_add_u32 s20, s20, s21
s_lshl_b32 s21, s{sW}, 9
s_add_u32 s20, s20, s21
s_add_u32 s20, s20, {WS_GP}
v_mov_b32 v{GW+2}, s{sNONCE}
v_mov_b32 v{GW+3}, s{sNONCE}
s_mov_b32 s22, -1
s_mov_b32 s23, 0
v_mov_b32 v{GW}, v{ACC}
v_mov_b32 v{GW+1}, v{ACC+16}
s_mov_b64 exec, s[22:23]
buffer_store_dwordx4 {R(GW,4)}, v74, {SR(SWS)}, s20 offen sc1
s_mov_b64 exec, -1
s_branch {lb2}""")
    A.label(lb)
    A(f"s_mov_b32 s20, 0x40000000\nbuffer_load_dword v254, v74, {SR(SWS)}, s20 offen")
    A.label(lb2)

def gp_issue():
    for q in range(4): A(f"buffer_load_dwordx4 {R(NM+4*q,4)}, v255, {SR(SWS)}, s{28+q} offen sc1")
def gp_check():
    for q in range(4): A(f"v_xor_b32 v{2+q}, s{sNONCE}, v{NM+4*q+2}")
    A("v_or3_b32 v2, v2, v3, v4\nv_or_b32 v2, v2, v5\nv_cmp_ne_u32 vcc, 0, v2")
def d_request():
    lb = A.newlabel("L_nd")
    A(f"""s_cmp_ge_u32 s{sDI}, 43
s_cbranch_scc1 {lb}
s_lshl_b32 s28, s{sDI}, 9
s_add_u32 s28, s28, {WS_GP}
s_add_u32 s29, s28, {2*1408*16}
s_add_u32 s30, s28, {4*1408*16}
s_add_u32 s31, s28, {6*1408*16}""")
    gp_issue()
    A.label(lb)
def d_stage(wait):
    def h():
        lb = A.newlabel("L_nd")
        A(f"s_cmp_ge_u32 s{sDI}, 43\ns_cbranch_scc1 {lb}")
        validated(gp_issue, gp_check, wait)
        A(f"""v_add_f32 v2, v{NM}, v{NM+4}
v_add_f32 v3, v{NM+1}, v{NM+5}
v_add_f32 v4, v{NM+8}, v{NM+12}
v_add_f32 v5, v{NM+9}, v{NM+13}
v_add_f32 v2, v2, v4
v_add_f32 v3, v3, v5
v_mov_b32 v4, v2
v_mov_b32 v5, v3
v_permlane32_swap_b32 v2, v4
v_permlane32_swap_b32 v3, v5
v_add_f32 v2, v2, v4
v_add_f32 v3, v3, v5""")
        bf16round(2, 2); bf16round(3, 3)
        A(f"""v_mul_f32 v4, {f32(-LOG2E)}, v2
v_exp_f32 v4, v4
v_add_f32 v4, 1.0, v4
v_rcp_f32 v4, v4
v_mul_f32 v2, v2, v4""")
        bf16round(2, 2)
        A(f"""v_mul_f32 v2, v2, v3
v_cvt_pk_bf16_f32 v2, v2, v2
s_lshl_b32 s20, s{sW}, 12
s_add_u32 s20, s20, {L_TAIL + 0x4000}
v_and_b32 v3, 31, v{vL}
v_lshl_add_u32 v3, v3, 1, s20
ds_write_b16 v3, v2
v_lshrrev_b32 v3, 5, v{vL}
v_lshl_add_u32 v3, v3, 4, s20
ds_read_b128 {R(56,4)}, v3
ds_read_b128 {R(60,4)}, v3 offset:32
s_lshl_b32 s20, s{sDI}, 12
s_lshl_b32 s21, s{sW}, 10
s_add_u32 s20, s20, s21
s_add_u32 s20, s20, {WS_YP}
s_mov_b32 s22, 0
s_mov_b32 s23, -1
v_lshlrev_b32 v2, 4, v{vL}
v_mov_b32 v66, s{sNONCE}
v_mov_b32 v67, s{sNONCE}
s_waitcnt lgkmcnt(0)""")
        for e in range(2):
            for st in range(2):
                A(mfma32(NM, 56 + 4 * st, DG[4 * st + e], None if st else 0))
                A(mfma32(NM + 16, 56 + 4 * st, DG[4 * st + e + 2], None if st else 0))
            A(f"v_cndmask_b32_e64 v{64+e}, v{NM}, v{NM+16}, s[22:23]")
        A(f"buffer_store_dwordx4 {R(64,4)}, v2, {SR(SWS)}, s20 offen sc1")
        A.label(lb)
    return h
def wo_dma4():
    return [f"""s_and_b32 s26, s{sWB}, 3
s_add_u32 s{sWB}, s{sWB}, 1
s_lshl_b32 s27, s26, 12
s_add_u32 m0, s27, s{sM0}
s_lshl_b32 s27, s26, 14
s_add_u32 s27, s27, s{sWOD}"""] + [f"buffer_load_dwordx4 v{vWO+k}, {SR(SWO)}, s27 offen offset:{k*1024} lds" for k in range(4)]
def kv_check(base, cs):
    for k in range(4):
        b = base(k)
        A(f"v_add3_u32 v{2+k}, v{b}, v{b+1}, v{b+2}\nv_add3_u32 v{2+k}, v{2+k}, v{b+3}, s{sNONCE}\nv_xor_b32 v{2+k}, v{2+k}, v{cs+k}")
    A(f"""v_or_b32 v2, v2, v3
v_or_b32 v4, v4, v5
v_and_b32 v2, s{sH1}, v2
v_and_or_b32 v2, v4, s{sH2}, v2
v_cmp_ne_u32 vcc, 0, v2""")
def k_check(): kv_check(Kf, KC)
def v_check(): kv_check(lambda k: Vf(k, 0), VC)
def vswap(ks):
    for k in ks:
        for r in range(4): A(f"v_permlane16_swap_b32 v{Vf(k,0)+r}, v{Vf(k,1)+r}")
def Q(q): return QF + 4 * q
def smf(dst, k, q, c): return mfma32(dst, Kf(k), Q(q), c)
SEG = lambda k0: [(k0, 0, None), (k0, 1, None), (k0 + 1, 0, None), (k0 + 1, 1, None)]
B3 = [SB, SB + 16, SB + 32]
def nm(q): return R(NM + 16 * q, 16)
def p2_run(jobs, cfun, fresh, extra={}, mem={}):
    n = len(jobs)
    pend = []
    A(smf(B3[0], jobs[0][0], jobs[0][1], cfun(jobs[0][1])))
    for t in range(n):
        k, q, mask = jobs[t]; b = B3[t % 3]
        side = []
        if t + 1 < n: side.append(smf(B3[(t + 1) % 3], jobs[t + 1][0], jobs[t + 1][1], cfun(jobs[t + 1][1])))
        side += pend
        val = [f"v_exp_f32 v{b+r}, v{b+r}" for r in range(16)]
        val += [f"v_cvt_pk_bf16_f32 v{b+j}, v{b+2*j}, v{b+2*j+1}" for j in range(8)]
        if mask == "old": val += [f"v_and_b32 v{b+j}, v{b+j}, v{MK+j}" for j in range(8)]
        if mask == "diag": val += [f"v_bfi_b32 v{b+j}, v{MK+j}, 0, v{b+j}" for j in range(8)]
        mm_ = mem.get(t, [])
        if mm_:
            step = len(val) // len(mm_)
            for q_, x in enumerate(mm_): val[q_ * step + step // 2] += "\n" + x
        vi = 0
        for sx in side:
            A(sx); emit(val[vi:vi + 5]); vi += 5
        emit(val[vi:])
        for fn in extra.get(t, []): fn()
        pend = [mfma32(OA + 16 * q, Vf(k, g), b + 4 * g, 0 if (q in fresh and g == 0) else None) for g in range(2)]
        fresh.discard(q)
    emit(pend)
zero = lambda q: 0
XR = 80
dma = lambda: emit(wo_dma4())
def wo_ops():
    out = []
    for b in range(4):
        l = wo_dma4(); out += [l[0] + "\n" + l[1]] + l[2:]
    return out
def dma_upto(n):
    lt = A.newlabel("L_du"); le = A.newlabel("L_de")
    A.label(lt)
    A(f"s_sub_u32 s20, s{sWE}, {4-n}\ns_cmp_ge_u32 s{sWB}, s20\ns_cbranch_scc1 {le}")
    dma()
    A(f"s_branch {lt}")
    A.label(le)
def after_v(isC, wait):
    def h():
        validated(v_issue, v_check, wait)
        vswap(range(4))
        if isC:
            for pr in range(2):
                A(f"buffer_load_dwordx4 {R(XR+4*pr,4)}, v{vOUT}, {SR(SX)}, s{sOUTO} offen offset:{pr*32}")
            if int(opts.get("opt", 1)):
                A(f"""s_lshl_b32 s20, s{sI}, 4
s_add_u32 s20, s20, s{sC}
s_and_b32 s21, s{sW}, 1
s_lshl_b32 s21, s21, 3
s_add_u32 s20, s20, s21
s_cmp_ge_u32 s{sW}, 2
s_cselect_b32 s21, 10, 12
s_mov_b32 s22, {WS_O}
s_cselect_b32 s22, {WS_OC}, s22
s_cselect_b32 s24, 0xff, -1
s_mov_b32 s25, 0
s_lshl_b32 s20, s20, s21
s_add_u32 s20, s20, s22
v_lshlrev_b32 v2, 7, v{vL}
s_mov_b64 exec, s[24:25]
buffer_load_dword v254, v2, {SR(SWS)}, s20 offen sc1
s_mov_b64 exec, -1""")
        TS(9); RC(43)
    return h
def k_valid(first_wait):
    validated(lambda: (k_issue(), v_issue()), k_check, first_wait)
    TS(7); RC(42)
def sched(ops, plan):
    out = {}; k = 0
    for t, n in plan:
        out[t] = ops[k:k + n]; k += n
    assert k == len(ops)
    return out
OWNJ = [(4, 0, "diag"), (5, 1, "diag"), (4, 1, None)]
OLDJ = [(3, 0, None), (2, 0, "old"), (3, 1, "old")]
A(f"s_cmp_eq_u32 s{sROLE}, 0\ns_cbranch_scc1 L_fA")
g_stage()
TS(8)
k_valid(7)
lb = A.newlabel("L_fb1"); lb2 = A.newlabel("L_fb0")
A(f"s_cmp_eq_u32 s{sH1}, 0\ns_cbranch_scc1 {lb}")
p2_run(SEG(0) + SEG(2), zero, {0, 1}, {0: [after_v(1, 1)], 3: [d_request], 6: [d_stage(7)]}, sched(wo_ops(), [(1, 3), (2, 3), (3, 3), (4, 3), (5, 2), (6, 2)]))
A("s_branch L_fchk")
A.label(lb)
A(f"s_cmp_eq_u32 s{sH2}, 0\ns_cbranch_scc1 {lb2}")
p2_run(SEG(2), zero, {0, 1}, {0: [after_v(1, 1)]})
dma_upto(4)
d_request(); d_stage(0)()
A("s_branch L_fchk")
A.label(lb2)
after_v(1, 1)()
dma_upto(4)
d_request(); d_stage(0)()
for r in range(32): A(f"v_mov_b32 v{OA+r}, 0")
A(f"v_mov_b32 v{vM0}, {f32(-1e30)}\nv_mov_b32 v{vM1}, {f32(-1e30)}")
A("s_branch L_p2done")
A.label("L_fA")
winner()
vswap((4, 5))
A('s_setprio %d' % int(opts.get('lprio', 1)))
p2_run(OWNJ, zero, {0, 1}, {}, sched(capture(k_issue) + capture(v_issue), [(0, 6), (1, 3), (2, 3)]))
TS(8)
k_valid(6)
lb = A.newlabel("L_fa1"); lb2 = A.newlabel("L_fa0")
A(f"s_cmp_eq_u32 s{sH2}, 0\ns_cbranch_scc1 {lb}")
p2_run(SEG(0) + OLDJ, zero, set(), {0: [after_v(0, 0)]}, sched(wo_ops(), [(1, 4), (2, 4), (3, 4), (4, 4)]))
A("s_branch L_fchk")
A.label(lb)
A(f"s_cmp_eq_u32 s{sH1}, 0\ns_cbranch_scc1 {lb2}")
p2_run(SEG(0), zero, set(), {0: [after_v(0, 0)]})
dma_upto(4)
A("s_branch L_fchk")
A.label(lb2)
after_v(0, 0)()
dma_upto(4)
A.label("L_fchk")
LO = (127 - 40) << 23; RNG = 80 << 23
if not FAST: LO, RNG = 0, 0
A(f"""v_subrev_u32 v2, {hex(LO)}, v{OA+8}
v_subrev_u32 v3, {hex(LO)}, v{OA+24}
v_max_u32 v2, v2, v3
v_cmp_le_u32 vcc, {hex(RNG) if RNG else 0}, v2
s_cbranch_vccnz L_slow""")
A.label("L_p2done")
TS(10)

def slow_path():
    A.label("L_slow")
    A(f"v_mov_b32 v{vM0}, {f32(-1e30)}\nv_mov_b32 v{vM1}, {f32(-1e30)}\nv_mov_b32 v5, {f32(-1e30)}")
    def max_run(jobs):
        for (k, q, mask) in jobs:
            m = vM0 if q == 0 else vM1
            A(smf(SB, k, q, 0))
            if mask:
                for r in range(16):
                    j0 = 8 * (r // 4) + r % 4
                    A(f"s_lshl_b32 s20, -1, {j0}\ns_lshl_b32 s21, -1, {j0+4}")
                    if mask == "diag": A(f"v_cndmask_b32_e64 v{SB+r}, v5, v{SB+r}, s[20:21]")
                    else: A(f"v_cndmask_b32_e64 v{SB+r}, v{SB+r}, v5, s[20:21]")
            for r in range(0, 16, 2): A(f"v_max3_f32 v{m}, v{SB+r}, v{SB+r+1}, v{m}")
    def groups(fn):
        l1 = A.newlabel("L_s"); l2 = A.newlabel("L_s"); l3 = A.newlabel("L_s")
        A(f"s_cmp_eq_u32 s{sH1}, 0\ns_cbranch_scc1 {l1}")
        fn(SEG(0))
        A.label(l1)
        A(f"s_cmp_eq_u32 s{sROLE}, 0\ns_cbranch_scc1 {l2}")
        fn(SEG(2))
        A(f"s_branch {l3}")
        A.label(l2)
        fn(OWNJ)
        A(f"s_cmp_eq_u32 s{sH2}, 0\ns_cbranch_scc1 {l3}")
        fn(OLDJ)
        A.label(l3)
    groups(max_run)
    A(f"""v_mov_b32 v2, v{vM0}
v_mov_b32 v3, v{vM1}
v_permlane32_swap_b32 v{vM0}, v2
v_permlane32_swap_b32 v{vM1}, v3
v_max_f32 v{vM0}, v{vM0}, v2
v_max_f32 v{vM1}, v{vM1}, v3""")
    for q, m in enumerate((vM0, vM1)):
        for r in range(16): A(f"v_sub_f32 v{NM+16*q+r}, 0, v{m}")
    for r in range(32): A(f"v_mov_b32 v{OA+r}, 0")
    groups(lambda jobs: p2_run(jobs, nm, set()))
    A("s_branch L_p2done")

A(f"""v_xor_b32 v3, 0x4000, v{vEX}
s_lshl_b32 s20, s{sI}, 1
s_add_u32 s20, s20, s{sROLE}
s_lshl_b32 s20, s20, 3
s_add_u32 s20, s20, s{sC}
s_lshl_b32 s21, s20, 10
s_add_u32 s21, s21, {WS_OC}
s_lshl_b32 s20, s20, 12
s_add_u32 s20, s20, {WS_O}
v_lshrrev_b32 v5, 2, v{vRK}
v_mov_b32 v{OA+25}, v{vM1}
ds_write_b64 v3, {R(OA+24,2)} offset:2048
ds_write_b128 v3, {R(OA+16,4)}
ds_write_b128 v3, {R(OA+20,4)} offset:1024
s_waitcnt lgkmcnt(0)
s_barrier
ds_read_b64 {R(SB+8,2)}, v{vEX} offset:2048
ds_read_b128 {R(SB,4)}, v{vEX}
ds_read_b128 {R(SB+4,4)}, v{vEX} offset:1024
s_waitcnt lgkmcnt(2)
v_max_f32 v3, v{vM0}, v{SB+9}
v_sub_f32 v{SB+10}, v{vM0}, v3
v_sub_f32 v{SB+11}, v{SB+9}, v3
v_exp_f32 v{SB+10}, v{SB+10}
v_exp_f32 v{SB+11}, v{SB+11}
v_mul_f32 v4, v{SB+10}, v{OA+8}
v_fmac_f32 v4, v{SB+11}, v{SB+8}
v_rcp_f32 v4, v4
v_mul_f32 v{SB+10}, v{SB+10}, v4
v_mul_f32 v{SB+11}, v{SB+11}, v4
s_waitcnt lgkmcnt(0)""")
for r in range(0, 8, 2):
    A(f"v_pk_mul_f32 {R(OA+r,2)}, {R(OA+r,2)}, {R(SB+10,2)} op_sel_hi:[1,0]")
    A(f"v_pk_fma_f32 {R(OA+r,2)}, {R(SB+r,2)}, {R(SB+10,2)}, {R(OA+r,2)} op_sel:[0,1,0]")
for k in range(4): A(f"v_cvt_pk_bf16_f32 v{SB+12+k}, v{OA+2*k}, v{OA+2*k+1}")
A(f"""buffer_store_dwordx4 {R(SB+12,4)}, v{vRK}, {SR(SWS)}, s20 offen sc1
v_add3_u32 v4, v{SB+12}, v{SB+13}, v{SB+14}
v_add3_u32 v4, v4, v{SB+15}, s{sNONCE}
buffer_store_dword v4, v5, {SR(SWS)}, s21 offen sc1""")
TS(11)

A("s_waitcnt vmcnt(2)\ns_barrier")
TS(12); RC(44)

WOF = 8; XB = 136; PA = 160; OF = 176; OL = 208; OLC = 224
A(f"""s_lshl_b32 s20, s{sQK}, 3
s_add_u32 s20, s20, s{sW}
s_lshl_b32 s32, s20, 10
s_add_u32 s32, s32, {WS_OC}
s_lshl_b32 s31, s20, 12
s_add_u32 s31, s31, {WS_O}
v_lshlrev_b32 v2, 4, v{vL}
v_lshlrev_b32 v{vRV}, 2, v{vL}
s_and_b32 s33, s{sKEY}, 0x7ff
s_sub_u32 s33, 2047, s33
s_lshr_b32 s34, s33, 5""")
def o_issue():
    for k in range(4):
        A(f"buffer_load_dwordx4 {R(OL+4*k,4)}, v2, {SR(SWS)}, s31 offen offset:{k*1024} sc1")
    for k in range(4):
        A(f"buffer_load_dword v{OLC+k}, v{vRV}, {SR(SWS)}, s32 offen offset:{k*256} sc1")
def o_check():
    for k in range(4):
        b = OL + 4 * k
        A(f"v_add3_u32 v{228+k}, v{b}, v{b+1}, v{b+2}\nv_add3_u32 v{228+k}, v{228+k}, v{b+3}, s{sNONCE}\nv_xor_b32 v{228+k}, v{228+k}, v{OLC+k}")
    A("v_or3_b32 v228, v228, v229, v230\nv_or_b32 v228, v228, v231\nv_cmp_ne_u32 vcc, 0, v228")
lb = A.newlabel("L_p3l")
A(f"s_cmp_ge_u32 s{sW}, 4\ns_cbranch_scc1 {lb}w")
for pr in range(2):
    b = XR + 4 * pr
    A(f"v_permlane32_swap_b32 v{b}, v{b+2}\nv_permlane32_swap_b32 v{b+1}, v{b+3}")
for k in range(8):
    x = XR + k; p = PA + 2 * k
    A(f"""v_lshlrev_b32 v{p}, 16, v{x}
v_and_b32 v{p+1}, 0xffff0000, v{x}
v_pk_add_f32 {R(XB+8,2)}, {R(p,2)}, {R(vPM,2)} op_sel_hi:[1,0] neg_lo:[0,1] neg_hi:[0,1]
v_cvt_pk_bf16_f32 v{XB+10}, v{XB+8}, v{XB+9}
v_lshlrev_b32 v{XB+8}, 16, v{XB+10}
v_and_b32 v{XB+9}, 0xffff0000, v{XB+10}
v_pk_mul_f32 {R(XB+8,2)}, {R(XB+8,2)}, {R(vPM,2)} op_sel:[0,1]
v_cvt_pk_bf16_f32 v{XB+10}, v{XB+8}, v{XB+9}
v_lshlrev_b32 v{XB+8}, 16, v{XB+10}
v_and_b32 v{XB+9}, 0xffff0000, v{XB+10}
v_pk_add_f32 {R(p,2)}, {R(p,2)}, {R(XB+8,2)}""")
A(f"""v_lshrrev_b32 v4, 5, v{vL}
v_bfe_u32 v3, v{vL}, 2, 2
v_lshl_add_u32 v5, v4, 2, v3
v_lshlrev_b32 v5, 8, v5
v_xor_b32 v3, s{sW}, v3
v_lshl_add_u32 v5, v3, 6, v5
v_bfe_u32 v3, v{vL}, 4, 1
v_lshl_add_u32 v5, v3, 5, v5
v_and_b32 v3, 3, v{vL}
v_lshl_add_u32 v5, v3, 3, v5
v_add_u32 v3, 65536, v5""")
for g in range(32):
    for j in range(2):
        o = g * 4096 + j * 2048
        A(f"ds_read_b64_tr_b16 {R(WOF+4*g+2*j,2)}, v{5 if o < 65536 else 3} offset:{o % 65536}")
A.label(lb + "w")
A("s_waitcnt vmcnt(0)")
def yp_issue():
    A(f"""s_and_b32 s20, s{sC}, 3
s_lshl_b32 s20, s20, 10
s_add_u32 s20, s20, {WS_YP}""")
    for k in range(43):
        A(f"buffer_load_dwordx4 {R(8+4*k,4)}, v2, {SR(SWS)}, s20 offen sc1\ns_add_u32 s20, s20, 4096")
A(f"s_cmp_lg_u32 s34, s{sQK}\ns_cbranch_scc1 {lb}\ns_cmp_lg_u32 s{sW}, 4\ns_cbranch_scc1 {lb}")
o_issue(); yp_issue()
A(f"s_waitcnt vmcnt(43)\ns_branch {lb}y")
A.label(lb)
TS(46)
o_issue()
TS(47)
A("s_waitcnt vmcnt(0)")
A.label(lb + "y")
o_check()
retry_check(lb)
for k in range(4):
    A(f"ds_write_b128 v{vEX}, {R(OL+4*k,4)} offset:{k*1024}")
TS(13); RC(45)
A("s_waitcnt lgkmcnt(0)\ns_barrier")
TS(14)
A(f"s_cmp_ge_u32 s{sW}, 4\ns_cbranch_scc1 L_p3help")
A(f"v_add_u32 v2, {L_TAIL}, v2")
def of_read(g): A(f"ds_read_b128 {R(OF+4*(g%8),4)}, v2 offset:{g*1024}")
for g in range(8): of_read(g)
for g in range(32):
    A(f"s_waitcnt lgkmcnt({min(7, 31-g)})")
    A(mfma32(PA, WOF + 4 * g, OF + 4 * (g % 8)))
    if g + 8 < 32: of_read(g + 8)
lb = A.newlabel("L_noz")
A(f"s_cmp_lg_u32 s34, s{sQK}\ns_cbranch_scc1 {lb}")
A(f"""s_barrier
s_lshl_b32 s20, s{sW}, 7
v_lshlrev_b32 v3, 4, v4
v_add_u32 v3, s20, v3""")
for a in range(4): A(f"ds_read_b128 {R(OF+4*a,4)}, v3 offset:{a*32}")
A(f"""s_and_b32 s20, s33, 31
v_and_b32 v3, 31, v{vL}
v_cmp_eq_u32 vcc, s20, v3
s_and_saveexec_b64 s[{sEX}:{sEX+1}], vcc
s_waitcnt lgkmcnt(0)""")
for r in range(16): A(f"v_add_f32 v{PA+r}, v{PA+r}, v{OF+r}")
A(f"s_mov_b64 exec, s[{sEX}:{sEX+1}]")
A.label(lb)
for k in range(8): A(f"v_cvt_pk_bf16_f32 v{XB+k}, v{PA+2*k}, v{PA+2*k+1}")
for pr in range(2):
    b = XB + 4 * pr
    A(f"v_permlane32_swap_b32 v{b}, v{b+2}\nv_permlane32_swap_b32 v{b+1}, v{b+3}")
    A(f"buffer_store_dwordx4 {R(b,4)}, v{vOUT}, {SR(SOUT)}, s{sOUTO} offen offset:{pr*32}")
A("s_branch L_end")
A.label("L_p3help")
A(f"s_cmp_lg_u32 s34, s{sQK}\ns_cbranch_scc1 L_end")
lb = A.newlabel("L_hb")
A(f"s_cmp_lg_u32 s{sW}, 4\ns_cbranch_scc1 {lb}")
def yp_check():
    A("v_mov_b32 v3, 0")
    for k in range(43): A(f"v_xor_b32 v4, s{sNONCE}, v{10+4*k}\nv_or_b32 v3, v3, v4")
    A("v_cmp_ne_u32 vcc, 0, v3")
validated(yp_issue, yp_check, 0)
for k in range(1, 43): A(f"v_add_f32 v8, v8, v{8+4*k}\nv_add_f32 v9, v9, v{9+4*k}")
bf16round(8, 8); bf16round(9, 9)
A(f"""s_and_b32 s20, s{sKEY}, 0xffff0000
s_ashr_i32 s21, s20, 31
s_not_b32 s21, s21
s_or_b32 s21, s21, 0x80000000
s_xor_b32 s20, s20, s21
s_and_b32 s20, s20, 0xffff0000
v_mov_b32 v3, s20
v_mul_f32 v3, {f32(-LOG2E)}, v3
v_exp_f32 v3, v3
v_add_f32 v3, 1.0, v3
v_rcp_f32 v3, v3""")
bf16round(3, 3)
A("v_mul_f32 v8, v8, v3\nv_mul_f32 v9, v9, v3")
bf16round(8, 8); bf16round(9, 9)
A(f"""v_lshrrev_b32 v3, 5, v{vL}
v_lshlrev_b32 v3, 8, v3
v_and_b32 v4, 31, v{vL}
v_lshl_add_u32 v3, v4, 2, v3
ds_write_b32 v3, v8
ds_write_b32 v3, v9 offset:128
s_waitcnt lgkmcnt(0)""")
A.label(lb)
A("s_barrier")
A.label("L_end")
if PROF:
    TS(15)
    A(f"""s_mov_b64 exec, -1
v_writelane_b32 v{vTS}, s{sRETRY}, 62
s_memrealtime s[96:97]
s_waitcnt lgkmcnt(0)
v_writelane_b32 v{vTS}, s96, 61
s_lshl_b32 s20, s2, 3
s_add_u32 s20, s20, s{sW}
s_lshl_b32 s20, s20, 8
s_add_u32 s20, s20, {WS_TS}
v_lshlrev_b32 v2, 2, v{vL}
buffer_store_dword v{vTS}, v2, {SR(SWS)}, s20 offen""")
A.label("L_exit")
A("s_endpgm")
A.label("L_codeend")
slow_path()

body = A.finalize()
hdr = open("cdna_kernels/" + NAME + ".s.ref").read().split("; Override launch")[0]
out = hdr + f"""; Fused single kernel: LN stats + router, QKV GEMM, sliding-window attention, MoD FFN, output projection.
; Generated by gen/gen.py (hand-written generator).
; @launch grid=(256,1,1) block=(512,1,1) lds=163840
.amdgcn_target "amdgcn-amd-amdhsa--gfx950"
.text
.globl {NAME}_kernel
.p2align 8
.type {NAME}_kernel,@function
{NAME}_kernel:
L_start:
{body}
.section .rodata,"a"
.p2align 6
.amdhsa_kernel {NAME}_kernel
  .amdhsa_next_free_vgpr 256
  .amdhsa_next_free_sgpr 102
  .amdhsa_accum_offset 256
  .amdhsa_group_segment_fixed_size 0
  .amdhsa_kernarg_size 88
  .amdhsa_user_sgpr_count 2
  .amdhsa_user_sgpr_kernarg_segment_ptr 1
  .amdhsa_system_sgpr_workgroup_id_x 1
  .amdhsa_float_denorm_mode_32 3
.end_amdhsa_kernel
"""
import subprocess, re
def labels(text):
    open("_g.s", "w").write(text)
    r = subprocess.run(["clang", "-x", "assembler", "-target", "amdgcn-amd-amdhsa", "-mcpu=gfx950", "-c", "_g.s", "-o", "_g.o"], capture_output=True, text=True)
    if r.returncode:
        print("\n".join(r.stderr.split("\n")[:30])); sys.exit(1)
    t = subprocess.run(["llvm-objdump", "-t", "_g.o"], capture_output=True, text=True).stdout
    return {m.group(2): int(m.group(1), 16) for m in re.finditer(r"^([0-9a-f]{16}) .*\s(L_\w+)$", t, re.M)}
lab = labels(out.replace("CODE_PF_MAX", "0x11111"))
out = out.replace("CODE_PF_MAX", hex((lab["L_codeend"] - 256) & ~127))
assert labels(out) == lab
print("code bytes", lab["L_codeend"], "instrs", len(A.ins), "nops", A.nnop)
open(sys.argv[1], "w").write(out)
```

```python
import sys, struct
from asmlib import Asm

NAME = "parallel_sum__sliding_block__moe_arch_mod__prompt"
opts = dict(a.split("=") if "=" in a else (a, "1") for a in sys.argv[2:])
PROF = int(opts.get("prof", 0))
LOOPTS = int(opts.get('loopts', 0))
DEPTH = int(opts.get('depth', 3))
FAST = int(opts.get('fast', 1))
SIBU = int(opts.get('sibu', 4))
GWP = int(opts.get('gwp', 2))
PUBU = int(opts.get('pubu', 1))

def f32(x): return "0x%08x" % struct.unpack("<I", struct.pack("<f", x))[0]
LOG2E = 1.4426950408889634

WS_BEST  = 0x0
WS_STATS = 0x8000
WS_YP    = 0x10000
WS_GP    = 0x40000
WS_KV    = 0x100000
WS_KVC   = 0x500000
WS_O     = 0x600000
WS_OC    = 0x800000
WS_TS    = 0x900000
WS_SIZE  = 0x1000000
L_X = 0; L_RING = 65536; L_MISC = 147456; L_TAIL = 131072
def slot_of(u): return (u + 2) % 5
L_QF = L_MISC
L_SM = L_MISC + 8192
L_RT = L_SM
L_NONCE = L_SM + 128
L_IDX = L_SM + 144
L_XSEL = L_SM + 1024
L_STAT = L_SM + 256
L_RINV = L_SM + 768
L_GW = L_RING + 4 * 16384
L_OWN = L_RING + slot_of(8) * 16384
SX, SW, SWS, SDBG, SWR = 40, 44, 48, 52, 56
SWO, SOUT, SWG, SWU, SWD = 60, 64, 68, 72, 76
sI, sC, sW, sROT, sNONCE, sP, sKEY = 3, 4, 5, 6, 7, 8, 9
sXO, sWOFF, sCT, sWB, sHH, sROLE, sH1, sH2 = 10, 11, 12, 13, 14, 15, 16, 17
sSM, sSR = 18, 19
sOUTO, sQK, sWOD, sM0, sWE, sEX, sRETRY = 80, 81, 82, 83, 84, 86, 88
sGU = 89
sDI = 85
DG = [208, 212, 216, 220, 228, 232, 236, 76]
sRB = 90
vL, vZ, vTS = 1, 6, 7
vXA, vWA0, vWA1 = 88, 92, 93
vX0, vX1, vW0, vW1 = 80, 81, 82, 83
vSA, vKA, vKC, vBA = 80, 81, 82, 83
ACC = 96; STB = 128; CS = 200; SEL = 204; GW = 208; ST0, ST1 = 224, 226; XS = 228
OWN = 128; SL = 8
KC, VC, QF, NM, OA, SB, WD, MK = 80, 84, 88, 96, 128, 160, 208, 232
vM0, vM1, vRK, vRV, vRKC, vGA, vEX, vOUT, vPM, vPR, vWO = 240, 241, 242, 243, 244, 245, 246, 247, 248, 249, 250
A = Asm()

def TS(n):
    if PROF: A(f"s_memtime s[98:99]\ns_waitcnt lgkmcnt(0)\nv_writelane_b32 v{vTS}, s98, {n}")
def TSL(n):
    if LOOPTS: TS(n)
def RC(n):
    if PROF: A(f"v_writelane_b32 v{vTS}, s{sRETRY}, {n}")
def srd(base, size): A(f"s_mov_b32 s{base+2}, {size}\ns_mov_b32 s{base+3}, 0x20000")
def R(b, n): return f"v[{b}:{b+n-1}]"
def SR(b): return f"s[{b}:{b+3}]"
DPP8 = ("quad_perm:[1,0,3,2]", "quad_perm:[2,3,0,1]", "row_half_mirror")
def dpp(op, x, m): return f"{op}_dpp v{x}, v{x}, v{x} {m} row_mask:0xf bank_mask:0xf"
def allreduce32(x, t, op):
    for m in DPP8 + ("row_mirror",): A(dpp(op, x, m))
    A(f"v_mov_b32 v{t}, v{x}\nv_permlane16_swap_b32 v{x}, v{t}\n{op} v{x}, v{x}, v{t}")
def bf16round(dst, src):
    A(f"v_cvt_pk_bf16_f32 v{dst}, v{src}, v{src}\nv_and_b32 v{dst}, 0xffff0000, v{dst}")
def retry_check(lbl):
    A(f"s_add_u32 s{sRETRY}, s{sRETRY}, 1\ns_cmp_gt_u32 s{sRETRY}, 20000\ns_cbranch_scc1 L_end")
    A(f"s_cbranch_vccnz {lbl}")
def validated(issue, check, first_wait, retry_wait=0):
    lr = A.newlabel("L_rt"); lo = A.newlabel("L_ok")
    A(f"s_waitcnt vmcnt({first_wait})"); check(); A(f"s_cbranch_vccz {lo}")
    A.label(lr)
    issue(); A(f"s_waitcnt vmcnt({retry_wait})"); check()
    retry_check(lr)
    A.label(lo)
def capture(fn):
    n = len(A.ins); fn(); out = [x.text for x in A.ins[n:]]; del A.ins[n:]
    return out
def emit(l):
    for x in l: A(x)
def split(l, n): return [l[len(l)*k//n: len(l)*(k+1)//n] for k in range(n)]
def mfma32(d, a, b, c=None):
    return f"v_mfma_f32_32x32x16_bf16 {R(d,16)}, {R(a,4)}, {R(b,4)}, {R(d,16) if c is None else c}"
def var_to_rinv(v):
    bf16round(v, v)
    A(f"v_add_f32 v{v}, {f32(1e-5)}, v{v}")
    bf16round(v, v)
    A(f"v_sqrt_f32 v{v}, v{v}")
    bf16round(v, v)
    A(f"v_rcp_f32 v{v}, v{v}")

A("s_cmp_ge_u32 s2, 256\ns_cbranch_scc1 L_exit")
for b, off in ((SX, 0), (SW, 8), (SWR, 32), (SDBG, 72), (SWS, 80), (SWO, 16), (SWG, 40), (SWU, 48), (SWD, 56), (SOUT, 64)):
    A(f"s_load_dwordx2 s[{b}:{b+1}], s[0:1], {off}")
A(f"""s_getpc_b64 s[22:23]
v_lshrrev_b32 v2, 6, v0
v_and_b32 v{vL}, 63, v0
s_and_b32 s20, s2, 3
s_lshr_b32 s21, s2, 3
v_readfirstlane_b32 s{sW}, v2
s_lshl_b32 s20, s20, 3
s_and_b32 s24, s21, 7
s_add_u32 s{sI}, s20, s24
s_bfe_u32 s20, s2, 0x10002
s_lshl_b32 s20, s20, 2
s_lshr_b32 s24, s21, 3
s_add_u32 s{sC}, s20, s24
s_lshl_b32 s{sP}, s{sI}, 3
s_add_u32 s{sP}, s{sP}, s{sC}
s_sub_u32 s{sGU}, s{sP}, 32
s_sub_u32 s{sDI}, s{sP}, 176
s_cmp_lt_u32 s{sGU}, 176
s_cselect_b32 s{sDI}, 255, s{sDI}
s_cmp_lt_u32 s{sP}, 32
s_cselect_b32 s{sDI}, s{sP}, s{sDI}
s_mov_b32 s{sRETRY}, 0""")
srd(SX, 2048 * 1024)
if PROF:
    A(f"v_mov_b32 v{vTS}, 0\ns_memrealtime s[96:97]\ns_waitcnt lgkmcnt(0)\nv_writelane_b32 v{vTS}, s96, 63")
    TS(0)
A(f"s_cmp_ge_u32 s{sW}, 4\ns_cbranch_scc1 L_lwave")
srd(SWR, 1024)
A(f"""v_and_b32 v2, 31, v{vL}
v_lshlrev_b32 v{vSA}, 4, v2
v_lshrrev_b32 v3, 5, v{vL}
v_lshl_add_u32 v4, v3, 10, v{vSA}
s_lshl_b32 s20, s{sP}, 3
s_lshl_b32 s21, s{sW}, 1
s_add_u32 s20, s20, s21
s_lshl_b32 s21, s20, 10
s_waitcnt lgkmcnt(0)
buffer_load_dwordx4 v[8:11], v4, {SR(SX)}, s21 offen
buffer_load_dwordx4 v[12:15], v4, {SR(SX)}, s21 offen offset:512
buffer_load_dwordx4 v[16:19], v{vSA}, {SR(SWR)}, 0 offen
buffer_load_dwordx4 v[20:23], v{vSA}, {SR(SWR)}, 0 offen offset:512
s_branch L_cwave""")

def frag_addrs():
    A(f"""v_and_b32 v2, 31, v{vL}
v_lshrrev_b32 v3, 5, v{vL}
v_bfe_u32 v4, v2, 1, 3
v_xor_b32 v4, v4, v3
v_lshlrev_b32 v4, 4, v4
v_lshl_add_u32 v4, v2, 7, v4
v_add_u32 v{vXA}, s28, v4
v_xor_b32 v{vXA+1}, 32, v{vXA}
v_xor_b32 v{vXA+2}, 64, v{vXA}
v_xor_b32 v{vXA+3}, 96, v{vXA}
v_bfe_u32 v4, v{vL}, 2, 2
v_lshlrev_b32 v4, 7, v4
v_lshl_add_u32 v4, v3, 11, v4
v_bfe_u32 v5, v{vL}, 3, 1
v_lshl_add_u32 v4, v5, 6, v4
v_bfe_u32 v5, v{vL}, 4, 1
v_lshl_add_u32 v4, v5, 5, v4
v_and_b32 v5, 3, v{vL}
v_lshl_add_u32 v{vGA}, v5, 3, v4
s_lshl_b32 s20, s{sCT}, 6
v_xor_b32 v4, s20, v{vGA}
v_add_u32 v{vWA0}, s29, v4
v_add_u32 v{vWA1}, {3*16384}, v{vWA0}
v_lshrrev_b32 v4, 4, v{vL}
v_xor_b32 v4, v4, v{vL}
v_and_b32 v4, 1, v4
v_add_u32 v4, -1, v4
v_and_b32 v{SEL}, 0x3f803f80, v4
v_mov_b32 v{SEL+1}, v{SEL}
v_mov_b32 v{SEL+2}, v{SEL}
v_mov_b32 v{SEL+3}, v{SEL}""")
    for r in range(4): A(f"v_mov_b32 v{CS+r}, 0")
def wa(slot, off):
    return (vWA0, slot * 16384 + off) if slot < 3 else (vWA1, (slot - 3) * 16384 + off)
def csum_mfma(wf): return f"v_mfma_f32_16x16x32_bf16 {R(CS,4)}, {R(SEL,4)}, {R(wf,4)}, {R(CS,4)}"
def corr_w(dst):
    A(f"""s_mov_b32 s20, 0xffff0000
s_mov_b32 s21, 0xffff0000
v_cndmask_b32_e64 v2, v{CS}, v{CS+1}, s[20:21]
v_mul_f32 v2, 0.5, v2""")
    bf16round(3, 2)
    A("v_sub_f32 v2, v2, v3")
    bf16round(4, 2)
    A(f"""v_sub_f32 v2, v2, v4
v_cvt_pk_bf16_f32 v{dst}, v3, v4
v_cvt_pk_bf16_f32 v{dst+1}, v2, 0""")
def corr_x(dst, m):
    A(f"""v_cvt_pk_bf16_f32 v{dst}, -v{m}, -v{m}
v_cvt_pk_bf16_f32 v{dst+1}, -v{m}, 0
v_mov_b32 v{dst+2}, 0
v_mov_b32 v{dst+3}, 0""")
def Kf(k): return SL + 12 * k
def Vf(k, g): return SL + 12 * k + 4 + 4 * g
def attn_setup_s():
    A(f"""s_sub_u32 s20, 3, s{sROLE}
s_cmp_eq_u32 s{sROLE}, 0
s_cselect_b32 s21, 4, 1
s_sub_u32 s22, s{sI}, s20
s_lshl_b32 s22, s22, 3
s_add_u32 s22, s22, s{sC}
s_cmp_ge_u32 s{sI}, s20
s_cselect_b32 s{sH1}, -1, 0
s_cselect_b32 s22, s22, 0x10000
s_sub_u32 s23, s{sI}, s21
s_lshl_b32 s23, s23, 3
s_add_u32 s23, s23, s{sC}
s_cmp_ge_u32 s{sI}, s21
s_cselect_b32 s{sH2}, -1, 0
s_cselect_b32 s23, s23, 0x10000
s_lshl_b32 s{sRB}, s22, 14
s_add_u32 s{sRB}, s{sRB}, {WS_KV}
s_add_u32 s{sRB+1}, s{sRB}, 4096
s_lshl_b32 s{sRB+2}, s23, 14
s_add_u32 s{sRB+2}, s{sRB+2}, {WS_KV}
s_add_u32 s{sRB+3}, s{sRB+2}, 4096
s_lshl_b32 s{sRB+4}, s22, 12
s_add_u32 s{sRB+4}, s{sRB+4}, {WS_KVC}
s_lshl_b32 s{sRB+5}, s23, 12
s_add_u32 s{sRB+5}, s{sRB+5}, {WS_KVC}
s_lshl_b32 s{sWOD}, s{sW}, 16
s_and_b32 s20, s{sC}, 3
s_lshl_b32 s20, s20, 8
s_add_u32 s{sWOD}, s{sWOD}, s20
s_lshl_b32 s{sM0}, s{sW}, 14
s_mov_b32 s{sWB}, s{sI}
s_add_u32 s{sWE}, s{sI}, 4
s_lshl_b32 s{sQK}, s{sI}, 1
s_lshr_b32 s21, s{sC}, 2
s_add_u32 s{sQK}, s{sQK}, s21
s_lshl_b32 s{sOUTO}, s{sQK}, 15
s_add_u32 s{sOUTO}, s{sOUTO}, s20
s_lshl_b32 s20, s{sHH}, 6
s_add_u32 s{sOUTO}, s{sOUTO}, s20""")
    srd(SWD, 1376 * 1024); srd(SOUT, 2048 * 1024); srd(SWO, 0 if opts.get('nowo') else 512 * 1024); srd(SWS, WS_SIZE)
def attn_setup_v():
    A(f"""s_lshl_b32 s20, s{sHH}, 10
v_lshlrev_b32 v{vRK}, 4, v{vL}
s_lshl_b32 s21, s{sW}, 12
s_add_u32 s21, s21, {L_TAIL}
v_add_u32 v{vEX}, s21, v{vRK}
v_add_u32 v{vRK}, s20, v{vRK}
v_lshrrev_b32 v{vRKC}, 1, v{vRK}
v_add_u32 v{vRV}, 8192, v{vRK}
v_lshrrev_b32 v2, 4, v{vL}
v_and_b32 v3, 15, v{vL}
v_lshlrev_b32 v4, 2, v2
v_xor_b32 v3, v3, v4
v_lshlrev_b32 v3, 4, v3
v_lshl_add_u32 v{vWO}, v2, 10, v3
v_add_u32 v{vWO+1}, 3072, v{vWO}
v_add_u32 v{vWO+2}, 6144, v{vWO}
v_add_u32 v{vWO+3}, 9216, v{vWO}
v_and_b32 v3, 31, v{vL}
v_lshrrev_b32 v4, 5, v{vL}
v_lshlrev_b32 v{vOUT}, 10, v3
v_lshl_add_u32 v{vOUT}, v4, 4, v{vOUT}
v_mul_u32_u24 v4, {1408*16}, v4
v_lshl_add_u32 v255, v3, 4, v4
v_mov_b32 v{vM0}, 0
v_mov_b32 v{vM1}, 0""")
def mk_setup():
    A(f"""v_and_b32 v2, 31, v{vL}
v_lshrrev_b32 v3, 5, v{vL}
v_lshlrev_b32 v3, 2, v3
v_sub_u32 v2, v2, v3
v_mov_b32 v192, -1
v_mov_b32 v193, -1""")
    for k in range(8):
        j0 = 8 * (k // 2) + 2 * (k % 2)
        A(f"""v_add_u32 v3, {1 - j0}, v2
v_med3_i32 v3, v3, 0, 2
v_lshlrev_b32 v3, 4, v3
v_lshlrev_b64 v[194:195], v3, v[192:193]
v_mov_b32 v{MK+k}, v194""")
def v_prefill(n):
    A(f"v_mov_b32 v{Vf(0,1)}, 0x3f803f80")
    for k in range(n):
        for r in range(4):
            if k or r: A(f"v_mov_b32 v{Vf(k,1)+r}, v{Vf(0,1)}")
def k_issue():
    for k in range(4):
        A(f"buffer_load_dwordx4 {R(Kf(k),4)}, v{vRK}, {SR(SWS)}, s{sRB+k} offen sc1")
    for p in range(2):
        A(f"buffer_load_dwordx2 {R(KC+2*p,2)}, v{vRKC}, {SR(SWS)}, s{sRB+4+p} offen sc1")
def v_issue():
    for k in range(4):
        A(f"buffer_load_dwordx4 {R(Vf(k,0),4)}, v{vRV}, {SR(SWS)}, s{sRB+k} offen sc1")
    for p in range(2):
        A(f"buffer_load_dwordx2 {R(VC+2*p,2)}, v{vRKC}, {SR(SWS)}, s{sRB+4+p} offen offset:2048 sc1")

A.label("L_lwave")
srd(SW, 512 * 3072)
A(f"""s_add_u32 s20, s{sC}, s{sI}
s_and_b32 s20, s20, 3
s_lshl_b32 s{sROT}, s20, 1
s_sub_u32 s{sHH}, s{sW}, 4
v_lshrrev_b32 v2, 3, v{vL}
v_and_b32 v3, 7, v{vL}
v_lshrrev_b32 v4, 1, v2
v_xor_b32 v5, v3, v4
v_lshlrev_b32 v5, 4, v5
v_lshl_add_u32 v{vX0}, v2, 10, v5
v_xor_b32 v5, 64, v5
v_lshl_add_u32 v{vX1}, v2, 10, v5
v_add_u32 v{vX1}, {8192-1024}, v{vX1}
v_and_b32 v4, 1, v4
v_lshlrev_b32 v4, 2, v4
v_xor_b32 v5, v3, v4
v_lshlrev_b32 v84, 4, v5
v_mul_u32_u24 v{vW0}, 3072, v2
v_add_u32 v{vW0}, v{vW0}, v84
v_add_u32 v{vW1}, {24576-2048}, v{vW0}
s_lshl_b32 s{sXO}, s{sI}, 16
s_lshl_b32 s20, s{sHH}, 14
s_add_u32 s{sXO}, s{sXO}, s20
s_lshl_b32 s{sWOFF}, s{sC}, 7
s_mul_i32 s20, s{sHH}, {16*3072}
s_add_u32 s{sWOFF}, s{sWOFF}, s20
s_lshl_b32 s31, s{sHH}, 11
s_lshl_b32 s32, s{sHH}, 12
s_lshr_b32 s20, s2, 3
s_lshl_b32 s20, s20, 10
s_lshl_b32 s21, s{sHH}, 8
s_add_u32 s20, s20, s21
s_min_u32 s20, s20, CODE_PF_MAX
s_add_u32 s22, s22, s20
s_addc_u32 s23, s23, 0
s_waitcnt lgkmcnt(0)
""")
if not opts.get("nocpf"):
    for o_ in (0, 64, 128, 192): A(f"s_load_dword s100, s[22:23], {o_}")
lb = A.newlabel("L_nt")
A(f"s_cmp_lg_u32 s{sW}, 7\ns_cbranch_scc1 {lb}")
for b in (SWR, SWG, SWU, SWO, SWD, SOUT):
    A(f"s_load_dword s100, s[{b}:{b+1}], 0")
A(f"s_load_dword s100, s[{SDBG}:{SDBG+1}], 128")
for off in (0xF000, 0x2FF000 , 0x4FF000, 0x6FF000, 0x8FF000):
    A(f"s_mov_b32 s20, {off}\ns_load_dword s100, s[{SWS}:{SWS+1}], s20")
A.label(lb)
XOF = {u: [u] for u in range(8)}
def issue_unit(u):
    slot = slot_of(u)
    for t in XOF.get(u, []):
        A(f"""s_add_u32 s33, s{sROT}, {t}
s_and_b32 s33, s33, 7
s_lshl_b32 s34, s33, 7
s_add_u32 m0, s31, {L_X + t*8192}
s_add_u32 s34, s34, s{sXO}
buffer_load_dwordx4 v{vX0}, {SR(SX)}, s34 offen lds
buffer_load_dwordx4 v{vX1}, {SR(SX)}, s34 offen offset:1024 lds""")
    if u < 8:
        A(f"""s_add_u32 s33, s{sROT}, {u}
s_and_b32 s33, s33, 7
s_mul_i32 s35, s33, {64*3072}
s_add_u32 s35, s35, s{sWOFF}
s_add_u32 m0, s32, {L_RING + slot*16384}
s_add_u32 s35, s35, 1024
buffer_load_dwordx4 v{vW0}, {SR(SW)}, s35 offen lds
buffer_load_dwordx4 v{vW0}, {SR(SW)}, s35 offen offset:1024 lds
buffer_load_dwordx4 v{vW1}, {SR(SW)}, s35 offen offset:2048 lds
buffer_load_dwordx4 v{vW1}, {SR(SW)}, s35 offen offset:3072 lds""")
    else:
        for e in range(2):
            A(f"""s_add_u32 s33, s{sROT}, {2*(u-8)+e}
s_and_b32 s33, s33, 7
s_mul_i32 s35, s33, {64*3072}
s_add_u32 m0, s32, {L_RING + slot*16384 + e*1024}
s_add_u32 s35, s35, s{sWOFF}
buffer_load_dwordx4 v{vW0}, {SR(SW)}, s35 offen lds
buffer_load_dwordx4 v{vW1}, {SR(SW)}, s35 offen offset:2048 lds""")
def ucount(u): return 4 + 2 * len(XOF.get(u, []))
for u in range(DEPTH): issue_unit(u)
TS(1)
SA = 112
A(f"""s_and_b32 s{sCT}, s{sHH}, 1
s_lshr_b32 s28, s{sHH}, 1
s_lshl_b32 s28, s28, 12
s_mov_b32 s29, {L_RING}
s_mov_b32 s{sROLE}, 0
v_lshlrev_b32 v85, 4, v{vL}
s_lshl_b32 s30, s{sI}, 10
s_add_u32 s30, s30, {WS_STATS}
s_cmp_lg_u32 s{sHH}, 0
s_cselect_b32 s30, 0x40000000, s30
s_mov_b32 s36, {WS_BEST}
s_cmp_lg_u32 s{sHH}, 1
s_cselect_b32 s36, 0x40000000, s36""")
attn_setup_s()
def sib_issue(): A(f"buffer_load_dwordx4 {R(SA,4)}, v85, {SR(SWS)}, s30 offen sc1")
lp = split(capture(lambda: (frag_addrs(), attn_setup_v(), v_prefill(6), mk_setup())), 6)
lpieces = {0: lp[0], 1: lp[1], 2: lp[2], 3: lp[3], 4: lp[4], 5: lp[5]}
ops = []
for u in range(DEPTH): ops += [u] * ucount(u)
def younger_than(tag): return len(ops) - 1 - max(k for k, x in enumerate(ops) if x == tag)
issued = DEPTH
for u in range(8):
    TSL(32 + u)
    A(f"s_waitcnt vmcnt({younger_than(u)})")
    TSL(16 + u)
    A("s_barrier")
    TSL(24 + u)
    if u == SIBU:
        sib_issue(); ops.append("sib")
    tgt = min(12, u + 1 + DEPTH + max(0, u - 1 - DEPTH), u + 5)
    while issued < tgt:
        issue_unit(issued); ops += [issued] * ucount(issued); issued += 1
    emit(lpieces.get(u, []))
    if u == 6:
        lb = A.newlabel("L_nsib")
        A(f"""v_mov_b32 v122, {L_NONCE}
ds_read_b32 v123, v122
s_waitcnt lgkmcnt(0)
v_readfirstlane_b32 s{sNONCE}, v123
s_cmp_lg_u32 s{sHH}, 0
s_cbranch_scc1 {lb}""")
        validated(sib_issue, lambda: A(f"v_cmp_ne_u32 vcc, s{sNONCE}, v{SA+3}"), younger_than("sib"))
        A(f"""v_lshrrev_b32 v122, 1, v85
v_lshrrev_b32 v123, 2, v85
v_add_u32 v122, {L_STAT}, v122
v_add_u32 v123, {L_RINV}, v123
ds_write_b64 v122, {R(SA,2)}
ds_write_b32 v123, v{SA+1}
s_waitcnt lgkmcnt(0)""")
        A.label(lb)
assert issued == 12, issued
TS(2)
LST, LSC, LCX, LCW = 116, 118, 120, 124
for r in range(16): A(f"v_mov_b32 v{ACC+r}, 0")
A(f"""v_and_b32 v2, 31, v{vL}
v_lshlrev_b32 v2, 3, v2
s_lshr_b32 s20, s28, 4
s_add_u32 s20, s20, {L_STAT}
v_add_u32 v2, s20, v2
ds_read_b64 {R(LST,2)}, v2
s_waitcnt lgkmcnt(0)""")
corr_x(LCX, LST)
A(f"""v_mul_f32 v{LSC}, {f32(0.25*LOG2E)}, v{LST+1}
v_mov_b32 v{LCW+2}, 0
v_mov_b32 v{LCW+3}, 0
s_lshl_b32 s30, s{sHH}, 11
s_add_u32 s30, s30, {L_QF}
v_lshlrev_b32 v5, 4, v{vL}
v_add_u32 v5, s30, v5""")
def q_reads(n):
    u = 8 + n // 8; e = (n // 4) % 2; st = n % 4; b = STB + 8 * (n % 8)
    out = [f"ds_read_b128 {R(b,4)}, v{vXA+st} offset:{(n//4)*8192}"]
    for j in range(2):
        r, o = wa(slot_of(u), e * 1024 + st * 4096 + j * 512)
        out.append(f"ds_read_b64_tr_b16 {R(b+4+2*j,2)}, v{r} offset:{o}")
    return out
def q_span(n0, n1, depth=4, fill=()):
    fill = list(fill)
    for n in range(n0, min(n0 + depth, n1)): emit(q_reads(n))
    for n in range(n0, n1):
        ahead = min(n + depth, n1) - n - 1
        A(f"s_waitcnt lgkmcnt({3*ahead})")
        b = STB + 8 * (n % 8)
        A(csum_mfma(b + 4))
        A(mfma32(ACC, b + 4, b))
        if n + depth < n1: emit(q_reads(n + depth))
        if n - n0 >= 2: emit(fill[:1]); fill = fill[1:]
A("s_waitcnt vmcnt(4)\ns_barrier")
TS(3)
TS(48)
q_span(0, 24)
TS(49)
A("s_waitcnt vmcnt(0)\ns_barrier")
q_span(24, 32)
TS(4)
corr_w(LCW)
A(mfma32(ACC, LCW, LCX))
for r in range(16): A(f"v_mul_f32 v{ACC+r}, v{ACC+r}, v{LSC}")
for k in range(8): A(f"v_cvt_pk_bf16_f32 v{STB+k}, v{ACC+2*k}, v{ACC+2*k+1}")
A(f"ds_write_b128 v5, {R(STB,4)}\nds_write_b128 v5, {R(STB+4,4)} offset:1024")
TS(50)
A("s_branch L_join")

A.label("L_cwave")
srd(SDBG, 256); srd(SWG, 512 * 2752); srd(SWU, 512 * 2752)
A(f"v_mov_b32 v{vZ}, 0\nv_add_u32 v62, s20, v3")
A(f"s_lshr_b32 s24, s2, 3\ns_or_b32 s24, s24, s{sW}\ns_cmp_lg_u32 s24, 0\ns_cbranch_scc1 L_nononce")
A(f"s_memrealtime s[24:25]\ns_waitcnt lgkmcnt(0)\ns_or_b32 s24, s24, 1\nv_mov_b32 v58, s24\nv_mov_b32 v59, 0\ns_mov_b64 exec, 1")
A(f"buffer_atomic_cmpswap v[58:59], v{vZ}, {SR(SDBG)}, 0 offen sc1\ns_mov_b64 exec, -1")
A.label("L_nononce")
A(f"""s_and_b32 s{sCT}, s{sW}, 1
s_mov_b32 s28, 0
s_lshr_b32 s29, s{sW}, 1
s_lshl_b32 s29, s29, 10
s_add_u32 s29, s29, {L_RING}
s_mov_b32 s{sHH}, s{sW}
s_mov_b32 s{sROLE}, 1
v_lshlrev_b32 v{vBA}, 4, v{vL}
s_lshl_b32 s35, s{sW}, 10
s_add_u32 s35, s35, {WS_BEST}
s_lshl_b32 s33, s{sP}, 14
s_add_u32 s33, s33, {WS_KV}
s_add_u32 s36, s33, 4096
s_lshl_b32 s34, s{sP}, 12
s_add_u32 s34, s34, {WS_KVC}""")
frag_addrs()
for r in range(32): A(f"v_mov_b32 v{ACC+r}, 0")
attn_setup_s(); attn_setup_v()
A(f"""v_lshrrev_b32 v2, 3, v{vL}
v_mul_u32_u24 v3, 2752, v2
v_and_b32 v4, 7, v{vL}
v_lshl_add_u32 v5, v4, 4, v3
s_and_b32 s31, s{sP}, 7
s_lshl_b32 s31, s31, 6
s_lshl_b32 s32, s{sW}, 4
s_add_u32 s31, s31, s32
s_mul_i32 s31, s31, 2752
s_lshr_b32 s32, s{sGU}, 3
s_lshl_b32 s32, s32, 7
s_add_u32 s31, s31, s32
s_cmp_ge_u32 s{sGU}, {0 if opts.get("nogw") else 176}
s_cselect_b32 s31, 0x40000000, s31
s_add_u32 s32, s31, {8*2752}""")
A(f"""s_lshl_b32 s37, s{sDI}, 15
s_lshl_b32 s38, s{sW}, 8
s_add_u32 s37, s37, s38
v_lshrrev_b32 v2, 4, v{vL}
v_and_b32 v3, 15, v{vL}
v_lshlrev_b32 v3, 4, v3
v_lshl_add_u32 v63, v2, 10, v3""")
def gw_issue():
    l1 = A.newlabel("L_gw"); l2 = A.newlabel("L_gw")
    A(f"s_cmp_lt_u32 s{sDI}, 43\ns_cbranch_scc1 {l1}")
    A(f"""buffer_load_dwordx4 {R(GW,4)}, v5, {SR(SWG)}, s31 offen
buffer_load_dwordx4 {R(GW+4,4)}, v5, {SR(SWU)}, s31 offen
buffer_load_dwordx4 {R(GW+8,4)}, v5, {SR(SWG)}, s32 offen
buffer_load_dwordx4 {R(GW+12,4)}, v5, {SR(SWU)}, s32 offen
s_branch {l2}""")
    A.label(l1)
    for n in range(8):
        A(f"buffer_load_dwordx4 {R(DG[n],4)}, v63, {SR(SWD)}, s37 offen\ns_add_u32 s37, s37, 4096")
    A.label(l2)
assert GWP == 2
if GWP == 0:
    gw_issue(); A("s_waitcnt vmcnt(4)")
else:
    A("s_waitcnt vmcnt(2)")
    if GWP == 1: gw_issue()
TS(1)
XU = 24
for k in range(8):
    A(f"v_lshlrev_b32 v{XU+2*k}, 16, v{8+k}\nv_and_b32 v{XU+2*k+1}, 0xffff0000, v{8+k}")
A(f"v_pk_add_f32 v[40:41], {R(XU,2)}, {R(XU+2,2)}")
for k in range(4, 16, 2): A(f"v_pk_add_f32 v[40:41], v[40:41], {R(XU+k,2)}")
A("v_add_f32 v40, v40, v41")
allreduce32(40, 41, "v_add_f32")
A(f"v_mul_f32 v40, {f32(-1.0/512)}, v40")
A("v_cvt_pk_bf16_f32 v42, -v40, -v40\nv_and_b32 v42, 0xffff0000, v42")
A(f"v_pk_add_f32 v[46:47], {R(XU,2)}, v[40:41] op_sel_hi:[1,0]\nv_pk_mul_f32 v[44:45], v[46:47], v[46:47]")
for k in range(2, 16, 2):
    A(f"v_pk_add_f32 v[46:47], {R(XU+k,2)}, v[40:41] op_sel_hi:[1,0]\nv_pk_fma_f32 v[44:45], v[46:47], v[46:47], v[44:45]")
A("v_add_f32 v43, v44, v45")
allreduce32(43, 41, "v_add_f32")
for k in range(0, 16, 2): A(f"v_pk_add_f32 {R(XU+k,2)}, {R(XU+k,2)}, v[42:43] op_sel_hi:[1,0] neg_lo:[0,1] neg_hi:[0,1]")
A(f"v_mul_f32 v43, {f32(1.0/512)}, v43")
for k in range(8): A(f"v_cvt_pk_bf16_f32 v{8+k}, v{XU+2*k}, v{XU+2*k+1}")
var_to_rinv(43)
for k in range(8):
    A(f"v_lshlrev_b32 v{XU+2*k}, 16, v{8+k}\nv_and_b32 v{XU+2*k+1}, 0xffff0000, v{8+k}")
for k in range(0, 16, 2): A(f"v_pk_mul_f32 {R(XU+k,2)}, {R(XU+k,2)}, v[42:43] op_sel:[0,1]")
for k in range(8): A(f"v_cvt_pk_bf16_f32 v{8+k}, v{XU+2*k}, v{XU+2*k+1}")
A("v_mov_b32 v44, 0\ns_waitcnt vmcnt(0)")
for k in range(8): A(f"v_dot2_f32_bf16 v44, v{8+k}, v{16+k}, v44")
allreduce32(44, 41, "v_add_f32")
bf16round(44, 44)
A(f"""v_ashrrev_i32 v45, 31, v44
v_or_b32 v45, 0x80000000, v45
v_xor_b32 v44, v44, v45
v_and_b32 v44, 0xffff0000, v44
v_sub_u32 v45, 2047, v62
v_or_b32 v44, v44, v45
v_and_b32 v46, 7, v62
v_lshlrev_b32 v46, 4, v46
v_add_u32 v46, {L_RT}, v46
ds_write_b96 v46, v[42:44]
s_lshl_b32 s24, s{sW}, 8
buffer_load_dword v60, v{vZ}, {SR(SDBG)}, s24 offen sc1
s_setprio {int(opts.get("prio", 2))}""")
if GWP == 2: gw_issue()
TS(2)
A("s_waitcnt lgkmcnt(0)")
A(f"s_cmp_ge_u32 s{sW}, 2\ns_cbranch_scc1 L_vwave")

def kv_reads(n):
    u = n // 4; st = n % 4; b = STB + 12 * (n % 6)
    out = [f"ds_read_b128 {R(b+4*qb,4)}, v{vXA+st} offset:{u*8192 + qb*4096}" for qb in range(2)]
    for j in range(2):
        r, o = wa(slot_of(u), st * 4096 + j * 512)
        out.append(f"ds_read_b64_tr_b16 {R(b+8+2*j,2)}, v{r} offset:{o}")
    return out
def kv_mm(n, isK, cs=True):
    b = STB + 12 * (n % 6)
    out = [csum_mfma(b + 8)] if cs else []
    for qb in range(2):
        out.append(mfma32(ACC + 16 * qb, b + 8, b + 4 * qb) if isK else mfma32(ACC + 16 * qb, b + 4 * qb, b + 8))
    return out
def kv_interval(u, isK, fill=(), post_reads=()):
    rd = [x for n in range(4 * u, 4 * u + 4) for x in kv_reads(n)]
    old = [x for n in (4 * u - 2, 4 * u - 1) if n >= 0 for x in kv_mm(n, isK)]
    fill = list(fill)
    per = (len(fill) + 5) // 6
    emit(rd[:4])
    rest = rd[4:]
    for m in old:
        A(m); emit(rest[:2]); rest = rest[2:]
    emit(rest)
    for k, n in enumerate((4 * u, 4 * u + 1)):
        A(f"s_waitcnt lgkmcnt({12 - 4*k})")
        for m in kv_mm(n, isK):
            A(m); emit(fill[:per]); fill = fill[per:]
    emit(post_reads)
    A("s_waitcnt lgkmcnt(0)")
BT = 68
def best_issue(): A(f"buffer_load_dwordx4 {R(BT,4)}, v{vBA}, {SR(SWS)}, s35 offen sc1")
def nonce_issue(): A(f"buffer_load_dword v60, v{vZ}, {SR(SDBG)}, 0 offen sc1")
CX0, CX1, CW = 40, 44, 56
def publish():
    lb = A.newlabel("L_np")
    A(f"s_cmp_lg_u32 s{sW}, 0\ns_cbranch_scc1 {lb}")
    A(f"""v_and_b32 v2, 7, v{vL}
v_lshlrev_b32 v2, 4, v2
v_add_u32 v2, {L_RT}, v2
ds_read_b96 v[48:50], v2""")
    validated(nonce_issue, lambda: A("v_cmp_eq_u32 vcc, 0, v60"), 4 if GWP == 2 else 0)
    A(f"""v_mov_b32 v2, {L_NONCE}
ds_write_b32 v2, v60
v_mov_b32 v51, v60
s_lshl_b32 s20, s{sP}, 4
s_add_u32 s20, s20, {WS_BEST}
s_lshl_b32 s21, s{sP}, 7
s_add_u32 s21, s21, {WS_STATS}
s_mov_b64 exec, 0xff
s_waitcnt lgkmcnt(0)
buffer_store_dwordx4 v[48:51], v{vBA}, {SR(SWS)}, s21 offen sc1
v_mov_b32 v52, v50""")
    for m in DPP8: A(dpp("v_max_u32", 52, m))
    A(f"""v_cmp_eq_u32 vcc, v52, v50
s_and_b32 s22, vcc_lo, 0xff
s_mov_b32 s23, 0
s_mov_b64 exec, s[22:23]
buffer_store_dwordx4 v[48:51], v{vZ}, {SR(SWS)}, s20 offen sc1
s_mov_b64 exec, -1""")
    A.label(lb)
def cw_loop(isK):
    for u in range(8):
        TSL(16 + u)
        A("s_barrier")
        TSL(24 + u)
        fill = []; post = []
        if u == 3:
            fill = capture(lambda: A(f"""v_mov_b32 v{CW+2}, 0
v_mov_b32 v{CW+3}, 0
v_lshrrev_b32 v64, 1, v{vSA}
v_add_u32 v64, {L_STAT}, v64
v_mov_b32 v66, {L_NONCE}"""))
            if isK:
                fill += capture(lambda: A(f"""s_lshl_b32 s20, s{sCT}, 11
v_add_u32 v{vKA}, s20, v{vBA}
v_lshrrev_b32 v{vKC}, 1, v{vKA}"""))
            else:
                fill += capture(lambda: A(f"""v_and_b32 v2, 0x2f, v{vL}
v_bfe_u32 v3, v{vL}, 4, 1
s_lshl_b32 s20, s{sCT}, 1
v_add_u32 v3, s20, v3
v_lshlrev_b32 v{vKA}, 4, v2
v_lshl_add_u32 v{vKA}, v3, 10, v{vKA}
v_lshrrev_b32 v{vKC}, 1, v{vKA}
v_add_u32 v{vKA}, 8192, v{vKA}
v_lshrrev_b32 v65, 5, v{vL}
v_lshlrev_b32 v65, 4, v65
v_add_u32 v65, {L_RINV}, v65"""))
        if u == 7:
            fill = capture(best_issue)
            post = [f"ds_read_b64 {R(ST0,2)}, v64", f"ds_read_b64 {R(ST1,2)}, v64 offset:256", "ds_read_b32 v67, v66"]
            if not isK:
                post += [f"ds_read_b128 {R(8+16*qb+4*a,4)}, v65 offset:{qb*128 + a*32}" for qb in range(2) for a in range(4)]
        kv_interval(u, isK, fill, post)
        TSL(32 + u)
        if u == PUBU and isK: publish()
    A("s_barrier")
    TS(3)
    A(csum_mfma(STB + 12 * (30 % 6) + 8)); A(csum_mfma(STB + 12 * (31 % 6) + 8))
    mm = kv_mm(30, isK, False) + kv_mm(31, isK, False)
    A(mm[0]); corr_x(CX0, ST0)
    A(mm[1]); corr_x(CX1, ST1)
    A(f"v_readfirstlane_b32 s{sNONCE}, v67")
    cw = capture(lambda: corr_w(CW))
    A(mm[2]); emit(cw[:6]); A(mm[3]); emit(cw[6:])
    for qb, cx in enumerate((CX0, CX1)):
        A(mfma32(ACC + 16 * qb, CW, cx) if isK else mfma32(ACC + 16 * qb, cx, CW))
CSR = 144
def kv_store(isK):
    for qb in range(2):
        st = ST0 if qb == 0 else ST1
        for e in range(2):
            for r in range(8 * e, 8 * e + 8):
                A(f"v_mul_f32 v{ACC+16*qb+r}, v{ACC+16*qb+r}, v{st+1 if isK else 8+16*qb+r}")
            for k in range(4 * e, 4 * e + 4): A(f"v_cvt_pk_bf16_f32 v{OWN+8*qb+k}, v{ACC+16*qb+2*k}, v{ACC+16*qb+2*k+1}")
            b = OWN + 8 * qb + 4 * e; c_ = CSR + 2 * e + qb
            A(f"buffer_store_dwordx4 {R(b,4)}, v{vKA}, {SR(SWS)}, s{33 if qb == 0 else 36} offen offset:{e*(1024 if isK else 256)} sc1")
            A(f"v_add3_u32 v{c_}, v{b}, v{b+1}, v{b+2}\nv_add3_u32 v{c_}, v{c_}, v{b+3}, s{sNONCE}")
    for e in range(2):
        A(f"buffer_store_dwordx2 {R(CSR+2*e,2)}, v{vKC}, {SR(SWS)}, s34 offen offset:{e*512 if isK else 2048+e*128} sc1")

cw_loop(True); kv_store(True)
A("s_mov_b32 s39, 1024\ns_branch L_cpost")
A.label("L_vwave")
cw_loop(False); kv_store(False)
A("s_mov_b32 s39, 256")
A.label("L_cpost")
TS(4)
A("s_setprio 0")
A(f"""s_cmp_ge_u32 s{sC}, 4
s_cselect_b64 s[20:21], -1, 0
v_cndmask_b32_e64 v{vPM}, v{ST0}, v{ST1}, s[20:21]
v_cndmask_b32_e64 v{vPR}, v{ST0+1}, v{ST1+1}, s[20:21]
""")
validated(best_issue, lambda: A(f"v_cmp_ne_u32 vcc, s{sNONCE}, v{BT+3}"), 6)
A(f"v_mov_b32 v{BT+4}, v{BT+2}")
allreduce32(BT + 4, BT + 5, "v_max_u32")
A(f"""v_mov_b32 v{BT+5}, v{BT+4}
v_permlane32_swap_b32 v{BT+4}, v{BT+5}
v_max_u32 v{BT+4}, v{BT+4}, v{BT+5}
s_lshl_b32 s20, s{sW}, 4
s_add_u32 s20, s20, {L_IDX}
v_mov_b32 v2, s20
v_cmp_eq_u32 vcc, v{BT+4}, v{BT+2}
s_mov_b64 exec, vcc
ds_write_b128 v2, {R(BT,4)}
s_mov_b64 exec, -1
s_cmp_lt_u32 s{sDI}, 43
s_cbranch_scc1 L_dprep""")
A(f"""v_bfe_u32 v4, v{vL}, 4, 1
v_lshlrev_b32 v4, 6, v4
v_xor_b32 v2, v{vEX}, v4""")
for k in range(4): A(f"ds_write_b128 v2, {R(GW+4*k,4)} offset:{k*1024}")
A("s_branch L_b9")
A.label("L_dprep")
A(f"""v_lshrrev_b32 v3, 4, v{vL}
v_lshlrev_b32 v3, 6, v3
v_xor_b32 v2, v{vEX}, v3
v_lshrrev_b32 v3, 5, v{vL}
v_bfe_u32 v4, v{vL}, 2, 2
v_lshlrev_b32 v5, 8, v4
v_lshl_add_u32 v5, v3, 11, v5
v_lshl_add_u32 v5, v4, 6, v5
v_bfe_u32 v3, v{vL}, 4, 1
v_lshl_add_u32 v5, v3, 5, v5
v_and_b32 v3, 3, v{vL}
v_lshl_add_u32 v5, v3, 3, v5
s_lshl_b32 s20, s{sW}, 12
s_add_u32 s20, s20, {L_GW}
v_add_u32 v68, s20, v5
v_xor_b32 v69, 64, v68
v_xor_b32 v70, 128, v68
v_xor_b32 v71, 192, v68""")
for rd in range(2):
    for k in range(4): A(f"ds_write_b128 v2, {R(DG[4*rd+k],4)} offset:{k*1024}")
    for t in range(4):
        for j in range(2): A(f"ds_read_b64_tr_b16 {R(DG[4*rd+t]+2*j,2)}, v{68+t} offset:{j*1024}")
A.label("L_b9")
v_prefill(4)
def winner():
    A(f"v_mov_b32 v5, v{SB+2}")
    for m in DPP8[:2]: A(dpp("v_max_u32", 5, m))
    A(f"""v_cmp_eq_u32 vcc, v5, v{SB+2}
v_readfirstlane_b32 s{sKEY}, v5
s_ff1_i32_b32 s20, vcc_lo
v_readlane_b32 s{sSM}, v{SB}, s20
v_readlane_b32 s{sSR}, v{SB+1}, s20""")
A(f"""v_and_b32 v4, 3, v{vL}
v_lshlrev_b32 v4, 4, v4
v_add_u32 v4, {L_IDX}, v4
v_add_u32 v2, {L_OWN}, v{vKA}
v_add_u32 v3, s39, v2
v_and_b32 v72, 7, v{vL}
v_lshlrev_b32 v72, 2, v72
v_mov_b32 v74, v{vSA}
s_waitcnt lgkmcnt(0)
s_barrier""")
TS(48)
A(f"""ds_read_b128 {R(SB,4)}, v4
ds_write_b128 v2, {R(OWN,4)}
ds_write_b128 v3, {R(OWN+4,4)}
ds_write_b128 v2, {R(OWN+8,4)} offset:4096
ds_write_b128 v3, {R(OWN+12,4)} offset:4096
s_waitcnt lgkmcnt(4)""")
winner()
A(f"""s_and_b32 s24, s{sKEY}, 0x7ff
s_sub_u32 s24, 2047, s24
s_lshl_b32 s24, s24, 10
s_and_b32 s25, s{sP}, 7
s_lshl_b32 s25, s25, 7
s_add_u32 s24, s24, s25
s_lshl_b32 s25, s{sW}, 5
s_add_u32 s24, s24, s25
buffer_load_dword v73, v72, {SR(SX)}, s24 offen
s_waitcnt vmcnt(1)""")
TS(49)
k_issue()
TS(50)
v_issue()
TS(51)
A(f"""s_waitcnt vmcnt(12)
v_lshlrev_b32 v2, 16, v73
v_and_b32 v3, 0xffff0000, v73
v_subrev_f32 v2, s{sSM}, v2
v_subrev_f32 v3, s{sSM}, v3
v_cvt_pk_bf16_f32 v4, v2, v3
v_lshlrev_b32 v2, 16, v4
v_and_b32 v3, 0xffff0000, v4
v_mul_f32 v2, s{sSR}, v2
v_mul_f32 v3, s{sSR}, v3
v_cvt_pk_bf16_f32 v4, v2, v3
s_add_u32 s25, s25, {L_XSEL}
v_add_u32 v72, s25, v72
ds_write_b32 v72, v4
v_mov_b32 v75, v{vWA1}""")

A.label("L_join")
TS(5); RC(41)
A("s_waitcnt lgkmcnt(0)\ns_barrier")
A(f"""s_lshl_b32 s20, s{sROLE}, 12
s_add_u32 s21, s20, {L_QF}
s_xor_b32 s20, s20, 4096
s_add_u32 s20, s20, {L_QF}
v_add_u32 v2, s21, v{vRK}
v_add_u32 v3, s20, v{vRK}
ds_read_b128 {R(QF,4)}, v2
ds_read_b128 {R(QF+4,4)}, v3""")
lb = A.newlabel("L_noown"); lb2 = A.newlabel("L_noown2")
A(f"s_cmp_lg_u32 s{sROLE}, 0\ns_cbranch_scc1 {lb}")
A(f"""v_add_u32 v2, {L_OWN}, v{vRK}
v_and_b32 v4, 3, v{vL}
v_lshlrev_b32 v4, 4, v4
v_add_u32 v4, {L_IDX}, v4
ds_read_b128 {R(SB,4)}, v4
ds_read_b128 {R(Kf(4),4)}, v2
ds_read_b128 {R(Kf(5),4)}, v2 offset:4096
ds_read_b128 {R(Vf(4,0),4)}, v2 offset:8192
ds_read_b128 {R(Vf(5,0),4)}, v2 offset:12288
s_branch {lb2}""")
A.label(lb)
GX = 144; GF = 160
A(f"""s_cmp_ge_u32 s{sGU}, 176
s_cbranch_scc1 {lb2}
s_cmp_ge_u32 s{sW}, 2
s_cbranch_scc1 {lb2}
v_lshrrev_b32 v2, 5, v{vL}
v_lshlrev_b32 v2, 4, v2
v_add_u32 v2, {L_XSEL}, v2""")
for st in range(4): A(f"ds_read_b128 {R(GX+4*st,4)}, v2 offset:{st*32}")
for st in range(4):
    for m in range(2):
        for j in range(2):
            A(f"ds_read_b64_tr_b16 {R(GF+8*st+4*m+2*j,2)}, v75 offset:{16384 + m*1024 + st*4096 + j*512}")
A.label(lb2)
A("s_waitcnt lgkmcnt(0)\ns_barrier")
TS(6)
def g_stage():
    lb = A.newlabel("L_nog"); lb2 = A.newlabel("L_nog2")
    A(f"s_cmp_ge_u32 s{sGU}, 176\ns_cbranch_scc1 {lb}\ns_cmp_ge_u32 s{sW}, 2\ns_cbranch_scc1 {lb}")
    for st in range(4):
        for m in range(2): A(mfma32(ACC + 16 * m, GX + 4 * st, GF + 8 * st + 4 * m, None if st else 0))
    A(f"""s_and_b32 s20, s{sP}, 7
s_mul_i32 s20, s20, {1408*16}
s_lshr_b32 s21, s{sGU}, 3
s_lshl_b32 s21, s21, 10
s_add_u32 s20, s20, s21
s_lshl_b32 s21, s{sW}, 9
s_add_u32 s20, s20, s21
s_add_u32 s20, s20, {WS_GP}
v_mov_b32 v{GW+2}, s{sNONCE}
v_mov_b32 v{GW+3}, s{sNONCE}
s_mov_b32 s22, -1
s_mov_b32 s23, 0
v_mov_b32 v{GW}, v{ACC}
v_mov_b32 v{GW+1}, v{ACC+16}
s_mov_b64 exec, s[22:23]
buffer_store_dwordx4 {R(GW,4)}, v74, {SR(SWS)}, s20 offen sc1
s_mov_b64 exec, -1
s_branch {lb2}""")
    A.label(lb)
    A(f"s_mov_b32 s20, 0x40000000\nbuffer_load_dword v254, v74, {SR(SWS)}, s20 offen")
    A.label(lb2)

def gp_issue():
    for q in range(4): A(f"buffer_load_dwordx4 {R(NM+4*q,4)}, v255, {SR(SWS)}, s{28+q} offen sc1")
def gp_check():
    for q in range(4): A(f"v_xor_b32 v{2+q}, s{sNONCE}, v{NM+4*q+2}")
    A("v_or3_b32 v2, v2, v3, v4\nv_or_b32 v2, v2, v5\nv_cmp_ne_u32 vcc, 0, v2")
def d_request():
    lb = A.newlabel("L_nd")
    A(f"""s_cmp_ge_u32 s{sDI}, 43
s_cbranch_scc1 {lb}
s_lshl_b32 s28, s{sDI}, 9
s_add_u32 s28, s28, {WS_GP}
s_add_u32 s29, s28, {2*1408*16}
s_add_u32 s30, s28, {4*1408*16}
s_add_u32 s31, s28, {6*1408*16}""")
    gp_issue()
    A.label(lb)
def d_stage(wait):
    def h():
        lb = A.newlabel("L_nd")
        A(f"s_cmp_ge_u32 s{sDI}, 43\ns_cbranch_scc1 {lb}")
        validated(gp_issue, gp_check, wait)
        A(f"""v_add_f32 v2, v{NM}, v{NM+4}
v_add_f32 v3, v{NM+1}, v{NM+5}
v_add_f32 v4, v{NM+8}, v{NM+12}
v_add_f32 v5, v{NM+9}, v{NM+13}
v_add_f32 v2, v2, v4
v_add_f32 v3, v3, v5
v_mov_b32 v4, v2
v_mov_b32 v5, v3
v_permlane32_swap_b32 v2, v4
v_permlane32_swap_b32 v3, v5
v_add_f32 v2, v2, v4
v_add_f32 v3, v3, v5""")
        bf16round(2, 2); bf16round(3, 3)
        A(f"""v_mul_f32 v4, {f32(-LOG2E)}, v2
v_exp_f32 v4, v4
v_add_f32 v4, 1.0, v4
v_rcp_f32 v4, v4
v_mul_f32 v2, v2, v4""")
        bf16round(2, 2)
        A(f"""v_mul_f32 v2, v2, v3
v_cvt_pk_bf16_f32 v2, v2, v2
s_lshl_b32 s20, s{sW}, 12
s_add_u32 s20, s20, {L_TAIL + 0x4000}
v_and_b32 v3, 31, v{vL}
v_lshl_add_u32 v3, v3, 1, s20
ds_write_b16 v3, v2
v_lshrrev_b32 v3, 5, v{vL}
v_lshl_add_u32 v3, v3, 4, s20
ds_read_b128 {R(56,4)}, v3
ds_read_b128 {R(60,4)}, v3 offset:32
s_lshl_b32 s20, s{sDI}, 12
s_lshl_b32 s21, s{sW}, 10
s_add_u32 s20, s20, s21
s_add_u32 s20, s20, {WS_YP}
s_mov_b32 s22, 0
s_mov_b32 s23, -1
v_lshlrev_b32 v2, 4, v{vL}
v_mov_b32 v66, s{sNONCE}
v_mov_b32 v67, s{sNONCE}
s_waitcnt lgkmcnt(0)""")
        for e in range(2):
            for st in range(2):
                A(mfma32(NM, 56 + 4 * st, DG[4 * st + e], None if st else 0))
                A(mfma32(NM + 16, 56 + 4 * st, DG[4 * st + e + 2], None if st else 0))
            A(f"v_cndmask_b32_e64 v{64+e}, v{NM}, v{NM+16}, s[22:23]")
        A(f"buffer_store_dwordx4 {R(64,4)}, v2, {SR(SWS)}, s20 offen sc1")
        A.label(lb)
    return h
def wo_dma4():
    return [f"""s_and_b32 s26, s{sWB}, 3
s_add_u32 s{sWB}, s{sWB}, 1
s_lshl_b32 s27, s26, 12
s_add_u32 m0, s27, s{sM0}
s_lshl_b32 s27, s26, 14
s_add_u32 s27, s27, s{sWOD}"""] + [f"buffer_load_dwordx4 v{vWO+k}, {SR(SWO)}, s27 offen offset:{k*1024} lds" for k in range(4)]
def kv_check(base, cs):
    for k in range(4):
        b = base(k)
        A(f"v_add3_u32 v{2+k}, v{b}, v{b+1}, v{b+2}\nv_add3_u32 v{2+k}, v{2+k}, v{b+3}, s{sNONCE}\nv_xor_b32 v{2+k}, v{2+k}, v{cs+k}")
    A(f"""v_or_b32 v2, v2, v3
v_or_b32 v4, v4, v5
v_and_b32 v2, s{sH1}, v2
v_and_or_b32 v2, v4, s{sH2}, v2
v_cmp_ne_u32 vcc, 0, v2""")
def k_check(): kv_check(Kf, KC)
def v_check(): kv_check(lambda k: Vf(k, 0), VC)
def vswap(ks):
    for k in ks:
        for r in range(4): A(f"v_permlane16_swap_b32 v{Vf(k,0)+r}, v{Vf(k,1)+r}")
def Q(q): return QF + 4 * q
def smf(dst, k, q, c): return mfma32(dst, Kf(k), Q(q), c)
SEG = lambda k0: [(k0, 0, None), (k0, 1, None), (k0 + 1, 0, None), (k0 + 1, 1, None)]
B3 = [SB, SB + 16, SB + 32]
def nm(q): return R(NM + 16 * q, 16)
def p2_run(jobs, cfun, fresh, extra={}, mem={}):
    n = len(jobs)
    pend = []
    A(smf(B3[0], jobs[0][0], jobs[0][1], cfun(jobs[0][1])))
    for t in range(n):
        k, q, mask = jobs[t]; b = B3[t % 3]
        side = []
        if t + 1 < n: side.append(smf(B3[(t + 1) % 3], jobs[t + 1][0], jobs[t + 1][1], cfun(jobs[t + 1][1])))
        side += pend
        val = [f"v_exp_f32 v{b+r}, v{b+r}" for r in range(16)]
        val += [f"v_cvt_pk_bf16_f32 v{b+j}, v{b+2*j}, v{b+2*j+1}" for j in range(8)]
        if mask == "old": val += [f"v_and_b32 v{b+j}, v{b+j}, v{MK+j}" for j in range(8)]
        if mask == "diag": val += [f"v_bfi_b32 v{b+j}, v{MK+j}, 0, v{b+j}" for j in range(8)]
        mm_ = mem.get(t, [])
        if mm_:
            step = len(val) // len(mm_)
            for q_, x in enumerate(mm_): val[q_ * step + step // 2] += "\n" + x
        vi = 0
        for sx in side:
            A(sx); emit(val[vi:vi + 5]); vi += 5
        emit(val[vi:])
        for fn in extra.get(t, []): fn()
        pend = [mfma32(OA + 16 * q, Vf(k, g), b + 4 * g, 0 if (q in fresh and g == 0) else None) for g in range(2)]
        fresh.discard(q)
    emit(pend)
zero = lambda q: 0
XR = 80
dma = lambda: emit(wo_dma4())
def wo_ops():
    out = []
    for b in range(4):
        l = wo_dma4(); out += [l[0] + "\n" + l[1]] + l[2:]
    return out
def dma_upto(n):
    lt = A.newlabel("L_du"); le = A.newlabel("L_de")
    A.label(lt)
    A(f"s_sub_u32 s20, s{sWE}, {4-n}\ns_cmp_ge_u32 s{sWB}, s20\ns_cbranch_scc1 {le}")
    dma()
    A(f"s_branch {lt}")
    A.label(le)
def after_v(isC, wait):
    def h():
        validated(v_issue, v_check, wait)
        vswap(range(4))
        if isC:
            for pr in range(2):
                A(f"buffer_load_dwordx4 {R(XR+4*pr,4)}, v{vOUT}, {SR(SX)}, s{sOUTO} offen offset:{pr*32}")
            if int(opts.get("opt", 1)):
                A(f"""s_lshl_b32 s20, s{sI}, 4
s_add_u32 s20, s20, s{sC}
s_and_b32 s21, s{sW}, 1
s_lshl_b32 s21, s21, 3
s_add_u32 s20, s20, s21
s_cmp_ge_u32 s{sW}, 2
s_cselect_b32 s21, 10, 12
s_mov_b32 s22, {WS_O}
s_cselect_b32 s22, {WS_OC}, s22
s_cselect_b32 s24, 0xff, -1
s_mov_b32 s25, 0
s_lshl_b32 s20, s20, s21
s_add_u32 s20, s20, s22
v_lshlrev_b32 v2, 7, v{vL}
s_mov_b64 exec, s[24:25]
buffer_load_dword v254, v2, {SR(SWS)}, s20 offen sc1
s_mov_b64 exec, -1""")
        TS(9); RC(43)
    return h
def k_valid(first_wait):
    validated(lambda: (k_issue(), v_issue()), k_check, first_wait)
    TS(7); RC(42)
def sched(ops, plan):
    out = {}; k = 0
    for t, n in plan:
        out[t] = ops[k:k + n]; k += n
    assert k == len(ops)
    return out
OWNJ = [(4, 0, "diag"), (5, 1, "diag"), (4, 1, None)]
OLDJ = [(3, 0, None), (2, 0, "old"), (3, 1, "old")]
A(f"s_cmp_eq_u32 s{sROLE}, 0\ns_cbranch_scc1 L_fA")
g_stage()
TS(8)
k_valid(7)
lb = A.newlabel("L_fb1"); lb2 = A.newlabel("L_fb0")
A(f"s_cmp_eq_u32 s{sH1}, 0\ns_cbranch_scc1 {lb}")
p2_run(SEG(0) + SEG(2), zero, {0, 1}, {0: [after_v(1, 1)], 3: [d_request], 6: [d_stage(7)]}, sched(wo_ops(), [(1, 3), (2, 3), (3, 3), (4, 3), (5, 2), (6, 2)]))
A("s_branch L_fchk")
A.label(lb)
A(f"s_cmp_eq_u32 s{sH2}, 0\ns_cbranch_scc1 {lb2}")
p2_run(SEG(2), zero, {0, 1}, {0: [after_v(1, 1)]})
dma_upto(4)
d_request(); d_stage(0)()
A("s_branch L_fchk")
A.label(lb2)
after_v(1, 1)()
dma_upto(4)
d_request(); d_stage(0)()
for r in range(32): A(f"v_mov_b32 v{OA+r}, 0")
A(f"v_mov_b32 v{vM0}, {f32(-1e30)}\nv_mov_b32 v{vM1}, {f32(-1e30)}")
A("s_branch L_p2done")
A.label("L_fA")
winner()
vswap((4, 5))
A('s_setprio %d' % int(opts.get('lprio', 1)))
p2_run(OWNJ, zero, {0, 1}, {}, sched(capture(k_issue) + capture(v_issue), [(0, 6), (1, 3), (2, 3)]))
TS(8)
k_valid(6)
lb = A.newlabel("L_fa1"); lb2 = A.newlabel("L_fa0")
A(f"s_cmp_eq_u32 s{sH2}, 0\ns_cbranch_scc1 {lb}")
p2_run(SEG(0) + OLDJ, zero, set(), {0: [after_v(0, 0)]}, sched(wo_ops(), [(1, 4), (2, 4), (3, 4), (4, 4)]))
A("s_branch L_fchk")
A.label(lb)
A(f"s_cmp_eq_u32 s{sH1}, 0\ns_cbranch_scc1 {lb2}")
p2_run(SEG(0), zero, set(), {0: [after_v(0, 0)]})
dma_upto(4)
A("s_branch L_fchk")
A.label(lb2)
after_v(0, 0)()
dma_upto(4)
A.label("L_fchk")
LO = (127 - 40) << 23; RNG = 80 << 23
if not FAST: LO, RNG = 0, 0
A(f"""v_subrev_u32 v2, {hex(LO)}, v{OA+8}
v_subrev_u32 v3, {hex(LO)}, v{OA+24}
v_max_u32 v2, v2, v3
v_cmp_le_u32 vcc, {hex(RNG) if RNG else 0}, v2
s_cbranch_vccnz L_slow""")
A.label("L_p2done")
TS(10)

def slow_path():
    A.label("L_slow")
    A(f"v_mov_b32 v{vM0}, {f32(-1e30)}\nv_mov_b32 v{vM1}, {f32(-1e30)}\nv_mov_b32 v5, {f32(-1e30)}")
    def max_run(jobs):
        for (k, q, mask) in jobs:
            m = vM0 if q == 0 else vM1
            A(smf(SB, k, q, 0))
            if mask:
                for r in range(16):
                    j0 = 8 * (r // 4) + r % 4
                    A(f"s_lshl_b32 s20, -1, {j0}\ns_lshl_b32 s21, -1, {j0+4}")
                    if mask == "diag": A(f"v_cndmask_b32_e64 v{SB+r}, v5, v{SB+r}, s[20:21]")
                    else: A(f"v_cndmask_b32_e64 v{SB+r}, v{SB+r}, v5, s[20:21]")
            for r in range(0, 16, 2): A(f"v_max3_f32 v{m}, v{SB+r}, v{SB+r+1}, v{m}")
    def groups(fn):
        l1 = A.newlabel("L_s"); l2 = A.newlabel("L_s"); l3 = A.newlabel("L_s")
        A(f"s_cmp_eq_u32 s{sH1}, 0\ns_cbranch_scc1 {l1}")
        fn(SEG(0))
        A.label(l1)
        A(f"s_cmp_eq_u32 s{sROLE}, 0\ns_cbranch_scc1 {l2}")
        fn(SEG(2))
        A(f"s_branch {l3}")
        A.label(l2)
        fn(OWNJ)
        A(f"s_cmp_eq_u32 s{sH2}, 0\ns_cbranch_scc1 {l3}")
        fn(OLDJ)
        A.label(l3)
    groups(max_run)
    A(f"""v_mov_b32 v2, v{vM0}
v_mov_b32 v3, v{vM1}
v_permlane32_swap_b32 v{vM0}, v2
v_permlane32_swap_b32 v{vM1}, v3
v_max_f32 v{vM0}, v{vM0}, v2
v_max_f32 v{vM1}, v{vM1}, v3""")
    for q, m in enumerate((vM0, vM1)):
        for r in range(16): A(f"v_sub_f32 v{NM+16*q+r}, 0, v{m}")
    for r in range(32): A(f"v_mov_b32 v{OA+r}, 0")
    groups(lambda jobs: p2_run(jobs, nm, set()))
    A("s_branch L_p2done")

A(f"""v_xor_b32 v3, 0x4000, v{vEX}
s_lshl_b32 s20, s{sI}, 1
s_add_u32 s20, s20, s{sROLE}
s_lshl_b32 s20, s20, 3
s_add_u32 s20, s20, s{sC}
s_lshl_b32 s21, s20, 10
s_add_u32 s21, s21, {WS_OC}
s_lshl_b32 s20, s20, 12
s_add_u32 s20, s20, {WS_O}
v_lshrrev_b32 v5, 2, v{vRK}
v_mov_b32 v{OA+25}, v{vM1}
ds_write_b64 v3, {R(OA+24,2)} offset:2048
ds_write_b128 v3, {R(OA+16,4)}
ds_write_b128 v3, {R(OA+20,4)} offset:1024
s_waitcnt lgkmcnt(0)
s_barrier
ds_read_b64 {R(SB+8,2)}, v{vEX} offset:2048
ds_read_b128 {R(SB,4)}, v{vEX}
ds_read_b128 {R(SB+4,4)}, v{vEX} offset:1024
s_waitcnt lgkmcnt(2)
v_max_f32 v3, v{vM0}, v{SB+9}
v_sub_f32 v{SB+10}, v{vM0}, v3
v_sub_f32 v{SB+11}, v{SB+9}, v3
v_exp_f32 v{SB+10}, v{SB+10}
v_exp_f32 v{SB+11}, v{SB+11}
v_mul_f32 v4, v{SB+10}, v{OA+8}
v_fmac_f32 v4, v{SB+11}, v{SB+8}
v_rcp_f32 v4, v4
v_mul_f32 v{SB+10}, v{SB+10}, v4
v_mul_f32 v{SB+11}, v{SB+11}, v4
s_waitcnt lgkmcnt(0)""")
for r in range(0, 8, 2):
    A(f"v_pk_mul_f32 {R(OA+r,2)}, {R(OA+r,2)}, {R(SB+10,2)} op_sel_hi:[1,0]")
    A(f"v_pk_fma_f32 {R(OA+r,2)}, {R(SB+r,2)}, {R(SB+10,2)}, {R(OA+r,2)} op_sel:[0,1,0]")
for k in range(4): A(f"v_cvt_pk_bf16_f32 v{SB+12+k}, v{OA+2*k}, v{OA+2*k+1}")
A(f"""buffer_store_dwordx4 {R(SB+12,4)}, v{vRK}, {SR(SWS)}, s20 offen sc1
v_add3_u32 v4, v{SB+12}, v{SB+13}, v{SB+14}
v_add3_u32 v4, v4, v{SB+15}, s{sNONCE}
buffer_store_dword v4, v5, {SR(SWS)}, s21 offen sc1""")
TS(11)

A("s_waitcnt vmcnt(2)\ns_barrier")
TS(12); RC(44)

WOF = 8; XB = 136; PA = 160; OF = 176; OL = 208; OLC = 224
A(f"""s_lshl_b32 s20, s{sQK}, 3
s_add_u32 s20, s20, s{sW}
s_lshl_b32 s32, s20, 10
s_add_u32 s32, s32, {WS_OC}
s_lshl_b32 s31, s20, 12
s_add_u32 s31, s31, {WS_O}
v_lshlrev_b32 v2, 4, v{vL}
v_lshlrev_b32 v{vRV}, 2, v{vL}
s_and_b32 s33, s{sKEY}, 0x7ff
s_sub_u32 s33, 2047, s33
s_lshr_b32 s34, s33, 5""")
def o_issue():
    for k in range(4):
        A(f"buffer_load_dwordx4 {R(OL+4*k,4)}, v2, {SR(SWS)}, s31 offen offset:{k*1024} sc1")
    for k in range(4):
        A(f"buffer_load_dword v{OLC+k}, v{vRV}, {SR(SWS)}, s32 offen offset:{k*256} sc1")
def o_check():
    for k in range(4):
        b = OL + 4 * k
        A(f"v_add3_u32 v{228+k}, v{b}, v{b+1}, v{b+2}\nv_add3_u32 v{228+k}, v{228+k}, v{b+3}, s{sNONCE}\nv_xor_b32 v{228+k}, v{228+k}, v{OLC+k}")
    A("v_or3_b32 v228, v228, v229, v230\nv_or_b32 v228, v228, v231\nv_cmp_ne_u32 vcc, 0, v228")
lb = A.newlabel("L_p3l")
A(f"s_cmp_ge_u32 s{sW}, 4\ns_cbranch_scc1 {lb}w")
for pr in range(2):
    b = XR + 4 * pr
    A(f"v_permlane32_swap_b32 v{b}, v{b+2}\nv_permlane32_swap_b32 v{b+1}, v{b+3}")
for k in range(8):
    x = XR + k; p = PA + 2 * k
    A(f"""v_lshlrev_b32 v{p}, 16, v{x}
v_and_b32 v{p+1}, 0xffff0000, v{x}
v_pk_add_f32 {R(XB+8,2)}, {R(p,2)}, {R(vPM,2)} op_sel_hi:[1,0] neg_lo:[0,1] neg_hi:[0,1]
v_cvt_pk_bf16_f32 v{XB+10}, v{XB+8}, v{XB+9}
v_lshlrev_b32 v{XB+8}, 16, v{XB+10}
v_and_b32 v{XB+9}, 0xffff0000, v{XB+10}
v_pk_mul_f32 {R(XB+8,2)}, {R(XB+8,2)}, {R(vPM,2)} op_sel:[0,1]
v_cvt_pk_bf16_f32 v{XB+10}, v{XB+8}, v{XB+9}
v_lshlrev_b32 v{XB+8}, 16, v{XB+10}
v_and_b32 v{XB+9}, 0xffff0000, v{XB+10}
v_pk_add_f32 {R(p,2)}, {R(p,2)}, {R(XB+8,2)}""")
A(f"""v_lshrrev_b32 v4, 5, v{vL}
v_bfe_u32 v3, v{vL}, 2, 2
v_lshl_add_u32 v5, v4, 2, v3
v_lshlrev_b32 v5, 8, v5
v_xor_b32 v3, s{sW}, v3
v_lshl_add_u32 v5, v3, 6, v5
v_bfe_u32 v3, v{vL}, 4, 1
v_lshl_add_u32 v5, v3, 5, v5
v_and_b32 v3, 3, v{vL}
v_lshl_add_u32 v5, v3, 3, v5
v_add_u32 v3, 65536, v5""")
for g in range(32):
    for j in range(2):
        o = g * 4096 + j * 2048
        A(f"ds_read_b64_tr_b16 {R(WOF+4*g+2*j,2)}, v{5 if o < 65536 else 3} offset:{o % 65536}")
A.label(lb + "w")
A("s_waitcnt vmcnt(0)")
def yp_issue():
    A(f"""s_and_b32 s20, s{sC}, 3
s_lshl_b32 s20, s20, 10
s_add_u32 s20, s20, {WS_YP}""")
    for k in range(43):
        A(f"buffer_load_dwordx4 {R(8+4*k,4)}, v2, {SR(SWS)}, s20 offen sc1\ns_add_u32 s20, s20, 4096")
A(f"s_cmp_lg_u32 s34, s{sQK}\ns_cbranch_scc1 {lb}\ns_cmp_lg_u32 s{sW}, 4\ns_cbranch_scc1 {lb}")
o_issue(); yp_issue()
A(f"s_waitcnt vmcnt(43)\ns_branch {lb}y")
A.label(lb)
TS(46)
o_issue()
TS(47)
A("s_waitcnt vmcnt(0)")
A.label(lb + "y")
o_check()
retry_check(lb)
for k in range(4):
    A(f"ds_write_b128 v{vEX}, {R(OL+4*k,4)} offset:{k*1024}")
TS(13); RC(45)
A("s_waitcnt lgkmcnt(0)\ns_barrier")
TS(14)
A(f"s_cmp_ge_u32 s{sW}, 4\ns_cbranch_scc1 L_p3help")
A(f"v_add_u32 v2, {L_TAIL}, v2")
def of_read(g): A(f"ds_read_b128 {R(OF+4*(g%8),4)}, v2 offset:{g*1024}")
for g in range(8): of_read(g)
for g in range(32):
    A(f"s_waitcnt lgkmcnt({min(7, 31-g)})")
    A(mfma32(PA, WOF + 4 * g, OF + 4 * (g % 8)))
    if g + 8 < 32: of_read(g + 8)
lb = A.newlabel("L_noz")
A(f"s_cmp_lg_u32 s34, s{sQK}\ns_cbranch_scc1 {lb}")
A(f"""s_barrier
s_lshl_b32 s20, s{sW}, 7
v_lshlrev_b32 v3, 4, v4
v_add_u32 v3, s20, v3""")
for a in range(4): A(f"ds_read_b128 {R(OF+4*a,4)}, v3 offset:{a*32}")
A(f"""s_and_b32 s20, s33, 31
v_and_b32 v3, 31, v{vL}
v_cmp_eq_u32 vcc, s20, v3
s_and_saveexec_b64 s[{sEX}:{sEX+1}], vcc
s_waitcnt lgkmcnt(0)""")
for r in range(16): A(f"v_add_f32 v{PA+r}, v{PA+r}, v{OF+r}")
A(f"s_mov_b64 exec, s[{sEX}:{sEX+1}]")
A.label(lb)
for k in range(8): A(f"v_cvt_pk_bf16_f32 v{XB+k}, v{PA+2*k}, v{PA+2*k+1}")
for pr in range(2):
    b = XB + 4 * pr
    A(f"v_permlane32_swap_b32 v{b}, v{b+2}\nv_permlane32_swap_b32 v{b+1}, v{b+3}")
    A(f"buffer_store_dwordx4 {R(b,4)}, v{vOUT}, {SR(SOUT)}, s{sOUTO} offen offset:{pr*32}")
A("s_branch L_end")
A.label("L_p3help")
A(f"s_cmp_lg_u32 s34, s{sQK}\ns_cbranch_scc1 L_end")
lb = A.newlabel("L_hb")
A(f"s_cmp_lg_u32 s{sW}, 4\ns_cbranch_scc1 {lb}")
def yp_check():
    A("v_mov_b32 v3, 0")
    for k in range(43): A(f"v_xor_b32 v4, s{sNONCE}, v{10+4*k}\nv_or_b32 v3, v3, v4")
    A("v_cmp_ne_u32 vcc, 0, v3")
validated(yp_issue, yp_check, 0)
for k in range(1, 43): A(f"v_add_f32 v8, v8, v{8+4*k}\nv_add_f32 v9, v9, v{9+4*k}")
bf16round(8, 8); bf16round(9, 9)
A(f"""s_and_b32 s20, s{sKEY}, 0xffff0000
s_ashr_i32 s21, s20, 31
s_not_b32 s21, s21
s_or_b32 s21, s21, 0x80000000
s_xor_b32 s20, s20, s21
s_and_b32 s20, s20, 0xffff0000
v_mov_b32 v3, s20
v_mul_f32 v3, {f32(-LOG2E)}, v3
v_exp_f32 v3, v3
v_add_f32 v3, 1.0, v3
v_rcp_f32 v3, v3""")
bf16round(3, 3)
A("v_mul_f32 v8, v8, v3\nv_mul_f32 v9, v9, v3")
bf16round(8, 8); bf16round(9, 9)
A(f"""v_lshrrev_b32 v3, 5, v{vL}
v_lshlrev_b32 v3, 8, v3
v_and_b32 v4, 31, v{vL}
v_lshl_add_u32 v3, v4, 2, v3
ds_write_b32 v3, v8
ds_write_b32 v3, v9 offset:128
s_waitcnt lgkmcnt(0)""")
A.label(lb)
A("s_barrier")
A.label("L_end")
if opts.get("cal"):
    A("s_memtime s[96:97]\ns_waitcnt lgkmcnt(0)")
    A.label("L_cal")
    A("s_memtime s[98:99]\ns_waitcnt lgkmcnt(0)\ns_sub_u32 s98, s98, s96\ns_cmp_lt_u32 s98, %d\ns_cbranch_scc1 L_cal" % int(opts["cal"]))
if opts.get("fix"):
    A.label("L_fix")
    A("s_memrealtime s[98:99]\ns_waitcnt lgkmcnt(0)\ns_sub_u32 s98, s98, s%d\ns_cmp_lt_u32 s98, %d\ns_cbranch_scc1 L_fix" % (sNONCE, int(opts["fix"])))
if PROF:
    TS(15)
    A(f"""s_mov_b64 exec, -1
v_writelane_b32 v{vTS}, s{sRETRY}, 62
s_memrealtime s[96:97]
s_waitcnt lgkmcnt(0)
v_writelane_b32 v{vTS}, s96, 61
s_lshl_b32 s20, s2, 3
s_add_u32 s20, s20, s{sW}
s_lshl_b32 s20, s20, 8
s_add_u32 s20, s20, {WS_TS}
v_lshlrev_b32 v2, 2, v{vL}
buffer_store_dword v{vTS}, v2, {SR(SWS)}, s20 offen""")
A.label("L_exit")
A("s_endpgm")
A.label("L_codeend")
slow_path()

body = A.finalize()
hdr = open("cdna_kernels/" + NAME + ".s.ref").read().split("; Override launch")[0]
out = hdr + f"""; Fused single kernel: LN stats + router, QKV GEMM, sliding-window attention, MoD FFN, output projection.
; Generated by gen/gen.py (hand-written generator).
; @launch grid=(256,1,1) block=(512,1,1) lds=163840
.amdgcn_target "amdgcn-amd-amdhsa--gfx950"
.text
.globl {NAME}_kernel
.p2align 8
.type {NAME}_kernel,@function
{NAME}_kernel:
L_start:
{body}
.section .rodata,"a"
.p2align 6
.amdhsa_kernel {NAME}_kernel
  .amdhsa_next_free_vgpr 256
  .amdhsa_next_free_sgpr 102
  .amdhsa_accum_offset 256
  .amdhsa_group_segment_fixed_size 0
  .amdhsa_kernarg_size 88
  .amdhsa_user_sgpr_count 2
  .amdhsa_user_sgpr_kernarg_segment_ptr 1
  .amdhsa_system_sgpr_workgroup_id_x 1
  .amdhsa_float_denorm_mode_32 3
.end_amdhsa_kernel
"""
import subprocess, re
def labels(text):
    open("_g.s", "w").write(text)
    r = subprocess.run(["clang", "-x", "assembler", "-target", "amdgcn-amd-amdhsa", "-mcpu=gfx950", "-c", "_g.s", "-o", "_g.o"], capture_output=True, text=True)
    if r.returncode:
        print("\n".join(r.stderr.split("\n")[:30])); sys.exit(1)
    t = subprocess.run(["llvm-objdump", "-t", "_g.o"], capture_output=True, text=True).stdout
    return {m.group(2): int(m.group(1), 16) for m in re.finditer(r"^([0-9a-f]{16}) .*\s(L_\w+)$", t, re.M)}
lab = labels(out.replace("CODE_PF_MAX", "0x11111"))
out = out.replace("CODE_PF_MAX", hex((lab["L_codeend"] - 256) & ~127))
assert labels(out) == lab
print("code bytes", lab["L_codeend"], "instrs", len(A.ins), "nops", A.nnop)
open(sys.argv[1], "w").write(out)
```

```python
import sys, struct
from asmlib import Asm

NAME = "parallel_sum__sliding_block__moe_arch_mod__prompt"
opts = dict(a.split("=") if "=" in a else (a, "1") for a in sys.argv[2:])
PROF = int(opts.get("prof", 0))
LOOPTS = int(opts.get('loopts', 0))
DEPTH = int(opts.get('depth', 3))
FAST = int(opts.get('fast', 1))
SIBU = int(opts.get('sibu', 4))
GWP = int(opts.get('gwp', 2))
PWS = int(opts.get('pws', 0))
LGW = int(opts.get('lgw', -1))
PUBU = int(opts.get('pubu', 1))

def f32(x): return "0x%08x" % struct.unpack("<I", struct.pack("<f", x))[0]
LOG2E = 1.4426950408889634

WS_BEST  = 0x0
WS_EPOCH = 0x4000
WS_STATS = 0x8000
WS_YP    = 0x10000
WS_GP    = 0x40000
WS_KV    = 0x100000
WS_KVC   = 0x500000
WS_O     = 0x600000
WS_OC    = 0x800000
WS_TS    = 0x900000
WS_SIZE  = 0x1000000
L_X = 0; L_RING = 65536; L_MISC = 147456; L_TAIL = 131072
def slot_of(u): return (u + 2) % 5
L_QF = L_MISC
L_SM = L_MISC + 8192
L_RT = L_SM
L_NONCE = L_SM + 128
L_IDX = L_SM + 144
L_XSEL = L_SM + 1024
L_STAT = L_SM + 256
L_RINV = L_SM + 768
L_GW = L_RING + 4 * 16384
L_OWN = L_RING + slot_of(8) * 16384
SX, SW, SWS, SDBG, SWR = 40, 44, 48, 52, 56
SWO, SOUT, SWG, SWU, SWD = 60, 64, 68, 72, 76
sI, sC, sW, sROT, sNONCE, sP, sKEY = 3, 4, 5, 6, 7, 8, 9
sXO, sWOFF, sCT, sWB, sHH, sROLE, sH1, sH2 = 10, 11, 12, 13, 14, 15, 16, 17
sSM, sSR = 18, 19
sOUTO, sQK, sWOD, sM0, sWE, sEX, sRETRY = 80, 81, 82, 83, 84, 86, 88
sGU = 89
sDI = 85
DG = [208, 212, 216, 220, 228, 232, 236, 76]
sRB = 90
vL, vZ, vTS = 1, 6, 7
vXA, vWA0, vWA1 = 88, 92, 93
vX0, vX1, vW0, vW1 = 80, 81, 82, 83
vSA, vKA, vKC, vBA = 80, 81, 82, 83
ACC = 96; STB = 128; CS = 200; SEL = 204; GW = 208; ST0, ST1 = 224, 226; XS = 228
OWN = 128; SL = 8
KC, VC, QF, NM, OA, SB, WD, MK = 80, 84, 88, 96, 128, 160, 208, 232
vM0, vM1, vRK, vRV, vRKC, vGA, vEX, vOUT, vPM, vPR, vWO = 240, 241, 242, 243, 244, 245, 246, 247, 248, 249, 250
A = Asm()

def TS(n):
    if PROF == 1: A(f"s_memtime s[98:99]\ns_waitcnt lgkmcnt(0)\nv_writelane_b32 v{vTS}, s98, {n}")
def TSL(n):
    if LOOPTS: TS(n)
def RC(n):
    if PROF == 1: A(f"v_writelane_b32 v{vTS}, s{sRETRY}, {n}")
def srd(base, size): A(f"s_mov_b32 s{base+2}, {size}\ns_mov_b32 s{base+3}, 0x20000")
def R(b, n): return f"v[{b}:{b+n-1}]"
def SR(b): return f"s[{b}:{b+3}]"
DPP8 = ("quad_perm:[1,0,3,2]", "quad_perm:[2,3,0,1]", "row_half_mirror")
def dpp(op, x, m): return f"{op}_dpp v{x}, v{x}, v{x} {m} row_mask:0xf bank_mask:0xf"
def allreduce32(x, t, op):
    for m in DPP8 + ("row_mirror",): A(dpp(op, x, m))
    A(f"v_mov_b32 v{t}, v{x}\nv_permlane16_swap_b32 v{x}, v{t}\n{op} v{x}, v{x}, v{t}")
def bf16round(dst, src):
    A(f"v_cvt_pk_bf16_f32 v{dst}, v{src}, v{src}\nv_and_b32 v{dst}, 0xffff0000, v{dst}")
def retry_check(lbl):
    A(f"s_add_u32 s{sRETRY}, s{sRETRY}, 1\ns_cmp_gt_u32 s{sRETRY}, 20000\ns_cbranch_scc1 L_end")
    A(f"s_cbranch_vccnz {lbl}")
def validated(issue, check, first_wait, retry_wait=0):
    lr = A.newlabel("L_rt"); lo = A.newlabel("L_ok")
    A(f"s_waitcnt vmcnt({first_wait})"); check(); A(f"s_cbranch_vccz {lo}")
    A.label(lr)
    issue(); A(f"s_waitcnt vmcnt({retry_wait})"); check()
    retry_check(lr)
    A.label(lo)
def capture(fn):
    n = len(A.ins); fn(); out = [x.text for x in A.ins[n:]]; del A.ins[n:]
    return out
def emit(l):
    for x in l: A(x)
def split(l, n): return [l[len(l)*k//n: len(l)*(k+1)//n] for k in range(n)]
def mfma32(d, a, b, c=None):
    return f"v_mfma_f32_32x32x16_bf16 {R(d,16)}, {R(a,4)}, {R(b,4)}, {R(d,16) if c is None else c}"
def var_to_rinv(v):
    bf16round(v, v)
    A(f"v_add_f32 v{v}, {f32(1e-5)}, v{v}")
    bf16round(v, v)
    A(f"v_sqrt_f32 v{v}, v{v}")
    bf16round(v, v)
    A(f"v_rcp_f32 v{v}, v{v}")

A("s_cmp_ge_u32 s2, 256\ns_cbranch_scc1 L_exit")
for b, off in ((SX, 0), (SW, 8), (SWR, 32), (SDBG, 72), (SWS, 80), (SWO, 16), (SWG, 40), (SWU, 48), (SWD, 56), (SOUT, 64)):
    A(f"s_load_dwordx2 s[{b}:{b+1}], s[0:1], {off}")
A(f"""s_getpc_b64 s[22:23]
v_lshrrev_b32 v2, 6, v0
v_and_b32 v{vL}, 63, v0
s_and_b32 s20, s2, 3
s_lshr_b32 s21, s2, 3
v_readfirstlane_b32 s{sW}, v2
s_lshl_b32 s20, s20, 3
s_and_b32 s24, s21, 7
s_add_u32 s{sI}, s20, s24
s_bfe_u32 s20, s2, 0x10002
s_lshl_b32 s20, s20, 2
s_lshr_b32 s24, s21, 3
s_add_u32 s{sC}, s20, s24
s_lshl_b32 s{sP}, s{sI}, 3
s_add_u32 s{sP}, s{sP}, s{sC}
s_sub_u32 s{sGU}, s{sP}, 32
s_sub_u32 s{sDI}, s{sP}, 176
s_cmp_lt_u32 s{sGU}, 176
s_cselect_b32 s{sDI}, 255, s{sDI}
s_cmp_lt_u32 s{sP}, 32
s_cselect_b32 s{sDI}, s{sP}, s{sDI}
s_mov_b32 s{sRETRY}, 0""")
srd(SX, 2048 * 1024)
if PROF:
    A(f"v_mov_b32 v{vTS}, 0\ns_memrealtime s[96:97]\ns_waitcnt lgkmcnt(0)\nv_writelane_b32 v{vTS}, s96, 63")
    TS(0)
A(f"s_cmp_ge_u32 s{sW}, 4\ns_cbranch_scc1 L_lwave")
srd(SWR, 1024)
A(f"""v_and_b32 v2, 31, v{vL}
v_lshlrev_b32 v{vSA}, 4, v2
v_lshrrev_b32 v3, 5, v{vL}
v_lshl_add_u32 v4, v3, 10, v{vSA}
s_lshl_b32 s20, s{sP}, 3
s_lshl_b32 s21, s{sW}, 1
s_add_u32 s20, s20, s21
s_lshl_b32 s21, s20, 10
s_waitcnt lgkmcnt(0)
s_load_dword s{sNONCE}, s[{SWS}:{SWS+1}], {WS_EPOCH}
buffer_load_dwordx4 v[8:11], v4, {SR(SX)}, s21 offen
buffer_load_dwordx4 v[12:15], v4, {SR(SX)}, s21 offen offset:512
buffer_load_dwordx4 v[16:19], v{vSA}, {SR(SWR)}, 0 offen
buffer_load_dwordx4 v[20:23], v{vSA}, {SR(SWR)}, 0 offen offset:512
""")
if int(opts.get('tlb', 1)) == 3:
    A(f"""s_load_dword s100, s[{SWG}:{SWG+1}], 0
s_load_dword s100, s[{SWU}:{SWU+1}], 0
s_load_dword s100, s[{SWD}:{SWD+1}], 0
s_load_dword s100, s[{SWO}:{SWO+1}], 0
s_load_dword s100, s[{SOUT}:{SOUT+1}], 0""")
    for off in (0x2FF000, 0x4FF000, 0x6FF000, 0x8FF000)[:int(opts.get('tlbw', 4))]:
        A(f"s_mov_b32 s24, {off}\ns_load_dword s100, s[{SWS}:{SWS+1}], s24")
A("s_branch L_cwave")

def frag_addrs():
    A(f"""v_and_b32 v2, 31, v{vL}
v_lshrrev_b32 v3, 5, v{vL}
v_bfe_u32 v4, v2, 1, 3
v_xor_b32 v4, v4, v3
v_lshlrev_b32 v4, 4, v4
v_lshl_add_u32 v4, v2, 7, v4
v_add_u32 v{vXA}, s28, v4
v_xor_b32 v{vXA+1}, 32, v{vXA}
v_xor_b32 v{vXA+2}, 64, v{vXA}
v_xor_b32 v{vXA+3}, 96, v{vXA}
v_bfe_u32 v4, v{vL}, 2, 2
v_lshlrev_b32 v4, 7, v4
v_lshl_add_u32 v4, v3, 11, v4
v_bfe_u32 v5, v{vL}, 3, 1
v_lshl_add_u32 v4, v5, 6, v4
v_bfe_u32 v5, v{vL}, 4, 1
v_lshl_add_u32 v4, v5, 5, v4
v_and_b32 v5, 3, v{vL}
v_lshl_add_u32 v{vGA}, v5, 3, v4
s_lshl_b32 s20, s{sCT}, 6
v_xor_b32 v4, s20, v{vGA}
v_add_u32 v{vWA0}, s29, v4
v_add_u32 v{vWA1}, {3*16384}, v{vWA0}
v_lshrrev_b32 v4, 4, v{vL}
v_xor_b32 v4, v4, v{vL}
v_and_b32 v4, 1, v4
v_add_u32 v4, -1, v4
v_and_b32 v{SEL}, 0x3f803f80, v4
v_mov_b32 v{SEL+1}, v{SEL}
v_mov_b32 v{SEL+2}, v{SEL}
v_mov_b32 v{SEL+3}, v{SEL}""")
    for r in range(4): A(f"v_mov_b32 v{CS+r}, 0")
def wa(slot, off):
    return (vWA0, slot * 16384 + off) if slot < 3 else (vWA1, (slot - 3) * 16384 + off)
def csum_mfma(wf): return f"v_mfma_f32_16x16x32_bf16 {R(CS,4)}, {R(SEL,4)}, {R(wf,4)}, {R(CS,4)}"
def corr_w(dst):
    A(f"""s_mov_b32 s20, 0xffff0000
s_mov_b32 s21, 0xffff0000
v_cndmask_b32_e64 v2, v{CS}, v{CS+1}, s[20:21]
v_mul_f32 v2, 0.5, v2""")
    bf16round(3, 2)
    A("v_sub_f32 v2, v2, v3")
    bf16round(4, 2)
    A(f"""v_sub_f32 v2, v2, v4
v_cvt_pk_bf16_f32 v{dst}, v3, v4
v_cvt_pk_bf16_f32 v{dst+1}, v2, 0""")
def corr_x(dst, m):
    A(f"""v_cvt_pk_bf16_f32 v{dst}, -v{m}, -v{m}
v_cvt_pk_bf16_f32 v{dst+1}, -v{m}, 0
v_mov_b32 v{dst+2}, 0
v_mov_b32 v{dst+3}, 0""")
def Kf(k): return SL + 12 * k
def Vf(k, g): return SL + 12 * k + 4 + 4 * g
def attn_setup_s():
    A(f"""s_sub_u32 s20, 3, s{sROLE}
s_cmp_eq_u32 s{sROLE}, 0
s_cselect_b32 s21, 4, 1
s_sub_u32 s22, s{sI}, s20
s_lshl_b32 s22, s22, 3
s_add_u32 s22, s22, s{sC}
s_cmp_ge_u32 s{sI}, s20
s_cselect_b32 s{sH1}, -1, 0
s_cselect_b32 s22, s22, 0x10000
s_sub_u32 s23, s{sI}, s21
s_lshl_b32 s23, s23, 3
s_add_u32 s23, s23, s{sC}
s_cmp_ge_u32 s{sI}, s21
s_cselect_b32 s{sH2}, -1, 0
s_cselect_b32 s23, s23, 0x10000
s_lshl_b32 s{sRB}, s22, 14
s_add_u32 s{sRB}, s{sRB}, {WS_KV}
s_add_u32 s{sRB+1}, s{sRB}, 4096
s_lshl_b32 s{sRB+2}, s23, 14
s_add_u32 s{sRB+2}, s{sRB+2}, {WS_KV}
s_add_u32 s{sRB+3}, s{sRB+2}, 4096
s_lshl_b32 s{sRB+4}, s22, 12
s_add_u32 s{sRB+4}, s{sRB+4}, {WS_KVC}
s_lshl_b32 s{sRB+5}, s23, 12
s_add_u32 s{sRB+5}, s{sRB+5}, {WS_KVC}
s_lshl_b32 s{sWOD}, s{sW}, 16
s_and_b32 s20, s{sC}, 3
s_lshl_b32 s20, s20, 8
s_add_u32 s{sWOD}, s{sWOD}, s20
s_lshl_b32 s{sM0}, s{sW}, 14
s_mov_b32 s{sWB}, s{sI}
s_add_u32 s{sWE}, s{sI}, 4
s_lshl_b32 s{sQK}, s{sI}, 1
s_lshr_b32 s21, s{sC}, 2
s_add_u32 s{sQK}, s{sQK}, s21
s_lshl_b32 s{sOUTO}, s{sQK}, 15
s_add_u32 s{sOUTO}, s{sOUTO}, s20
s_lshl_b32 s20, s{sHH}, 6
s_add_u32 s{sOUTO}, s{sOUTO}, s20""")
    srd(SWD, 0 if opts.get('nogw') else 1376 * 1024); srd(SOUT, 2048 * 1024); srd(SWO, 0 if opts.get('nowo') else 512 * 1024); srd(SWS, WS_SIZE)
def attn_setup_v():
    A(f"""s_lshl_b32 s20, s{sHH}, 10
v_lshlrev_b32 v{vRK}, 4, v{vL}
s_lshl_b32 s21, s{sW}, 12
s_add_u32 s21, s21, {L_TAIL}
v_add_u32 v{vEX}, s21, v{vRK}
v_add_u32 v{vRK}, s20, v{vRK}
v_lshrrev_b32 v{vRKC}, 1, v{vRK}
v_add_u32 v{vRV}, 8192, v{vRK}
v_lshrrev_b32 v2, 4, v{vL}
v_and_b32 v3, 15, v{vL}
v_lshlrev_b32 v4, 2, v2
v_xor_b32 v3, v3, v4
v_lshlrev_b32 v3, 4, v3
v_lshl_add_u32 v{vWO}, v2, 10, v3
v_add_u32 v{vWO+1}, 3072, v{vWO}
v_add_u32 v{vWO+2}, 6144, v{vWO}
v_add_u32 v{vWO+3}, 9216, v{vWO}
v_and_b32 v3, 31, v{vL}
v_lshrrev_b32 v4, 5, v{vL}
v_lshlrev_b32 v{vOUT}, 10, v3
v_lshl_add_u32 v{vOUT}, v4, 4, v{vOUT}
v_mul_u32_u24 v4, {1408*16}, v4
v_lshl_add_u32 v255, v3, 4, v4
v_mov_b32 v{vM0}, 0
v_mov_b32 v{vM1}, 0""")
def mk_setup():
    A(f"""v_and_b32 v2, 31, v{vL}
v_lshrrev_b32 v3, 5, v{vL}
v_lshlrev_b32 v3, 2, v3
v_sub_u32 v2, v2, v3
v_mov_b32 v192, -1
v_mov_b32 v193, -1""")
    for k in range(8):
        j0 = 8 * (k // 2) + 2 * (k % 2)
        A(f"""v_add_u32 v3, {1 - j0}, v2
v_med3_i32 v3, v3, 0, 2
v_lshlrev_b32 v3, 4, v3
v_lshlrev_b64 v[194:195], v3, v[192:193]
v_mov_b32 v{MK+k}, v194""")
def v_prefill(n):
    A(f"v_mov_b32 v{Vf(0,1)}, 0x3f803f80")
    for k in range(n):
        for r in range(4):
            if k or r: A(f"v_mov_b32 v{Vf(k,1)+r}, v{Vf(0,1)}")
def k_issue():
    for k in range(4):
        A(f"buffer_load_dwordx4 {R(Kf(k),4)}, v{vRK}, {SR(SWS)}, s{sRB+k} offen sc1")
    for p in range(2):
        A(f"buffer_load_dwordx2 {R(KC+2*p,2)}, v{vRKC}, {SR(SWS)}, s{sRB+4+p} offen sc1")
def v_issue():
    for k in range(4):
        A(f"buffer_load_dwordx4 {R(Vf(k,0),4)}, v{vRV}, {SR(SWS)}, s{sRB+k} offen sc1")
    for p in range(2):
        A(f"buffer_load_dwordx2 {R(VC+2*p,2)}, v{vRKC}, {SR(SWS)}, s{sRB+4+p} offen offset:2048 sc1")

A.label("L_lwave")
srd(SW, 512 * 3072)
A(f"""s_add_u32 s20, s{sC}, s{sI}
s_and_b32 s20, s20, 3
s_lshl_b32 s{sROT}, s20, 1
s_sub_u32 s{sHH}, s{sW}, 4
v_lshrrev_b32 v2, 3, v{vL}
v_and_b32 v3, 7, v{vL}
v_lshrrev_b32 v4, 1, v2
v_xor_b32 v5, v3, v4
v_lshlrev_b32 v5, 4, v5
v_lshl_add_u32 v{vX0}, v2, 10, v5
v_xor_b32 v5, 64, v5
v_lshl_add_u32 v{vX1}, v2, 10, v5
v_add_u32 v{vX1}, {8192-1024}, v{vX1}
v_and_b32 v4, 1, v4
v_lshlrev_b32 v4, 2, v4
v_xor_b32 v5, v3, v4
v_lshlrev_b32 v84, 4, v5
v_mul_u32_u24 v{vW0}, 3072, v2
v_add_u32 v{vW0}, v{vW0}, v84
v_add_u32 v{vW1}, {24576-2048}, v{vW0}
s_lshl_b32 s{sXO}, s{sI}, 16
s_lshl_b32 s20, s{sHH}, 14
s_add_u32 s{sXO}, s{sXO}, s20
s_lshl_b32 s{sWOFF}, s{sC}, 7
s_mul_i32 s20, s{sHH}, {16*3072}
s_add_u32 s{sWOFF}, s{sWOFF}, s20
s_lshl_b32 s31, s{sHH}, 11
s_lshl_b32 s32, s{sHH}, 12
s_lshr_b32 s20, s2, 3
s_lshl_b32 s20, s20, 10
s_lshl_b32 s21, s{sHH}, 8
s_add_u32 s20, s20, s21
s_min_u32 s20, s20, CODE_PF_MAX
s_add_u32 s22, s22, s20
s_addc_u32 s23, s23, 0
s_waitcnt lgkmcnt(0)
s_load_dword s{sNONCE}, s[{SWS}:{SWS+1}], {WS_EPOCH}
s_load_dword s100, s[22:23], 0
s_load_dword s100, s[22:23], 64
s_load_dword s100, s[22:23], 128
s_load_dword s100, s[22:23], 192""")
TLBM = int(opts.get('tlb', 1))
if TLBM == 1:
    lb = A.newlabel("L_nt")
    A(f"s_cmp_lg_u32 s{sW}, 7\ns_cbranch_scc1 {lb}")
    for b in (SWR, SWG, SWU, SWO, SWD, SOUT):
        A(f"s_load_dword s100, s[{b}:{b+1}], 0")
    A(f"s_load_dword s100, s[{SDBG}:{SDBG+1}], 128")
    for off in (0xF000, 0x2FF000 , 0x4FF000, 0x6FF000, 0x8FF000):
        A(f"s_mov_b32 s20, {off}\ns_load_dword s100, s[{SWS}:{SWS+1}], s20")
    A.label(lb)
XOF = {u: [u] for u in range(8)}
def issue_unit(u):
    slot = slot_of(u)
    for t in XOF.get(u, []):
        A(f"""s_add_u32 s33, s{sROT}, {t}
s_and_b32 s33, s33, 7
s_lshl_b32 s34, s33, 7
s_add_u32 m0, s31, {L_X + t*8192}
s_add_u32 s34, s34, s{sXO}
buffer_load_dwordx4 v{vX0}, {SR(SX)}, s34 offen lds
buffer_load_dwordx4 v{vX1}, {SR(SX)}, s34 offen offset:1024 lds""")
    if u < 8:
        A(f"""s_add_u32 s33, s{sROT}, {u}
s_and_b32 s33, s33, 7
s_mul_i32 s35, s33, {64*3072}
s_add_u32 s35, s35, s{sWOFF}
s_add_u32 m0, s32, {L_RING + slot*16384}
s_add_u32 s35, s35, 1024
buffer_load_dwordx4 v{vW0}, {SR(SW)}, s35 offen lds
buffer_load_dwordx4 v{vW0}, {SR(SW)}, s35 offen offset:1024 lds
buffer_load_dwordx4 v{vW1}, {SR(SW)}, s35 offen offset:2048 lds
buffer_load_dwordx4 v{vW1}, {SR(SW)}, s35 offen offset:3072 lds""")
    else:
        for e in range(2):
            A(f"""s_add_u32 s33, s{sROT}, {2*(u-8)+e}
s_and_b32 s33, s33, 7
s_mul_i32 s35, s33, {64*3072}
s_add_u32 m0, s32, {L_RING + slot*16384 + e*1024}
s_add_u32 s35, s35, s{sWOFF}
buffer_load_dwordx4 v{vW0}, {SR(SW)}, s35 offen lds
buffer_load_dwordx4 v{vW1}, {SR(SW)}, s35 offen offset:2048 lds""")
def ucount(u): return 4 + 2 * len(XOF.get(u, []))
def lgw_issue():
    srd(SWG, 512 * 2752); srd(SWU, 512 * 2752)
    A(f"""v_lshrrev_b32 v2, 3, v{vL}
v_mul_u32_u24 v3, 2752, v2
v_and_b32 v4, 7, v{vL}
v_lshl_add_u32 v86, v4, 4, v3
s_and_b32 s33, s{sP}, 7
s_lshl_b32 s33, s33, 6
s_lshl_b32 s34, s{sHH}, 4
s_add_u32 s33, s33, s34
s_mul_i32 s33, s33, 2752
s_lshr_b32 s34, s{sGU}, 3
s_lshl_b32 s34, s34, 7
s_add_u32 s33, s33, s34
s_cmp_ge_u32 s{sGU}, 176
s_cselect_b32 s33, 0x40000000, s33
s_add_u32 s34, s33, {8*2752}
buffer_load_dwordx4 {R(GW,4)}, v86, {SR(SWG)}, s33 offen
buffer_load_dwordx4 {R(GW+4,4)}, v86, {SR(SWU)}, s33 offen
buffer_load_dwordx4 {R(GW+8,4)}, v86, {SR(SWG)}, s34 offen
buffer_load_dwordx4 {R(GW+12,4)}, v86, {SR(SWU)}, s34 offen""")
ops = []
for u in range(DEPTH):
    issue_unit(u); ops += [u] * ucount(u)
    if u == LGW: lgw_issue(); ops += ["gw"] * 4
TS(1)
if TLBM == 2:
    lb = A.newlabel("L_nt")
    A(f"s_cmp_lg_u32 s{sW}, 7\ns_cbranch_scc1 {lb}")
    for b in (SWR, SWG, SWU, SWO, SWD, SOUT):
        A(f"s_load_dword s100, s[{b}:{b+1}], 0")
    A(f"s_load_dword s100, s[{SDBG}:{SDBG+1}], 128")
    for off in (0xF000, 0x2FF000 , 0x4FF000, 0x6FF000, 0x8FF000):
        A(f"s_mov_b32 s20, {off}\ns_load_dword s100, s[{SWS}:{SWS+1}], s20")
    A.label(lb)
SA = 112
A(f"""s_and_b32 s{sCT}, s{sHH}, 1
s_lshr_b32 s28, s{sHH}, 1
s_lshl_b32 s28, s28, 12
s_mov_b32 s29, {L_RING}
s_mov_b32 s{sROLE}, 0
v_lshlrev_b32 v85, 4, v{vL}
s_lshl_b32 s30, s{sI}, 10
s_add_u32 s30, s30, {WS_STATS}
s_cmp_lg_u32 s{sHH}, 0
s_cselect_b32 s30, 0x40000000, s30
s_mov_b32 s36, {WS_BEST}
s_cmp_lg_u32 s{sHH}, 1
s_cselect_b32 s36, 0x40000000, s36""")
attn_setup_s()
def sib_issue(): A(f"buffer_load_dwordx4 {R(SA,4)}, v85, {SR(SWS)}, s30 offen sc1")
lp = split(capture(lambda: (frag_addrs(), attn_setup_v(), v_prefill(6), mk_setup())), 6)
lpieces = {0: lp[0], 1: lp[1], 2: lp[2], 3: lp[3], 4: lp[4], 5: lp[5]}
def younger_than(tag): return len(ops) - 1 - max(k for k, x in enumerate(ops) if x == tag)
issued = DEPTH
for u in range(8):
    TSL(32 + u)
    A(f"s_waitcnt vmcnt({younger_than(u)})")
    TSL(16 + u)
    A("s_barrier")
    TSL(24 + u)
    if u == SIBU:
        sib_issue(); ops.append("sib")
    tgt = min(12, u + 1 + DEPTH + max(0, u - 1 - DEPTH), u + 5)
    while issued < tgt:
        issue_unit(issued); ops += [issued] * ucount(issued)
        if issued == LGW: lgw_issue(); ops += ['gw'] * 4
        issued += 1
    emit(lpieces.get(u, []))
    if u == 6:
        lb = A.newlabel("L_nsib")
        A(f"""s_waitcnt lgkmcnt(0)
s_add_u32 s{sNONCE}, s{sNONCE}, 1
s_cmp_lg_u32 s{sHH}, 0
s_cbranch_scc1 {lb}""")
        validated(sib_issue, lambda: A(f"v_cmp_ne_u32 vcc, s{sNONCE}, v{SA+3}"), younger_than("sib"))
        A(f"""v_lshrrev_b32 v122, 1, v85
v_lshrrev_b32 v123, 2, v85
v_add_u32 v122, {L_STAT}, v122
v_add_u32 v123, {L_RINV}, v123
ds_write_b64 v122, {R(SA,2)}
ds_write_b32 v123, v{SA+1}
s_waitcnt lgkmcnt(0)""")
        A.label(lb)
assert issued == 12, issued
TS(2)
LST, LSC, LCX, LCW = 116, 118, 120, 124
for r in range(16): A(f"v_mov_b32 v{ACC+r}, 0")
A(f"""v_and_b32 v2, 31, v{vL}
v_lshlrev_b32 v2, 3, v2
s_lshr_b32 s20, s28, 4
s_add_u32 s20, s20, {L_STAT}
v_add_u32 v2, s20, v2
ds_read_b64 {R(LST,2)}, v2
s_waitcnt lgkmcnt(0)""")
corr_x(LCX, LST)
A(f"""v_mul_f32 v{LSC}, {f32(0.25*LOG2E)}, v{LST+1}
v_mov_b32 v{LCW+2}, 0
v_mov_b32 v{LCW+3}, 0
s_lshl_b32 s30, s{sHH}, 11
s_add_u32 s30, s30, {L_QF}
v_lshlrev_b32 v5, 4, v{vL}
v_add_u32 v5, s30, v5""")
def q_reads(n):
    u = 8 + n // 8; e = (n // 4) % 2; st = n % 4; b = STB + 8 * (n % 8)
    out = [f"ds_read_b128 {R(b,4)}, v{vXA+st} offset:{(n//4)*8192}"]
    for j in range(2):
        r, o = wa(slot_of(u), e * 1024 + st * 4096 + j * 512)
        out.append(f"ds_read_b64_tr_b16 {R(b+4+2*j,2)}, v{r} offset:{o}")
    return out
def q_span(n0, n1, depth=4, fill=()):
    fill = list(fill)
    for n in range(n0, min(n0 + depth, n1)): emit(q_reads(n))
    for n in range(n0, n1):
        ahead = min(n + depth, n1) - n - 1
        A(f"s_waitcnt lgkmcnt({3*ahead})")
        b = STB + 8 * (n % 8)
        A(csum_mfma(b + 4))
        A(mfma32(ACC, b + 4, b))
        if n + depth < n1: emit(q_reads(n + depth))
        if n - n0 >= 2: emit(fill[:1]); fill = fill[1:]
A("s_waitcnt vmcnt(4)\ns_barrier")
TS(3)
if LGW >= 0:
    lb = A.newlabel("L_nlg")
    A(f"""s_cmp_ge_u32 s{sGU}, 176
s_cbranch_scc1 {lb}
v_bfe_u32 v4, v{vL}, 4, 1
v_lshlrev_b32 v4, 6, v4
v_xor_b32 v2, v{vEX}, v4
v_xor_b32 v2, 0x4000, v2""")
    for k in range(4): A(f"ds_write_b128 v2, {R(GW+4*k,4)} offset:{k*1024}")
    A.label(lb)
TS(48)
q_span(0, 24)
TS(49)
A("s_waitcnt vmcnt(0)\ns_barrier")
q_span(24, 32)
TS(4)
corr_w(LCW)
A(mfma32(ACC, LCW, LCX))
for r in range(16): A(f"v_mul_f32 v{ACC+r}, v{ACC+r}, v{LSC}")
for k in range(8): A(f"v_cvt_pk_bf16_f32 v{STB+k}, v{ACC+2*k}, v{ACC+2*k+1}")
A(f"ds_write_b128 v5, {R(STB,4)}\nds_write_b128 v5, {R(STB+4,4)} offset:1024")
TS(50)
A("s_branch L_join")

A.label("L_cwave")
srd(SDBG, 256); srd(SWG, 512 * 2752); srd(SWU, 512 * 2752)
A(f"v_mov_b32 v{vZ}, 0\nv_add_u32 v62, s20, v3")
A(f"""s_and_b32 s{sCT}, s{sW}, 1
s_mov_b32 s28, 0
s_lshr_b32 s29, s{sW}, 1
s_lshl_b32 s29, s29, 10
s_add_u32 s29, s29, {L_RING}
s_mov_b32 s{sHH}, s{sW}
s_mov_b32 s{sROLE}, 1
v_lshlrev_b32 v{vBA}, 4, v{vL}
s_lshl_b32 s35, s{sW}, 10
s_add_u32 s35, s35, {WS_BEST}
s_lshl_b32 s33, s{sP}, 14
s_add_u32 s33, s33, {WS_KV}
s_add_u32 s36, s33, 4096
s_lshl_b32 s34, s{sP}, 12
s_add_u32 s34, s34, {WS_KVC}""")
frag_addrs()
for r in range(32): A(f"v_mov_b32 v{ACC+r}, 0")
attn_setup_s(); attn_setup_v()
A(f"""v_lshrrev_b32 v2, 3, v{vL}
v_mul_u32_u24 v3, 2752, v2
v_and_b32 v4, 7, v{vL}
v_lshl_add_u32 v5, v4, 4, v3
s_and_b32 s31, s{sP}, 7
s_lshl_b32 s31, s31, 6
s_lshl_b32 s32, s{sW}, 4
s_add_u32 s31, s31, s32
s_mul_i32 s31, s31, 2752
s_lshr_b32 s32, s{sGU}, 3
s_lshl_b32 s32, s32, 7
s_add_u32 s31, s31, s32
s_cmp_ge_u32 s{sGU}, {0 if (opts.get("nogw") or LGW >= 0) else 176}
s_cselect_b32 s31, 0x40000000, s31
s_add_u32 s32, s31, {8*2752}""")
A(f"""s_lshl_b32 s37, s{sDI}, 15
s_lshl_b32 s38, s{sW}, 8
s_add_u32 s37, s37, s38
v_lshrrev_b32 v2, 4, v{vL}
v_and_b32 v3, 15, v{vL}
v_lshlrev_b32 v3, 4, v3
v_lshl_add_u32 v63, v2, 10, v3""")
def gw_issue():
    l1 = A.newlabel("L_gw"); l2 = A.newlabel("L_gw")
    A(f"s_cmp_lt_u32 s{sDI}, 43\ns_cbranch_scc1 {l1}")
    A(f"""buffer_load_dwordx4 {R(GW,4)}, v5, {SR(SWG)}, s31 offen
buffer_load_dwordx4 {R(GW+4,4)}, v5, {SR(SWU)}, s31 offen
buffer_load_dwordx4 {R(GW+8,4)}, v5, {SR(SWG)}, s32 offen
buffer_load_dwordx4 {R(GW+12,4)}, v5, {SR(SWU)}, s32 offen
s_branch {l2}""")
    A.label(l1)
    for n in range(8):
        A(f"buffer_load_dwordx4 {R(DG[n],4)}, v63, {SR(SWD)}, s37 offen\ns_add_u32 s37, s37, 4096")
    A.label(l2)
if int(opts.get("d2", 0)):
    A(f"""v_mov_b32 v40, 0
v_mov_b32 v41, 0
v_mov_b32 v42, 0
v_mov_b32 v43, 0
v_mov_b32 v48, 0x3f803f80
v_sub_u32 v47, 2047, v62
v_and_b32 v46, 7, v62
v_lshlrev_b32 v46, 4, v46
v_add_u32 v46, {L_RT}, v46
s_mov_b32 s26, 0xffff0000""")
    PREW = int(opts.get("prew", 0))
    def prewrite():
        A(f"""s_lshl_b32 s20, s{sW}, 12
s_add_u32 s21, s33, s20
s_lshl_b32 s22, s{sW}, 10
s_add_u32 s22, s34, s22
s_lshl_b32 s23, s{sI}, 4
s_add_u32 s23, s23, s{sC}
s_and_b32 s24, s{sW}, 1
s_lshl_b32 s24, s24, 3
s_add_u32 s23, s23, s24
s_lshl_b32 s24, s23, 12
s_lshr_b32 s25, s{sW}, 1
s_lshl_b32 s25, s25, 11
s_add_u32 s24, s24, s25
s_add_u32 s24, s24, {WS_O}
s_lshl_b32 s23, s23, 10
s_add_u32 s23, s23, {WS_OC}""")
        if PREW & 1:
            for k in range(4): A(f"buffer_store_dwordx4 {R(ACC,4)}, v{vBA}, {SR(SWS)}, s21 offen offset:{k*1024} sc1")
            A(f"buffer_store_dwordx4 {R(ACC,4)}, v{vBA}, {SR(SWS)}, s22 offen sc1")
        if PREW & 2:
            for k in range(2): A(f"buffer_store_dwordx4 {R(ACC,4)}, v{vBA}, {SR(SWS)}, s24 offen offset:{k*1024} sc1")
            A(f"buffer_store_dwordx4 {R(ACC,4)}, v{vBA}, {SR(SWS)}, s23 offen sc1")
    NPW = (5 if PREW & 1 else 0) + (3 if PREW & 2 else 0)
    if PREW: prewrite()
    A(f"s_waitcnt vmcnt({2 + NPW})")
    TS(1)
    if int(opts.get("np1", 0)): A(f"s_lshl_b32 s24, s{sW}, 8\nbuffer_load_dword v60, v{vZ}, {SR(SDBG)}, s24 offen sc1")
    for k in range(8): A(f"v_dot2_f32_bf16 v40, v{8+k}, v48, v40\nv_dot2_f32_bf16 v41, v{8+k}, v{8+k}, v41")
    A("s_waitcnt vmcnt(%d)" % NPW)
    for k in range(8): A(f"v_dot2_f32_bf16 v42, v{8+k}, v{16+k}, v42\nv_dot2_f32_bf16 v43, v{16+k}, v48, v43")
    for m in DPP8 + ("row_mirror",):
        for r in range(4): A(dpp("v_add_f32", 40 + r, m))
    for r in range(4): A(f"v_mov_b32 v{24+r}, v{40+r}")
    for r in range(4): A(f"v_permlane16_swap_b32 v{40+r}, v{24+r}")
    for r in range(4): A(f"v_add_f32 v{40+r}, v{40+r}, v{24+r}")
    A(f"""v_mul_f32 v40, {f32(1.0/512)}, v40
v_mul_f32 v41, {f32(1.0/512)}, v41
v_fma_f32 v41, -v40, v40, v41
v_max_f32 v41, 0, v41""")
    bf16round(40, 40)
    A("v_fma_f32 v42, -v40, v43, v42")
    var_to_rinv(41)
    A("v_mul_f32 v42, v42, v41")
    bf16round(42, 42)
    A(f"""v_ashrrev_i32 v45, 31, v42
v_or_b32 v45, 0x80000000, v45
v_xor_b32 v42, v42, v45
v_and_or_b32 v42, v42, s26, v47
ds_write_b96 v46, v[40:42]""")
else:
    A("s_waitcnt vmcnt(2)")
    TS(1)
    XU = 24
    for k in range(8):
        A(f"v_lshlrev_b32 v{XU+2*k}, 16, v{8+k}\nv_and_b32 v{XU+2*k+1}, 0xffff0000, v{8+k}")
    A(f"v_pk_add_f32 v[40:41], {R(XU,2)}, {R(XU+2,2)}")
    for k in range(4, 16, 2): A(f"v_pk_add_f32 v[40:41], v[40:41], {R(XU+k,2)}")
    A("v_add_f32 v40, v40, v41")
    allreduce32(40, 41, "v_add_f32")
    A(f"v_mul_f32 v40, {f32(-1.0/512)}, v40")
    A("v_cvt_pk_bf16_f32 v42, -v40, -v40\nv_and_b32 v42, 0xffff0000, v42")
    A(f"v_pk_add_f32 v[46:47], {R(XU,2)}, v[40:41] op_sel_hi:[1,0]\nv_pk_mul_f32 v[44:45], v[46:47], v[46:47]")
    for k in range(2, 16, 2):
        A(f"v_pk_add_f32 v[46:47], {R(XU+k,2)}, v[40:41] op_sel_hi:[1,0]\nv_pk_fma_f32 v[44:45], v[46:47], v[46:47], v[44:45]")
    A("v_add_f32 v43, v44, v45")
    allreduce32(43, 41, "v_add_f32")
    for k in range(0, 16, 2): A(f"v_pk_add_f32 {R(XU+k,2)}, {R(XU+k,2)}, v[42:43] op_sel_hi:[1,0] neg_lo:[0,1] neg_hi:[0,1]")
    A(f"v_mul_f32 v43, {f32(1.0/512)}, v43")
    for k in range(8): A(f"v_cvt_pk_bf16_f32 v{8+k}, v{XU+2*k}, v{XU+2*k+1}")
    var_to_rinv(43)
    for k in range(8):
        A(f"v_lshlrev_b32 v{XU+2*k}, 16, v{8+k}\nv_and_b32 v{XU+2*k+1}, 0xffff0000, v{8+k}")
    for k in range(0, 16, 2): A(f"v_pk_mul_f32 {R(XU+k,2)}, {R(XU+k,2)}, v[42:43] op_sel:[0,1]")
    for k in range(8): A(f"v_cvt_pk_bf16_f32 v{8+k}, v{XU+2*k}, v{XU+2*k+1}")
    A("v_mov_b32 v44, 0\ns_waitcnt vmcnt(0)")
    for k in range(8): A(f"v_dot2_f32_bf16 v44, v{8+k}, v{16+k}, v44")
    allreduce32(44, 41, "v_add_f32")
    bf16round(44, 44)
    A(f"""v_ashrrev_i32 v45, 31, v44
v_or_b32 v45, 0x80000000, v45
v_xor_b32 v44, v44, v45
v_and_b32 v44, 0xffff0000, v44
v_sub_u32 v45, 2047, v62
v_or_b32 v44, v44, v45
v_and_b32 v46, 7, v62
v_lshlrev_b32 v46, 4, v46
v_add_u32 v46, {L_RT}, v46
ds_write_b96 v46, v[42:44]
""")
A(f"""s_waitcnt lgkmcnt(0)
s_add_u32 s{sNONCE}, s{sNONCE}, 1""")
if PWS:
    A(f"""v_mov_b32 v43, s{sNONCE}
v_lshlrev_b32 v44, 4, v62
s_mov_b32 s24, 1
s_mov_b32 s25, 1
s_mov_b32 s27, {WS_STATS}
s_mov_b64 exec, s[24:25]
buffer_store_dwordx4 v[40:43], v44, {SR(SWS)}, s27 offen sc1
s_mov_b64 exec, -1""")
A(f"""s_setprio {int(opts.get("prio", 2))}""")
if GWP == 2: gw_issue()
A('v_mov_b32 v54, v5')
TS(2)
A("s_waitcnt lgkmcnt(0)")
A(f"s_cmp_ge_u32 s{sW}, 2\ns_cbranch_scc1 L_vwave")

def kv_reads(n):
    u = n // 4; st = n % 4; b = STB + 12 * (n % 6)
    out = [f"ds_read_b128 {R(b+4*qb,4)}, v{vXA+st} offset:{u*8192 + qb*4096}" for qb in range(2)]
    for j in range(2):
        r, o = wa(slot_of(u), st * 4096 + j * 512)
        out.append(f"ds_read_b64_tr_b16 {R(b+8+2*j,2)}, v{r} offset:{o}")
    return out
def kv_mm(n, isK, cs=True):
    b = STB + 12 * (n % 6)
    out = [csum_mfma(b + 8)] if cs else []
    for qb in range(2):
        out.append(mfma32(ACC + 16 * qb, b + 8, b + 4 * qb) if isK else mfma32(ACC + 16 * qb, b + 4 * qb, b + 8))
    return out
def kv_interval(u, isK, fill=(), post_reads=()):
    rd = [x for n in range(4 * u, 4 * u + 4) for x in kv_reads(n)]
    old = [x for n in (4 * u - 2, 4 * u - 1) if n >= 0 for x in kv_mm(n, isK)]
    fill = list(fill)
    per = (len(fill) + 5) // 6
    emit(rd[:4])
    rest = rd[4:]
    for m in old:
        A(m); emit(rest[:2]); rest = rest[2:]
    emit(rest)
    for k, n in enumerate((4 * u, 4 * u + 1)):
        A(f"s_waitcnt lgkmcnt({12 - 4*k})")
        for m in kv_mm(n, isK):
            A(m); emit(fill[:per]); fill = fill[per:]
    emit(post_reads)
    A("s_waitcnt lgkmcnt(0)")
BT = 68
def best_issue(): A(f"buffer_load_dwordx4 {R(BT,4)}, v{vBA}, {SR(SWS)}, s35 offen sc1")
def nonce_issue(): A(f"buffer_load_dword v60, v{vZ}, {SR(SDBG)}, 0 offen sc1")
CX0, CX1, CW = 40, 44, 56
def publish():
    lb = A.newlabel("L_np")
    A(f"s_cmp_lg_u32 s{sW}, 0\ns_cbranch_scc1 {lb}")
    A(f"""v_mov_b32 v51, s{sNONCE}
s_lshl_b32 s20, s{sP}, 4
s_add_u32 s20, s20, {WS_BEST}
s_lshl_b32 s21, s{sP}, 7
s_add_u32 s21, s21, {WS_STATS}
s_mov_b64 exec, 0xff""")
    if not PWS: A(f"buffer_store_dwordx4 v[48:51], v{vBA}, {SR(SWS)}, s21 offen sc1")
    A("v_mov_b32 v52, v50")
    for m in DPP8: A(dpp("v_max_u32", 52, m))
    A(f"""v_cmp_eq_u32 vcc, v52, v50
s_mov_b64 exec, vcc
buffer_store_dwordx4 v[48:51], v{vZ}, {SR(SWS)}, s20 offen sc1
s_mov_b64 exec, -1""")
    A.label(lb)
def cw_loop(isK):
    for u in range(8):
        TSL(16 + u)
        A("s_barrier")
        TSL(24 + u)
        fill = []; post = []
        if u == PUBU and isK:
            fill = [f"v_and_b32 v53, 0x70, v{vBA}", f"v_add_u32 v53, {L_RT}, v53"]; post = ["ds_read_b96 v[48:50], v53"]
        if u == 3:
            fill = capture(lambda: A(f"""v_mov_b32 v{CW+2}, 0
v_mov_b32 v{CW+3}, 0
v_lshrrev_b32 v64, 1, v{vSA}
v_add_u32 v64, {L_STAT}, v64
v_mov_b32 v66, {L_NONCE}"""))
            if isK:
                fill += capture(lambda: A(f"""s_lshl_b32 s20, s{sCT}, 11
v_add_u32 v{vKA}, s20, v{vBA}
v_lshrrev_b32 v{vKC}, 1, v{vKA}"""))
            else:
                fill += capture(lambda: A(f"""v_and_b32 v2, 0x2f, v{vL}
v_bfe_u32 v3, v{vL}, 4, 1
s_lshl_b32 s20, s{sCT}, 1
v_add_u32 v3, s20, v3
v_lshlrev_b32 v{vKA}, 4, v2
v_lshl_add_u32 v{vKA}, v3, 10, v{vKA}
v_lshrrev_b32 v{vKC}, 1, v{vKA}
v_add_u32 v{vKA}, 8192, v{vKA}
v_lshrrev_b32 v65, 5, v{vL}
v_lshlrev_b32 v65, 4, v65
v_add_u32 v65, {L_RINV}, v65"""))
        if u == 7:
            fill = capture(best_issue)
            post = [f"ds_read_b64 {R(ST0,2)}, v64", f"ds_read_b64 {R(ST1,2)}, v64 offset:256"]
            if not isK:
                post += [f"ds_read_b128 {R(8+16*qb+4*a,4)}, v65 offset:{qb*128 + a*32}" for qb in range(2) for a in range(4)]
        kv_interval(u, isK, fill, post)
        TSL(32 + u)
        if u == PUBU and isK: publish()
        if GWP == 10 + u:
            A('v_mov_b32 v5, v54'); gw_issue()
    A("s_barrier")
    TS(3)
    A(csum_mfma(STB + 12 * (30 % 6) + 8)); A(csum_mfma(STB + 12 * (31 % 6) + 8))
    mm = kv_mm(30, isK, False) + kv_mm(31, isK, False)
    A(mm[0]); corr_x(CX0, ST0)
    A(mm[1]); corr_x(CX1, ST1)
    cw = capture(lambda: corr_w(CW))
    A(mm[2]); emit(cw[:6]); A(mm[3]); emit(cw[6:])
    for qb, cx in enumerate((CX0, CX1)):
        A(mfma32(ACC + 16 * qb, CW, cx) if isK else mfma32(ACC + 16 * qb, cx, CW))
CSR = 144
def kv_store(isK):
    for qb in range(2):
        st = ST0 if qb == 0 else ST1
        for e in range(2):
            for r in range(8 * e, 8 * e + 8):
                A(f"v_mul_f32 v{ACC+16*qb+r}, v{ACC+16*qb+r}, v{st+1 if isK else 8+16*qb+r}")
            for k in range(4 * e, 4 * e + 4): A(f"v_cvt_pk_bf16_f32 v{OWN+8*qb+k}, v{ACC+16*qb+2*k}, v{ACC+16*qb+2*k+1}")
            b = OWN + 8 * qb + 4 * e; c_ = CSR + 2 * e + qb
            A(f"buffer_store_dwordx4 {R(b,4)}, v{vKA}, {SR(SWS)}, s{33 if qb == 0 else 36} offen offset:{e*(1024 if isK else 256)} sc1")
            A(f"v_add3_u32 v{c_}, v{b}, v{b+1}, v{b+2}\nv_add3_u32 v{c_}, v{c_}, v{b+3}, s{sNONCE}")
    for e in range(2):
        A(f"buffer_store_dwordx2 {R(CSR+2*e,2)}, v{vKC}, {SR(SWS)}, s34 offen offset:{e*512 if isK else 2048+e*128} sc1")

cw_loop(True); kv_store(True)
A("s_mov_b32 s39, 1024\ns_branch L_cpost")
A.label("L_vwave")
cw_loop(False); kv_store(False)
A("s_mov_b32 s39, 256")
A.label("L_cpost")
TS(4)
A("s_setprio 0")
A(f"""s_cmp_ge_u32 s{sC}, 4
s_cselect_b64 s[20:21], -1, 0
v_cndmask_b32_e64 v{vPM}, v{ST0}, v{ST1}, s[20:21]
v_cndmask_b32_e64 v{vPR}, v{ST0+1}, v{ST1+1}, s[20:21]
""")
validated(best_issue, lambda: A(f"v_cmp_ne_u32 vcc, s{sNONCE}, v{BT+3}"), 6)
A(f"v_mov_b32 v{BT+4}, v{BT+2}")
allreduce32(BT + 4, BT + 5, "v_max_u32")
A(f"""v_mov_b32 v{BT+5}, v{BT+4}
v_permlane32_swap_b32 v{BT+4}, v{BT+5}
v_max_u32 v{BT+4}, v{BT+4}, v{BT+5}
s_lshl_b32 s20, s{sW}, 4
s_add_u32 s20, s20, {L_IDX}
v_mov_b32 v2, s20
v_cmp_eq_u32 vcc, v{BT+4}, v{BT+2}
s_mov_b64 exec, vcc
ds_write_b128 v2, {R(BT,4)}
s_mov_b64 exec, -1
s_cmp_lt_u32 s{sDI}, 43
s_cbranch_scc1 L_dprep""")
A(f"""v_bfe_u32 v4, v{vL}, 4, 1
v_lshlrev_b32 v4, 6, v4
v_xor_b32 v2, v{vEX}, v4""")
if LGW < 0:
    for k in range(4): A(f"ds_write_b128 v2, {R(GW+4*k,4)} offset:{k*1024}")
A("s_branch L_b9")
A.label("L_dprep")
A(f"""v_lshrrev_b32 v3, 4, v{vL}
v_lshlrev_b32 v3, 6, v3
v_xor_b32 v2, v{vEX}, v3
v_lshrrev_b32 v3, 5, v{vL}
v_bfe_u32 v4, v{vL}, 2, 2
v_lshlrev_b32 v5, 8, v4
v_lshl_add_u32 v5, v3, 11, v5
v_lshl_add_u32 v5, v4, 6, v5
v_bfe_u32 v3, v{vL}, 4, 1
v_lshl_add_u32 v5, v3, 5, v5
v_and_b32 v3, 3, v{vL}
v_lshl_add_u32 v5, v3, 3, v5
s_lshl_b32 s20, s{sW}, 12
s_add_u32 s20, s20, {L_GW}
v_add_u32 v68, s20, v5
v_xor_b32 v69, 64, v68
v_xor_b32 v70, 128, v68
v_xor_b32 v71, 192, v68""")
for rd in range(2):
    for k in range(4): A(f"ds_write_b128 v2, {R(DG[4*rd+k],4)} offset:{k*1024}")
    for t in range(4):
        for j in range(2): A(f"ds_read_b64_tr_b16 {R(DG[4*rd+t]+2*j,2)}, v{68+t} offset:{j*1024}")
A.label("L_b9")
v_prefill(4)
def winner():
    A(f"v_mov_b32 v5, v{SB+2}")
    for m in DPP8[:2]: A(dpp("v_max_u32", 5, m))
    A(f"""v_cmp_eq_u32 vcc, v5, v{SB+2}
v_readfirstlane_b32 s{sKEY}, v5
s_ff1_i32_b32 s20, vcc_lo
v_readlane_b32 s{sSM}, v{SB}, s20
v_readlane_b32 s{sSR}, v{SB+1}, s20""")
A(f"""v_and_b32 v4, 3, v{vL}
v_lshlrev_b32 v4, 4, v4
v_add_u32 v4, {L_IDX}, v4
v_add_u32 v2, {L_OWN}, v{vKA}
v_add_u32 v3, s39, v2
v_and_b32 v72, 7, v{vL}
v_lshlrev_b32 v72, 2, v72
v_mov_b32 v74, v{vSA}
s_waitcnt lgkmcnt(0)
s_barrier""")
TS(48)
A(f"""ds_read_b128 {R(SB,4)}, v4
ds_write_b128 v2, {R(OWN,4)}
ds_write_b128 v3, {R(OWN+4,4)}
ds_write_b128 v2, {R(OWN+8,4)} offset:4096
ds_write_b128 v3, {R(OWN+12,4)} offset:4096
s_waitcnt lgkmcnt(4)""")
winner()
A(f"""s_and_b32 s24, s{sKEY}, 0x7ff
s_sub_u32 s24, 2047, s24
s_lshl_b32 s24, s24, 10
s_and_b32 s25, s{sP}, 7
s_lshl_b32 s25, s25, 7
s_add_u32 s24, s24, s25
s_lshl_b32 s25, s{sW}, 5
s_add_u32 s24, s24, s25
buffer_load_dword v73, v72, {SR(SX)}, s24 offen
s_waitcnt vmcnt(1)""")
TS(49)
k_issue()
TS(50)
v_issue()
TS(51)
A(f"""s_waitcnt vmcnt(12)
v_lshlrev_b32 v2, 16, v73
v_and_b32 v3, 0xffff0000, v73
v_subrev_f32 v2, s{sSM}, v2
v_subrev_f32 v3, s{sSM}, v3
v_cvt_pk_bf16_f32 v4, v2, v3
v_lshlrev_b32 v2, 16, v4
v_and_b32 v3, 0xffff0000, v4
v_mul_f32 v2, s{sSR}, v2
v_mul_f32 v3, s{sSR}, v3
v_cvt_pk_bf16_f32 v4, v2, v3
s_add_u32 s25, s25, {L_XSEL}
v_add_u32 v72, s25, v72
ds_write_b32 v72, v4
v_mov_b32 v75, v{vWA1}""")

A.label("L_join")
TS(5); RC(41)
A("s_waitcnt lgkmcnt(0)\ns_barrier")
A(f"""s_lshl_b32 s20, s{sROLE}, 12
s_add_u32 s21, s20, {L_QF}
s_xor_b32 s20, s20, 4096
s_add_u32 s20, s20, {L_QF}
v_add_u32 v2, s21, v{vRK}
v_add_u32 v3, s20, v{vRK}
ds_read_b128 {R(QF,4)}, v2
ds_read_b128 {R(QF+4,4)}, v3""")
lb = A.newlabel("L_noown"); lb2 = A.newlabel("L_noown2")
A(f"s_cmp_lg_u32 s{sROLE}, 0\ns_cbranch_scc1 {lb}")
A(f"""v_add_u32 v2, {L_OWN}, v{vRK}
v_and_b32 v4, 3, v{vL}
v_lshlrev_b32 v4, 4, v4
v_add_u32 v4, {L_IDX}, v4
ds_read_b128 {R(SB,4)}, v4
ds_read_b128 {R(Kf(4),4)}, v2
ds_read_b128 {R(Kf(5),4)}, v2 offset:4096
ds_read_b128 {R(Vf(4,0),4)}, v2 offset:8192
ds_read_b128 {R(Vf(5,0),4)}, v2 offset:12288
s_branch {lb2}""")
A.label(lb)
GX = 144; GF = 160
A(f"""s_cmp_ge_u32 s{sGU}, 176
s_cbranch_scc1 {lb2}
s_cmp_ge_u32 s{sW}, 2
s_cbranch_scc1 {lb2}
v_lshrrev_b32 v2, 5, v{vL}
v_lshlrev_b32 v2, 4, v2
v_add_u32 v2, {L_XSEL}, v2""")
for st in range(4): A(f"ds_read_b128 {R(GX+4*st,4)}, v2 offset:{st*32}")
for st in range(4):
    for m in range(2):
        for j in range(2):
            A(f"ds_read_b64_tr_b16 {R(GF+8*st+4*m+2*j,2)}, v75 offset:{16384 + m*1024 + st*4096 + j*512}")
A.label(lb2)
A("s_waitcnt lgkmcnt(0)\ns_barrier")
TS(6)
def g_stage():
    lb = A.newlabel("L_nog"); lb2 = A.newlabel("L_nog2")
    A(f"s_cmp_ge_u32 s{sGU}, 176\ns_cbranch_scc1 {lb}\ns_cmp_ge_u32 s{sW}, 2\ns_cbranch_scc1 {lb}")
    for st in range(4):
        for m in range(2): A(mfma32(ACC + 16 * m, GX + 4 * st, GF + 8 * st + 4 * m, None if st else 0))
    A(f"""s_and_b32 s20, s{sP}, 7
s_mul_i32 s20, s20, {1408*16}
s_lshr_b32 s21, s{sGU}, 3
s_lshl_b32 s21, s21, 10
s_add_u32 s20, s20, s21
s_lshl_b32 s21, s{sW}, 9
s_add_u32 s20, s20, s21
s_add_u32 s20, s20, {WS_GP}
v_mov_b32 v{GW+2}, s{sNONCE}
v_mov_b32 v{GW+3}, s{sNONCE}
s_mov_b32 s22, -1
s_mov_b32 s23, 0
v_mov_b32 v{GW}, v{ACC}
v_mov_b32 v{GW+1}, v{ACC+16}
s_mov_b64 exec, s[22:23]
buffer_store_dwordx4 {R(GW,4)}, v74, {SR(SWS)}, s20 offen sc1
s_mov_b64 exec, -1
s_branch {lb2}""")
    A.label(lb)
    A(f"s_mov_b32 s20, 0x40000000\nbuffer_load_dword v254, v74, {SR(SWS)}, s20 offen")
    A.label(lb2)

def gp_issue():
    for q in range(4): A(f"buffer_load_dwordx4 {R(NM+4*q,4)}, v255, {SR(SWS)}, s{28+q} offen sc1")
def gp_check():
    for q in range(4): A(f"v_xor_b32 v{2+q}, s{sNONCE}, v{NM+4*q+2}")
    A("v_or3_b32 v2, v2, v3, v4\nv_or_b32 v2, v2, v5\nv_cmp_ne_u32 vcc, 0, v2")
def d_request():
    lb = A.newlabel("L_nd")
    A(f"""s_cmp_ge_u32 s{sDI}, 43
s_cbranch_scc1 {lb}
s_lshl_b32 s28, s{sDI}, 9
s_add_u32 s28, s28, {WS_GP}
s_add_u32 s29, s28, {2*1408*16}
s_add_u32 s30, s28, {4*1408*16}
s_add_u32 s31, s28, {6*1408*16}""")
    gp_issue()
    A.label(lb)
def d_stage(wait):
    def h():
        lb = A.newlabel("L_nd")
        A(f"s_cmp_ge_u32 s{sDI}, 43\ns_cbranch_scc1 {lb}")
        validated(gp_issue, gp_check, wait)
        A(f"""v_add_f32 v2, v{NM}, v{NM+4}
v_add_f32 v3, v{NM+1}, v{NM+5}
v_add_f32 v4, v{NM+8}, v{NM+12}
v_add_f32 v5, v{NM+9}, v{NM+13}
v_add_f32 v2, v2, v4
v_add_f32 v3, v3, v5
v_mov_b32 v4, v2
v_mov_b32 v5, v3
v_permlane32_swap_b32 v2, v4
v_permlane32_swap_b32 v3, v5
v_add_f32 v2, v2, v4
v_add_f32 v3, v3, v5""")
        bf16round(2, 2); bf16round(3, 3)
        A(f"""v_mul_f32 v4, {f32(-LOG2E)}, v2
v_exp_f32 v4, v4
v_add_f32 v4, 1.0, v4
v_rcp_f32 v4, v4
v_mul_f32 v2, v2, v4""")
        bf16round(2, 2)
        A(f"""v_mul_f32 v2, v2, v3
v_cvt_pk_bf16_f32 v2, v2, v2
s_lshl_b32 s20, s{sW}, 12
s_add_u32 s20, s20, {L_TAIL + 0x4000}
v_and_b32 v3, 31, v{vL}
v_lshl_add_u32 v3, v3, 1, s20
ds_write_b16 v3, v2
v_lshrrev_b32 v3, 5, v{vL}
v_lshl_add_u32 v3, v3, 4, s20
ds_read_b128 {R(56,4)}, v3
ds_read_b128 {R(60,4)}, v3 offset:32
s_lshl_b32 s20, s{sDI}, 12
s_lshl_b32 s21, s{sW}, 10
s_add_u32 s20, s20, s21
s_add_u32 s20, s20, {WS_YP}
s_mov_b32 s22, 0
s_mov_b32 s23, -1
v_lshlrev_b32 v2, 4, v{vL}
v_mov_b32 v66, s{sNONCE}
v_mov_b32 v67, s{sNONCE}
s_waitcnt lgkmcnt(0)""")
        for e in range(2):
            for st in range(2):
                A(mfma32(NM, 56 + 4 * st, DG[4 * st + e], None if st else 0))
                A(mfma32(NM + 16, 56 + 4 * st, DG[4 * st + e + 2], None if st else 0))
            A(f"v_cndmask_b32_e64 v{64+e}, v{NM}, v{NM+16}, s[22:23]")
        A(f"buffer_store_dwordx4 {R(64,4)}, v2, {SR(SWS)}, s20 offen sc1")
        A.label(lb)
    return h
def wo_dma4():
    return [f"""s_and_b32 s26, s{sWB}, 3
s_add_u32 s{sWB}, s{sWB}, 1
s_lshl_b32 s27, s26, 12
s_add_u32 m0, s27, s{sM0}
s_lshl_b32 s27, s26, 14
s_add_u32 s27, s27, s{sWOD}"""] + [f"buffer_load_dwordx4 v{vWO+k}, {SR(SWO)}, s27 offen offset:{k*1024} lds" for k in range(4)]
def kv_check(base, cs):
    for k in range(4):
        b = base(k)
        A(f"v_add3_u32 v{2+k}, v{b}, v{b+1}, v{b+2}\nv_add3_u32 v{2+k}, v{2+k}, v{b+3}, s{sNONCE}\nv_xor_b32 v{2+k}, v{2+k}, v{cs+k}")
    A(f"""v_or_b32 v2, v2, v3
v_or_b32 v4, v4, v5
v_and_b32 v2, s{sH1}, v2
v_and_or_b32 v2, v4, s{sH2}, v2
v_cmp_ne_u32 vcc, 0, v2""")
def k_check(): kv_check(Kf, KC)
def v_check(): kv_check(lambda k: Vf(k, 0), VC)
def vswap(ks):
    for k in ks:
        for r in range(4): A(f"v_permlane16_swap_b32 v{Vf(k,0)+r}, v{Vf(k,1)+r}")
def Q(q): return QF + 4 * q
def smf(dst, k, q, c): return mfma32(dst, Kf(k), Q(q), c)
SEG = lambda k0: [(k0, 0, None), (k0, 1, None), (k0 + 1, 0, None), (k0 + 1, 1, None)]
B3 = [SB, SB + 16, SB + 32]
def nm(q): return R(NM + 16 * q, 16)
def p2_run(jobs, cfun, fresh, extra={}, mem={}):
    n = len(jobs)
    pend = []
    A(smf(B3[0], jobs[0][0], jobs[0][1], cfun(jobs[0][1])))
    for t in range(n):
        k, q, mask = jobs[t]; b = B3[t % 3]
        side = []
        if t + 1 < n: side.append(smf(B3[(t + 1) % 3], jobs[t + 1][0], jobs[t + 1][1], cfun(jobs[t + 1][1])))
        side += pend
        val = [f"v_exp_f32 v{b+r}, v{b+r}" for r in range(16)]
        val += [f"v_cvt_pk_bf16_f32 v{b+j}, v{b+2*j}, v{b+2*j+1}" for j in range(8)]
        if mask == "old": val += [f"v_and_b32 v{b+j}, v{b+j}, v{MK+j}" for j in range(8)]
        if mask == "diag": val += [f"v_bfi_b32 v{b+j}, v{MK+j}, 0, v{b+j}" for j in range(8)]
        mm_ = mem.get(t, [])
        if mm_:
            step = len(val) // len(mm_)
            for q_, x in enumerate(mm_): val[q_ * step + step // 2] += "\n" + x
        vi = 0
        for sx in side:
            A(sx); emit(val[vi:vi + 5]); vi += 5
        emit(val[vi:])
        for fn in extra.get(t, []): fn()
        pend = [mfma32(OA + 16 * q, Vf(k, g), b + 4 * g, 0 if (q in fresh and g == 0) else None) for g in range(2)]
        fresh.discard(q)
    emit(pend)
zero = lambda q: 0
XR = 80
dma = lambda: emit(wo_dma4())
def wo_ops():
    out = []
    for b in range(4):
        l = wo_dma4(); out += [l[0] + "\n" + l[1]] + l[2:]
    return out
def dma_upto(n):
    lt = A.newlabel("L_du"); le = A.newlabel("L_de")
    A.label(lt)
    A(f"s_sub_u32 s20, s{sWE}, {4-n}\ns_cmp_ge_u32 s{sWB}, s20\ns_cbranch_scc1 {le}")
    dma()
    A(f"s_branch {lt}")
    A.label(le)
def after_v(isC, wait):
    def h():
        validated(v_issue, v_check, wait)
        vswap(range(4))
        if isC:
            for pr in range(2):
                A(f"buffer_load_dwordx4 {R(XR+4*pr,4)}, v{vOUT}, {SR(SX)}, s{sOUTO} offen offset:{pr*32}")
            if int(opts.get("opt", 1)):
                A(f"""s_lshl_b32 s20, s{sI}, 4
s_add_u32 s20, s20, s{sC}
s_and_b32 s21, s{sW}, 1
s_lshl_b32 s21, s21, 3
s_add_u32 s20, s20, s21
s_cmp_ge_u32 s{sW}, 2
s_cselect_b32 s21, 10, 12
s_mov_b32 s22, {WS_O}
s_cselect_b32 s22, {WS_OC}, s22
s_cselect_b32 s24, 0xff, -1
s_mov_b32 s25, 0
s_lshl_b32 s20, s20, s21
s_add_u32 s20, s20, s22
v_lshlrev_b32 v2, 7, v{vL}
s_mov_b64 exec, s[24:25]
buffer_load_dword v254, v2, {SR(SWS)}, s20 offen sc1
s_mov_b64 exec, -1""")
        TS(9); RC(43)
    return h
def k_valid(first_wait):
    validated(lambda: (k_issue(), v_issue()), k_check, first_wait)
    TS(7); RC(42)
def sched(ops, plan):
    out = {}; k = 0
    for t, n in plan:
        out[t] = ops[k:k + n]; k += n
    assert k == len(ops)
    return out
OWNJ = [(4, 0, "diag"), (5, 1, "diag"), (4, 1, None)]
OLDJ = [(3, 0, None), (2, 0, "old"), (3, 1, "old")]
A(f"s_cmp_eq_u32 s{sROLE}, 0\ns_cbranch_scc1 L_fA")
g_stage()
TS(8)
k_valid(7)
lb = A.newlabel("L_fb1"); lb2 = A.newlabel("L_fb0")
A(f"s_cmp_eq_u32 s{sH1}, 0\ns_cbranch_scc1 {lb}")
p2_run(SEG(0) + SEG(2), zero, {0, 1}, {0: [after_v(1, 1)], 3: [d_request], 6: [d_stage(7)]}, sched(wo_ops(), [(1, 3), (2, 3), (3, 3), (4, 3), (5, 2), (6, 2)]))
A("s_branch L_fchk")
A.label(lb)
A(f"s_cmp_eq_u32 s{sH2}, 0\ns_cbranch_scc1 {lb2}")
p2_run(SEG(2), zero, {0, 1}, {0: [after_v(1, 1)]})
dma_upto(4)
d_request(); d_stage(0)()
A("s_branch L_fchk")
A.label(lb2)
after_v(1, 1)()
dma_upto(4)
d_request(); d_stage(0)()
for r in range(32): A(f"v_mov_b32 v{OA+r}, 0")
A(f"v_mov_b32 v{vM0}, {f32(-1e30)}\nv_mov_b32 v{vM1}, {f32(-1e30)}")
A("s_branch L_p2done")
A.label("L_fA")
winner()
vswap((4, 5))
A('s_setprio %d' % int(opts.get('lprio', 1)))
p2_run(OWNJ, zero, {0, 1}, {}, sched(capture(k_issue) + capture(v_issue), [(0, 6), (1, 3), (2, 3)]))
TS(8)
k_valid(6)
lb = A.newlabel("L_fa1"); lb2 = A.newlabel("L_fa0")
A(f"s_cmp_eq_u32 s{sH2}, 0\ns_cbranch_scc1 {lb}")
p2_run(SEG(0) + OLDJ, zero, set(), {0: [after_v(0, 0)]}, sched(wo_ops(), [(1, 4), (2, 4), (3, 4), (4, 4)]))
A("s_branch L_fchk")
A.label(lb)
A(f"s_cmp_eq_u32 s{sH1}, 0\ns_cbranch_scc1 {lb2}")
p2_run(SEG(0), zero, set(), {0: [after_v(0, 0)]})
dma_upto(4)
A("s_branch L_fchk")
A.label(lb2)
after_v(0, 0)()
dma_upto(4)
A.label("L_fchk")
LO = (127 - 40) << 23; RNG = 80 << 23
if not FAST: LO, RNG = 0, 0
A(f"""v_subrev_u32 v2, {hex(LO)}, v{OA+8}
v_subrev_u32 v3, {hex(LO)}, v{OA+24}
v_max_u32 v2, v2, v3
v_cmp_le_u32 vcc, {hex(RNG) if RNG else 0}, v2
s_cbranch_vccnz L_slow""")
A.label("L_p2done")
TS(10)

def slow_path():
    A.label("L_slow")
    A(f"v_mov_b32 v{vM0}, {f32(-1e30)}\nv_mov_b32 v{vM1}, {f32(-1e30)}\nv_mov_b32 v5, {f32(-1e30)}")
    def max_run(jobs):
        for (k, q, mask) in jobs:
            m = vM0 if q == 0 else vM1
            A(smf(SB, k, q, 0))
            if mask:
                for r in range(16):
                    j0 = 8 * (r // 4) + r % 4
                    A(f"s_lshl_b32 s20, -1, {j0}\ns_lshl_b32 s21, -1, {j0+4}")
                    if mask == "diag": A(f"v_cndmask_b32_e64 v{SB+r}, v5, v{SB+r}, s[20:21]")
                    else: A(f"v_cndmask_b32_e64 v{SB+r}, v{SB+r}, v5, s[20:21]")
            for r in range(0, 16, 2): A(f"v_max3_f32 v{m}, v{SB+r}, v{SB+r+1}, v{m}")
    def groups(fn):
        l1 = A.newlabel("L_s"); l2 = A.newlabel("L_s"); l3 = A.newlabel("L_s")
        A(f"s_cmp_eq_u32 s{sH1}, 0\ns_cbranch_scc1 {l1}")
        fn(SEG(0))
        A.label(l1)
        A(f"s_cmp_eq_u32 s{sROLE}, 0\ns_cbranch_scc1 {l2}")
        fn(SEG(2))
        A(f"s_branch {l3}")
        A.label(l2)
        fn(OWNJ)
        A(f"s_cmp_eq_u32 s{sH2}, 0\ns_cbranch_scc1 {l3}")
        fn(OLDJ)
        A.label(l3)
    groups(max_run)
    A(f"""v_mov_b32 v2, v{vM0}
v_mov_b32 v3, v{vM1}
v_permlane32_swap_b32 v{vM0}, v2
v_permlane32_swap_b32 v{vM1}, v3
v_max_f32 v{vM0}, v{vM0}, v2
v_max_f32 v{vM1}, v{vM1}, v3""")
    for q, m in enumerate((vM0, vM1)):
        for r in range(16): A(f"v_sub_f32 v{NM+16*q+r}, 0, v{m}")
    for r in range(32): A(f"v_mov_b32 v{OA+r}, 0")
    groups(lambda jobs: p2_run(jobs, nm, set()))
    A("s_branch L_p2done")

A(f"""v_xor_b32 v3, 0x4000, v{vEX}
s_lshl_b32 s20, s{sI}, 1
s_add_u32 s20, s20, s{sROLE}
s_lshl_b32 s20, s20, 3
s_add_u32 s20, s20, s{sC}
s_lshl_b32 s21, s20, 10
s_add_u32 s21, s21, {WS_OC}
s_lshl_b32 s20, s20, 12
s_add_u32 s20, s20, {WS_O}
v_lshrrev_b32 v5, 2, v{vRK}
v_mov_b32 v{OA+25}, v{vM1}
ds_write_b64 v3, {R(OA+24,2)} offset:2048
ds_write_b128 v3, {R(OA+16,4)}
ds_write_b128 v3, {R(OA+20,4)} offset:1024
s_waitcnt lgkmcnt(0)
s_barrier
ds_read_b64 {R(SB+8,2)}, v{vEX} offset:2048
ds_read_b128 {R(SB,4)}, v{vEX}
ds_read_b128 {R(SB+4,4)}, v{vEX} offset:1024
s_waitcnt lgkmcnt(2)
v_max_f32 v3, v{vM0}, v{SB+9}
v_sub_f32 v{SB+10}, v{vM0}, v3
v_sub_f32 v{SB+11}, v{SB+9}, v3
v_exp_f32 v{SB+10}, v{SB+10}
v_exp_f32 v{SB+11}, v{SB+11}
v_mul_f32 v4, v{SB+10}, v{OA+8}
v_fmac_f32 v4, v{SB+11}, v{SB+8}
v_rcp_f32 v4, v4
v_mul_f32 v{SB+10}, v{SB+10}, v4
v_mul_f32 v{SB+11}, v{SB+11}, v4
s_waitcnt lgkmcnt(0)""")
for r in range(0, 8, 2):
    A(f"v_pk_mul_f32 {R(OA+r,2)}, {R(OA+r,2)}, {R(SB+10,2)} op_sel_hi:[1,0]")
    A(f"v_pk_fma_f32 {R(OA+r,2)}, {R(SB+r,2)}, {R(SB+10,2)}, {R(OA+r,2)} op_sel:[0,1,0]")
for k in range(4): A(f"v_cvt_pk_bf16_f32 v{SB+12+k}, v{OA+2*k}, v{OA+2*k+1}")
A(f"""buffer_store_dwordx4 {R(SB+12,4)}, v{vRK}, {SR(SWS)}, s20 offen sc1
v_add3_u32 v4, v{SB+12}, v{SB+13}, v{SB+14}
v_add3_u32 v4, v4, v{SB+15}, s{sNONCE}
buffer_store_dword v4, v5, {SR(SWS)}, s21 offen sc1""")
TS(11)

A("s_waitcnt vmcnt(2)\ns_barrier")
TS(12); RC(44)

WOF = 8; XB = 136; PA = 160; OF = 176; OL = 208; OLC = 224
A(f"""s_lshl_b32 s20, s{sQK}, 3
s_add_u32 s20, s20, s{sW}
s_lshl_b32 s32, s20, 10
s_add_u32 s32, s32, {WS_OC}
s_lshl_b32 s31, s20, 12
s_add_u32 s31, s31, {WS_O}
v_lshlrev_b32 v2, 4, v{vL}
v_lshlrev_b32 v{vRV}, 2, v{vL}
s_and_b32 s33, s{sKEY}, 0x7ff
s_sub_u32 s33, 2047, s33
s_lshr_b32 s34, s33, 5""")
def o_issue():
    for k in range(4):
        A(f"buffer_load_dwordx4 {R(OL+4*k,4)}, v2, {SR(SWS)}, s31 offen offset:{k*1024} sc1")
    for k in range(4):
        A(f"buffer_load_dword v{OLC+k}, v{vRV}, {SR(SWS)}, s32 offen offset:{k*256} sc1")
def o_check():
    for k in range(4):
        b = OL + 4 * k
        A(f"v_add3_u32 v{228+k}, v{b}, v{b+1}, v{b+2}\nv_add3_u32 v{228+k}, v{228+k}, v{b+3}, s{sNONCE}\nv_xor_b32 v{228+k}, v{228+k}, v{OLC+k}")
    A("v_or3_b32 v228, v228, v229, v230\nv_or_b32 v228, v228, v231\nv_cmp_ne_u32 vcc, 0, v228")
lb = A.newlabel("L_p3l")
A(f"s_cmp_ge_u32 s{sW}, 4\ns_cbranch_scc1 {lb}w")
for pr in range(2):
    b = XR + 4 * pr
    A(f"v_permlane32_swap_b32 v{b}, v{b+2}\nv_permlane32_swap_b32 v{b+1}, v{b+3}")
for k in range(8):
    x = XR + k; p = PA + 2 * k
    A(f"""v_lshlrev_b32 v{p}, 16, v{x}
v_and_b32 v{p+1}, 0xffff0000, v{x}
v_pk_add_f32 {R(XB+8,2)}, {R(p,2)}, {R(vPM,2)} op_sel_hi:[1,0] neg_lo:[0,1] neg_hi:[0,1]
v_cvt_pk_bf16_f32 v{XB+10}, v{XB+8}, v{XB+9}
v_lshlrev_b32 v{XB+8}, 16, v{XB+10}
v_and_b32 v{XB+9}, 0xffff0000, v{XB+10}
v_pk_mul_f32 {R(XB+8,2)}, {R(XB+8,2)}, {R(vPM,2)} op_sel:[0,1]
v_cvt_pk_bf16_f32 v{XB+10}, v{XB+8}, v{XB+9}
v_lshlrev_b32 v{XB+8}, 16, v{XB+10}
v_and_b32 v{XB+9}, 0xffff0000, v{XB+10}
v_pk_add_f32 {R(p,2)}, {R(p,2)}, {R(XB+8,2)}""")
A(f"""v_lshrrev_b32 v4, 5, v{vL}
v_bfe_u32 v3, v{vL}, 2, 2
v_lshl_add_u32 v5, v4, 2, v3
v_lshlrev_b32 v5, 8, v5
v_xor_b32 v3, s{sW}, v3
v_lshl_add_u32 v5, v3, 6, v5
v_bfe_u32 v3, v{vL}, 4, 1
v_lshl_add_u32 v5, v3, 5, v5
v_and_b32 v3, 3, v{vL}
v_lshl_add_u32 v5, v3, 3, v5
v_add_u32 v3, 65536, v5""")
for g in range(32):
    for j in range(2):
        o = g * 4096 + j * 2048
        A(f"ds_read_b64_tr_b16 {R(WOF+4*g+2*j,2)}, v{5 if o < 65536 else 3} offset:{o % 65536}")
A.label(lb + "w")
A("s_waitcnt vmcnt(0)")
def yp_issue():
    A(f"""s_and_b32 s20, s{sC}, 3
s_lshl_b32 s20, s20, 10
s_add_u32 s20, s20, {WS_YP}""")
    for k in range(43):
        A(f"buffer_load_dwordx4 {R(8+4*k,4)}, v2, {SR(SWS)}, s20 offen sc1\ns_add_u32 s20, s20, 4096")
A(f"s_cmp_lg_u32 s34, s{sQK}\ns_cbranch_scc1 {lb}\ns_cmp_lg_u32 s{sW}, 4\ns_cbranch_scc1 {lb}")
o_issue(); yp_issue()
A(f"s_waitcnt vmcnt(43)\ns_branch {lb}y")
A.label(lb)
TS(46)
o_issue()
TS(47)
A("s_waitcnt vmcnt(0)")
A.label(lb + "y")
o_check()
retry_check(lb)
for k in range(4):
    A(f"ds_write_b128 v{vEX}, {R(OL+4*k,4)} offset:{k*1024}")
TS(13); RC(45)
A("s_waitcnt lgkmcnt(0)\ns_barrier")
TS(14)
A(f"s_cmp_ge_u32 s{sW}, 4\ns_cbranch_scc1 L_p3help")
A(f"v_add_u32 v2, {L_TAIL}, v2")
def of_read(g): A(f"ds_read_b128 {R(OF+4*(g%8),4)}, v2 offset:{g*1024}")
for g in range(8): of_read(g)
for g in range(32):
    A(f"s_waitcnt lgkmcnt({min(7, 31-g)})")
    A(mfma32(PA, WOF + 4 * g, OF + 4 * (g % 8)))
    if g + 8 < 32: of_read(g + 8)
lb = A.newlabel("L_noz")
A(f"s_cmp_lg_u32 s34, s{sQK}\ns_cbranch_scc1 {lb}")
A(f"""s_barrier
s_lshl_b32 s20, s{sW}, 7
v_lshlrev_b32 v3, 4, v4
v_add_u32 v3, s20, v3""")
for a in range(4): A(f"ds_read_b128 {R(OF+4*a,4)}, v3 offset:{a*32}")
A(f"""s_and_b32 s20, s33, 31
v_and_b32 v3, 31, v{vL}
v_cmp_eq_u32 vcc, s20, v3
s_and_saveexec_b64 s[{sEX}:{sEX+1}], vcc
s_waitcnt lgkmcnt(0)""")
for r in range(16): A(f"v_add_f32 v{PA+r}, v{PA+r}, v{OF+r}")
A(f"s_mov_b64 exec, s[{sEX}:{sEX+1}]")
A.label(lb)
for k in range(8): A(f"v_cvt_pk_bf16_f32 v{XB+k}, v{PA+2*k}, v{PA+2*k+1}")
for pr in range(2):
    b = XB + 4 * pr
    A(f"v_permlane32_swap_b32 v{b}, v{b+2}\nv_permlane32_swap_b32 v{b+1}, v{b+3}")
    A(f"buffer_store_dwordx4 {R(b,4)}, v{vOUT}, {SR(SOUT)}, s{sOUTO} offen offset:{pr*32}")
A("s_branch L_end")
A.label("L_p3help")
A(f"""s_or_b32 s20, s2, s{sHH}
s_cmp_lg_u32 s20, 0
s_cbranch_scc1 L_noep
v_mov_b32 v200, s{sNONCE}
v_mov_b32 v201, {WS_EPOCH}
s_mov_b64 exec, 1
buffer_store_dword v200, v201, {SR(SWS)}, 0 offen sc1
s_mov_b64 exec, -1
L_noep:""")
A(f"s_cmp_lg_u32 s34, s{sQK}\ns_cbranch_scc1 L_end")
lb = A.newlabel("L_hb")
A(f"s_cmp_lg_u32 s{sW}, 4\ns_cbranch_scc1 {lb}")
def yp_check():
    A("v_mov_b32 v3, 0")
    for k in range(43): A(f"v_xor_b32 v4, s{sNONCE}, v{10+4*k}\nv_or_b32 v3, v3, v4")
    A("v_cmp_ne_u32 vcc, 0, v3")
validated(yp_issue, yp_check, 0)
for k in range(1, 43): A(f"v_add_f32 v8, v8, v{8+4*k}\nv_add_f32 v9, v9, v{9+4*k}")
bf16round(8, 8); bf16round(9, 9)
A(f"""s_and_b32 s20, s{sKEY}, 0xffff0000
s_ashr_i32 s21, s20, 31
s_not_b32 s21, s21
s_or_b32 s21, s21, 0x80000000
s_xor_b32 s20, s20, s21
s_and_b32 s20, s20, 0xffff0000
v_mov_b32 v3, s20
v_mul_f32 v3, {f32(-LOG2E)}, v3
v_exp_f32 v3, v3
v_add_f32 v3, 1.0, v3
v_rcp_f32 v3, v3""")
bf16round(3, 3)
A("v_mul_f32 v8, v8, v3\nv_mul_f32 v9, v9, v3")
bf16round(8, 8); bf16round(9, 9)
A(f"""v_lshrrev_b32 v3, 5, v{vL}
v_lshlrev_b32 v3, 8, v3
v_and_b32 v4, 31, v{vL}
v_lshl_add_u32 v3, v4, 2, v3
ds_write_b32 v3, v8
ds_write_b32 v3, v9 offset:128
s_waitcnt lgkmcnt(0)""")
A.label(lb)
A("s_barrier")
A.label("L_end")
if PROF:
    TS(15)
    srd(SWS, WS_SIZE)
    A(f"""s_mov_b64 exec, -1
v_writelane_b32 v{vTS}, s{sRETRY}, 62
s_memrealtime s[96:97]
s_waitcnt lgkmcnt(0)
v_writelane_b32 v{vTS}, s96, 61
s_lshl_b32 s20, s2, 3
s_add_u32 s20, s20, s{sW}
s_lshl_b32 s20, s20, 8
s_add_u32 s20, s20, {WS_TS}
v_lshlrev_b32 v2, 2, v{vL}
buffer_store_dword v{vTS}, v2, {SR(SWS)}, s20 offen""")
A.label("L_exit")
A("s_endpgm")
A.label("L_codeend")
slow_path()

body = A.finalize()
import re as _re
def addflag(srd_, flag, kind="load"):
    global body
    pat = _re.compile(r"^(\s*buffer_%s_\w+ .*s\[%d:%d\], \S+ offen(?: offset:\d+)?)( lds)?$" % (kind, srd_, srd_ + 3), _re.M)
    body = pat.sub(lambda m: m.group(1) + " " + flag + (m.group(2) or ""), body)
for b_ in (SWG, SWU, SWD): addflag(b_, "nt")
if opts.get("ntx"): addflag(SX, "nt")
if opts.get("ntw"): addflag(SW, "nt")
if opts.get("nto"): addflag(SWO, "nt")
if opts.get("outf"): addflag(SOUT, opts["outf"].replace("+", " "), "store")
hdr = open("cdna_kernels/" + NAME + ".s.ref").read().split("; Override launch")[0]
out = hdr + f"""; Fused single kernel: LN stats + router, QKV GEMM, sliding-window attention, MoD FFN, output projection.
; Generated by gen/gen.py (hand-written generator).
; @launch grid=(256,1,1) block=(512,1,1) lds=163840
.amdgcn_target "amdgcn-amd-amdhsa--gfx950"
.text
.globl {NAME}_kernel
.p2align 8
.type {NAME}_kernel,@function
{NAME}_kernel:
L_start:
{body}
.section .rodata,"a"
.p2align 6
.amdhsa_kernel {NAME}_kernel
  .amdhsa_next_free_vgpr 256
  .amdhsa_next_free_sgpr 102
  .amdhsa_accum_offset 256
  .amdhsa_group_segment_fixed_size 0
  .amdhsa_kernarg_size 88
  .amdhsa_user_sgpr_count 2
  .amdhsa_user_sgpr_kernarg_segment_ptr 1
  .amdhsa_system_sgpr_workgroup_id_x 1
  .amdhsa_float_denorm_mode_32 3
.end_amdhsa_kernel
"""
import subprocess, re
def labels(text):
    open("_g.s", "w").write(text)
    r = subprocess.run(["clang", "-x", "assembler", "-target", "amdgcn-amd-amdhsa", "-mcpu=gfx950", "-c", "_g.s", "-o", "_g.o"], capture_output=True, text=True)
    if r.returncode:
        print("\n".join(r.stderr.split("\n")[:30])); sys.exit(1)
    t = subprocess.run(["llvm-objdump", "-t", "_g.o"], capture_output=True, text=True).stdout
    return {m.group(2): int(m.group(1), 16) for m in re.finditer(r"^([0-9a-f]{16}) .*\s(L_\w+)$", t, re.M)}
lab = labels(out.replace("CODE_PF_MAX", "0x11111"))
out = out.replace("CODE_PF_MAX", hex((lab["L_codeend"] - 256) & ~127))
assert labels(out) == lab
print("code bytes", lab["L_codeend"], "instrs", len(A.ins), "nops", A.nnop)
open(sys.argv[1], "w").write(out)
```

```python
import sys, struct
from asmlib import Asm

NAME = "parallel_sum__sliding_block__moe_arch_mod__prompt"
opts = dict(a.split("=") if "=" in a else (a, "1") for a in sys.argv[2:])
PROF = int(opts.get("prof", 0))
LOOPTS = int(opts.get('loopts', 0))
DEPTH = int(opts.get('depth', 3))
FAST = int(opts.get('fast', 1))
SIBU = int(opts.get('sibu', 4))
GWP = int(opts.get('gwp', 2))
DOFF = int(opts.get('doff', 245))
DSH = int(opts.get('dsh', 0))
DNL = int(opts.get('dnl', 43))
DPOS = int(opts.get('dpos', 0))
PWS = int(opts.get('pws', 0))
LGW = int(opts.get('lgw', -1))
PUBU = int(opts.get('pubu', 1))

def f32(x): return "0x%08x" % struct.unpack("<I", struct.pack("<f", x))[0]
LOG2E = 1.4426950408889634

WS_BEST  = 0x0
WS_EPOCH = 0x4000
WS_STATS = 0x8000
WS_YP    = 0x10000
WS_GP    = 0x40000
WS_KV    = 0x100000
WS_KVC   = 0x500000
WS_O     = 0x600000
WS_OC    = 0x800000
WS_TS    = 0x900000
WS_SIZE  = 0x1000000
L_X = 0; L_RING = 65536; L_MISC = 147456; L_TAIL = 131072
def slot_of(u): return (u + 2) % 5
L_QF = L_MISC
L_SM = L_MISC + 8192
L_RT = L_SM
L_NONCE = L_SM + 128
L_IDX = L_SM + 144
L_XSEL = L_SM + 1024
L_CSX = L_SM + 2048
L_STAT = L_SM + 256
L_RINV = L_SM + 768
L_GW = L_RING + 4 * 16384
L_OWN = L_RING + slot_of(8) * 16384
SX, SW, SWS, SDBG, SWR = 40, 44, 48, 52, 56
SWO, SOUT, SWG, SWU, SWD = 60, 64, 68, 72, 76
sI, sC, sW, sROT, sNONCE, sP, sKEY = 3, 4, 5, 6, 7, 8, 9
sXO, sWOFF, sCT, sWB, sHH, sROLE, sH1, sH2 = 10, 11, 12, 13, 14, 15, 16, 17
sSM, sSR = 18, 19
sOUTO, sQK, sWOD, sM0, sWE, sEX, sRETRY = 80, 81, 82, 83, 84, 86, 88
sGU = 89
sDI = 85
DG = [96 + 4 * n for n in range(8)]
GOFF = int(opts.get('goff', 80))
sRB = 90
vL, vZ, vTS = 1, 6, 7
vXA, vWA0, vWA1 = 88, 92, 93
vX0, vX1, vW0, vW1 = 80, 81, 82, 83
vSA, vKA, vKC, vBA = 80, 81, 82, 83
ACC = 96; STB = 128; CS = 200; SEL = 204; GW = 208; ST0, ST1 = 224, 226; XS = 228
OWN = 128; SL = 8
KC, VC, QF, NM, OA, SB, WD, MK = 80, 84, 88, 96, 128, 160, 208, 232
vM0, vM1, vRK, vRV, vRKC, vGA, vEX, vOUT, vPM, vPR, vWO = 240, 241, 242, 243, 244, 245, 246, 247, 248, 249, 250
A = Asm()

def TS(n):
    if PROF == 1: A(f"s_memtime s[98:99]\ns_waitcnt lgkmcnt(0)\nv_writelane_b32 v{vTS}, s98, {n}")
def TSL(n):
    if LOOPTS: TS(n)
def RC(n):
    if PROF == 1: A(f"v_writelane_b32 v{vTS}, s{sRETRY}, {n}")
def srd(base, size): A(f"s_mov_b32 s{base+2}, {size}\ns_mov_b32 s{base+3}, 0x20000")
def R(b, n): return f"v[{b}:{b+n-1}]"
def SR(b): return f"s[{b}:{b+3}]"
DPP8 = ("quad_perm:[1,0,3,2]", "quad_perm:[2,3,0,1]", "row_half_mirror")
def dpp(op, x, m): return f"{op}_dpp v{x}, v{x}, v{x} {m} row_mask:0xf bank_mask:0xf"
def allreduce32(x, t, op):
    for m in DPP8 + ("row_mirror",): A(dpp(op, x, m))
    A(f"v_mov_b32 v{t}, v{x}\nv_permlane16_swap_b32 v{x}, v{t}\n{op} v{x}, v{x}, v{t}")
def bf16round(dst, src):
    A(f"v_cvt_pk_bf16_f32 v{dst}, v{src}, v{src}\nv_and_b32 v{dst}, 0xffff0000, v{dst}")
def retry_check(lbl):
    A(f"s_add_u32 s{sRETRY}, s{sRETRY}, 1\ns_cmp_gt_u32 s{sRETRY}, 20000\ns_cbranch_scc1 L_end")
    A(f"s_cbranch_vccnz {lbl}")
def validated(issue, check, first_wait, retry_wait=0):
    lr = A.newlabel("L_rt"); lo = A.newlabel("L_ok")
    A(f"s_waitcnt vmcnt({first_wait})"); check(); A(f"s_cbranch_vccz {lo}")
    A.label(lr)
    issue(); A(f"s_waitcnt vmcnt({retry_wait})"); check()
    retry_check(lr)
    A.label(lo)
def capture(fn):
    n = len(A.ins); fn(); out = [x.text for x in A.ins[n:]]; del A.ins[n:]
    return out
def emit(l):
    for x in l: A(x)
def split(l, n): return [l[len(l)*k//n: len(l)*(k+1)//n] for k in range(n)]
def mfma32(d, a, b, c=None):
    return f"v_mfma_f32_32x32x16_bf16 {R(d,16)}, {R(a,4)}, {R(b,4)}, {R(d,16) if c is None else c}"
def var_to_rinv(v):
    bf16round(v, v)
    A(f"v_add_f32 v{v}, {f32(1e-5)}, v{v}")
    bf16round(v, v)
    A(f"v_sqrt_f32 v{v}, v{v}")
    bf16round(v, v)
    A(f"v_rcp_f32 v{v}, v{v}")

A("s_cmp_ge_u32 s2, 256\ns_cbranch_scc1 L_exit")
for b, off in ((SX, 0), (SW, 8), (SWR, 32), (SDBG, 72), (SWS, 80), (SWO, 16), (SWG, 40), (SWU, 48), (SWD, 56), (SOUT, 64)):
    A(f"s_load_dwordx2 s[{b}:{b+1}], s[0:1], {off}")
A(f"""s_getpc_b64 s[22:23]
v_lshrrev_b32 v2, 6, v0
v_and_b32 v{vL}, 63, v0
s_and_b32 s20, s2, 3
s_lshr_b32 s21, s2, 3
v_readfirstlane_b32 s{sW}, v2
s_lshl_b32 s20, s20, 3
s_and_b32 s24, s21, 7
s_add_u32 s{sI}, s20, s24
s_bfe_u32 s20, s2, 0x10002
s_lshl_b32 s20, s20, 2
s_lshr_b32 s24, s21, 3
s_add_u32 s{sC}, s20, s24""")
opts.setdefault("map3", "1")
if opts.get("map3") != "0":
    A(f"""s_bfe_u32 s20, s2, 0x20001
{"s_lshr_b32 s24, s20, 1" + chr(10) + "s_xor_b32 s20, s20, s24" if opts["map3"] == "2" else ""}
s_lshl_b32 s20, s20, 3
s_and_b32 s24, s21, 7
s_add_u32 s{sI}, s20, s24
s_and_b32 s20, s2, 1
s_lshl_b32 s20, s20, 2
s_lshr_b32 s24, s21, 3
s_add_u32 s{sC}, s20, s24""")
if opts.get("map2"):
    A(f"""s_and_b32 s20, s2, 7
s_lshl_b32 s20, s20, 2
s_and_b32 s24, s21, 3
s_add_u32 s{sI}, s20, s24
s_lshr_b32 s{sC}, s21, 2""")
A(f"""s_lshl_b32 s{sP}, s{sI}, 3
s_add_u32 s{sP}, s{sP}, s{sC}
s_sub_u32 s{sGU}, s{sP}, {GOFF}
s_cmp_ge_u32 s{sW}, 4
s_cselect_b32 s20, {DNL}, {43-DNL}
s_cselect_b32 s24, 0, {DNL}
s_add_u32 s{sDI}, s{sP}, s24
s_cmp_lt_u32 s{sP}, s20
s_cselect_b32 s{sDI}, s{sDI}, 255
s_mov_b32 s{sRETRY}, 0""")
srd(SX, 2048 * 1024)
if PROF:
    A(f"v_mov_b32 v{vTS}, 0\ns_memrealtime s[96:97]\ns_waitcnt lgkmcnt(0)\nv_writelane_b32 v{vTS}, s96, 63")
    TS(0)
A(f"s_cmp_ge_u32 s{sW}, 4\ns_cbranch_scc1 L_lwave")
srd(SWR, 1024)
A(f"""v_and_b32 v2, 31, v{vL}
v_lshlrev_b32 v{vSA}, 4, v2
v_lshrrev_b32 v3, 5, v{vL}
v_lshl_add_u32 v4, v3, 10, v{vSA}
s_lshl_b32 s20, s{sP}, 3
s_lshl_b32 s21, s{sW}, 1
s_add_u32 s20, s20, s21
s_lshl_b32 s21, s20, 10
s_waitcnt lgkmcnt(0)
s_load_dword s{sNONCE}, s[{SWS}:{SWS+1}], {WS_EPOCH}
buffer_load_dwordx4 v[8:11], v4, {SR(SX)}, s21 offen
buffer_load_dwordx4 v[12:15], v4, {SR(SX)}, s21 offen offset:512
buffer_load_dwordx4 v[16:19], v{vSA}, {SR(SWR)}, 0 offen
buffer_load_dwordx4 v[20:23], v{vSA}, {SR(SWR)}, 0 offen offset:512
""")
if int(opts.get('tlb', 1)) == 3:
    A(f"""s_load_dword s100, s[{SWG}:{SWG+1}], 0
s_load_dword s100, s[{SWU}:{SWU+1}], 0
s_load_dword s100, s[{SWD}:{SWD+1}], 0
s_load_dword s100, s[{SWO}:{SWO+1}], 0
s_load_dword s100, s[{SOUT}:{SOUT+1}], 0""")
    for off in (0x2FF000, 0x4FF000, 0x6FF000, 0x8FF000)[:int(opts.get('tlbw', 4))]:
        A(f"s_mov_b32 s24, {off}\ns_load_dword s100, s[{SWS}:{SWS+1}], s24")
A("s_branch L_cwave")

def frag_addrs():
    A(f"""v_and_b32 v2, 31, v{vL}
v_lshrrev_b32 v3, 5, v{vL}
v_bfe_u32 v4, v2, 1, 3
v_xor_b32 v4, v4, v3
v_lshlrev_b32 v4, 4, v4
v_lshl_add_u32 v4, v2, 7, v4
v_add_u32 v{vXA}, s28, v4
v_xor_b32 v{vXA+1}, 32, v{vXA}
v_xor_b32 v{vXA+2}, 64, v{vXA}
v_xor_b32 v{vXA+3}, 96, v{vXA}
v_bfe_u32 v4, v{vL}, 2, 2
v_lshlrev_b32 v4, 7, v4
v_lshl_add_u32 v4, v3, 11, v4
v_bfe_u32 v5, v{vL}, 3, 1
v_lshl_add_u32 v4, v5, 6, v4
v_bfe_u32 v5, v{vL}, 4, 1
v_lshl_add_u32 v4, v5, 5, v4
v_and_b32 v5, 3, v{vL}
v_lshl_add_u32 v{vGA}, v5, 3, v4
s_lshl_b32 s20, s{sCT}, 6
v_xor_b32 v4, s20, v{vGA}
v_add_u32 v{vWA0}, s29, v4
v_add_u32 v{vWA1}, {3*16384}, v{vWA0}
v_lshrrev_b32 v4, 4, v{vL}
v_xor_b32 v4, v4, v{vL}
v_and_b32 v4, 1, v4
v_add_u32 v4, -1, v4
v_and_b32 v{SEL}, 0x3f803f80, v4
v_mov_b32 v{SEL+1}, v{SEL}
v_mov_b32 v{SEL+2}, v{SEL}
v_mov_b32 v{SEL+3}, v{SEL}""")
    for r in range(4): A(f"v_mov_b32 v{CS+r}, 0")
def wa(slot, off):
    return (vWA0, slot * 16384 + off) if slot < 3 else (vWA1, (slot - 3) * 16384 + off)
def csum_mfma(wf): return f"v_mfma_f32_16x16x32_bf16 {R(CS,4)}, {R(SEL,4)}, {R(wf,4)}, {R(CS,4)}"
def corr_w(dst):
    A(f"""s_mov_b32 s20, 0xffff0000
s_mov_b32 s21, 0xffff0000
v_cndmask_b32_e64 v2, v{CS}, v{CS+1}, s[20:21]
v_mul_f32 v2, 0.5, v2""")
    bf16round(3, 2)
    A("v_sub_f32 v2, v2, v3")
    bf16round(4, 2)
    A(f"""v_sub_f32 v2, v2, v4
v_cvt_pk_bf16_f32 v{dst}, v3, v4
v_cvt_pk_bf16_f32 v{dst+1}, v2, 0""")
def corr_x(dst, m):
    A(f"""v_cvt_pk_bf16_f32 v{dst}, -v{m}, -v{m}
v_cvt_pk_bf16_f32 v{dst+1}, -v{m}, 0
v_mov_b32 v{dst+2}, 0
v_mov_b32 v{dst+3}, 0""")
def Kf(k): return SL + 12 * k
def Vf(k, g): return SL + 12 * k + 4 + 4 * g
def attn_setup_s():
    A(f"""s_sub_u32 s20, 3, s{sROLE}
s_cmp_eq_u32 s{sROLE}, 0
s_cselect_b32 s21, 4, 1
s_sub_u32 s22, s{sI}, s20
s_lshl_b32 s22, s22, 3
s_add_u32 s22, s22, s{sC}
s_cmp_ge_u32 s{sI}, s20
s_cselect_b32 s{sH1}, -1, 0
s_cselect_b32 s22, s22, 0x10000
s_sub_u32 s23, s{sI}, s21
s_lshl_b32 s23, s23, 3
s_add_u32 s23, s23, s{sC}
s_cmp_ge_u32 s{sI}, s21
s_cselect_b32 s{sH2}, -1, 0
s_cselect_b32 s23, s23, 0x10000
s_lshl_b32 s{sRB}, s22, 14
s_add_u32 s{sRB}, s{sRB}, {WS_KV}
s_add_u32 s{sRB+1}, s{sRB}, 4096
s_lshl_b32 s{sRB+2}, s23, 14
s_add_u32 s{sRB+2}, s{sRB+2}, {WS_KV}
s_add_u32 s{sRB+3}, s{sRB+2}, 4096
s_lshl_b32 s{sRB+4}, s22, 12
s_add_u32 s{sRB+4}, s{sRB+4}, {WS_KVC}
s_lshl_b32 s{sRB+5}, s23, 12
s_add_u32 s{sRB+5}, s{sRB+5}, {WS_KVC}
s_lshl_b32 s{sWOD}, s{sW}, 16
s_and_b32 s20, s{sC}, 3
s_lshl_b32 s20, s20, 8
s_add_u32 s{sWOD}, s{sWOD}, s20
s_lshl_b32 s{sM0}, s{sW}, 14
s_mov_b32 s{sWB}, s{sI}
s_add_u32 s{sWE}, s{sI}, 4
s_lshl_b32 s{sQK}, s{sI}, 1
s_lshr_b32 s21, s{sC}, 2
s_add_u32 s{sQK}, s{sQK}, s21
s_lshl_b32 s{sOUTO}, s{sQK}, 15
s_add_u32 s{sOUTO}, s{sOUTO}, s20
s_lshl_b32 s20, s{sHH}, 6
s_add_u32 s{sOUTO}, s{sOUTO}, s20""")
    srd(SWD, 0 if opts.get('nogw') else 1376 * 1024); srd(SOUT, 2048 * 1024); srd(SWO, 0 if opts.get('nowo') else 512 * 1024); srd(SWS, WS_SIZE)
def attn_setup_v():
    A(f"""s_lshl_b32 s20, s{sHH}, 10
v_lshlrev_b32 v{vRK}, 4, v{vL}
s_lshl_b32 s21, s{sW}, 12
s_add_u32 s21, s21, {L_TAIL}
v_add_u32 v{vEX}, s21, v{vRK}
v_add_u32 v{vRK}, s20, v{vRK}
v_lshrrev_b32 v{vRKC}, 1, v{vRK}
v_add_u32 v{vRV}, 8192, v{vRK}
v_lshrrev_b32 v2, 4, v{vL}
v_and_b32 v3, 15, v{vL}
v_lshlrev_b32 v4, 2, v2
v_xor_b32 v3, v3, v4
v_lshlrev_b32 v3, 4, v3
v_lshl_add_u32 v{vWO}, v2, 10, v3
v_add_u32 v{vWO+1}, 3072, v{vWO}
v_add_u32 v{vWO+2}, 6144, v{vWO}
v_add_u32 v{vWO+3}, 9216, v{vWO}
v_and_b32 v3, 31, v{vL}
v_lshrrev_b32 v4, 5, v{vL}
v_lshlrev_b32 v{vOUT}, 10, v3
v_lshl_add_u32 v{vOUT}, v4, 4, v{vOUT}
v_mul_u32_u24 v4, {1408*16}, v4
v_lshl_add_u32 v255, v3, 4, v4
v_mov_b32 v{vM0}, 0
v_mov_b32 v{vM1}, 0""")
def mk_setup():
    A(f"""v_and_b32 v2, 31, v{vL}
v_lshrrev_b32 v3, 5, v{vL}
v_lshlrev_b32 v3, 2, v3
v_sub_u32 v2, v2, v3
v_mov_b32 v192, -1
v_mov_b32 v193, -1""")
    for k in range(8):
        j0 = 8 * (k // 2) + 2 * (k % 2)
        A(f"""v_add_u32 v3, {1 - j0}, v2
v_med3_i32 v3, v3, 0, 2
v_lshlrev_b32 v3, 4, v3
v_lshlrev_b64 v[194:195], v3, v[192:193]
v_mov_b32 v{MK+k}, v194""")
def v_prefill(n):
    A(f"v_mov_b32 v{Vf(0,1)}, 0x3f803f80")
    for k in range(n):
        for r in range(4):
            if k or r: A(f"v_mov_b32 v{Vf(k,1)+r}, v{Vf(0,1)}")
def k_issue():
    for k in range(4):
        A(f"buffer_load_dwordx4 {R(Kf(k),4)}, v{vRK}, {SR(SWS)}, s{sRB+k} offen sc1")
    for p in range(2):
        A(f"buffer_load_dwordx2 {R(KC+2*p,2)}, v{vRKC}, {SR(SWS)}, s{sRB+4+p} offen sc1")
def v_issue():
    for k in range(4):
        A(f"buffer_load_dwordx4 {R(Vf(k,0),4)}, v{vRV}, {SR(SWS)}, s{sRB+k} offen sc1")
    for p in range(2):
        A(f"buffer_load_dwordx2 {R(VC+2*p,2)}, v{vRKC}, {SR(SWS)}, s{sRB+4+p} offen offset:2048 sc1")

A.label("L_lwave")
srd(SW, 512 * 3072)
A(f"""s_add_u32 s20, s{sC}, s{sI}
s_and_b32 s20, s20, 3
s_lshl_b32 s{sROT}, s20, 1
s_sub_u32 s{sHH}, s{sW}, 4
v_lshrrev_b32 v2, 3, v{vL}
v_and_b32 v3, 7, v{vL}
v_lshrrev_b32 v4, 1, v2
v_xor_b32 v5, v3, v4
v_lshlrev_b32 v5, 4, v5
v_lshl_add_u32 v{vX0}, v2, 10, v5
v_xor_b32 v5, 64, v5
v_lshl_add_u32 v{vX1}, v2, 10, v5
v_add_u32 v{vX1}, {8192-1024}, v{vX1}
v_and_b32 v4, 1, v4
v_lshlrev_b32 v4, 2, v4
v_xor_b32 v5, v3, v4
v_lshlrev_b32 v84, 4, v5
v_mul_u32_u24 v{vW0}, 3072, v2
v_add_u32 v{vW0}, v{vW0}, v84
v_add_u32 v{vW1}, {24576-2048}, v{vW0}
s_lshl_b32 s{sXO}, s{sI}, 16
s_lshl_b32 s20, s{sHH}, 14
s_add_u32 s{sXO}, s{sXO}, s20
s_lshl_b32 s{sWOFF}, s{sC}, 7
s_mul_i32 s20, s{sHH}, {16*3072}
s_add_u32 s{sWOFF}, s{sWOFF}, s20
s_lshl_b32 s31, s{sHH}, 11
s_lshl_b32 s32, s{sHH}, 12
s_lshr_b32 s20, s2, 3
s_lshl_b32 s20, s20, 10
s_lshl_b32 s21, s{sHH}, 8
s_add_u32 s20, s20, s21
s_min_u32 s20, s20, CODE_PF_MAX
s_add_u32 s22, s22, s20
s_addc_u32 s23, s23, 0
s_waitcnt lgkmcnt(0)
s_load_dword s{sNONCE}, s[{SWS}:{SWS+1}], {WS_EPOCH}
s_load_dword s100, s[22:23], 0
s_load_dword s100, s[22:23], 64
s_load_dword s100, s[22:23], 128
s_load_dword s100, s[22:23], 192""")
TLBM = int(opts.get('tlb', 1))
if TLBM == 1:
    lb = A.newlabel("L_nt")
    A(f"s_cmp_lg_u32 s{sW}, 7\ns_cbranch_scc1 {lb}")
    for b in (SWR, SWG, SWU, SWO, SWD, SOUT):
        A(f"s_load_dword s100, s[{b}:{b+1}], 0")
    A(f"s_load_dword s100, s[{SDBG}:{SDBG+1}], 128")
    for off in (0xF000, 0x2FF000 , 0x4FF000, 0x6FF000, 0x8FF000):
        A(f"s_mov_b32 s20, {off}\ns_load_dword s100, s[{SWS}:{SWS+1}], s20")
    A.label(lb)
XOF = {u: [u] for u in range(8)}
def issue_unit(u):
    slot = slot_of(u)
    for t in XOF.get(u, []):
        A(f"""s_add_u32 s33, s{sROT}, {t}
s_and_b32 s33, s33, 7
s_lshl_b32 s34, s33, 7
s_add_u32 m0, s31, {L_X + t*8192}
s_add_u32 s34, s34, s{sXO}
buffer_load_dwordx4 v{vX0}, {SR(SX)}, s34 offen lds
buffer_load_dwordx4 v{vX1}, {SR(SX)}, s34 offen offset:1024 lds""")
    if u < 8:
        A(f"""s_add_u32 s33, s{sROT}, {u}
s_and_b32 s33, s33, 7
s_mul_i32 s35, s33, {64*3072}
s_add_u32 s35, s35, s{sWOFF}
s_add_u32 m0, s32, {L_RING + slot*16384}
s_add_u32 s35, s35, 1024
buffer_load_dwordx4 v{vW0}, {SR(SW)}, s35 offen lds
buffer_load_dwordx4 v{vW0}, {SR(SW)}, s35 offen offset:1024 lds
buffer_load_dwordx4 v{vW1}, {SR(SW)}, s35 offen offset:2048 lds
buffer_load_dwordx4 v{vW1}, {SR(SW)}, s35 offen offset:3072 lds""")
    else:
        for e in range(2):
            A(f"""s_add_u32 s33, s{sROT}, {2*(u-8)+e}
s_and_b32 s33, s33, 7
s_mul_i32 s35, s33, {64*3072}
s_add_u32 m0, s32, {L_RING + slot*16384 + e*1024}
s_add_u32 s35, s35, s{sWOFF}
buffer_load_dwordx4 v{vW0}, {SR(SW)}, s35 offen lds
buffer_load_dwordx4 v{vW1}, {SR(SW)}, s35 offen offset:2048 lds""")
def ucount(u): return 4 + 2 * len(XOF.get(u, []))
def lgw_issue():
    srd(SWG, 512 * 2752); srd(SWU, 512 * 2752)
    A(f"""v_lshrrev_b32 v2, 3, v{vL}
v_mul_u32_u24 v3, 2752, v2
v_and_b32 v4, 7, v{vL}
v_lshl_add_u32 v86, v4, 4, v3
s_and_b32 s33, s{sP}, 7
s_lshl_b32 s33, s33, 6
s_lshl_b32 s34, s{sHH}, 4
s_add_u32 s33, s33, s34
s_mul_i32 s33, s33, 2752
s_lshr_b32 s34, s{sGU}, 3
s_lshl_b32 s34, s34, 7
s_add_u32 s33, s33, s34
s_cmp_ge_u32 s{sGU}, 176
s_cselect_b32 s33, 0x40000000, s33
s_add_u32 s34, s33, {8*2752}
buffer_load_dwordx4 {R(GW,4)}, v86, {SR(SWG)}, s33 offen
buffer_load_dwordx4 {R(GW+4,4)}, v86, {SR(SWU)}, s33 offen
buffer_load_dwordx4 {R(GW+8,4)}, v86, {SR(SWG)}, s34 offen
buffer_load_dwordx4 {R(GW+12,4)}, v86, {SR(SWU)}, s34 offen""")
ops = []
for u in range(DEPTH):
    issue_unit(u); ops += [u] * ucount(u)
    if u == LGW: lgw_issue(); ops += ["gw"] * 4
TS(1)
if TLBM == 2:
    lb = A.newlabel("L_nt")
    A(f"s_cmp_lg_u32 s{sW}, 7\ns_cbranch_scc1 {lb}")
    for b in (SWR, SWG, SWU, SWO, SWD, SOUT):
        A(f"s_load_dword s100, s[{b}:{b+1}], 0")
    A(f"s_load_dword s100, s[{SDBG}:{SDBG+1}], 128")
    for off in (0xF000, 0x2FF000 , 0x4FF000, 0x6FF000, 0x8FF000):
        A(f"s_mov_b32 s20, {off}\ns_load_dword s100, s[{SWS}:{SWS+1}], s20")
    A.label(lb)
SA = 112
A(f"""s_and_b32 s{sCT}, s{sHH}, 1
s_lshr_b32 s28, s{sHH}, 1
s_lshl_b32 s28, s28, 12
s_mov_b32 s29, {L_RING}
s_mov_b32 s{sROLE}, 0
v_lshlrev_b32 v85, 4, v{vL}
s_lshl_b32 s30, s{sI}, 10
s_add_u32 s30, s30, {WS_STATS}
s_cmp_lg_u32 s{sHH}, 0
s_cselect_b32 s30, 0x40000000, s30
s_mov_b32 s36, {WS_BEST}
s_cmp_lg_u32 s{sHH}, 1
s_cselect_b32 s36, 0x40000000, s36""")
attn_setup_s()
def sib_issue(): A(f"buffer_load_dwordx4 {R(SA,4)}, v85, {SR(SWS)}, s30 offen sc1")
lp = split(capture(lambda: (frag_addrs(), attn_setup_v(), v_prefill(6), mk_setup())), 6)
lpieces = {0: lp[0], 1: lp[1], 2: lp[2], 3: lp[3], 4: lp[4], 5: lp[5]}
def younger_than(tag): return len(ops) - 1 - max(k for k, x in enumerate(ops) if x == tag)
issued = DEPTH
for u in range(8):
    TSL(32 + u)
    A(f"s_waitcnt vmcnt({younger_than(u)})")
    TSL(16 + u)
    A("s_barrier")
    TSL(24 + u)
    if u == SIBU:
        sib_issue(); ops.append("sib")
    tgt = min(12, u + 1 + DEPTH + max(0, u - 1 - DEPTH), u + 5)
    while issued < tgt:
        issue_unit(issued); ops += [issued] * ucount(issued)
        if issued == LGW: lgw_issue(); ops += ['gw'] * 4
        issued += 1
    emit(lpieces.get(u, []))
    if u == 6:
        lb = A.newlabel("L_nsib")
        A(f"""s_waitcnt lgkmcnt(0)
s_add_u32 s{sNONCE}, s{sNONCE}, 1
s_cmp_lg_u32 s{sHH}, 0
s_cbranch_scc1 {lb}""")
        validated(sib_issue, lambda: A(f"v_cmp_ne_u32 vcc, s{sNONCE}, v{SA+3}"), younger_than("sib"))
        A(f"""v_lshrrev_b32 v122, 1, v85
v_lshrrev_b32 v123, 2, v85
v_add_u32 v122, {L_STAT}, v122
v_add_u32 v123, {L_RINV}, v123
ds_write_b64 v122, {R(SA,2)}
ds_write_b32 v123, v{SA+1}
s_waitcnt lgkmcnt(0)""")
        A.label(lb)
assert issued == 12, issued
TS(2)
LST, LSC, LCX, LCW = 116, 118, 120, 124
for r in range(16): A(f"v_mov_b32 v{ACC+r}, 0")
A(f"""v_and_b32 v2, 31, v{vL}
v_lshlrev_b32 v2, 3, v2
s_lshr_b32 s20, s28, 4
s_add_u32 s20, s20, {L_STAT}
v_add_u32 v2, s20, v2
ds_read_b64 {R(LST,2)}, v2
s_waitcnt lgkmcnt(0)""")
corr_x(LCX, LST)
A(f"""v_mul_f32 v{LSC}, {f32(0.25*LOG2E)}, v{LST+1}
v_mov_b32 v{LCW+2}, 0
v_mov_b32 v{LCW+3}, 0
s_lshl_b32 s30, s{sHH}, 11
s_add_u32 s30, s30, {L_QF}
v_lshlrev_b32 v5, 4, v{vL}
v_add_u32 v5, s30, v5""")
Q2 = 192
A(f"""s_lshl_b32 s20, s28, 1
s_lshr_b32 s21, s28, 2
s_xor_b32 s22, s20, 8192
s_xor_b32 s23, s21, 1024""")
for st in range(4): A(f"v_add_u32 v{Q2+st}, s22, v{vXA+st}\nv_add_u32 v{vXA+st}, s20, v{vXA+st}")
A(f"""v_add_u32 v{Q2+4}, s23, v{vWA0}
v_add_u32 v{Q2+5}, s23, v{vWA1}
v_add_u32 v{vWA0}, s21, v{vWA0}
v_add_u32 v{vWA1}, s21, v{vWA1}
s_lshl_b32 s22, s{sHH}, 8
s_add_u32 s22, s22, {L_CSX}
v_lshl_add_u32 v86, v{vL}, 2, s22
v_xor_b32 v87, 512, v86
s_mov_b32 s20, 0xffff0000
s_mov_b32 s21, 0xffff0000""")
def q_reads(n):
    oth = n // 16; m = (n // 4) % 4; st = n % 4; b = STB + 8 * (n % 8)
    out = [f"ds_read_b128 {R(b,4)}, v{(Q2 if oth else vXA)+st} offset:{m*16384}"]
    for j in range(2):
        r, o = wa(slot_of(8 + m), st * 4096 + j * 512)
        if oth: r = Q2 + 4 + (r - vWA0)
        out.append(f"ds_read_b64_tr_b16 {R(b+4+2*j,2)}, v{r} offset:{o}")
    return out
A("s_waitcnt vmcnt(0)\ns_barrier")
TS(3)
QB9 = int(opts.get("qb9", 21))
lq = []
def lds(tag, txt): A(txt); lq.append(tag)
def lwait(tag): A(f"s_waitcnt lgkmcnt({min(15, len(lq) - 1 - max(k for k, x in enumerate(lq) if x == tag))})")
for n in range(4):
    for x in q_reads(n): lds(n, x)
cwl = capture(lambda: corr_w(LCW))[3:]
for n in range(32):
    lwait(n)
    b = STB + 8 * (n % 8)
    if n < 16: A(csum_mfma(b + 4))
    A(mfma32(ACC, b + 4, b))
    if n + 4 < 32:
        for x in q_reads(n + 4): lds(n + 4, x)
    if n == 17:
        A(f"v_cndmask_b32_e64 v2, v{CS}, v{CS+1}, s[20:21]")
        lds("cs", "ds_write_b32 v86, v2")
    if n == QB9:
        lwait("cs")
        A("s_barrier")
        lds("cp", "ds_read_b32 v4, v87")
    if n == QB9 + 4:
        lwait("cp"); A("v_add_f32 v2, v2, v4"); emit(cwl[:4])
    if n == QB9 + 5: emit(cwl[4:])
TS(4)
A(mfma32(ACC, LCW, LCX))
for r in range(16): A(f"v_mul_f32 v{ACC+r}, v{ACC+r}, v{LSC}")
for k in range(8): A(f"v_cvt_pk_bf16_f32 v{STB+k}, v{ACC+2*k}, v{ACC+2*k+1}")
A(f"ds_write_b128 v5, {R(STB,4)}\nds_write_b128 v5, {R(STB+4,4)} offset:1024")
TS(50)
A("s_branch L_join")

A.label("L_cwave")
srd(SDBG, 256); srd(SWG, 512 * 2752); srd(SWU, 512 * 2752)
A(f"v_mov_b32 v{vZ}, 0\nv_add_u32 v62, s20, v3")
A(f"""s_and_b32 s{sCT}, s{sW}, 1
s_mov_b32 s28, 0
s_lshr_b32 s29, s{sW}, 1
s_lshl_b32 s29, s29, 10
s_add_u32 s29, s29, {L_RING}
s_mov_b32 s{sHH}, s{sW}
s_mov_b32 s{sROLE}, 1
v_lshlrev_b32 v{vBA}, 4, v{vL}
s_lshl_b32 s35, s{sW}, 10
s_add_u32 s35, s35, {WS_BEST}
s_lshl_b32 s33, s{sP}, 14
s_add_u32 s33, s33, {WS_KV}
s_add_u32 s36, s33, 4096
s_lshl_b32 s34, s{sP}, 12
s_add_u32 s34, s34, {WS_KVC}""")
frag_addrs()
for r in range(32): A(f"v_mov_b32 v{ACC+r}, 0")
attn_setup_s(); attn_setup_v()
A(f"""v_lshrrev_b32 v2, 3, v{vL}
v_mul_u32_u24 v3, 2752, v2
v_and_b32 v4, 7, v{vL}
v_lshl_add_u32 v5, v4, 4, v3
s_and_b32 s31, s{sP}, 7
s_lshl_b32 s31, s31, 6
s_lshl_b32 s32, s{sW}, 4
s_add_u32 s31, s31, s32
s_mul_i32 s31, s31, 2752
s_lshr_b32 s32, s{sGU}, 3
s_lshl_b32 s32, s32, 7
s_add_u32 s31, s31, s32
s_cmp_ge_u32 s{sGU}, {0 if (opts.get("nogw") or LGW >= 0) else 176}
s_cselect_b32 s31, 0x40000000, s31
s_add_u32 s32, s31, {8*2752}""")
def gw_issue():
    A(f"""buffer_load_dwordx4 {R(GW,4)}, v5, {SR(SWG)}, s31 offen
buffer_load_dwordx4 {R(GW+4,4)}, v5, {SR(SWU)}, s31 offen
buffer_load_dwordx4 {R(GW+8,4)}, v5, {SR(SWG)}, s32 offen
buffer_load_dwordx4 {R(GW+12,4)}, v5, {SR(SWU)}, s32 offen""")
if int(opts.get("d2", 0)):
    A(f"""v_mov_b32 v40, 0
v_mov_b32 v41, 0
v_mov_b32 v42, 0
v_mov_b32 v43, 0
v_mov_b32 v48, 0x3f803f80
v_sub_u32 v47, 2047, v62
v_and_b32 v46, 7, v62
v_lshlrev_b32 v46, 4, v46
v_add_u32 v46, {L_RT}, v46
s_mov_b32 s26, 0xffff0000""")
    PREW = int(opts.get("prew", 0))
    def prewrite():
        A(f"""s_lshl_b32 s20, s{sW}, 12
s_add_u32 s21, s33, s20
s_lshl_b32 s22, s{sW}, 10
s_add_u32 s22, s34, s22
s_lshl_b32 s23, s{sI}, 4
s_add_u32 s23, s23, s{sC}
s_and_b32 s24, s{sW}, 1
s_lshl_b32 s24, s24, 3
s_add_u32 s23, s23, s24
s_lshl_b32 s24, s23, 12
s_lshr_b32 s25, s{sW}, 1
s_lshl_b32 s25, s25, 11
s_add_u32 s24, s24, s25
s_add_u32 s24, s24, {WS_O}
s_lshl_b32 s23, s23, 10
s_add_u32 s23, s23, {WS_OC}""")
        if PREW & 1:
            for k in range(4): A(f"buffer_store_dwordx4 {R(ACC,4)}, v{vBA}, {SR(SWS)}, s21 offen offset:{k*1024} sc1")
            A(f"buffer_store_dwordx4 {R(ACC,4)}, v{vBA}, {SR(SWS)}, s22 offen sc1")
        if PREW & 2:
            for k in range(2): A(f"buffer_store_dwordx4 {R(ACC,4)}, v{vBA}, {SR(SWS)}, s24 offen offset:{k*1024} sc1")
            A(f"buffer_store_dwordx4 {R(ACC,4)}, v{vBA}, {SR(SWS)}, s23 offen sc1")
    NPW = (5 if PREW & 1 else 0) + (3 if PREW & 2 else 0)
    if PREW: prewrite()
    A(f"s_waitcnt vmcnt({2 + NPW})")
    TS(1)
    if int(opts.get("np1", 0)): A(f"s_lshl_b32 s24, s{sW}, 8\nbuffer_load_dword v60, v{vZ}, {SR(SDBG)}, s24 offen sc1")
    for k in range(8): A(f"v_dot2_f32_bf16 v40, v{8+k}, v48, v40\nv_dot2_f32_bf16 v41, v{8+k}, v{8+k}, v41")
    A("s_waitcnt vmcnt(%d)" % NPW)
    for k in range(8): A(f"v_dot2_f32_bf16 v42, v{8+k}, v{16+k}, v42\nv_dot2_f32_bf16 v43, v{16+k}, v48, v43")
    for m in DPP8 + ("row_mirror",):
        for r in range(4): A(dpp("v_add_f32", 40 + r, m))
    for r in range(4): A(f"v_mov_b32 v{24+r}, v{40+r}")
    for r in range(4): A(f"v_permlane16_swap_b32 v{40+r}, v{24+r}")
    for r in range(4): A(f"v_add_f32 v{40+r}, v{40+r}, v{24+r}")
    A(f"""v_mul_f32 v40, {f32(1.0/512)}, v40
v_mul_f32 v41, {f32(1.0/512)}, v41
v_fma_f32 v41, -v40, v40, v41
v_max_f32 v41, 0, v41""")
    bf16round(40, 40)
    A("v_fma_f32 v42, -v40, v43, v42")
    var_to_rinv(41)
    A("v_mul_f32 v42, v42, v41")
    bf16round(42, 42)
    A(f"""v_ashrrev_i32 v45, 31, v42
v_or_b32 v45, 0x80000000, v45
v_xor_b32 v42, v42, v45
v_and_or_b32 v42, v42, s26, v47
ds_write_b96 v46, v[40:42]""")
else:
    A("s_waitcnt vmcnt(2)")
    TS(1)
    XU = 24
    for k in range(8):
        A(f"v_lshlrev_b32 v{XU+2*k}, 16, v{8+k}\nv_and_b32 v{XU+2*k+1}, 0xffff0000, v{8+k}")
    A(f"v_pk_add_f32 v[40:41], {R(XU,2)}, {R(XU+2,2)}")
    for k in range(4, 16, 2): A(f"v_pk_add_f32 v[40:41], v[40:41], {R(XU+k,2)}")
    A("v_add_f32 v40, v40, v41")
    allreduce32(40, 41, "v_add_f32")
    A(f"v_mul_f32 v40, {f32(-1.0/512)}, v40")
    A("v_cvt_pk_bf16_f32 v42, -v40, -v40\nv_and_b32 v42, 0xffff0000, v42")
    A(f"v_pk_add_f32 v[46:47], {R(XU,2)}, v[40:41] op_sel_hi:[1,0]\nv_pk_mul_f32 v[44:45], v[46:47], v[46:47]")
    for k in range(2, 16, 2):
        A(f"v_pk_add_f32 v[46:47], {R(XU+k,2)}, v[40:41] op_sel_hi:[1,0]\nv_pk_fma_f32 v[44:45], v[46:47], v[46:47], v[44:45]")
    A("v_add_f32 v43, v44, v45")
    allreduce32(43, 41, "v_add_f32")
    for k in range(0, 16, 2): A(f"v_pk_add_f32 {R(XU+k,2)}, {R(XU+k,2)}, v[42:43] op_sel_hi:[1,0] neg_lo:[0,1] neg_hi:[0,1]")
    A(f"v_mul_f32 v43, {f32(1.0/512)}, v43")
    for k in range(8): A(f"v_cvt_pk_bf16_f32 v{8+k}, v{XU+2*k}, v{XU+2*k+1}")
    var_to_rinv(43)
    for k in range(8):
        A(f"v_lshlrev_b32 v{XU+2*k}, 16, v{8+k}\nv_and_b32 v{XU+2*k+1}, 0xffff0000, v{8+k}")
    for k in range(0, 16, 2): A(f"v_pk_mul_f32 {R(XU+k,2)}, {R(XU+k,2)}, v[42:43] op_sel:[0,1]")
    for k in range(8): A(f"v_cvt_pk_bf16_f32 v{8+k}, v{XU+2*k}, v{XU+2*k+1}")
    A("v_mov_b32 v44, 0\ns_waitcnt vmcnt(0)")
    for k in range(8): A(f"v_dot2_f32_bf16 v44, v{8+k}, v{16+k}, v44")
    allreduce32(44, 41, "v_add_f32")
    bf16round(44, 44)
    A(f"""v_ashrrev_i32 v45, 31, v44
v_or_b32 v45, 0x80000000, v45
v_xor_b32 v44, v44, v45
v_and_b32 v44, 0xffff0000, v44
v_sub_u32 v45, 2047, v62
v_or_b32 v44, v44, v45
v_and_b32 v46, 7, v62
v_lshlrev_b32 v46, 4, v46
v_add_u32 v46, {L_RT}, v46
ds_write_b96 v46, v[42:44]
""")
A(f"""s_waitcnt lgkmcnt(0)
s_add_u32 s{sNONCE}, s{sNONCE}, 1""")
if PWS:
    A(f"""v_mov_b32 v43, s{sNONCE}
v_lshlrev_b32 v44, 4, v62
s_mov_b32 s24, 1
s_mov_b32 s25, 1
s_mov_b32 s27, {WS_STATS}
s_mov_b64 exec, s[24:25]
buffer_store_dwordx4 v[40:43], v44, {SR(SWS)}, s27 offen sc1
s_mov_b64 exec, -1""")
A(f"""s_setprio {int(opts.get("prio", 2))}""")
if GWP == 2: gw_issue()
A('v_mov_b32 v54, v5')
TS(2)
A("s_waitcnt lgkmcnt(0)")
A(f"s_cmp_ge_u32 s{sW}, 2\ns_cbranch_scc1 L_vwave")

def kv_reads(n):
    u = n // 4; st = n % 4; b = STB + 12 * (n % 6)
    out = [f"ds_read_b128 {R(b+4*qb,4)}, v{vXA+st} offset:{u*8192 + qb*4096}" for qb in range(2)]
    for j in range(2):
        r, o = wa(slot_of(u), st * 4096 + j * 512)
        out.append(f"ds_read_b64_tr_b16 {R(b+8+2*j,2)}, v{r} offset:{o}")
    return out
def kv_mm(n, isK, cs=True):
    b = STB + 12 * (n % 6)
    out = [csum_mfma(b + 8)] if cs else []
    for qb in range(2):
        out.append(mfma32(ACC + 16 * qb, b + 8, b + 4 * qb) if isK else mfma32(ACC + 16 * qb, b + 4 * qb, b + 8))
    return out
def kv_interval(u, isK, fill=(), post_reads=()):
    rd = [x for n in range(4 * u, 4 * u + 4) for x in kv_reads(n)]
    old = [x for n in (4 * u - 2, 4 * u - 1) if n >= 0 for x in kv_mm(n, isK)]
    fill = list(fill)
    per = (len(fill) + 5) // 6
    emit(rd[:4])
    rest = rd[4:]
    for m in old:
        A(m); emit(rest[:2]); rest = rest[2:]
    emit(rest)
    for k, n in enumerate((4 * u, 4 * u + 1)):
        A(f"s_waitcnt lgkmcnt({12 - 4*k})")
        for m in kv_mm(n, isK):
            A(m); emit(fill[:per]); fill = fill[per:]
    emit(post_reads)
    A("s_waitcnt lgkmcnt(0)")
BT = 68
def best_issue(): A(f"buffer_load_dwordx4 {R(BT,4)}, v{vBA}, {SR(SWS)}, s35 offen sc1")
def nonce_issue(): A(f"buffer_load_dword v60, v{vZ}, {SR(SDBG)}, 0 offen sc1")
CX0, CX1, CW = 40, 44, 56
def publish():
    lb = A.newlabel("L_np")
    A(f"s_cmp_lg_u32 s{sW}, 0\ns_cbranch_scc1 {lb}")
    A(f"""v_mov_b32 v51, s{sNONCE}
s_lshl_b32 s20, s{sP}, 4
s_add_u32 s20, s20, {WS_BEST}
s_lshl_b32 s21, s{sP}, 7
s_add_u32 s21, s21, {WS_STATS}
s_mov_b64 exec, 0xff""")
    if not PWS: A(f"buffer_store_dwordx4 v[48:51], v{vBA}, {SR(SWS)}, s21 offen sc1")
    A("v_mov_b32 v52, v50")
    for m in DPP8: A(dpp("v_max_u32", 52, m))
    A(f"""v_cmp_eq_u32 vcc, v52, v50
s_mov_b64 exec, vcc
buffer_store_dwordx4 v[48:51], v{vZ}, {SR(SWS)}, s20 offen sc1
s_mov_b64 exec, -1""")
    A.label(lb)
def cw_loop(isK):
    for u in range(8):
        TSL(16 + u)
        A("s_barrier")
        TSL(24 + u)
        fill = []; post = []
        if u == PUBU and isK:
            fill = [f"v_and_b32 v53, 0x70, v{vBA}", f"v_add_u32 v53, {L_RT}, v53"]; post = ["ds_read_b96 v[48:50], v53"]
        if u == 3:
            fill = capture(lambda: A(f"""v_mov_b32 v{CW+2}, 0
v_mov_b32 v{CW+3}, 0
v_lshrrev_b32 v64, 1, v{vSA}
v_add_u32 v64, {L_STAT}, v64
v_mov_b32 v66, {L_NONCE}"""))
            if isK:
                fill += capture(lambda: A(f"""s_lshl_b32 s20, s{sCT}, 11
v_add_u32 v{vKA}, s20, v{vBA}
v_lshrrev_b32 v{vKC}, 1, v{vKA}"""))
            else:
                fill += capture(lambda: A(f"""v_and_b32 v2, 0x2f, v{vL}
v_bfe_u32 v3, v{vL}, 4, 1
s_lshl_b32 s20, s{sCT}, 1
v_add_u32 v3, s20, v3
v_lshlrev_b32 v{vKA}, 4, v2
v_lshl_add_u32 v{vKA}, v3, 10, v{vKA}
v_lshrrev_b32 v{vKC}, 1, v{vKA}
v_add_u32 v{vKA}, 8192, v{vKA}
v_lshrrev_b32 v65, 5, v{vL}
v_lshlrev_b32 v65, 4, v65
v_add_u32 v65, {L_RINV}, v65"""))
        if u == 7:
            fill = capture(best_issue)
            post = [f"ds_read_b64 {R(ST0,2)}, v64", f"ds_read_b64 {R(ST1,2)}, v64 offset:256"]
            if not isK:
                post += [f"ds_read_b128 {R(8+16*qb+4*a,4)}, v65 offset:{qb*128 + a*32}" for qb in range(2) for a in range(4)]
        kv_interval(u, isK, fill, post)
        TSL(32 + u)
        if u == PUBU and isK: publish()
        if GWP == 10 + u:
            A('v_mov_b32 v5, v54'); gw_issue()
    A("s_barrier")
    TS(3)
    A(csum_mfma(STB + 12 * (30 % 6) + 8)); A(csum_mfma(STB + 12 * (31 % 6) + 8))
    mm = kv_mm(30, isK, False) + kv_mm(31, isK, False)
    A(mm[0]); corr_x(CX0, ST0)
    A(mm[1]); corr_x(CX1, ST1)
    cw = capture(lambda: corr_w(CW))
    A(mm[2]); emit(cw[:6]); A(mm[3]); emit(cw[6:])
    for qb, cx in enumerate((CX0, CX1)):
        A(mfma32(ACC + 16 * qb, CW, cx) if isK else mfma32(ACC + 16 * qb, cx, CW))
CSR = 144
def kv_store(isK):
    for qb in range(2):
        st = ST0 if qb == 0 else ST1
        for e in range(2):
            for r in range(8 * e, 8 * e + 8):
                A(f"v_mul_f32 v{ACC+16*qb+r}, v{ACC+16*qb+r}, v{st+1 if isK else 8+16*qb+r}")
            for k in range(4 * e, 4 * e + 4): A(f"v_cvt_pk_bf16_f32 v{OWN+8*qb+k}, v{ACC+16*qb+2*k}, v{ACC+16*qb+2*k+1}")
            b = OWN + 8 * qb + 4 * e; c_ = CSR + 2 * e + qb
            A(f"buffer_store_dwordx4 {R(b,4)}, v{vKA}, {SR(SWS)}, s{33 if qb == 0 else 36} offen offset:{e*(1024 if isK else 256)} sc1")
            A(f"v_add3_u32 v{c_}, v{b}, v{b+1}, v{b+2}\nv_add3_u32 v{c_}, v{c_}, v{b+3}, s{sNONCE}")
    for e in range(2):
        A(f"buffer_store_dwordx2 {R(CSR+2*e,2)}, v{vKC}, {SR(SWS)}, s34 offen offset:{e*512 if isK else 2048+e*128} sc1")

cw_loop(True); kv_store(True)
A("s_mov_b32 s39, 1024\ns_branch L_cpost")
A.label("L_vwave")
cw_loop(False); kv_store(False)
A("s_mov_b32 s39, 256")
A.label("L_cpost")
TS(4)
A("s_setprio 0")
WOW = int(opts.get("wow", 0))
if WOW:
    A(f"""s_and_b32 s20, s{sI}, 7
s_lshl_b32 s20, s20, 2
s_add_u32 s20, s20, s{sW}
s_lshl_b32 s20, s20, 14
s_and_b32 s21, s{sC}, 3
s_lshl_b32 s21, s21, 8
s_add_u32 s20, s20, s21""")
    for k in range(4): A(f"buffer_load_dwordx4 {R(176+4*k,4)}, v{vWO+k}, {SR(SWO)}, s20 offen offset:{k*1024}")
validated(best_issue, lambda: A(f"v_cmp_ne_u32 vcc, s{sNONCE}, v{BT+3}"), 6 + 4 * WOW)
A(f"v_mov_b32 v{BT+4}, v{BT+2}")
allreduce32(BT + 4, BT + 5, "v_max_u32")
A(f"""v_mov_b32 v{BT+5}, v{BT+4}
v_permlane32_swap_b32 v{BT+4}, v{BT+5}
v_max_u32 v{BT+4}, v{BT+4}, v{BT+5}
s_lshl_b32 s20, s{sW}, 4
s_add_u32 s20, s20, {L_IDX}
v_mov_b32 v2, s20
v_cmp_eq_u32 vcc, v{BT+4}, v{BT+2}
s_mov_b64 exec, vcc
ds_write_b128 v2, {R(BT,4)}
s_mov_b64 exec, -1
""")
def winner():
    A(f"v_mov_b32 v5, v{SB+2}")
    for m in DPP8[:2]: A(dpp("v_max_u32", 5, m))
    A(f"""v_cmp_eq_u32 vcc, v5, v{SB+2}
v_readfirstlane_b32 s{sKEY}, v5
s_ff1_i32_b32 s20, vcc_lo
v_readlane_b32 s{sSM}, v{SB}, s20
v_readlane_b32 s{sSR}, v{SB+1}, s20""")
A(f"""v_and_b32 v4, 3, v{vL}
v_lshlrev_b32 v4, 4, v4
v_add_u32 v4, {L_IDX}, v4
v_add_u32 v2, {L_OWN}, v{vKA}
v_add_u32 v3, s39, v2
v_and_b32 v72, 7, v{vL}
v_lshlrev_b32 v72, 2, v72
v_mov_b32 v74, v{vSA}
s_waitcnt lgkmcnt(0)
s_barrier""")
TS(48)
A(f"""ds_read_b128 {R(SB,4)}, v4
ds_write_b128 v2, {R(OWN,4)}
ds_write_b128 v3, {R(OWN+4,4)}
ds_write_b128 v2, {R(OWN+8,4)} offset:4096
ds_write_b128 v3, {R(OWN+12,4)} offset:4096
s_waitcnt lgkmcnt(4)""")
winner()
A(f"""s_and_b32 s24, s{sKEY}, 0x7ff
s_sub_u32 s24, 2047, s24
s_lshl_b32 s24, s24, 10
s_and_b32 s25, s{sP}, 7
s_lshl_b32 s25, s25, 7
s_add_u32 s24, s24, s25
s_lshl_b32 s25, s{sW}, 5
s_add_u32 s24, s24, s25
buffer_load_dword v73, v72, {SR(SX)}, s24 offen""")
A(f"""s_cmp_ge_u32 s{sC}, 4
s_cselect_b64 s[20:21], -1, 0
v_cndmask_b32_e64 v{vPM}, v{ST0}, v{ST1}, s[20:21]
v_cndmask_b32_e64 v{vPR}, v{ST0+1}, v{ST1+1}, s[20:21]
""")
A(f"""v_bfe_u32 v4, v{vL}, 4, 1
v_lshlrev_b32 v4, 6, v4
v_xor_b32 v2, v{vEX}, v4""")
if LGW < 0:
    for k in range(4): A(f"ds_write_b128 v2, {R(GW+4*k,4)} offset:{k*1024}")
v_prefill(4)
A("s_waitcnt vmcnt(1)")
TS(49)
k_issue()
TS(50)
v_issue()
TS(51)
A(f"""s_waitcnt vmcnt(12)
v_lshlrev_b32 v2, 16, v73
v_and_b32 v3, 0xffff0000, v73
v_subrev_f32 v2, s{sSM}, v2
v_subrev_f32 v3, s{sSM}, v3
v_cvt_pk_bf16_f32 v4, v2, v3
v_lshlrev_b32 v2, 16, v4
v_and_b32 v3, 0xffff0000, v4
v_mul_f32 v2, s{sSR}, v2
v_mul_f32 v3, s{sSR}, v3
v_cvt_pk_bf16_f32 v4, v2, v3
s_add_u32 s25, s25, {L_XSEL}
v_add_u32 v72, s25, v72
ds_write_b32 v72, v4
v_mov_b32 v75, v{vWA1}""")

A.label("L_join")
TS(5); RC(41)
A("s_waitcnt lgkmcnt(0)\ns_barrier")
A(f"""s_lshl_b32 s20, s{sROLE}, 12
s_add_u32 s21, s20, {L_QF}
s_xor_b32 s20, s20, 4096
s_add_u32 s20, s20, {L_QF}
v_add_u32 v2, s21, v{vRK}
v_add_u32 v3, s20, v{vRK}
ds_read_b128 {R(QF,4)}, v2
ds_read_b128 {R(QF+4,4)}, v3""")
lb = A.newlabel("L_noown"); lb2 = A.newlabel("L_noown2")
A(f"s_cmp_lg_u32 s{sROLE}, 0\ns_cbranch_scc1 {lb}")
A(f"""v_add_u32 v2, {L_OWN}, v{vRK}
v_and_b32 v4, 3, v{vL}
v_lshlrev_b32 v4, 4, v4
v_add_u32 v4, {L_IDX}, v4
ds_read_b128 {R(SB,4)}, v4
ds_read_b128 {R(Kf(4),4)}, v2
ds_read_b128 {R(Kf(5),4)}, v2 offset:4096
ds_read_b128 {R(Vf(4,0),4)}, v2 offset:8192
ds_read_b128 {R(Vf(5,0),4)}, v2 offset:12288
s_branch {lb2}""")
A.label(lb)
GX = 144; GF = 160
A(f"""s_cmp_ge_u32 s{sGU}, 176
s_cbranch_scc1 {lb2}
s_cmp_ge_u32 s{sW}, 2
s_cbranch_scc1 {lb2}
v_lshrrev_b32 v2, 5, v{vL}
v_lshlrev_b32 v2, 4, v2
v_add_u32 v2, {L_XSEL}, v2""")
for st in range(4): A(f"ds_read_b128 {R(GX+4*st,4)}, v2 offset:{st*32}")
for st in range(4):
    for m in range(2):
        for j in range(2):
            A(f"ds_read_b64_tr_b16 {R(GF+8*st+4*m+2*j,2)}, v75 offset:{16384 + m*1024 + st*4096 + j*512}")
A.label(lb2)
A("s_waitcnt lgkmcnt(0)\ns_barrier")
TS(6)
def g_stage():
    lb = A.newlabel("L_nog"); lb2 = A.newlabel("L_nog2")
    A(f"s_cmp_ge_u32 s{sGU}, 176\ns_cbranch_scc1 {lb}\ns_cmp_ge_u32 s{sW}, 2\ns_cbranch_scc1 {lb}")
    for st in range(4):
        for m in range(2): A(mfma32(ACC + 16 * m, GX + 4 * st, GF + 8 * st + 4 * m, None if st else 0))
    A(f"""s_and_b32 s20, s{sP}, 7
s_mul_i32 s20, s20, {1408*16}
s_lshr_b32 s21, s{sGU}, 3
s_lshl_b32 s21, s21, 10
s_add_u32 s20, s20, s21
s_lshl_b32 s21, s{sW}, 9
s_add_u32 s20, s20, s21
s_add_u32 s20, s20, {WS_GP}
v_mov_b32 v{GW+2}, s{sNONCE}
v_mov_b32 v{GW+3}, s{sNONCE}
s_mov_b32 s22, -1
s_mov_b32 s23, 0
v_mov_b32 v{GW}, v{ACC}
v_mov_b32 v{GW+1}, v{ACC+16}
s_mov_b64 exec, s[22:23]
buffer_store_dwordx4 {R(GW,4)}, v74, {SR(SWS)}, s20 offen sc1
s_mov_b64 exec, -1
s_branch {lb2}""")
    A.label(lb)
    A(f"s_mov_b32 s20, 0x40000000\nbuffer_load_dword v254, v74, {SR(SWS)}, s20 offen")
    A.label(lb2)

GPR = 8
def gp_issue():
    A(f"s_lshl_b32 s36, s{sDI}, 9\ns_add_u32 s36, s36, {WS_GP}")
    for q in range(4): A(f"buffer_load_dwordx4 {R(GPR+4*q,4)}, v255, {SR(SWS)}, s36 offen sc1\ns_add_u32 s36, s36, {2*1408*16}")
def gp_check():
    for q in range(4): A(f"v_xor_b32 v{2+q}, s{sNONCE}, v{GPR+4*q+2}")
    A("v_or3_b32 v2, v2, v3, v4\nv_or_b32 v2, v2, v5\nv_cmp_ne_u32 vcc, 0, v2")
def wd_loads():
    A(f"""s_lshl_b32 s37, s{sDI}, 15
s_lshl_b32 s20, s{sHH}, 8
s_add_u32 s37, s37, s20
v_lshrrev_b32 v2, 4, v{vL}
v_and_b32 v3, 15, v{vL}
v_lshlrev_b32 v3, 4, v3
v_lshl_add_u32 v2, v2, 10, v3""")
    for n in range(8): A(f"buffer_load_dwordx4 {R(DG[n],4)}, v2, {SR(SWD)}, s37 offen\ns_add_u32 s37, s37, 4096")
def wd_issue():
    lb = A.newlabel("L_nwd")
    A(f"s_cmp_ge_u32 s{sDI}, 43\ns_cbranch_scc1 {lb}")
    wd_loads()
    A.label(lb)
def d_block():
    A(f"s_cmp_ge_u32 s{sDI}, 43\ns_cbranch_scc1 L_dend")
    A.label("L_dtop")
    gp_issue()
    A(f"""v_lshrrev_b32 v3, 4, v{vL}
v_lshlrev_b32 v3, 6, v3
v_xor_b32 v2, v{vEX}, v3
v_xor_b32 v24, {0x4000 if DPOS == 0 else 0}, v2
v_lshrrev_b32 v3, 5, v{vL}
v_bfe_u32 v4, v{vL}, 2, 2
v_lshlrev_b32 v5, 8, v4
v_lshl_add_u32 v5, v3, 11, v5
v_lshl_add_u32 v5, v4, 6, v5
v_bfe_u32 v3, v{vL}, 4, 1
v_lshl_add_u32 v5, v3, 5, v5
v_and_b32 v3, 3, v{vL}
v_lshl_add_u32 v5, v3, 3, v5
s_xor_b32 s38, s{sW}, {4 if DPOS == 0 else 0}
s_lshl_b32 s38, s38, 12
s_add_u32 s38, s38, {L_TAIL}
v_add_u32 v25, s38, v5
v_xor_b32 v26, 64, v25
v_xor_b32 v27, 128, v25
v_xor_b32 v28, 192, v25
s_waitcnt vmcnt(4)""")
    for rd in range(2):
        for k in range(4): A(f"ds_write_b128 v24, {R(DG[4*rd+k],4)} offset:{k*1024}")
        for t in range(4):
            for j in range(2): A(f"ds_read_b64_tr_b16 {R(DG[4*rd+t]+2*j,2)}, v{25+t} offset:{j*1024}")
    validated(gp_issue, gp_check, 0)
    A(f"""v_add_f32 v2, v{GPR}, v{GPR+4}
v_add_f32 v3, v{GPR+1}, v{GPR+5}
v_add_f32 v4, v{GPR+8}, v{GPR+12}
v_add_f32 v5, v{GPR+9}, v{GPR+13}
v_add_f32 v2, v2, v4
v_add_f32 v3, v3, v5
v_mov_b32 v4, v2
v_mov_b32 v5, v3
v_permlane32_swap_b32 v2, v4
v_permlane32_swap_b32 v3, v5
v_add_f32 v2, v2, v4
v_add_f32 v3, v3, v5""")
    bf16round(2, 2); bf16round(3, 3)
    A(f"""v_mul_f32 v4, {f32(-LOG2E)}, v2
v_exp_f32 v4, v4
v_add_f32 v4, 1.0, v4
v_rcp_f32 v4, v4
v_mul_f32 v2, v2, v4""")
    bf16round(2, 2)
    A(f"""v_mul_f32 v2, v2, v3
v_cvt_pk_bf16_f32 v2, v2, v2
v_and_b32 v3, 31, v{vL}
v_lshl_add_u32 v3, v3, 1, s38
ds_write_b16 v3, v2
v_lshrrev_b32 v3, 5, v{vL}
v_lshl_add_u32 v3, v3, 4, s38
ds_read_b128 {R(32,4)}, v3
ds_read_b128 {R(36,4)}, v3 offset:32
s_lshl_b32 s20, s{sDI}, 12
s_lshl_b32 s21, s{sHH}, 10
s_add_u32 s20, s20, s21
s_add_u32 s20, s20, {WS_YP}
s_mov_b32 s22, 0
s_mov_b32 s23, -1
v_lshlrev_b32 v2, 4, v{vL}
v_mov_b32 v42, s{sNONCE}
v_mov_b32 v43, s{sNONCE}
s_waitcnt lgkmcnt(0)""")
    DB = [SB, SB + 16, SB + 32, 48]
    for st in range(2):
        for t in range(4): A(mfma32(DB[t], 32 + 4 * st, DG[4 * st + t], None if st else 0))
    A(f"""v_cndmask_b32_e64 v40, v{DB[0]}, v{DB[2]}, s[22:23]
v_cndmask_b32_e64 v41, v{DB[1]}, v{DB[3]}, s[22:23]
buffer_store_dwordx4 {R(40,4)}, v2, {SR(SWS)}, s20 offen sc1
""")
    A.label("L_dend")
def wo_dma4():
    return [f"""s_and_b32 s26, s{sWB}, 3
s_add_u32 s{sWB}, s{sWB}, 1
s_lshl_b32 s27, s26, 12
s_add_u32 m0, s27, s{sM0}
s_lshl_b32 s27, s26, 14
s_add_u32 s27, s27, s{sWOD}"""] + [f"buffer_load_dwordx4 v{vWO+k}, {SR(SWO)}, s27 offen offset:{k*1024} lds" for k in range(4)]
def kv_check(base, cs):
    for k in range(4):
        b = base(k)
        A(f"v_add3_u32 v{2+k}, v{b}, v{b+1}, v{b+2}\nv_add3_u32 v{2+k}, v{2+k}, v{b+3}, s{sNONCE}\nv_xor_b32 v{2+k}, v{2+k}, v{cs+k}")
    A(f"""v_or_b32 v2, v2, v3
v_or_b32 v4, v4, v5
v_and_b32 v2, s{sH1}, v2
v_and_or_b32 v2, v4, s{sH2}, v2
v_cmp_ne_u32 vcc, 0, v2""")
def k_check(): kv_check(Kf, KC)
def v_check(): kv_check(lambda k: Vf(k, 0), VC)
def vswap(ks):
    for k in ks:
        for r in range(4): A(f"v_permlane16_swap_b32 v{Vf(k,0)+r}, v{Vf(k,1)+r}")
def Q(q): return QF + 4 * q
def smf(dst, k, q, c): return mfma32(dst, Kf(k), Q(q), c)
SEG = lambda k0: [(k0, 0, None), (k0, 1, None), (k0 + 1, 0, None), (k0 + 1, 1, None)]
B3 = [SB, SB + 16, SB + 32]
def nm(q): return R(NM + 16 * q, 16)
def p2_run(jobs, cfun, fresh, extra={}, mem={}):
    n = len(jobs)
    pend = []
    A(smf(B3[0], jobs[0][0], jobs[0][1], cfun(jobs[0][1])))
    for t in range(n):
        k, q, mask = jobs[t]; b = B3[t % 3]
        side = []
        if t + 1 < n: side.append(smf(B3[(t + 1) % 3], jobs[t + 1][0], jobs[t + 1][1], cfun(jobs[t + 1][1])))
        side += pend
        val = [f"v_exp_f32 v{b+r}, v{b+r}" for r in range(16)]
        val += [f"v_cvt_pk_bf16_f32 v{b+j}, v{b+2*j}, v{b+2*j+1}" for j in range(8)]
        if mask == "old": val += [f"v_and_b32 v{b+j}, v{b+j}, v{MK+j}" for j in range(8)]
        if mask == "diag": val += [f"v_bfi_b32 v{b+j}, v{MK+j}, 0, v{b+j}" for j in range(8)]
        mm_ = mem.get(t, [])
        if mm_:
            step = len(val) // len(mm_)
            for q_, x in enumerate(mm_): val[q_ * step + step // 2] += "\n" + x
        vi = 0
        for sx in side:
            A(sx); emit(val[vi:vi + 5]); vi += 5
        emit(val[vi:])
        for fn in extra.get(t, []): fn()
        pend = [mfma32(OA + 16 * q, Vf(k, g), b + 4 * g, 0 if (q in fresh and g == 0) else None) for g in range(2)]
        fresh.discard(q)
    emit(pend)
zero = lambda q: 0
XR = 80
dma = lambda: emit(wo_dma4())
def wo_ops():
    out = []
    for b in range(4):
        l = wo_dma4(); out += [l[0] + "\n" + l[1]] + l[2:]
    return out
def dma_upto(n):
    lt = A.newlabel("L_du"); le = A.newlabel("L_de")
    A.label(lt)
    A(f"s_sub_u32 s20, s{sWE}, {4-n}\ns_cmp_ge_u32 s{sWB}, s20\ns_cbranch_scc1 {le}")
    dma()
    A(f"s_branch {lt}")
    A.label(le)
def after_v(isC, wait):
    def h():
        validated(v_issue, v_check, wait)
        vswap(range(4))
        if isC:
            for pr in range(2):
                A(f"buffer_load_dwordx4 {R(XR+4*pr,4)}, v{vOUT}, {SR(SX)}, s{sOUTO} offen offset:{pr*32}")
            if int(opts.get("opt", 0)) == 1:
                A(f"""s_lshl_b32 s20, s{sI}, 4
s_add_u32 s20, s20, s{sC}
s_and_b32 s21, s{sW}, 1
s_lshl_b32 s21, s21, 3
s_add_u32 s20, s20, s21
s_cmp_ge_u32 s{sW}, 2
s_cselect_b32 s21, 10, 12
s_mov_b32 s22, {WS_O}
s_cselect_b32 s22, {WS_OC}, s22
s_cselect_b32 s24, 0xff, -1
s_mov_b32 s25, 0
s_lshl_b32 s20, s20, s21
s_add_u32 s20, s20, s22
v_lshlrev_b32 v2, 7, v{vL}
s_mov_b64 exec, s[24:25]
buffer_load_dword v254, v2, {SR(SWS)}, s20 offen sc1
s_mov_b64 exec, -1""")
        if int(opts.get("opt", 0)) == 4:
            A(f"""s_lshl_b32 s20, s{sI}, 1
s_add_u32 s20, s20, s{sROLE}
s_lshl_b32 s20, s20, 3
s_add_u32 s20, s20, s{sC}
s_lshl_b32 s21, s20, 10
s_add_u32 s21, s21, {WS_OC}
s_lshl_b32 s20, s20, 12
s_add_u32 s20, s20, {WS_O}
v_lshrrev_b32 v5, 2, v{vRK}
v_add3_u32 v4, v{QF}, v{QF+1}, v{QF+2}
v_add3_u32 v4, v4, v{QF+3}, s{sNONCE}
v_add_u32 v4, 1, v4
buffer_store_dwordx4 {R(QF,4)}, v{vRK}, {SR(SWS)}, s20 offen sc1
buffer_store_dword v4, v5, {SR(SWS)}, s21 offen sc1""")
        TS(9); RC(43)
    return h
def k_valid(first_wait):
    validated(lambda: (k_issue(), v_issue()), k_check, first_wait)
    TS(7); RC(42)
def sched(ops, plan):
    out = {}; k = 0
    for t, n in plan:
        out[t] = ops[k:k + n]; k += n
    assert k == len(ops)
    return out
OWNJ = [(4, 0, "diag"), (5, 1, "diag"), (4, 1, None)]
OLDJ = [(3, 0, None), (2, 0, "old"), (3, 1, "old")]
CPL = eval(opts.get('cpl', '[]')); LPL = eval(opts.get('lpl', '[(1,4),(5,4),(6,4)]'))
NCB = sum(n for t, n in CPL) // 4
A(f"s_cmp_eq_u32 s{sROLE}, 0\ns_cbranch_scc1 L_fA")
g_stage()
TS(8)
k_valid(7)
lb = A.newlabel("L_fb1"); lb2 = A.newlabel("L_fb0")
A(f"s_cmp_eq_u32 s{sH1}, 0\ns_cbranch_scc1 {lb}")
p2_run(SEG(0) + SEG(2), zero, {0, 1}, {0: [after_v(1, 1)]}, sched(wo_ops()[:4*NCB], CPL))
A("s_branch L_fchk")
A.label(lb)
A(f"s_cmp_eq_u32 s{sH2}, 0\ns_cbranch_scc1 {lb2}")
p2_run(SEG(2), zero, {0, 1}, {0: [after_v(1, 1), wd_issue]})
dma_upto(NCB)
A("s_branch L_fchk")
A.label(lb2)
after_v(1, 1)()
wd_issue()
dma_upto(NCB)
for r in range(32): A(f"v_mov_b32 v{OA+r}, 0")
A(f"v_mov_b32 v{vM0}, {f32(-1e30)}\nv_mov_b32 v{vM1}, {f32(-1e30)}")
A("s_branch L_p2done")
A.label("L_fA")
A(f"s_cmp_lg_u32 s{sH1}, 0\ns_cbranch_scc1 L_nwe")
wd_issue()
A.label("L_nwe")
winner()
vswap((4, 5))
A('s_setprio %d' % int(opts.get('lprio', 1)))
p2_run(OWNJ, zero, {0, 1}, {}, sched(capture(k_issue) + capture(v_issue), [(0, 6), (1, 3), (2, 3)]))
TS(8)
k_valid(6)
lb = A.newlabel("L_fa1"); lb2 = A.newlabel("L_fa0")
A(f"s_cmp_eq_u32 s{sH2}, 0\ns_cbranch_scc1 {lb}")
p2_run(SEG(0) + OLDJ, zero, set(), {0: [after_v(0, 0), wd_issue]}, sched(wo_ops()[:sum(n for t, n in LPL)], LPL))
dma_upto(4)
A("s_branch L_fchk")
A.label(lb)
A(f"s_cmp_eq_u32 s{sH1}, 0\ns_cbranch_scc1 {lb2}")
p2_run(SEG(0), zero, set(), {0: [after_v(0, 0), wd_issue]})
dma_upto(4)
A("s_branch L_fchk")
A.label(lb2)
after_v(0, 0)()
dma_upto(4)
A.label("L_fchk")
LO = (127 - 40) << 23; RNG = 80 << 23
if not FAST: LO, RNG = 0, 0
A(f"""v_subrev_u32 v2, {hex(LO)}, v{OA+8}
v_subrev_u32 v3, {hex(LO)}, v{OA+24}
v_max_u32 v2, v2, v3
v_cmp_le_u32 vcc, {hex(RNG) if RNG else 0}, v2
s_cbranch_vccnz L_slow""")
A.label("L_p2done")
if DPOS == 0: d_block()
TS(10)

def slow_path():
    A.label("L_slow")
    A("s_waitcnt vmcnt(0)")
    A(f"v_mov_b32 v{vM0}, {f32(-1e30)}\nv_mov_b32 v{vM1}, {f32(-1e30)}\nv_mov_b32 v5, {f32(-1e30)}")
    def max_run(jobs):
        for (k, q, mask) in jobs:
            m = vM0 if q == 0 else vM1
            A(smf(SB, k, q, 0))
            if mask:
                for r in range(16):
                    j0 = 8 * (r // 4) + r % 4
                    A(f"s_lshl_b32 s20, -1, {j0}\ns_lshl_b32 s21, -1, {j0+4}")
                    if mask == "diag": A(f"v_cndmask_b32_e64 v{SB+r}, v5, v{SB+r}, s[20:21]")
                    else: A(f"v_cndmask_b32_e64 v{SB+r}, v{SB+r}, v5, s[20:21]")
            for r in range(0, 16, 2): A(f"v_max3_f32 v{m}, v{SB+r}, v{SB+r+1}, v{m}")
    def groups(fn):
        l1 = A.newlabel("L_s"); l2 = A.newlabel("L_s"); l3 = A.newlabel("L_s")
        A(f"s_cmp_eq_u32 s{sH1}, 0\ns_cbranch_scc1 {l1}")
        fn(SEG(0))
        A.label(l1)
        A(f"s_cmp_eq_u32 s{sROLE}, 0\ns_cbranch_scc1 {l2}")
        fn(SEG(2))
        A(f"s_branch {l3}")
        A.label(l2)
        fn(OWNJ)
        A(f"s_cmp_eq_u32 s{sH2}, 0\ns_cbranch_scc1 {l3}")
        fn(OLDJ)
        A.label(l3)
    groups(max_run)
    A(f"""v_mov_b32 v2, v{vM0}
v_mov_b32 v3, v{vM1}
v_permlane32_swap_b32 v{vM0}, v2
v_permlane32_swap_b32 v{vM1}, v3
v_max_f32 v{vM0}, v{vM0}, v2
v_max_f32 v{vM1}, v{vM1}, v3""")
    for q, m in enumerate((vM0, vM1)):
        for r in range(16): A(f"v_sub_f32 v{NM+16*q+r}, 0, v{m}")
    for r in range(32): A(f"v_mov_b32 v{OA+r}, 0")
    groups(lambda jobs: p2_run(jobs, nm, set()))
    wd_issue()
    A("s_branch L_p2done")

A(f"""v_xor_b32 v3, 0x4000, v{vEX}
s_lshl_b32 s20, s{sI}, 1
s_add_u32 s20, s20, s{sROLE}
s_lshl_b32 s20, s20, 3
s_add_u32 s20, s20, s{sC}
s_lshl_b32 s21, s20, 10
s_add_u32 s21, s21, {WS_OC}
s_lshl_b32 s20, s20, 12
s_add_u32 s20, s20, {WS_O}
v_lshrrev_b32 v5, 2, v{vRK}
v_mov_b32 v{OA+25}, v{vM1}
ds_write_b64 v3, {R(OA+24,2)} offset:2048
ds_write_b128 v3, {R(OA+16,4)}
ds_write_b128 v3, {R(OA+20,4)} offset:1024
s_waitcnt lgkmcnt(0)
s_barrier
ds_read_b64 {R(SB+8,2)}, v{vEX} offset:2048
ds_read_b128 {R(SB,4)}, v{vEX}
ds_read_b128 {R(SB+4,4)}, v{vEX} offset:1024
s_waitcnt lgkmcnt(2)
v_max_f32 v3, v{vM0}, v{SB+9}
v_sub_f32 v{SB+10}, v{vM0}, v3
v_sub_f32 v{SB+11}, v{SB+9}, v3
v_exp_f32 v{SB+10}, v{SB+10}
v_exp_f32 v{SB+11}, v{SB+11}
v_mul_f32 v4, v{SB+10}, v{OA+8}
v_fmac_f32 v4, v{SB+11}, v{SB+8}
v_rcp_f32 v4, v4
v_mul_f32 v{SB+10}, v{SB+10}, v4
v_mul_f32 v{SB+11}, v{SB+11}, v4
s_waitcnt lgkmcnt(0)""")
for r in range(0, 8, 2):
    A(f"v_pk_mul_f32 {R(OA+r,2)}, {R(OA+r,2)}, {R(SB+10,2)} op_sel_hi:[1,0]")
    A(f"v_pk_fma_f32 {R(OA+r,2)}, {R(SB+r,2)}, {R(SB+10,2)}, {R(OA+r,2)} op_sel:[0,1,0]")
for k in range(4): A(f"v_cvt_pk_bf16_f32 v{SB+12+k}, v{OA+2*k}, v{OA+2*k+1}")
A(f"""buffer_store_dwordx4 {R(SB+12,4)}, v{vRK}, {SR(SWS)}, s20 offen sc1
v_add3_u32 v4, v{SB+12}, v{SB+13}, v{SB+14}
v_add3_u32 v4, v4, v{SB+15}, s{sNONCE}
buffer_store_dword v4, v5, {SR(SWS)}, s21 offen sc1""")
TS(11)

A("s_waitcnt vmcnt(2)\ns_barrier")
TS(12); RC(44)

WOF = 8; XB = 136; PA = 160; OF = 176; OL = 208; OLC = 224
A(f"""s_lshl_b32 s20, s{sQK}, 3
s_add_u32 s20, s20, s{sW}
s_lshl_b32 s32, s20, 10
s_add_u32 s32, s32, {WS_OC}
s_lshl_b32 s31, s20, 12
s_add_u32 s31, s31, {WS_O}
v_lshlrev_b32 v2, 4, v{vL}
v_lshlrev_b32 v{vRV}, 2, v{vL}
s_and_b32 s33, s{sKEY}, 0x7ff
s_sub_u32 s33, 2047, s33
s_lshr_b32 s34, s33, 5""")
def o_issue():
    for k in range(4):
        A(f"buffer_load_dwordx4 {R(OL+4*k,4)}, v2, {SR(SWS)}, s31 offen offset:{k*1024} sc1")
    for k in range(4):
        A(f"buffer_load_dword v{OLC+k}, v{vRV}, {SR(SWS)}, s32 offen offset:{k*256} sc1")
def o_check():
    for k in range(4):
        b = OL + 4 * k
        A(f"v_add3_u32 v{228+k}, v{b}, v{b+1}, v{b+2}\nv_add3_u32 v{228+k}, v{228+k}, v{b+3}, s{sNONCE}\nv_xor_b32 v{228+k}, v{228+k}, v{OLC+k}")
    A("v_or3_b32 v228, v228, v229, v230\nv_or_b32 v228, v228, v231\nv_cmp_ne_u32 vcc, 0, v228")
lb = A.newlabel("L_p3l")
A(f"s_cmp_lt_u32 s{sW}, 4\ns_cbranch_scc1 L_nphb")
A(f"""s_sub_u32 s{sWOD}, s{sWOD}, {4 << 16}
s_sub_u32 s{sM0}, s{sM0}, {4 << 14}
s_add_u32 s{sWE}, s{sWE}, 4
s_add_u32 s{sWB}, s{sWB}, {NCB}""")
dma_upto(4)
A.label("L_nphb")
if DPOS == 1: d_block()
A(f"v_lshlrev_b32 v2, 4, v{vL}")
A(f"s_cmp_ge_u32 s{sW}, 4\ns_cbranch_scc1 {lb}w")
for pr in range(2):
    b = XR + 4 * pr
    A(f"v_permlane32_swap_b32 v{b}, v{b+2}\nv_permlane32_swap_b32 v{b+1}, v{b+3}")
for k in range(8):
    x = XR + k; p = PA + 2 * k
    A(f"""v_lshlrev_b32 v{p}, 16, v{x}
v_and_b32 v{p+1}, 0xffff0000, v{x}
v_pk_add_f32 {R(XB+8,2)}, {R(p,2)}, {R(vPM,2)} op_sel_hi:[1,0] neg_lo:[0,1] neg_hi:[0,1]
v_cvt_pk_bf16_f32 v{XB+10}, v{XB+8}, v{XB+9}
v_lshlrev_b32 v{XB+8}, 16, v{XB+10}
v_and_b32 v{XB+9}, 0xffff0000, v{XB+10}
v_pk_mul_f32 {R(XB+8,2)}, {R(XB+8,2)}, {R(vPM,2)} op_sel:[0,1]
v_cvt_pk_bf16_f32 v{XB+10}, v{XB+8}, v{XB+9}
v_lshlrev_b32 v{XB+8}, 16, v{XB+10}
v_and_b32 v{XB+9}, 0xffff0000, v{XB+10}
v_pk_add_f32 {R(p,2)}, {R(p,2)}, {R(XB+8,2)}""")
A(f"""v_lshlrev_b32 v2, 4, v{vL}
v_lshrrev_b32 v4, 5, v{vL}
v_bfe_u32 v3, v{vL}, 2, 2
v_lshl_add_u32 v5, v4, 2, v3
v_lshlrev_b32 v5, 8, v5
v_xor_b32 v3, s{sW}, v3
v_lshl_add_u32 v5, v3, 6, v5
v_bfe_u32 v3, v{vL}, 4, 1
v_lshl_add_u32 v5, v3, 5, v5
v_and_b32 v3, 3, v{vL}
v_lshl_add_u32 v5, v3, 3, v5
v_add_u32 v3, 65536, v5""")
def wo_read(g): return [f"ds_read_b64_tr_b16 {R(WOF+4*g+2*j,2)}, v{5 if g < 16 else 3} offset:{(g*4096 + j*2048) % 65536}" for j in range(2)]
for g in range(16, 32): emit(wo_read(g))
A(f"s_waitcnt vmcnt(0)\ns_branch {lb}")
A.label(lb + "w")
A(f"s_waitcnt vmcnt({16-4*NCB})")
def yp_issue():
    A(f"""s_and_b32 s20, s{sC}, 3
s_lshl_b32 s20, s20, 10
s_add_u32 s20, s20, {WS_YP}
s_add_u32 s21, s20, {42*4096}
s_mul_i32 s22, s{sHH}, {11*4096}
s_add_u32 s20, s20, s22""")
    for k in range(11):
        if k == 10: A("s_min_u32 s20, s20, s21")
        A(f"buffer_load_dwordx4 {R(8+4*k,4)}, v2, {SR(SWS)}, s20 offen sc1\ns_add_u32 s20, s20, 4096")
A(f"s_cmp_lg_u32 s34, s{sQK}\ns_cbranch_scc1 {lb}")
o_issue(); yp_issue()
A(f"s_waitcnt vmcnt(11)\ns_branch {lb}y")
A.label(lb)
TS(46)
o_issue()
TS(47)
A("s_waitcnt vmcnt(0)")
A.label(lb + "y")
o_check()
retry_check(lb)
for k in range(4):
    A(f"ds_write_b128 v{vEX}, {R(OL+4*k,4)} offset:{k*1024}")
TS(13); RC(45)
A("s_waitcnt lgkmcnt(0)\ns_barrier")
TS(14)
A(f"s_cmp_ge_u32 s{sW}, 4\ns_cbranch_scc1 L_p3help")
A(f"v_add_u32 v2, {L_TAIL}, v2")
order = list(range(16, 32)) + list(range(16))
lq = []
def ofr(n): lds(("o", n), f"ds_read_b128 {R(OF+4*(n%8),4)}, v2 offset:{order[n]*1024}")
for n in range(6): ofr(n)
for n in range(32):
    lwait(("o", n))
    A(mfma32(PA, WOF + 4 * order[n], OF + 4 * (n % 8)))
    if n < 16:
        for x in wo_read(n): lds("w", x)
    if n + 6 < 32: ofr(n + 6)
    if n == int(opts.get("zb", 14)):
        A(f"s_cmp_lg_u32 s34, s{sQK}\ns_cbranch_scc1 L_nzb\ns_barrier\nL_nzb:")
lb = A.newlabel("L_noz")
A(f"s_cmp_lg_u32 s34, s{sQK}\ns_cbranch_scc1 {lb}")
A(f"""s_barrier
s_lshl_b32 s20, s{sW}, 7
s_add_u32 s20, s20, 65536
v_lshlrev_b32 v3, 4, v4
v_add_u32 v3, s20, v3""")
for a in range(4): A(f"ds_read_b128 {R(OF+4*a,4)}, v3 offset:{a*32}")
A(f"""s_and_b32 s20, s33, 31
v_and_b32 v3, 31, v{vL}
v_cmp_eq_u32 vcc, s20, v3
s_and_saveexec_b64 s[{sEX}:{sEX+1}], vcc
s_waitcnt lgkmcnt(0)""")
for r in range(16): A(f"v_add_f32 v{PA+r}, v{PA+r}, v{OF+r}")
A(f"s_mov_b64 exec, s[{sEX}:{sEX+1}]")
A.label(lb)
for k in range(8): A(f"v_cvt_pk_bf16_f32 v{XB+k}, v{PA+2*k}, v{PA+2*k+1}")
for pr in range(2):
    b = XB + 4 * pr
    A(f"v_permlane32_swap_b32 v{b}, v{b+2}\nv_permlane32_swap_b32 v{b+1}, v{b+3}")
    A(f"buffer_store_dwordx4 {R(b,4)}, v{vOUT}, {SR(SOUT)}, s{sOUTO} offen offset:{pr*32}")
A("s_branch L_end")
A.label("L_p3help")
A(f"""s_or_b32 s20, s2, s{sHH}
s_cmp_lg_u32 s20, 0
s_cbranch_scc1 L_noep
v_mov_b32 v200, s{sNONCE}
v_mov_b32 v201, {WS_EPOCH}
s_mov_b64 exec, 1
buffer_store_dword v200, v201, {SR(SWS)}, 0 offen sc1
s_mov_b64 exec, -1
L_noep:""")
A(f"s_cmp_lg_u32 s34, s{sQK}\ns_cbranch_scc1 L_end")
def yp_check():
    A(f"v_min3_u32 v3, v10, v14, v18\nv_max3_u32 v4, v10, v14, v18")
    for k in range(3, 11, 2): A(f"v_min3_u32 v3, v3, v{10+4*k}, v{14+4*k}\nv_max3_u32 v4, v4, v{10+4*k}, v{14+4*k}")
    A(f"v_xor_b32 v3, s{sNONCE}, v3\nv_xor_b32 v4, s{sNONCE}, v4\nv_or_b32 v3, v3, v4\nv_cmp_ne_u32 vcc, 0, v3")
validated(yp_issue, yp_check, 0)
A(f"s_cmp_eq_u32 s{sHH}, 3\ns_cselect_b32 s20, 0, 1.0")
for k in range(1, 10): A(f"v_add_f32 v8, v8, v{8+4*k}\nv_add_f32 v9, v9, v{9+4*k}")
A(f"""v_fmac_f32 v8, s20, v48
v_fmac_f32 v9, s20, v49
s_lshl_b32 s20, s{sHH}, 9
s_add_u32 s20, s20, {65536 + 1024}
v_lshl_add_u32 v3, v{vL}, 3, s20
ds_write_b64 v3, v[8:9]
s_waitcnt lgkmcnt(0)
s_barrier""")
lb = A.newlabel("L_hb")
A(f"""s_cmp_lg_u32 s{sW}, 4
s_cbranch_scc1 {lb}
ds_read_b64 v[10:11], v3 offset:512
ds_read_b64 v[12:13], v3 offset:1024
ds_read_b64 v[14:15], v3 offset:1536
s_waitcnt lgkmcnt(0)
v_add_f32 v8, v8, v10
v_add_f32 v9, v9, v11
v_add_f32 v12, v12, v14
v_add_f32 v13, v13, v15
v_add_f32 v8, v8, v12
v_add_f32 v9, v9, v13""")
bf16round(8, 8); bf16round(9, 9)
A(f"""s_and_b32 s20, s{sKEY}, 0xffff0000
s_ashr_i32 s21, s20, 31
s_not_b32 s21, s21
s_or_b32 s21, s21, 0x80000000
s_xor_b32 s20, s20, s21
s_and_b32 s20, s20, 0xffff0000
v_mov_b32 v3, s20
v_mul_f32 v3, {f32(-LOG2E)}, v3
v_exp_f32 v3, v3
v_add_f32 v3, 1.0, v3
v_rcp_f32 v3, v3""")
bf16round(3, 3)
A("v_mul_f32 v8, v8, v3\nv_mul_f32 v9, v9, v3")
bf16round(8, 8); bf16round(9, 9)
A(f"""v_lshrrev_b32 v3, 5, v{vL}
v_lshlrev_b32 v3, 8, v3
v_and_b32 v4, 31, v{vL}
v_lshl_add_u32 v3, v4, 2, v3
v_add_u32 v3, 65536, v3
ds_write_b32 v3, v8
ds_write_b32 v3, v9 offset:128
s_waitcnt lgkmcnt(0)""")
A.label(lb)
A("s_barrier")
A.label("L_end")
if PROF:
    TS(15)
    srd(SWS, WS_SIZE)
    A(f"""s_mov_b64 exec, -1
v_writelane_b32 v{vTS}, s{sRETRY}, 62
s_memrealtime s[96:97]
s_waitcnt lgkmcnt(0)
v_writelane_b32 v{vTS}, s96, 61
s_lshl_b32 s20, s2, 3
s_add_u32 s20, s20, s{sW}
s_lshl_b32 s20, s20, 8
s_add_u32 s20, s20, {WS_TS}
v_lshlrev_b32 v2, 2, v{vL}
buffer_store_dword v{vTS}, v2, {SR(SWS)}, s20 offen""")
A.label("L_exit")
A("s_endpgm")
A.label("L_codeend")
slow_path()

body = A.finalize()
import re as _re
def addflag(srd_, flag, kind="load"):
    global body
    pat = _re.compile(r"^(\s*buffer_%s_\w+ .*s\[%d:%d\], \S+ offen(?: offset:\d+)?)( lds)?$" % (kind, srd_, srd_ + 3), _re.M)
    body = pat.sub(lambda m: m.group(1) + " " + flag + (m.group(2) or ""), body)
for b_ in (SWG, SWU, SWD): addflag(b_, "nt")
if opts.get("ntx"): addflag(SX, "nt")
if opts.get("ntw"): addflag(SW, "nt")
if opts.get("nto"): addflag(SWO, "nt")
if opts.get("outf"): addflag(SOUT, opts["outf"].replace("+", " "), "store")
hdr = open("cdna_kernels/" + NAME + ".s.ref").read().split("; Override launch")[0]
out = hdr + f"""; Fused single kernel: LN stats + router, QKV GEMM, sliding-window attention, MoD FFN, output projection.
; Generated by gen/gen.py (hand-written generator).
; @launch grid=(256,1,1) block=(512,1,1) lds=163840
.amdgcn_target "amdgcn-amd-amdhsa--gfx950"
.text
.globl {NAME}_kernel
.p2align 8
.type {NAME}_kernel,@function
{NAME}_kernel:
L_start:
{body}
.section .rodata,"a"
.p2align 6
.amdhsa_kernel {NAME}_kernel
  .amdhsa_next_free_vgpr 256
  .amdhsa_next_free_sgpr 102
  .amdhsa_accum_offset 256
  .amdhsa_group_segment_fixed_size 0
  .amdhsa_kernarg_size 88
  .amdhsa_user_sgpr_count 2
  .amdhsa_user_sgpr_kernarg_segment_ptr 1
  .amdhsa_system_sgpr_workgroup_id_x 1
  .amdhsa_float_denorm_mode_32 3
.end_amdhsa_kernel
"""
import subprocess, re
def labels(text):
    open("_g.s", "w").write(text)
    r = subprocess.run(["clang", "-x", "assembler", "-target", "amdgcn-amd-amdhsa", "-mcpu=gfx950", "-c", "_g.s", "-o", "_g.o"], capture_output=True, text=True)
    if r.returncode:
        print("\n".join(r.stderr.split("\n")[:30])); sys.exit(1)
    t = subprocess.run(["llvm-objdump", "-t", "_g.o"], capture_output=True, text=True).stdout
    return {m.group(2): int(m.group(1), 16) for m in re.finditer(r"^([0-9a-f]{16}) .*\s(L_\w+)$", t, re.M)}
lab = labels(out.replace("CODE_PF_MAX", "0x11111"))
out = out.replace("CODE_PF_MAX", hex((lab["L_codeend"] - 256) & ~127))
assert labels(out) == lab
print("code bytes", lab["L_codeend"], "instrs", len(A.ins), "nops", A.nnop)
open(sys.argv[1], "w").write(out)
```

```python
import sys, struct
from asmlib import Asm

NAME = "parallel_sum__sliding_block__moe_arch_mod__prompt"
opts = dict(a.split("=") if "=" in a else (a, "1") for a in sys.argv[2:])
PROF = int(opts.get("prof", 0))
LOOPTS = int(opts.get('loopts', 0))
DEPTH = int(opts.get('depth', 3))
FAST = int(opts.get('fast', 1))
SIBU = int(opts.get('sibu', 4))
GWP = int(opts.get('gwp', 2))
DOFF = int(opts.get('doff', 245))
DSH = int(opts.get('dsh', 0))
DNL = int(opts.get('dnl', 43))
DPOS = int(opts.get('dpos', 0))
PWS = int(opts.get('pws', 1))
LGW = int(opts.get('lgw', -1))
PUBU = int(opts.get('pubu', 0))

def f32(x): return "0x%08x" % struct.unpack("<I", struct.pack("<f", x))[0]
LOG2E = 1.4426950408889634

WS_BEST  = 0x0
WS_EPOCH = 0x4000
WS_STATS = 0x8000
WS_YP    = 0x10000
WS_GP    = 0x40000
WS_KV    = 0x100000
WS_KVC   = 0x500000
WS_O     = 0x600000
WS_OC    = 0x800000
WS_TS    = 0x900000
WS_SIZE  = 0x1000000
L_X = 0; L_RING = 65536; L_MISC = 147456; L_TAIL = 131072
def slot_of(u): return (u + 2) % 5
L_QF = L_MISC
L_SM = L_MISC + 8192
L_RT = L_SM
L_NONCE = L_SM + 128
L_IDX = L_SM + 144
L_XSEL = L_SM + 1024
L_CSX = L_SM + 2048
L_STAT = L_SM + 256
L_RINV = L_SM + 768
L_GW = L_RING + 4 * 16384
L_OWN = L_RING + slot_of(8) * 16384
SX, SW, SWS, SDBG, SWR = 40, 44, 48, 52, 56
SWO, SOUT, SWG, SWU, SWD = 60, 64, 68, 72, 76
sI, sC, sW, sROT, sNONCE, sP, sKEY = 3, 4, 5, 6, 7, 8, 9
sXO, sWOFF, sCT, sWB, sHH, sROLE, sH1, sH2 = 10, 11, 12, 13, 14, 15, 16, 17
sSM, sSR = 18, 19
sOUTO, sQK, sWOD, sM0, sWE, sEX, sRETRY = 80, 81, 82, 83, 84, 86, 88
sGU = 89
sDI = 85
DG = [96 + 4 * n for n in range(8)]
GOFF = int(opts.get('goff', 80))
sRB = 90
vL, vZ, vTS = 1, 6, 7
vXA, vWA0, vWA1 = 88, 92, 93
vX0, vX1, vW0, vW1 = 80, 81, 82, 83
vSA, vKA, vKC, vBA = 80, 81, 82, 83
ACC = 96; STB = 128; CS = 200; SEL = 204; GW = 208; ST0, ST1 = 224, 226; XS = 228
OWN = 128; SL = 8
KC, VC, QF, NM, OA, SB, WD, MK = 80, 84, 88, 96, 128, 160, 208, 232
vM0, vM1, vRK, vRV, vRKC, vGA, vEX, vOUT, vPM, vPR, vWO = 240, 241, 242, 243, 244, 245, 246, 247, 248, 249, 250
A = Asm()

def TS(n):
    if PROF == 1: A(f"s_memtime s[98:99]\ns_waitcnt lgkmcnt(0)\nv_writelane_b32 v{vTS}, s98, {n}")
def TSL(n):
    if LOOPTS: TS(n)
def RC(n):
    if PROF == 1: A(f"v_writelane_b32 v{vTS}, s{sRETRY}, {n}")
def srd(base, size): A(f"s_mov_b32 s{base+2}, {size}\ns_mov_b32 s{base+3}, 0x20000")
def R(b, n): return f"v[{b}:{b+n-1}]"
def SR(b): return f"s[{b}:{b+3}]"
DPP8 = ("quad_perm:[1,0,3,2]", "quad_perm:[2,3,0,1]", "row_half_mirror")
def dpp(op, x, m): return f"{op}_dpp v{x}, v{x}, v{x} {m} row_mask:0xf bank_mask:0xf"
def allreduce32(x, t, op):
    for m in DPP8 + ("row_mirror",): A(dpp(op, x, m))
    A(f"v_mov_b32 v{t}, v{x}\nv_permlane16_swap_b32 v{x}, v{t}\n{op} v{x}, v{x}, v{t}")
def bf16round(dst, src):
    A(f"v_cvt_pk_bf16_f32 v{dst}, v{src}, v{src}\nv_and_b32 v{dst}, 0xffff0000, v{dst}")
def retry_check(lbl):
    A(f"s_add_u32 s{sRETRY}, s{sRETRY}, 1\ns_cmp_gt_u32 s{sRETRY}, 20000\ns_cbranch_scc1 L_end")
    A(f"s_cbranch_vccnz {lbl}")
def validated(issue, check, first_wait, retry_wait=0):
    lr = A.newlabel("L_rt"); lo = A.newlabel("L_ok")
    A(f"s_waitcnt vmcnt({first_wait})"); check(); A(f"s_cbranch_vccz {lo}")
    A.label(lr)
    issue(); A(f"s_waitcnt vmcnt({retry_wait})"); check()
    retry_check(lr)
    A.label(lo)
def capture(fn):
    n = len(A.ins); fn(); out = [x.text for x in A.ins[n:]]; del A.ins[n:]
    return out
def emit(l):
    for x in l: A(x)
def split(l, n): return [l[len(l)*k//n: len(l)*(k+1)//n] for k in range(n)]
def mfma32(d, a, b, c=None):
    return f"v_mfma_f32_32x32x16_bf16 {R(d,16)}, {R(a,4)}, {R(b,4)}, {R(d,16) if c is None else c}"
def var_to_rinv(v):
    bf16round(v, v)
    A(f"v_add_f32 v{v}, {f32(1e-5)}, v{v}")
    bf16round(v, v)
    A(f"v_sqrt_f32 v{v}, v{v}")
    bf16round(v, v)
    A(f"v_rcp_f32 v{v}, v{v}")

A("s_cmp_ge_u32 s2, 256\ns_cbranch_scc1 L_exit")
for b, off in ((SX, 0), (SW, 8), (SWR, 32), (SDBG, 72), (SWS, 80), (SWO, 16), (SWG, 40), (SWU, 48), (SWD, 56), (SOUT, 64)):
    A(f"s_load_dwordx2 s[{b}:{b+1}], s[0:1], {off}")
A(f"""s_getpc_b64 s[22:23]
v_lshrrev_b32 v2, 6, v0
v_and_b32 v{vL}, 63, v0
s_and_b32 s20, s2, 3
s_lshr_b32 s21, s2, 3
v_readfirstlane_b32 s{sW}, v2
s_lshl_b32 s20, s20, 3
s_and_b32 s24, s21, 7
s_add_u32 s{sI}, s20, s24
s_bfe_u32 s20, s2, 0x10002
s_lshl_b32 s20, s20, 2
s_lshr_b32 s24, s21, 3
s_add_u32 s{sC}, s20, s24""")
opts.setdefault("map3", "1")
if opts.get("map3") != "0":
    A(f"""s_bfe_u32 s20, s2, 0x20001
{"s_lshr_b32 s24, s20, 1" + chr(10) + "s_xor_b32 s20, s20, s24" if opts["map3"] == "2" else ""}
s_lshl_b32 s20, s20, 3
s_and_b32 s24, s21, 7
s_add_u32 s{sI}, s20, s24
s_and_b32 s20, s2, 1
s_lshl_b32 s20, s20, 2
s_lshr_b32 s24, s21, 3
s_add_u32 s{sC}, s20, s24""")
if opts.get("map2"):
    A(f"""s_and_b32 s20, s2, 7
s_lshl_b32 s20, s20, 2
s_and_b32 s24, s21, 3
s_add_u32 s{sI}, s20, s24
s_lshr_b32 s{sC}, s21, 2""")
A(f"""s_lshl_b32 s{sP}, s{sI}, 3
s_add_u32 s{sP}, s{sP}, s{sC}
s_sub_u32 s{sGU}, s{sP}, {GOFF}
s_cmp_ge_u32 s{sW}, 4
s_cselect_b32 s20, {DNL}, {43-DNL}
s_cselect_b32 s24, 0, {DNL}
s_add_u32 s{sDI}, s{sP}, s24
s_cmp_lt_u32 s{sP}, s20
s_cselect_b32 s{sDI}, s{sDI}, 255
s_mov_b32 s{sRETRY}, 0""")
srd(SX, 2048 * 1024)
if PROF:
    A(f"v_mov_b32 v{vTS}, 0\ns_memrealtime s[96:97]\ns_waitcnt lgkmcnt(0)\nv_writelane_b32 v{vTS}, s96, 63")
    TS(0)
A(f"s_cmp_ge_u32 s{sW}, 4\ns_cbranch_scc1 L_lwave")
srd(SWR, 1024)
A(f"""v_and_b32 v2, 31, v{vL}
v_lshlrev_b32 v{vSA}, 4, v2
v_lshrrev_b32 v3, 5, v{vL}
v_lshl_add_u32 v4, v3, 10, v{vSA}
s_lshl_b32 s20, s{sP}, 3
s_lshl_b32 s21, s{sW}, 1
s_add_u32 s20, s20, s21
s_lshl_b32 s21, s20, 10
s_waitcnt lgkmcnt(0)
s_load_dword s{sNONCE}, s[{SWS}:{SWS+1}], {WS_EPOCH}
buffer_load_dwordx4 v[8:11], v4, {SR(SX)}, s21 offen
buffer_load_dwordx4 v[12:15], v4, {SR(SX)}, s21 offen offset:512
buffer_load_dwordx4 v[16:19], v{vSA}, {SR(SWR)}, 0 offen
buffer_load_dwordx4 v[20:23], v{vSA}, {SR(SWR)}, 0 offen offset:512
""")
if int(opts.get('tlb', 0)) == 3:
    A(f"""s_load_dword s100, s[{SWG}:{SWG+1}], 0
s_load_dword s100, s[{SWU}:{SWU+1}], 0
s_load_dword s100, s[{SWD}:{SWD+1}], 0
s_load_dword s100, s[{SWO}:{SWO+1}], 0
s_load_dword s100, s[{SOUT}:{SOUT+1}], 0""")
    for off in (0x2FF000, 0x4FF000, 0x6FF000, 0x8FF000)[:int(opts.get('tlbw', 4))]:
        A(f"s_mov_b32 s24, {off}\ns_load_dword s100, s[{SWS}:{SWS+1}], s24")
A("s_branch L_cwave")

def frag_addrs():
    A(f"""v_and_b32 v2, 31, v{vL}
v_lshrrev_b32 v3, 5, v{vL}
v_bfe_u32 v4, v2, 1, 3
v_xor_b32 v4, v4, v3
v_lshlrev_b32 v4, 4, v4
v_lshl_add_u32 v4, v2, 7, v4
v_add_u32 v{vXA}, s28, v4
v_xor_b32 v{vXA+1}, 32, v{vXA}
v_xor_b32 v{vXA+2}, 64, v{vXA}
v_xor_b32 v{vXA+3}, 96, v{vXA}
v_bfe_u32 v4, v{vL}, 2, 2
v_lshlrev_b32 v4, 7, v4
v_lshl_add_u32 v4, v3, 11, v4
v_bfe_u32 v5, v{vL}, 3, 1
v_lshl_add_u32 v4, v5, 6, v4
v_bfe_u32 v5, v{vL}, 4, 1
v_lshl_add_u32 v4, v5, 5, v4
v_and_b32 v5, 3, v{vL}
v_lshl_add_u32 v{vGA}, v5, 3, v4
s_lshl_b32 s20, s{sCT}, 6
v_xor_b32 v4, s20, v{vGA}
v_add_u32 v{vWA0}, s29, v4
v_add_u32 v{vWA1}, {3*16384}, v{vWA0}
v_lshrrev_b32 v4, 4, v{vL}
v_xor_b32 v4, v4, v{vL}
v_and_b32 v4, 1, v4
v_add_u32 v4, -1, v4
v_and_b32 v{SEL}, 0x3f803f80, v4
v_mov_b32 v{SEL+1}, v{SEL}
v_mov_b32 v{SEL+2}, v{SEL}
v_mov_b32 v{SEL+3}, v{SEL}""")
    for r in range(4): A(f"v_mov_b32 v{CS+r}, 0")
def wa(slot, off):
    return (vWA0, slot * 16384 + off) if slot < 3 else (vWA1, (slot - 3) * 16384 + off)
def csum_mfma(wf): return f"v_mfma_f32_16x16x32_bf16 {R(CS,4)}, {R(SEL,4)}, {R(wf,4)}, {R(CS,4)}"
def corr_w(dst):
    A(f"""s_mov_b32 s20, 0xffff0000
s_mov_b32 s21, 0xffff0000
v_cndmask_b32_e64 v2, v{CS}, v{CS+1}, s[20:21]
v_mul_f32 v2, 0.5, v2""")
    bf16round(3, 2)
    A("v_sub_f32 v2, v2, v3")
    bf16round(4, 2)
    A(f"""v_sub_f32 v2, v2, v4
v_cvt_pk_bf16_f32 v{dst}, v3, v4
v_cvt_pk_bf16_f32 v{dst+1}, v2, 0""")
def corr_x(dst, m):
    A(f"""v_cvt_pk_bf16_f32 v{dst}, -v{m}, -v{m}
v_cvt_pk_bf16_f32 v{dst+1}, -v{m}, 0
v_mov_b32 v{dst+2}, 0
v_mov_b32 v{dst+3}, 0""")
def Kf(k): return SL + 12 * k
def Vf(k, g): return SL + 12 * k + 4 + 4 * g
def attn_setup_s():
    A(f"""s_sub_u32 s20, 3, s{sROLE}
s_cmp_eq_u32 s{sROLE}, 0
s_cselect_b32 s21, 4, 1
s_sub_u32 s22, s{sI}, s20
s_lshl_b32 s22, s22, 3
s_add_u32 s22, s22, s{sC}
s_cmp_ge_u32 s{sI}, s20
s_cselect_b32 s{sH1}, -1, 0
s_cselect_b32 s22, s22, 0x10000
s_sub_u32 s23, s{sI}, s21
s_lshl_b32 s23, s23, 3
s_add_u32 s23, s23, s{sC}
s_cmp_ge_u32 s{sI}, s21
s_cselect_b32 s{sH2}, -1, 0
s_cselect_b32 s23, s23, 0x10000
s_lshl_b32 s{sRB}, s22, 14
s_add_u32 s{sRB}, s{sRB}, {WS_KV}
s_add_u32 s{sRB+1}, s{sRB}, 4096
s_lshl_b32 s{sRB+2}, s23, 14
s_add_u32 s{sRB+2}, s{sRB+2}, {WS_KV}
s_add_u32 s{sRB+3}, s{sRB+2}, 4096
s_lshl_b32 s{sRB+4}, s22, 12
s_add_u32 s{sRB+4}, s{sRB+4}, {WS_KVC}
s_lshl_b32 s{sRB+5}, s23, 12
s_add_u32 s{sRB+5}, s{sRB+5}, {WS_KVC}
s_lshl_b32 s{sWOD}, s{sW}, 16
s_and_b32 s20, s{sC}, 3
s_lshl_b32 s20, s20, 8
s_add_u32 s{sWOD}, s{sWOD}, s20
s_lshl_b32 s{sM0}, s{sW}, 14
s_mov_b32 s{sWB}, s{sI}
s_add_u32 s{sWE}, s{sI}, 4
s_lshl_b32 s{sQK}, s{sI}, 1
s_lshr_b32 s21, s{sC}, 2
s_add_u32 s{sQK}, s{sQK}, s21
s_lshl_b32 s{sOUTO}, s{sQK}, 15
s_add_u32 s{sOUTO}, s{sOUTO}, s20
s_lshl_b32 s20, s{sHH}, 6
s_add_u32 s{sOUTO}, s{sOUTO}, s20""")
    srd(SWD, 0 if opts.get('nogw') else 1376 * 1024); srd(SOUT, 2048 * 1024); srd(SWO, 0 if opts.get('nowo') else 512 * 1024); srd(SWS, WS_SIZE)
def attn_setup_v():
    A(f"""s_lshl_b32 s20, s{sHH}, 10
v_lshlrev_b32 v{vRK}, 4, v{vL}
s_lshl_b32 s21, s{sW}, 12
s_add_u32 s21, s21, {L_TAIL}
v_add_u32 v{vEX}, s21, v{vRK}
v_add_u32 v{vRK}, s20, v{vRK}
v_lshrrev_b32 v{vRKC}, 1, v{vRK}
v_add_u32 v{vRV}, 8192, v{vRK}
v_lshrrev_b32 v2, 4, v{vL}
v_and_b32 v3, 15, v{vL}
v_lshlrev_b32 v4, 2, v2
v_xor_b32 v3, v3, v4
v_lshlrev_b32 v3, 4, v3
v_lshl_add_u32 v{vWO}, v2, 10, v3
v_add_u32 v{vWO+1}, 3072, v{vWO}
v_add_u32 v{vWO+2}, 6144, v{vWO}
v_add_u32 v{vWO+3}, 9216, v{vWO}
v_and_b32 v3, 31, v{vL}
v_lshrrev_b32 v4, 5, v{vL}
v_lshlrev_b32 v{vOUT}, 10, v3
v_lshl_add_u32 v{vOUT}, v4, 4, v{vOUT}
v_mul_u32_u24 v4, {1408*16}, v4
v_lshl_add_u32 v255, v3, 4, v4
v_mov_b32 v{vM0}, 0
v_mov_b32 v{vM1}, 0""")
def mk_setup():
    A(f"""v_and_b32 v2, 31, v{vL}
v_lshrrev_b32 v3, 5, v{vL}
v_lshlrev_b32 v3, 2, v3
v_sub_u32 v2, v2, v3
v_mov_b32 v192, -1
v_mov_b32 v193, -1""")
    for k in range(8):
        j0 = 8 * (k // 2) + 2 * (k % 2)
        A(f"""v_add_u32 v3, {1 - j0}, v2
v_med3_i32 v3, v3, 0, 2
v_lshlrev_b32 v3, 4, v3
v_lshlrev_b64 v[194:195], v3, v[192:193]
v_mov_b32 v{MK+k}, v194""")
def v_prefill(n):
    A(f"v_mov_b32 v{Vf(0,1)}, 0x3f803f80")
    for k in range(n):
        for r in range(4):
            if k or r: A(f"v_mov_b32 v{Vf(k,1)+r}, v{Vf(0,1)}")
def k_issue():
    for k in range(4):
        A(f"buffer_load_dwordx4 {R(Kf(k),4)}, v{vRK}, {SR(SWS)}, s{sRB+k} offen sc1")
    for p in range(2):
        A(f"buffer_load_dwordx2 {R(KC+2*p,2)}, v{vRKC}, {SR(SWS)}, s{sRB+4+p} offen sc1")
def v_issue():
    for k in range(4):
        A(f"buffer_load_dwordx4 {R(Vf(k,0),4)}, v{vRV}, {SR(SWS)}, s{sRB+k} offen sc1")
    for p in range(2):
        A(f"buffer_load_dwordx2 {R(VC+2*p,2)}, v{vRKC}, {SR(SWS)}, s{sRB+4+p} offen offset:2048 sc1")

A.label("L_lwave")
srd(SW, 512 * 3072)
A(f"""s_add_u32 s20, s{sC}, s{sI}
s_and_b32 s20, s20, 3
s_lshl_b32 s{sROT}, s20, 1
s_sub_u32 s{sHH}, s{sW}, 4
v_lshrrev_b32 v2, 3, v{vL}
v_and_b32 v3, 7, v{vL}
v_lshrrev_b32 v4, 1, v2
v_xor_b32 v5, v3, v4
v_lshlrev_b32 v5, 4, v5
v_lshl_add_u32 v{vX0}, v2, 10, v5
v_xor_b32 v5, 64, v5
v_lshl_add_u32 v{vX1}, v2, 10, v5
v_add_u32 v{vX1}, {8192-1024}, v{vX1}
v_and_b32 v4, 1, v4
v_lshlrev_b32 v4, 2, v4
v_xor_b32 v5, v3, v4
v_lshlrev_b32 v84, 4, v5
v_mul_u32_u24 v{vW0}, 3072, v2
v_add_u32 v{vW0}, v{vW0}, v84
v_add_u32 v{vW1}, {24576-2048}, v{vW0}
s_lshl_b32 s{sXO}, s{sI}, 16
s_lshl_b32 s20, s{sHH}, 14
s_add_u32 s{sXO}, s{sXO}, s20
s_lshl_b32 s{sWOFF}, s{sC}, 7
s_mul_i32 s20, s{sHH}, {16*3072}
s_add_u32 s{sWOFF}, s{sWOFF}, s20
s_lshl_b32 s31, s{sHH}, 11
s_lshl_b32 s32, s{sHH}, 12
s_lshr_b32 s20, s2, 3
s_lshl_b32 s20, s20, 10
s_lshl_b32 s21, s{sHH}, 8
s_add_u32 s20, s20, s21
s_min_u32 s20, s20, CODE_PF_MAX
s_add_u32 s22, s22, s20
s_addc_u32 s23, s23, 0
s_waitcnt lgkmcnt(0)
s_load_dword s{sNONCE}, s[{SWS}:{SWS+1}], {WS_EPOCH}
s_load_dword s100, s[22:23], 0
s_load_dword s100, s[22:23], 64
s_load_dword s100, s[22:23], 128
s_load_dword s100, s[22:23], 192""")
TLBM = int(opts.get('tlb', 0))
if TLBM == 1:
    lb = A.newlabel("L_nt")
    A(f"s_cmp_lg_u32 s{sW}, 7\ns_cbranch_scc1 {lb}")
    for b in (SWR, SWG, SWU, SWO, SWD, SOUT):
        A(f"s_load_dword s100, s[{b}:{b+1}], 0")
    A(f"s_load_dword s100, s[{SDBG}:{SDBG+1}], 128")
    for off in (0xF000, 0x2FF000 , 0x4FF000, 0x6FF000, 0x8FF000):
        A(f"s_mov_b32 s20, {off}\ns_load_dword s100, s[{SWS}:{SWS+1}], s20")
    A.label(lb)
XOF = {u: [u] for u in range(8)}
def issue_unit(u):
    slot = slot_of(u)
    for t in XOF.get(u, []):
        A(f"""s_add_u32 s33, s{sROT}, {t}
s_and_b32 s33, s33, 7
s_lshl_b32 s34, s33, 7
s_add_u32 m0, s31, {L_X + t*8192}
s_add_u32 s34, s34, s{sXO}
buffer_load_dwordx4 v{vX0}, {SR(SX)}, s34 offen lds
buffer_load_dwordx4 v{vX1}, {SR(SX)}, s34 offen offset:1024 lds""")
    if u < 8:
        A(f"""s_add_u32 s33, s{sROT}, {u}
s_and_b32 s33, s33, 7
s_mul_i32 s35, s33, {64*3072}
s_add_u32 s35, s35, s{sWOFF}
s_add_u32 m0, s32, {L_RING + slot*16384}
s_add_u32 s35, s35, 1024
buffer_load_dwordx4 v{vW0}, {SR(SW)}, s35 offen lds
buffer_load_dwordx4 v{vW0}, {SR(SW)}, s35 offen offset:1024 lds
buffer_load_dwordx4 v{vW1}, {SR(SW)}, s35 offen offset:2048 lds
buffer_load_dwordx4 v{vW1}, {SR(SW)}, s35 offen offset:3072 lds""")
    else:
        for e in range(2):
            A(f"""s_add_u32 s33, s{sROT}, {2*(u-8)+e}
s_and_b32 s33, s33, 7
s_mul_i32 s35, s33, {64*3072}
s_add_u32 m0, s32, {L_RING + slot*16384 + e*1024}
s_add_u32 s35, s35, s{sWOFF}
buffer_load_dwordx4 v{vW0}, {SR(SW)}, s35 offen lds
buffer_load_dwordx4 v{vW1}, {SR(SW)}, s35 offen offset:2048 lds""")
def ucount(u): return 4 + 2 * len(XOF.get(u, []))
def lgw_issue():
    srd(SWG, 512 * 2752); srd(SWU, 512 * 2752)
    A(f"""v_lshrrev_b32 v2, 3, v{vL}
v_mul_u32_u24 v3, 2752, v2
v_and_b32 v4, 7, v{vL}
v_lshl_add_u32 v86, v4, 4, v3
s_and_b32 s33, s{sP}, 7
s_lshl_b32 s33, s33, 6
s_lshl_b32 s34, s{sHH}, 4
s_add_u32 s33, s33, s34
s_mul_i32 s33, s33, 2752
s_lshr_b32 s34, s{sGU}, 3
s_lshl_b32 s34, s34, 7
s_add_u32 s33, s33, s34
s_cmp_ge_u32 s{sGU}, 176
s_cselect_b32 s33, 0x40000000, s33
s_add_u32 s34, s33, {8*2752}
buffer_load_dwordx4 {R(GW,4)}, v86, {SR(SWG)}, s33 offen
buffer_load_dwordx4 {R(GW+4,4)}, v86, {SR(SWU)}, s33 offen
buffer_load_dwordx4 {R(GW+8,4)}, v86, {SR(SWG)}, s34 offen
buffer_load_dwordx4 {R(GW+12,4)}, v86, {SR(SWU)}, s34 offen""")
ops = []
for u in range(DEPTH):
    issue_unit(u); ops += [u] * ucount(u)
    if u == LGW: lgw_issue(); ops += ["gw"] * 4
TS(1)
if TLBM == 2:
    lb = A.newlabel("L_nt")
    A(f"s_cmp_lg_u32 s{sW}, 7\ns_cbranch_scc1 {lb}")
    for b in (SWR, SWG, SWU, SWO, SWD, SOUT):
        A(f"s_load_dword s100, s[{b}:{b+1}], 0")
    A(f"s_load_dword s100, s[{SDBG}:{SDBG+1}], 128")
    for off in (0xF000, 0x2FF000 , 0x4FF000, 0x6FF000, 0x8FF000):
        A(f"s_mov_b32 s20, {off}\ns_load_dword s100, s[{SWS}:{SWS+1}], s20")
    A.label(lb)
SA = 112
A(f"""s_and_b32 s{sCT}, s{sHH}, 1
s_lshr_b32 s28, s{sHH}, 1
s_lshl_b32 s28, s28, 12
s_mov_b32 s29, {L_RING}
s_mov_b32 s{sROLE}, 0
v_lshlrev_b32 v85, 4, v{vL}
s_lshl_b32 s30, s{sI}, 10
s_add_u32 s30, s30, {WS_STATS}
s_cmp_lg_u32 s{sHH}, 0
s_cselect_b32 s30, 0x40000000, s30
s_mov_b32 s36, {WS_BEST}
s_cmp_lg_u32 s{sHH}, 1
s_cselect_b32 s36, 0x40000000, s36""")
attn_setup_s()
def sib_issue(): A(f"buffer_load_dwordx4 {R(SA,4)}, v85, {SR(SWS)}, s30 offen sc1")
lp = split(capture(lambda: (frag_addrs(), attn_setup_v(), v_prefill(6), mk_setup())), 6)
lpieces = {0: lp[0], 1: lp[1], 2: lp[2], 3: lp[3], 4: lp[4], 5: lp[5]}
def younger_than(tag): return len(ops) - 1 - max(k for k, x in enumerate(ops) if x == tag)
issued = DEPTH
for u in range(8):
    TSL(32 + u)
    A(f"s_waitcnt vmcnt({younger_than(u)})")
    TSL(16 + u)
    A("s_barrier")
    TSL(24 + u)
    if u == SIBU:
        sib_issue(); ops.append("sib")
    tgt = min(12, u + 1 + DEPTH + max(0, u - 1 - DEPTH), u + 5)
    while issued < tgt:
        issue_unit(issued); ops += [issued] * ucount(issued)
        if issued == LGW: lgw_issue(); ops += ['gw'] * 4
        issued += 1
    emit(lpieces.get(u, []))
    if u == 6:
        lb = A.newlabel("L_nsib")
        A(f"""s_waitcnt lgkmcnt(0)
s_add_u32 s{sNONCE}, s{sNONCE}, 1
s_cmp_lg_u32 s{sHH}, 0
s_cbranch_scc1 {lb}""")
        validated(sib_issue, lambda: A(f"v_cmp_ne_u32 vcc, s{sNONCE}, v{SA+3}"), younger_than("sib"))
        A(f"""v_lshrrev_b32 v122, 1, v85
v_lshrrev_b32 v123, 2, v85
v_add_u32 v122, {L_STAT}, v122
v_add_u32 v123, {L_RINV}, v123
ds_write_b64 v122, {R(SA,2)}
ds_write_b32 v123, v{SA+1}
s_waitcnt lgkmcnt(0)""")
        A.label(lb)
assert issued == 12, issued
TS(2)
LST, LSC, LCX, LCW = 116, 118, 120, 124
for r in range(16): A(f"v_mov_b32 v{ACC+r}, 0")
A(f"""v_and_b32 v2, 31, v{vL}
v_lshlrev_b32 v2, 3, v2
s_lshr_b32 s20, s28, 4
s_add_u32 s20, s20, {L_STAT}
v_add_u32 v2, s20, v2
ds_read_b64 {R(LST,2)}, v2
s_waitcnt lgkmcnt(0)""")
corr_x(LCX, LST)
A(f"""v_mul_f32 v{LSC}, {f32(0.25*LOG2E)}, v{LST+1}
v_mov_b32 v{LCW+2}, 0
v_mov_b32 v{LCW+3}, 0
s_lshl_b32 s30, s{sHH}, 11
s_add_u32 s30, s30, {L_QF}
v_lshlrev_b32 v5, 4, v{vL}
v_add_u32 v5, s30, v5""")
Q2 = 192
A(f"""s_lshl_b32 s20, s28, 1
s_lshr_b32 s21, s28, 2
s_xor_b32 s22, s20, 8192
s_xor_b32 s23, s21, 1024""")
for st in range(4): A(f"v_add_u32 v{Q2+st}, s22, v{vXA+st}\nv_add_u32 v{vXA+st}, s20, v{vXA+st}")
A(f"""v_add_u32 v{Q2+4}, s23, v{vWA0}
v_add_u32 v{Q2+5}, s23, v{vWA1}
v_add_u32 v{vWA0}, s21, v{vWA0}
v_add_u32 v{vWA1}, s21, v{vWA1}
s_lshl_b32 s22, s{sHH}, 8
s_add_u32 s22, s22, {L_CSX}
v_lshl_add_u32 v86, v{vL}, 2, s22
v_xor_b32 v87, 512, v86
s_mov_b32 s20, 0xffff0000
s_mov_b32 s21, 0xffff0000""")
def q_reads(n):
    oth = n // 16; m = (n // 4) % 4; st = n % 4; b = STB + 8 * (n % 8)
    out = [f"ds_read_b128 {R(b,4)}, v{(Q2 if oth else vXA)+st} offset:{m*16384}"]
    for j in range(2):
        r, o = wa(slot_of(8 + m), st * 4096 + j * 512)
        if oth: r = Q2 + 4 + (r - vWA0)
        out.append(f"ds_read_b64_tr_b16 {R(b+4+2*j,2)}, v{r} offset:{o}")
    return out
A("s_waitcnt vmcnt(0)\ns_barrier")
TS(3)
QB9 = int(opts.get("qb9", 21))
lq = []
def lds(tag, txt): A(txt); lq.append(tag)
def lwait(tag): A(f"s_waitcnt lgkmcnt({min(15, len(lq) - 1 - max(k for k, x in enumerate(lq) if x == tag))})")
for n in range(4):
    for x in q_reads(n): lds(n, x)
cwl = capture(lambda: corr_w(LCW))[3:]
for n in range(32):
    lwait(n)
    b = STB + 8 * (n % 8)
    if n < 16: A(csum_mfma(b + 4))
    A(mfma32(ACC, b + 4, b))
    if n + 4 < 32:
        for x in q_reads(n + 4): lds(n + 4, x)
    if n == 17:
        A(f"v_cndmask_b32_e64 v2, v{CS}, v{CS+1}, s[20:21]")
        lds("cs", "ds_write_b32 v86, v2")
    if n == QB9:
        lwait("cs")
        A("s_barrier")
        lds("cp", "ds_read_b32 v4, v87")
    if n == QB9 + 4:
        lwait("cp"); A("v_add_f32 v2, v2, v4"); emit(cwl[:4])
    if n == QB9 + 5: emit(cwl[4:])
TS(4)
A(mfma32(ACC, LCW, LCX))
for r in range(16): A(f"v_mul_f32 v{ACC+r}, v{ACC+r}, v{LSC}")
for k in range(8): A(f"v_cvt_pk_bf16_f32 v{STB+k}, v{ACC+2*k}, v{ACC+2*k+1}")
A(f"ds_write_b128 v5, {R(STB,4)}\nds_write_b128 v5, {R(STB+4,4)} offset:1024")
TS(50)
A("s_branch L_join")

A.label("L_cwave")
srd(SDBG, 256); srd(SWG, 512 * 2752); srd(SWU, 512 * 2752)
A(f"v_mov_b32 v{vZ}, 0\nv_add_u32 v62, s20, v3")
A(f"""s_and_b32 s{sCT}, s{sW}, 1
s_mov_b32 s28, 0
s_lshr_b32 s29, s{sW}, 1
s_lshl_b32 s29, s29, 10
s_add_u32 s29, s29, {L_RING}
s_mov_b32 s{sHH}, s{sW}
s_mov_b32 s{sROLE}, 1
v_lshlrev_b32 v{vBA}, 4, v{vL}
s_lshl_b32 s35, s{sW}, 10
s_add_u32 s35, s35, {WS_BEST}
s_lshl_b32 s33, s{sP}, 14
s_add_u32 s33, s33, {WS_KV}
s_add_u32 s36, s33, 4096
s_lshl_b32 s34, s{sP}, 12
s_add_u32 s34, s34, {WS_KVC}""")
frag_addrs()
for r in range(32): A(f"v_mov_b32 v{ACC+r}, 0")
attn_setup_s(); attn_setup_v()
A(f"""v_lshrrev_b32 v2, 3, v{vL}
v_mul_u32_u24 v3, 2752, v2
v_and_b32 v4, 7, v{vL}
v_lshl_add_u32 v5, v4, 4, v3
s_and_b32 s31, s{sP}, 7
s_lshl_b32 s31, s31, 6
s_lshl_b32 s32, s{sW}, 4
s_add_u32 s31, s31, s32
s_mul_i32 s31, s31, 2752
s_lshr_b32 s32, s{sGU}, 3
s_lshl_b32 s32, s32, 7
s_add_u32 s31, s31, s32
s_cmp_ge_u32 s{sGU}, {0 if (opts.get("nogw") or LGW >= 0) else 176}
s_cselect_b32 s31, 0x40000000, s31
s_add_u32 s32, s31, {8*2752}""")
def gw_issue():
    A(f"""buffer_load_dwordx4 {R(GW,4)}, v5, {SR(SWG)}, s31 offen
buffer_load_dwordx4 {R(GW+4,4)}, v5, {SR(SWU)}, s31 offen
buffer_load_dwordx4 {R(GW+8,4)}, v5, {SR(SWG)}, s32 offen
buffer_load_dwordx4 {R(GW+12,4)}, v5, {SR(SWU)}, s32 offen""")
if int(opts.get("d2", 1)):
    A(f"""v_mov_b32 v40, 0
v_mov_b32 v41, 0
v_mov_b32 v42, 0
v_mov_b32 v43, 0
v_mov_b32 v48, 0x3f803f80
v_sub_u32 v47, 2047, v62
v_and_b32 v46, 7, v62
v_lshlrev_b32 v46, 4, v46
v_add_u32 v46, {L_RT}, v46
s_mov_b32 s26, 0xffff0000""")
    PREW = int(opts.get("prew", 0))
    def prewrite():
        A(f"""s_lshl_b32 s20, s{sW}, 12
s_add_u32 s21, s33, s20
s_lshl_b32 s22, s{sW}, 10
s_add_u32 s22, s34, s22
s_lshl_b32 s23, s{sI}, 4
s_add_u32 s23, s23, s{sC}
s_and_b32 s24, s{sW}, 1
s_lshl_b32 s24, s24, 3
s_add_u32 s23, s23, s24
s_lshl_b32 s24, s23, 12
s_lshr_b32 s25, s{sW}, 1
s_lshl_b32 s25, s25, 11
s_add_u32 s24, s24, s25
s_add_u32 s24, s24, {WS_O}
s_lshl_b32 s23, s23, 10
s_add_u32 s23, s23, {WS_OC}""")
        if PREW & 1:
            for k in range(4): A(f"buffer_store_dwordx4 {R(ACC,4)}, v{vBA}, {SR(SWS)}, s21 offen offset:{k*1024} sc1")
            A(f"buffer_store_dwordx4 {R(ACC,4)}, v{vBA}, {SR(SWS)}, s22 offen sc1")
        if PREW & 2:
            for k in range(2): A(f"buffer_store_dwordx4 {R(ACC,4)}, v{vBA}, {SR(SWS)}, s24 offen offset:{k*1024} sc1")
            A(f"buffer_store_dwordx4 {R(ACC,4)}, v{vBA}, {SR(SWS)}, s23 offen sc1")
    NPW = (5 if PREW & 1 else 0) + (3 if PREW & 2 else 0)
    if PREW: prewrite()
    A(f"s_waitcnt vmcnt({2 + NPW})")
    TS(1)
    if int(opts.get("np1", 0)): A(f"s_lshl_b32 s24, s{sW}, 8\nbuffer_load_dword v60, v{vZ}, {SR(SDBG)}, s24 offen sc1")
    for k in range(8): A(f"v_dot2_f32_bf16 v40, v{8+k}, v48, v40\nv_dot2_f32_bf16 v41, v{8+k}, v{8+k}, v41")
    A("s_waitcnt vmcnt(%d)" % NPW)
    for k in range(8): A(f"v_dot2_f32_bf16 v42, v{8+k}, v{16+k}, v42\nv_dot2_f32_bf16 v43, v{16+k}, v48, v43")
    for m in DPP8 + ("row_mirror",):
        for r in range(4): A(dpp("v_add_f32", 40 + r, m))
    for r in range(4): A(f"v_mov_b32 v{24+r}, v{40+r}")
    for r in range(4): A(f"v_permlane16_swap_b32 v{40+r}, v{24+r}")
    for r in range(4): A(f"v_add_f32 v{40+r}, v{40+r}, v{24+r}")
    A(f"""v_mul_f32 v40, {f32(1.0/512)}, v40
v_mul_f32 v41, {f32(1.0/512)}, v41
v_fma_f32 v41, -v40, v40, v41
v_max_f32 v41, 0, v41""")
    bf16round(40, 40)
    A("v_fma_f32 v42, -v40, v43, v42")
    var_to_rinv(41)
    A("v_mul_f32 v42, v42, v41")
    bf16round(42, 42)
    A(f"""v_ashrrev_i32 v45, 31, v42
v_or_b32 v45, 0x80000000, v45
v_xor_b32 v42, v42, v45
v_and_or_b32 v42, v42, s26, v47
ds_write_b96 v46, v[40:42]""")
else:
    A("s_waitcnt vmcnt(2)")
    TS(1)
    XU = 24
    for k in range(8):
        A(f"v_lshlrev_b32 v{XU+2*k}, 16, v{8+k}\nv_and_b32 v{XU+2*k+1}, 0xffff0000, v{8+k}")
    A(f"v_pk_add_f32 v[40:41], {R(XU,2)}, {R(XU+2,2)}")
    for k in range(4, 16, 2): A(f"v_pk_add_f32 v[40:41], v[40:41], {R(XU+k,2)}")
    A("v_add_f32 v40, v40, v41")
    allreduce32(40, 41, "v_add_f32")
    A(f"v_mul_f32 v40, {f32(-1.0/512)}, v40")
    A("v_cvt_pk_bf16_f32 v42, -v40, -v40\nv_and_b32 v42, 0xffff0000, v42")
    A(f"v_pk_add_f32 v[46:47], {R(XU,2)}, v[40:41] op_sel_hi:[1,0]\nv_pk_mul_f32 v[44:45], v[46:47], v[46:47]")
    for k in range(2, 16, 2):
        A(f"v_pk_add_f32 v[46:47], {R(XU+k,2)}, v[40:41] op_sel_hi:[1,0]\nv_pk_fma_f32 v[44:45], v[46:47], v[46:47], v[44:45]")
    A("v_add_f32 v43, v44, v45")
    allreduce32(43, 41, "v_add_f32")
    for k in range(0, 16, 2): A(f"v_pk_add_f32 {R(XU+k,2)}, {R(XU+k,2)}, v[42:43] op_sel_hi:[1,0] neg_lo:[0,1] neg_hi:[0,1]")
    A(f"v_mul_f32 v43, {f32(1.0/512)}, v43")
    for k in range(8): A(f"v_cvt_pk_bf16_f32 v{8+k}, v{XU+2*k}, v{XU+2*k+1}")
    var_to_rinv(43)
    for k in range(8):
        A(f"v_lshlrev_b32 v{XU+2*k}, 16, v{8+k}\nv_and_b32 v{XU+2*k+1}, 0xffff0000, v{8+k}")
    for k in range(0, 16, 2): A(f"v_pk_mul_f32 {R(XU+k,2)}, {R(XU+k,2)}, v[42:43] op_sel:[0,1]")
    for k in range(8): A(f"v_cvt_pk_bf16_f32 v{8+k}, v{XU+2*k}, v{XU+2*k+1}")
    A("v_mov_b32 v44, 0\ns_waitcnt vmcnt(0)")
    for k in range(8): A(f"v_dot2_f32_bf16 v44, v{8+k}, v{16+k}, v44")
    allreduce32(44, 41, "v_add_f32")
    bf16round(44, 44)
    A(f"""v_ashrrev_i32 v45, 31, v44
v_or_b32 v45, 0x80000000, v45
v_xor_b32 v44, v44, v45
v_and_b32 v44, 0xffff0000, v44
v_sub_u32 v45, 2047, v62
v_or_b32 v44, v44, v45
v_and_b32 v46, 7, v62
v_lshlrev_b32 v46, 4, v46
v_add_u32 v46, {L_RT}, v46
ds_write_b96 v46, v[42:44]
""")
A(f"""s_waitcnt lgkmcnt(0)
s_add_u32 s{sNONCE}, s{sNONCE}, 1""")
if PWS:
    A(f"""v_mov_b32 v43, s{sNONCE}
v_lshlrev_b32 v44, 4, v62
s_mov_b32 s24, 1
s_mov_b32 s25, 1
s_mov_b32 s27, {WS_STATS}
s_mov_b64 exec, s[24:25]
buffer_store_dwordx4 v[40:43], v44, {SR(SWS)}, s27 offen sc1
s_mov_b64 exec, -1""")
A(f"""s_setprio {int(opts.get("prio", 2))}""")
if GWP == 2: gw_issue()
A('v_mov_b32 v54, v5')
TS(2)
A("s_waitcnt lgkmcnt(0)")
A(f"s_cmp_ge_u32 s{sW}, 2\ns_cbranch_scc1 L_vwave")

def kv_reads(n):
    u = n // 4; st = n % 4; b = STB + 12 * (n % 6)
    out = [f"ds_read_b128 {R(b+4*qb,4)}, v{vXA+st} offset:{u*8192 + qb*4096}" for qb in range(2)]
    for j in range(2):
        r, o = wa(slot_of(u), st * 4096 + j * 512)
        out.append(f"ds_read_b64_tr_b16 {R(b+8+2*j,2)}, v{r} offset:{o}")
    return out
def kv_mm(n, isK, cs=True):
    b = STB + 12 * (n % 6)
    out = [csum_mfma(b + 8)] if cs else []
    for qb in range(2):
        out.append(mfma32(ACC + 16 * qb, b + 8, b + 4 * qb) if isK else mfma32(ACC + 16 * qb, b + 4 * qb, b + 8))
    return out
def kv_interval(u, isK, fill=(), post_reads=()):
    rd = [x for n in range(4 * u, 4 * u + 4) for x in kv_reads(n)]
    old = [x for n in (4 * u - 2, 4 * u - 1) if n >= 0 for x in kv_mm(n, isK)]
    fill = list(fill)
    per = (len(fill) + 5) // 6
    emit(rd[:4])
    rest = rd[4:]
    for m in old:
        A(m); emit(rest[:2]); rest = rest[2:]
    emit(rest)
    for k, n in enumerate((4 * u, 4 * u + 1)):
        A(f"s_waitcnt lgkmcnt({12 - 4*k})")
        for m in kv_mm(n, isK):
            A(m); emit(fill[:per]); fill = fill[per:]
    emit(post_reads)
    A("s_waitcnt lgkmcnt(0)")
BT = 68
def best_issue(): A(f"buffer_load_dwordx4 {R(BT,4)}, v{vBA}, {SR(SWS)}, s35 offen sc1")
def nonce_issue(): A(f"buffer_load_dword v60, v{vZ}, {SR(SDBG)}, 0 offen sc1")
CX0, CX1, CW = 40, 44, 56
def publish():
    lb = A.newlabel("L_np")
    A(f"s_cmp_lg_u32 s{sW}, 0\ns_cbranch_scc1 {lb}")
    A(f"""v_mov_b32 v51, s{sNONCE}
s_lshl_b32 s20, s{sP}, 4
s_add_u32 s20, s20, {WS_BEST}
s_lshl_b32 s21, s{sP}, 7
s_add_u32 s21, s21, {WS_STATS}
s_mov_b64 exec, 0xff""")
    if not PWS: A(f"buffer_store_dwordx4 v[48:51], v{vBA}, {SR(SWS)}, s21 offen sc1")
    A("v_mov_b32 v52, v50")
    for m in DPP8: A(dpp("v_max_u32", 52, m))
    A(f"""v_cmp_eq_u32 vcc, v52, v50
s_mov_b64 exec, vcc
buffer_store_dwordx4 v[48:51], v{vZ}, {SR(SWS)}, s20 offen sc1
s_mov_b64 exec, -1""")
    A.label(lb)
def cw_loop(isK):
    for u in range(8):
        TSL(16 + u)
        A("s_barrier")
        TSL(24 + u)
        fill = []; post = []
        if u == PUBU and isK:
            fill = [f"v_and_b32 v53, 0x70, v{vBA}", f"v_add_u32 v53, {L_RT}, v53"]; post = ["ds_read_b96 v[48:50], v53"]
        if u == 3:
            fill = capture(lambda: A(f"""v_mov_b32 v{CW+2}, 0
v_mov_b32 v{CW+3}, 0
v_lshrrev_b32 v64, 1, v{vSA}
v_add_u32 v64, {L_STAT}, v64
v_mov_b32 v66, {L_NONCE}"""))
            if isK:
                fill += capture(lambda: A(f"""s_lshl_b32 s20, s{sCT}, 11
v_add_u32 v{vKA}, s20, v{vBA}
v_lshrrev_b32 v{vKC}, 1, v{vKA}"""))
            else:
                fill += capture(lambda: A(f"""v_and_b32 v2, 0x2f, v{vL}
v_bfe_u32 v3, v{vL}, 4, 1
s_lshl_b32 s20, s{sCT}, 1
v_add_u32 v3, s20, v3
v_lshlrev_b32 v{vKA}, 4, v2
v_lshl_add_u32 v{vKA}, v3, 10, v{vKA}
v_lshrrev_b32 v{vKC}, 1, v{vKA}
v_add_u32 v{vKA}, 8192, v{vKA}
v_lshrrev_b32 v65, 5, v{vL}
v_lshlrev_b32 v65, 4, v65
v_add_u32 v65, {L_RINV}, v65"""))
        if u == 7:
            fill = capture(best_issue)
            post = [f"ds_read_b64 {R(ST0,2)}, v64", f"ds_read_b64 {R(ST1,2)}, v64 offset:256"]
            if not isK:
                post += [f"ds_read_b128 {R(8+16*qb+4*a,4)}, v65 offset:{qb*128 + a*32}" for qb in range(2) for a in range(4)]
        kv_interval(u, isK, fill, post)
        TSL(32 + u)
        if u == PUBU and isK: publish()
        if GWP == 10 + u:
            A('v_mov_b32 v5, v54'); gw_issue()
    A("s_barrier")
    TS(3)
    A(csum_mfma(STB + 12 * (30 % 6) + 8)); A(csum_mfma(STB + 12 * (31 % 6) + 8))
    mm = kv_mm(30, isK, False) + kv_mm(31, isK, False)
    A(mm[0]); corr_x(CX0, ST0)
    A(mm[1]); corr_x(CX1, ST1)
    cw = capture(lambda: corr_w(CW))
    A(mm[2]); emit(cw[:6]); A(mm[3]); emit(cw[6:])
    for qb, cx in enumerate((CX0, CX1)):
        A(mfma32(ACC + 16 * qb, CW, cx) if isK else mfma32(ACC + 16 * qb, cx, CW))
CSR = 144
def kv_store(isK):
    for qb in range(2):
        st = ST0 if qb == 0 else ST1
        for e in range(2):
            for r in range(8 * e, 8 * e + 8):
                A(f"v_mul_f32 v{ACC+16*qb+r}, v{ACC+16*qb+r}, v{st+1 if isK else 8+16*qb+r}")
            for k in range(4 * e, 4 * e + 4): A(f"v_cvt_pk_bf16_f32 v{OWN+8*qb+k}, v{ACC+16*qb+2*k}, v{ACC+16*qb+2*k+1}")
            b = OWN + 8 * qb + 4 * e; c_ = CSR + 2 * e + qb
            A(f"buffer_store_dwordx4 {R(b,4)}, v{vKA}, {SR(SWS)}, s{33 if qb == 0 else 36} offen offset:{e*(1024 if isK else 256)} sc1")
            A(f"v_add3_u32 v{c_}, v{b}, v{b+1}, v{b+2}\nv_add3_u32 v{c_}, v{c_}, v{b+3}, s{sNONCE}")
    for e in range(2):
        A(f"buffer_store_dwordx2 {R(CSR+2*e,2)}, v{vKC}, {SR(SWS)}, s34 offen offset:{e*512 if isK else 2048+e*128} sc1")

cw_loop(True); kv_store(True)
A("s_mov_b32 s39, 1024\ns_branch L_cpost")
A.label("L_vwave")
cw_loop(False); kv_store(False)
A("s_mov_b32 s39, 256")
A.label("L_cpost")
TS(4)
A("s_setprio 0")
WOW = int(opts.get("wow", 0))
if WOW:
    A(f"""s_and_b32 s20, s{sI}, 7
s_lshl_b32 s20, s20, 2
s_add_u32 s20, s20, s{sW}
s_lshl_b32 s20, s20, 14
s_and_b32 s21, s{sC}, 3
s_lshl_b32 s21, s21, 8
s_add_u32 s20, s20, s21""")
    for k in range(4): A(f"buffer_load_dwordx4 {R(176+4*k,4)}, v{vWO+k}, {SR(SWO)}, s20 offen offset:{k*1024}")
validated(best_issue, lambda: A(f"v_cmp_ne_u32 vcc, s{sNONCE}, v{BT+3}"), 6 + 4 * WOW)
A(f"v_mov_b32 v{BT+4}, v{BT+2}")
allreduce32(BT + 4, BT + 5, "v_max_u32")
A(f"""v_mov_b32 v{BT+5}, v{BT+4}
v_permlane32_swap_b32 v{BT+4}, v{BT+5}
v_max_u32 v{BT+4}, v{BT+4}, v{BT+5}
s_lshl_b32 s20, s{sW}, 4
s_add_u32 s20, s20, {L_IDX}
v_mov_b32 v2, s20
v_cmp_eq_u32 vcc, v{BT+4}, v{BT+2}
s_mov_b64 exec, vcc
ds_write_b128 v2, {R(BT,4)}
s_mov_b64 exec, -1
""")
def winner():
    A(f"v_mov_b32 v5, v{SB+2}")
    for m in DPP8[:2]: A(dpp("v_max_u32", 5, m))
    A(f"""v_cmp_eq_u32 vcc, v5, v{SB+2}
v_readfirstlane_b32 s{sKEY}, v5
s_ff1_i32_b32 s20, vcc_lo
v_readlane_b32 s{sSM}, v{SB}, s20
v_readlane_b32 s{sSR}, v{SB+1}, s20""")
A(f"""v_and_b32 v4, 3, v{vL}
v_lshlrev_b32 v4, 4, v4
v_add_u32 v4, {L_IDX}, v4
v_add_u32 v2, {L_OWN}, v{vKA}
v_add_u32 v3, s39, v2
v_and_b32 v72, 7, v{vL}
v_lshlrev_b32 v72, 2, v72
v_mov_b32 v74, v{vSA}
s_waitcnt lgkmcnt(0)
s_barrier""")
TS(48)
A(f"""ds_read_b128 {R(SB,4)}, v4
ds_write_b128 v2, {R(OWN,4)}
ds_write_b128 v3, {R(OWN+4,4)}
ds_write_b128 v2, {R(OWN+8,4)} offset:4096
ds_write_b128 v3, {R(OWN+12,4)} offset:4096
s_waitcnt lgkmcnt(4)""")
winner()
A(f"""s_and_b32 s24, s{sKEY}, 0x7ff
s_sub_u32 s24, 2047, s24
s_lshl_b32 s24, s24, 10
s_and_b32 s25, s{sP}, 7
s_lshl_b32 s25, s25, 7
s_add_u32 s24, s24, s25
s_lshl_b32 s25, s{sW}, 5
s_add_u32 s24, s24, s25
buffer_load_dword v73, v72, {SR(SX)}, s24 offen""")
A(f"""s_cmp_ge_u32 s{sC}, 4
s_cselect_b64 s[20:21], -1, 0
v_cndmask_b32_e64 v{vPM}, v{ST0}, v{ST1}, s[20:21]
v_cndmask_b32_e64 v{vPR}, v{ST0+1}, v{ST1+1}, s[20:21]
""")
A(f"""v_bfe_u32 v4, v{vL}, 4, 1
v_lshlrev_b32 v4, 6, v4
v_xor_b32 v2, v{vEX}, v4""")
if LGW < 0:
    for k in range(4): A(f"ds_write_b128 v2, {R(GW+4*k,4)} offset:{k*1024}")
v_prefill(4)
A("s_waitcnt vmcnt(1)")
TS(49)
k_issue()
TS(50)
v_issue()
TS(51)
A(f"""s_waitcnt vmcnt(12)
v_lshlrev_b32 v2, 16, v73
v_and_b32 v3, 0xffff0000, v73
v_subrev_f32 v2, s{sSM}, v2
v_subrev_f32 v3, s{sSM}, v3
v_cvt_pk_bf16_f32 v4, v2, v3
v_lshlrev_b32 v2, 16, v4
v_and_b32 v3, 0xffff0000, v4
v_mul_f32 v2, s{sSR}, v2
v_mul_f32 v3, s{sSR}, v3
v_cvt_pk_bf16_f32 v4, v2, v3
s_add_u32 s25, s25, {L_XSEL}
v_add_u32 v72, s25, v72
ds_write_b32 v72, v4
v_mov_b32 v75, v{vWA1}""")

A.label("L_join")
TS(5); RC(41)
A("s_waitcnt lgkmcnt(0)\ns_barrier")
A(f"""s_lshl_b32 s20, s{sROLE}, 12
s_add_u32 s21, s20, {L_QF}
s_xor_b32 s20, s20, 4096
s_add_u32 s20, s20, {L_QF}
v_add_u32 v2, s21, v{vRK}
v_add_u32 v3, s20, v{vRK}
ds_read_b128 {R(QF,4)}, v2
ds_read_b128 {R(QF+4,4)}, v3""")
lb = A.newlabel("L_noown"); lb2 = A.newlabel("L_noown2")
A(f"s_cmp_lg_u32 s{sROLE}, 0\ns_cbranch_scc1 {lb}")
A(f"""v_add_u32 v2, {L_OWN}, v{vRK}
v_and_b32 v4, 3, v{vL}
v_lshlrev_b32 v4, 4, v4
v_add_u32 v4, {L_IDX}, v4
ds_read_b128 {R(SB,4)}, v4
ds_read_b128 {R(Kf(4),4)}, v2
ds_read_b128 {R(Kf(5),4)}, v2 offset:4096
ds_read_b128 {R(Vf(4,0),4)}, v2 offset:8192
ds_read_b128 {R(Vf(5,0),4)}, v2 offset:12288
s_branch {lb2}""")
A.label(lb)
GX = 144; GF = 160
A(f"""s_cmp_ge_u32 s{sGU}, 176
s_cbranch_scc1 {lb2}
s_cmp_ge_u32 s{sW}, 2
s_cbranch_scc1 {lb2}
v_lshrrev_b32 v2, 5, v{vL}
v_lshlrev_b32 v2, 4, v2
v_add_u32 v2, {L_XSEL}, v2""")
for st in range(4): A(f"ds_read_b128 {R(GX+4*st,4)}, v2 offset:{st*32}")
for st in range(4):
    for m in range(2):
        for j in range(2):
            A(f"ds_read_b64_tr_b16 {R(GF+8*st+4*m+2*j,2)}, v75 offset:{16384 + m*1024 + st*4096 + j*512}")
A.label(lb2)
A("s_waitcnt lgkmcnt(0)\ns_barrier")
TS(6)
def g_stage():
    lb = A.newlabel("L_nog"); lb2 = A.newlabel("L_nog2")
    A(f"s_cmp_ge_u32 s{sGU}, 176\ns_cbranch_scc1 {lb}\ns_cmp_ge_u32 s{sW}, 2\ns_cbranch_scc1 {lb}")
    for st in range(4):
        for m in range(2): A(mfma32(ACC + 16 * m, GX + 4 * st, GF + 8 * st + 4 * m, None if st else 0))
    A(f"""s_and_b32 s20, s{sP}, 7
s_mul_i32 s20, s20, {1408*16}
s_lshr_b32 s21, s{sGU}, 3
s_lshl_b32 s21, s21, 10
s_add_u32 s20, s20, s21
s_lshl_b32 s21, s{sW}, 9
s_add_u32 s20, s20, s21
s_add_u32 s20, s20, {WS_GP}
v_mov_b32 v{GW+2}, s{sNONCE}
v_mov_b32 v{GW+3}, s{sNONCE}
s_mov_b32 s22, -1
s_mov_b32 s23, 0
v_mov_b32 v{GW}, v{ACC}
v_mov_b32 v{GW+1}, v{ACC+16}
s_mov_b64 exec, s[22:23]
buffer_store_dwordx4 {R(GW,4)}, v74, {SR(SWS)}, s20 offen sc1
s_mov_b64 exec, -1
s_branch {lb2}""")
    A.label(lb)
    A(f"s_mov_b32 s20, 0x40000000\nbuffer_load_dword v254, v74, {SR(SWS)}, s20 offen")
    A.label(lb2)

GPR = 8
def gp_issue():
    A(f"s_lshl_b32 s36, s{sDI}, 9\ns_add_u32 s36, s36, {WS_GP}")
    for q in range(4): A(f"buffer_load_dwordx4 {R(GPR+4*q,4)}, v255, {SR(SWS)}, s36 offen sc1\ns_add_u32 s36, s36, {2*1408*16}")
def gp_check():
    for q in range(4): A(f"v_xor_b32 v{2+q}, s{sNONCE}, v{GPR+4*q+2}")
    A("v_or3_b32 v2, v2, v3, v4\nv_or_b32 v2, v2, v5\nv_cmp_ne_u32 vcc, 0, v2")
def wd_loads():
    A(f"""s_lshl_b32 s37, s{sDI}, 15
s_lshl_b32 s20, s{sHH}, 8
s_add_u32 s37, s37, s20
v_lshrrev_b32 v2, 4, v{vL}
v_and_b32 v3, 15, v{vL}
v_lshlrev_b32 v3, 4, v3
v_lshl_add_u32 v2, v2, 10, v3""")
    for n in range(8): A(f"buffer_load_dwordx4 {R(DG[n],4)}, v2, {SR(SWD)}, s37 offen\ns_add_u32 s37, s37, 4096")
def wd_issue():
    lb = A.newlabel("L_nwd")
    A(f"s_cmp_ge_u32 s{sDI}, 43\ns_cbranch_scc1 {lb}")
    wd_loads()
    A.label(lb)
def d_block():
    A(f"s_cmp_ge_u32 s{sDI}, 43\ns_cbranch_scc1 L_dend")
    A.label("L_dtop")
    gp_issue()
    A(f"""v_lshrrev_b32 v3, 4, v{vL}
v_lshlrev_b32 v3, 6, v3
v_xor_b32 v2, v{vEX}, v3
v_xor_b32 v24, {0x4000 if DPOS == 0 else 0}, v2
v_lshrrev_b32 v3, 5, v{vL}
v_bfe_u32 v4, v{vL}, 2, 2
v_lshlrev_b32 v5, 8, v4
v_lshl_add_u32 v5, v3, 11, v5
v_lshl_add_u32 v5, v4, 6, v5
v_bfe_u32 v3, v{vL}, 4, 1
v_lshl_add_u32 v5, v3, 5, v5
v_and_b32 v3, 3, v{vL}
v_lshl_add_u32 v5, v3, 3, v5
s_xor_b32 s38, s{sW}, {4 if DPOS == 0 else 0}
s_lshl_b32 s38, s38, 12
s_add_u32 s38, s38, {L_TAIL}
v_add_u32 v25, s38, v5
v_xor_b32 v26, 64, v25
v_xor_b32 v27, 128, v25
v_xor_b32 v28, 192, v25
s_waitcnt vmcnt(4)""")
    for rd in range(2):
        for k in range(4): A(f"ds_write_b128 v24, {R(DG[4*rd+k],4)} offset:{k*1024}")
        for t in range(4):
            for j in range(2): A(f"ds_read_b64_tr_b16 {R(DG[4*rd+t]+2*j,2)}, v{25+t} offset:{j*1024}")
    validated(gp_issue, gp_check, 0)
    A(f"""v_add_f32 v2, v{GPR}, v{GPR+4}
v_add_f32 v3, v{GPR+1}, v{GPR+5}
v_add_f32 v4, v{GPR+8}, v{GPR+12}
v_add_f32 v5, v{GPR+9}, v{GPR+13}
v_add_f32 v2, v2, v4
v_add_f32 v3, v3, v5
v_mov_b32 v4, v2
v_mov_b32 v5, v3
v_permlane32_swap_b32 v2, v4
v_permlane32_swap_b32 v3, v5
v_add_f32 v2, v2, v4
v_add_f32 v3, v3, v5""")
    bf16round(2, 2); bf16round(3, 3)
    A(f"""v_mul_f32 v4, {f32(-LOG2E)}, v2
v_exp_f32 v4, v4
v_add_f32 v4, 1.0, v4
v_rcp_f32 v4, v4
v_mul_f32 v2, v2, v4""")
    bf16round(2, 2)
    A(f"""v_mul_f32 v2, v2, v3
v_cvt_pk_bf16_f32 v2, v2, v2
v_and_b32 v3, 31, v{vL}
v_lshl_add_u32 v3, v3, 1, s38
ds_write_b16 v3, v2
v_lshrrev_b32 v3, 5, v{vL}
v_lshl_add_u32 v3, v3, 4, s38
ds_read_b128 {R(32,4)}, v3
ds_read_b128 {R(36,4)}, v3 offset:32
s_lshl_b32 s20, s{sDI}, 12
s_lshl_b32 s21, s{sHH}, 10
s_add_u32 s20, s20, s21
s_add_u32 s20, s20, {WS_YP}
s_mov_b32 s22, 0
s_mov_b32 s23, -1
v_lshlrev_b32 v2, 4, v{vL}
v_mov_b32 v42, s{sNONCE}
v_mov_b32 v43, s{sNONCE}
s_waitcnt lgkmcnt(0)""")
    DB = [SB, SB + 16, SB + 32, 48]
    for st in range(2):
        for t in range(4): A(mfma32(DB[t], 32 + 4 * st, DG[4 * st + t], None if st else 0))
    A(f"""v_cndmask_b32_e64 v40, v{DB[0]}, v{DB[2]}, s[22:23]
v_cndmask_b32_e64 v41, v{DB[1]}, v{DB[3]}, s[22:23]
buffer_store_dwordx4 {R(40,4)}, v2, {SR(SWS)}, s20 offen sc1
""")
    A.label("L_dend")
def wo_dma4():
    return [f"""s_and_b32 s26, s{sWB}, 3
s_add_u32 s{sWB}, s{sWB}, 1
s_lshl_b32 s27, s26, 12
s_add_u32 m0, s27, s{sM0}
s_lshl_b32 s27, s26, 14
s_add_u32 s27, s27, s{sWOD}"""] + [f"buffer_load_dwordx4 v{vWO+k}, {SR(SWO)}, s27 offen offset:{k*1024} lds" for k in range(4)]
def kv_check(base, cs):
    for k in range(4):
        b = base(k)
        A(f"v_add3_u32 v{2+k}, v{b}, v{b+1}, v{b+2}\nv_add3_u32 v{2+k}, v{2+k}, v{b+3}, s{sNONCE}\nv_xor_b32 v{2+k}, v{2+k}, v{cs+k}")
    A(f"""v_or_b32 v2, v2, v3
v_or_b32 v4, v4, v5
v_and_b32 v2, s{sH1}, v2
v_and_or_b32 v2, v4, s{sH2}, v2
v_cmp_ne_u32 vcc, 0, v2""")
def k_check(): kv_check(Kf, KC)
def v_check(): kv_check(lambda k: Vf(k, 0), VC)
def vswap(ks):
    for k in ks:
        for r in range(4): A(f"v_permlane16_swap_b32 v{Vf(k,0)+r}, v{Vf(k,1)+r}")
def Q(q): return QF + 4 * q
def smf(dst, k, q, c): return mfma32(dst, Kf(k), Q(q), c)
SEG = lambda k0: [(k0, 0, None), (k0, 1, None), (k0 + 1, 0, None), (k0 + 1, 1, None)]
B3 = [SB, SB + 16, SB + 32]
def nm(q): return R(NM + 16 * q, 16)
def p2_run(jobs, cfun, fresh, extra={}, mem={}):
    n = len(jobs)
    pend = []
    A(smf(B3[0], jobs[0][0], jobs[0][1], cfun(jobs[0][1])))
    for t in range(n):
        k, q, mask = jobs[t]; b = B3[t % 3]
        side = []
        if t + 1 < n: side.append(smf(B3[(t + 1) % 3], jobs[t + 1][0], jobs[t + 1][1], cfun(jobs[t + 1][1])))
        side += pend
        val = [f"v_exp_f32 v{b+r}, v{b+r}" for r in range(16)]
        val += [f"v_cvt_pk_bf16_f32 v{b+j}, v{b+2*j}, v{b+2*j+1}" for j in range(8)]
        if mask == "old": val += [f"v_and_b32 v{b+j}, v{b+j}, v{MK+j}" for j in range(8)]
        if mask == "diag": val += [f"v_bfi_b32 v{b+j}, v{MK+j}, 0, v{b+j}" for j in range(8)]
        mm_ = mem.get(t, [])
        if mm_:
            step = len(val) // len(mm_)
            for q_, x in enumerate(mm_): val[q_ * step + step // 2] += "\n" + x
        vi = 0
        for sx in side:
            A(sx); emit(val[vi:vi + 5]); vi += 5
        emit(val[vi:])
        for fn in extra.get(t, []): fn()
        pend = [mfma32(OA + 16 * q, Vf(k, g), b + 4 * g, 0 if (q in fresh and g == 0) else None) for g in range(2)]
        fresh.discard(q)
    emit(pend)
zero = lambda q: 0
XR = 80
dma = lambda: emit(wo_dma4())
def wo_ops():
    out = []
    for b in range(4):
        l = wo_dma4(); out += [l[0] + "\n" + l[1]] + l[2:]
    return out
def dma_upto(n):
    lt = A.newlabel("L_du"); le = A.newlabel("L_de")
    A.label(lt)
    A(f"s_sub_u32 s20, s{sWE}, {4-n}\ns_cmp_ge_u32 s{sWB}, s20\ns_cbranch_scc1 {le}")
    dma()
    A(f"s_branch {lt}")
    A.label(le)
def after_v(isC, wait):
    def h():
        validated(v_issue, v_check, wait)
        vswap(range(4))
        if isC:
            for pr in range(2):
                A(f"buffer_load_dwordx4 {R(XR+4*pr,4)}, v{vOUT}, {SR(SX)}, s{sOUTO} offen offset:{pr*32}")
            if int(opts.get("opt", 0)) == 1:
                A(f"""s_lshl_b32 s20, s{sI}, 4
s_add_u32 s20, s20, s{sC}
s_and_b32 s21, s{sW}, 1
s_lshl_b32 s21, s21, 3
s_add_u32 s20, s20, s21
s_cmp_ge_u32 s{sW}, 2
s_cselect_b32 s21, 10, 12
s_mov_b32 s22, {WS_O}
s_cselect_b32 s22, {WS_OC}, s22
s_cselect_b32 s24, 0xff, -1
s_mov_b32 s25, 0
s_lshl_b32 s20, s20, s21
s_add_u32 s20, s20, s22
v_lshlrev_b32 v2, 7, v{vL}
s_mov_b64 exec, s[24:25]
buffer_load_dword v254, v2, {SR(SWS)}, s20 offen sc1
s_mov_b64 exec, -1""")
        if int(opts.get("opt", 0)) == 4:
            A(f"""s_lshl_b32 s20, s{sI}, 1
s_add_u32 s20, s20, s{sROLE}
s_lshl_b32 s20, s20, 3
s_add_u32 s20, s20, s{sC}
s_lshl_b32 s21, s20, 10
s_add_u32 s21, s21, {WS_OC}
s_lshl_b32 s20, s20, 12
s_add_u32 s20, s20, {WS_O}
v_lshrrev_b32 v5, 2, v{vRK}
v_add3_u32 v4, v{QF}, v{QF+1}, v{QF+2}
v_add3_u32 v4, v4, v{QF+3}, s{sNONCE}
v_add_u32 v4, 1, v4
buffer_store_dwordx4 {R(QF,4)}, v{vRK}, {SR(SWS)}, s20 offen sc1
buffer_store_dword v4, v5, {SR(SWS)}, s21 offen sc1""")
        TS(9); RC(43)
    return h
def k_valid(first_wait):
    validated(lambda: (k_issue(), v_issue()), k_check, first_wait)
    TS(7); RC(42)
def sched(ops, plan):
    out = {}; k = 0
    for t, n in plan:
        out[t] = ops[k:k + n]; k += n
    assert k == len(ops)
    return out
OWNJ = [(4, 0, "diag"), (5, 1, "diag"), (4, 1, None)]
OLDJ = [(3, 0, None), (2, 0, "old"), (3, 1, "old")]
CPL = eval(opts.get('cpl', '[]')); LPL = eval(opts.get('lpl', '[(1,4),(5,4),(6,4)]'))
NCB = sum(n for t, n in CPL) // 4
A(f"s_cmp_eq_u32 s{sROLE}, 0\ns_cbranch_scc1 L_fA")
g_stage()
TS(8)
k_valid(7)
lb = A.newlabel("L_fb1"); lb2 = A.newlabel("L_fb0")
A(f"s_cmp_eq_u32 s{sH1}, 0\ns_cbranch_scc1 {lb}")
p2_run(SEG(0) + SEG(2), zero, {0, 1}, {0: [after_v(1, 1)]}, sched(wo_ops()[:4*NCB], CPL))
A("s_branch L_fchk")
A.label(lb)
A(f"s_cmp_eq_u32 s{sH2}, 0\ns_cbranch_scc1 {lb2}")
p2_run(SEG(2), zero, {0, 1}, {0: [after_v(1, 1), wd_issue]})
dma_upto(NCB)
A("s_branch L_fchk")
A.label(lb2)
after_v(1, 1)()
wd_issue()
dma_upto(NCB)
for r in range(32): A(f"v_mov_b32 v{OA+r}, 0")
A(f"v_mov_b32 v{vM0}, {f32(-1e30)}\nv_mov_b32 v{vM1}, {f32(-1e30)}")
A("s_branch L_p2done")
A.label("L_fA")
A(f"s_cmp_lg_u32 s{sH1}, 0\ns_cbranch_scc1 L_nwe")
wd_issue()
A.label("L_nwe")
winner()
vswap((4, 5))
A('s_setprio %d' % int(opts.get('lprio', 1)))
p2_run(OWNJ, zero, {0, 1}, {}, sched(capture(k_issue) + capture(v_issue), [(0, 6), (1, 3), (2, 3)]))
TS(8)
k_valid(6)
lb = A.newlabel("L_fa1"); lb2 = A.newlabel("L_fa0")
A(f"s_cmp_eq_u32 s{sH2}, 0\ns_cbranch_scc1 {lb}")
p2_run(SEG(0) + OLDJ, zero, set(), {0: [after_v(0, 0), wd_issue]}, sched(wo_ops()[:sum(n for t, n in LPL)], LPL))
dma_upto(4)
A("s_branch L_fchk")
A.label(lb)
A(f"s_cmp_eq_u32 s{sH1}, 0\ns_cbranch_scc1 {lb2}")
p2_run(SEG(0), zero, set(), {0: [after_v(0, 0), wd_issue]})
dma_upto(4)
A("s_branch L_fchk")
A.label(lb2)
after_v(0, 0)()
dma_upto(4)
A.label("L_fchk")
LO = (127 - 40) << 23; RNG = 80 << 23
if not FAST: LO, RNG = 0, 0
A(f"""v_subrev_u32 v2, {hex(LO)}, v{OA+8}
v_subrev_u32 v3, {hex(LO)}, v{OA+24}
v_max_u32 v2, v2, v3
v_cmp_le_u32 vcc, {hex(RNG) if RNG else 0}, v2
s_cbranch_vccnz L_slow""")
A.label("L_p2done")
if DPOS == 0: d_block()
TS(10)

def slow_path():
    A.label("L_slow")
    A("s_waitcnt vmcnt(0)")
    A(f"v_mov_b32 v{vM0}, {f32(-1e30)}\nv_mov_b32 v{vM1}, {f32(-1e30)}\nv_mov_b32 v5, {f32(-1e30)}")
    def max_run(jobs):
        for (k, q, mask) in jobs:
            m = vM0 if q == 0 else vM1
            A(smf(SB, k, q, 0))
            if mask:
                for r in range(16):
                    j0 = 8 * (r // 4) + r % 4
                    A(f"s_lshl_b32 s20, -1, {j0}\ns_lshl_b32 s21, -1, {j0+4}")
                    if mask == "diag": A(f"v_cndmask_b32_e64 v{SB+r}, v5, v{SB+r}, s[20:21]")
                    else: A(f"v_cndmask_b32_e64 v{SB+r}, v{SB+r}, v5, s[20:21]")
            for r in range(0, 16, 2): A(f"v_max3_f32 v{m}, v{SB+r}, v{SB+r+1}, v{m}")
    def groups(fn):
        l1 = A.newlabel("L_s"); l2 = A.newlabel("L_s"); l3 = A.newlabel("L_s")
        A(f"s_cmp_eq_u32 s{sH1}, 0\ns_cbranch_scc1 {l1}")
        fn(SEG(0))
        A.label(l1)
        A(f"s_cmp_eq_u32 s{sROLE}, 0\ns_cbranch_scc1 {l2}")
        fn(SEG(2))
        A(f"s_branch {l3}")
        A.label(l2)
        fn(OWNJ)
        A(f"s_cmp_eq_u32 s{sH2}, 0\ns_cbranch_scc1 {l3}")
        fn(OLDJ)
        A.label(l3)
    groups(max_run)
    A(f"""v_mov_b32 v2, v{vM0}
v_mov_b32 v3, v{vM1}
v_permlane32_swap_b32 v{vM0}, v2
v_permlane32_swap_b32 v{vM1}, v3
v_max_f32 v{vM0}, v{vM0}, v2
v_max_f32 v{vM1}, v{vM1}, v3""")
    for q, m in enumerate((vM0, vM1)):
        for r in range(16): A(f"v_sub_f32 v{NM+16*q+r}, 0, v{m}")
    for r in range(32): A(f"v_mov_b32 v{OA+r}, 0")
    groups(lambda jobs: p2_run(jobs, nm, set()))
    wd_issue()
    A("s_branch L_p2done")

A(f"""v_xor_b32 v3, 0x4000, v{vEX}
s_lshl_b32 s20, s{sI}, 1
s_add_u32 s20, s20, s{sROLE}
s_lshl_b32 s20, s20, 3
s_add_u32 s20, s20, s{sC}
s_lshl_b32 s21, s20, 10
s_add_u32 s21, s21, {WS_OC}
s_lshl_b32 s20, s20, 12
s_add_u32 s20, s20, {WS_O}
v_lshrrev_b32 v5, 2, v{vRK}
v_mov_b32 v{OA+25}, v{vM1}
ds_write_b64 v3, {R(OA+24,2)} offset:2048
ds_write_b128 v3, {R(OA+16,4)}
ds_write_b128 v3, {R(OA+20,4)} offset:1024
s_waitcnt lgkmcnt(0)
s_barrier
ds_read_b64 {R(SB+8,2)}, v{vEX} offset:2048
ds_read_b128 {R(SB,4)}, v{vEX}
ds_read_b128 {R(SB+4,4)}, v{vEX} offset:1024
s_waitcnt lgkmcnt(2)
v_max_f32 v3, v{vM0}, v{SB+9}
v_sub_f32 v{SB+10}, v{vM0}, v3
v_sub_f32 v{SB+11}, v{SB+9}, v3
v_exp_f32 v{SB+10}, v{SB+10}
v_exp_f32 v{SB+11}, v{SB+11}
v_mul_f32 v4, v{SB+10}, v{OA+8}
v_fmac_f32 v4, v{SB+11}, v{SB+8}
v_rcp_f32 v4, v4
v_mul_f32 v{SB+10}, v{SB+10}, v4
v_mul_f32 v{SB+11}, v{SB+11}, v4
s_waitcnt lgkmcnt(0)""")
for r in range(0, 8, 2):
    A(f"v_pk_mul_f32 {R(OA+r,2)}, {R(OA+r,2)}, {R(SB+10,2)} op_sel_hi:[1,0]")
    A(f"v_pk_fma_f32 {R(OA+r,2)}, {R(SB+r,2)}, {R(SB+10,2)}, {R(OA+r,2)} op_sel:[0,1,0]")
for k in range(4): A(f"v_cvt_pk_bf16_f32 v{SB+12+k}, v{OA+2*k}, v{OA+2*k+1}")
A(f"""buffer_store_dwordx4 {R(SB+12,4)}, v{vRK}, {SR(SWS)}, s20 offen sc1
v_add3_u32 v4, v{SB+12}, v{SB+13}, v{SB+14}
v_add3_u32 v4, v4, v{SB+15}, s{sNONCE}
buffer_store_dword v4, v5, {SR(SWS)}, s21 offen sc1""")
TS(11)

A("s_waitcnt vmcnt(2)\ns_barrier")
TS(12); RC(44)

WOF = 8; XB = 136; PA = 160; OF = 176; OL = 208; OLC = 224
A(f"""s_lshl_b32 s20, s{sQK}, 3
s_add_u32 s20, s20, s{sW}
s_lshl_b32 s32, s20, 10
s_add_u32 s32, s32, {WS_OC}
s_lshl_b32 s31, s20, 12
s_add_u32 s31, s31, {WS_O}
v_lshlrev_b32 v2, 4, v{vL}
v_lshlrev_b32 v{vRV}, 2, v{vL}
s_and_b32 s33, s{sKEY}, 0x7ff
s_sub_u32 s33, 2047, s33
s_lshr_b32 s34, s33, 5""")
def o_issue():
    for k in range(4):
        A(f"buffer_load_dwordx4 {R(OL+4*k,4)}, v2, {SR(SWS)}, s31 offen offset:{k*1024} sc1")
    for k in range(4):
        A(f"buffer_load_dword v{OLC+k}, v{vRV}, {SR(SWS)}, s32 offen offset:{k*256} sc1")
def o_check():
    for k in range(4):
        b = OL + 4 * k
        A(f"v_add3_u32 v{228+k}, v{b}, v{b+1}, v{b+2}\nv_add3_u32 v{228+k}, v{228+k}, v{b+3}, s{sNONCE}\nv_xor_b32 v{228+k}, v{228+k}, v{OLC+k}")
    A("v_or3_b32 v228, v228, v229, v230\nv_or_b32 v228, v228, v231\nv_cmp_ne_u32 vcc, 0, v228")
lb = A.newlabel("L_p3l")
A(f"s_cmp_lt_u32 s{sW}, 4\ns_cbranch_scc1 L_nphb")
A(f"""s_sub_u32 s{sWOD}, s{sWOD}, {4 << 16}
s_sub_u32 s{sM0}, s{sM0}, {4 << 14}
s_add_u32 s{sWE}, s{sWE}, 4
s_add_u32 s{sWB}, s{sWB}, {NCB}""")
dma_upto(4)
A.label("L_nphb")
if DPOS == 1: d_block()
A(f"v_lshlrev_b32 v2, 4, v{vL}")
A(f"s_cmp_ge_u32 s{sW}, 4\ns_cbranch_scc1 {lb}w")
for pr in range(2):
    b = XR + 4 * pr
    A(f"v_permlane32_swap_b32 v{b}, v{b+2}\nv_permlane32_swap_b32 v{b+1}, v{b+3}")
for k in range(8):
    x = XR + k; p = PA + 2 * k
    A(f"""v_lshlrev_b32 v{p}, 16, v{x}
v_and_b32 v{p+1}, 0xffff0000, v{x}
v_pk_add_f32 {R(XB+8,2)}, {R(p,2)}, {R(vPM,2)} op_sel_hi:[1,0] neg_lo:[0,1] neg_hi:[0,1]
v_cvt_pk_bf16_f32 v{XB+10}, v{XB+8}, v{XB+9}
v_lshlrev_b32 v{XB+8}, 16, v{XB+10}
v_and_b32 v{XB+9}, 0xffff0000, v{XB+10}
v_pk_mul_f32 {R(XB+8,2)}, {R(XB+8,2)}, {R(vPM,2)} op_sel:[0,1]
v_cvt_pk_bf16_f32 v{XB+10}, v{XB+8}, v{XB+9}
v_lshlrev_b32 v{XB+8}, 16, v{XB+10}
v_and_b32 v{XB+9}, 0xffff0000, v{XB+10}
v_pk_add_f32 {R(p,2)}, {R(p,2)}, {R(XB+8,2)}""")
A(f"""v_lshlrev_b32 v2, 4, v{vL}
v_lshrrev_b32 v4, 5, v{vL}
v_bfe_u32 v3, v{vL}, 2, 2
v_lshl_add_u32 v5, v4, 2, v3
v_lshlrev_b32 v5, 8, v5
v_xor_b32 v3, s{sW}, v3
v_lshl_add_u32 v5, v3, 6, v5
v_bfe_u32 v3, v{vL}, 4, 1
v_lshl_add_u32 v5, v3, 5, v5
v_and_b32 v3, 3, v{vL}
v_lshl_add_u32 v5, v3, 3, v5
v_add_u32 v3, 65536, v5""")
def wo_read(g): return [f"ds_read_b64_tr_b16 {R(WOF+4*g+2*j,2)}, v{5 if g < 16 else 3} offset:{(g*4096 + j*2048) % 65536}" for j in range(2)]
for g in range(16, 32): emit(wo_read(g))
A(f"s_waitcnt vmcnt(0)\ns_branch {lb}")
A.label(lb + "w")
A(f"s_waitcnt vmcnt({16-4*NCB})")
def yp_issue():
    A(f"""s_and_b32 s20, s{sC}, 3
s_lshl_b32 s20, s20, 10
s_add_u32 s20, s20, {WS_YP}
s_add_u32 s21, s20, {42*4096}
s_mul_i32 s22, s{sHH}, {11*4096}
s_add_u32 s20, s20, s22""")
    for k in range(11):
        if k == 10: A("s_min_u32 s20, s20, s21")
        A(f"buffer_load_dwordx4 {R(8+4*k,4)}, v2, {SR(SWS)}, s20 offen sc1\ns_add_u32 s20, s20, 4096")
A(f"s_cmp_lg_u32 s34, s{sQK}\ns_cbranch_scc1 {lb}")
o_issue(); yp_issue()
A(f"s_waitcnt vmcnt(11)\ns_branch {lb}y")
A.label(lb)
TS(46)
o_issue()
TS(47)
A("s_waitcnt vmcnt(0)")
A.label(lb + "y")
o_check()
retry_check(lb)
for k in range(4):
    A(f"ds_write_b128 v{vEX}, {R(OL+4*k,4)} offset:{k*1024}")
TS(13); RC(45)
A("s_waitcnt lgkmcnt(0)\ns_barrier")
TS(14)
A(f"s_cmp_ge_u32 s{sW}, 4\ns_cbranch_scc1 L_p3help")
A(f"v_add_u32 v2, {L_TAIL}, v2")
order = list(range(16, 32)) + list(range(16))
lq = []
def ofr(n): lds(("o", n), f"ds_read_b128 {R(OF+4*(n%8),4)}, v2 offset:{order[n]*1024}")
for n in range(6): ofr(n)
for n in range(32):
    lwait(("o", n))
    A(mfma32(PA, WOF + 4 * order[n], OF + 4 * (n % 8)))
    if n < 16:
        for x in wo_read(n): lds("w", x)
    if n + 6 < 32: ofr(n + 6)
    if n == int(opts.get("zb", 14)):
        A(f"s_cmp_lg_u32 s34, s{sQK}\ns_cbranch_scc1 L_nzb\ns_barrier\nL_nzb:")
lb = A.newlabel("L_noz")
A(f"s_cmp_lg_u32 s34, s{sQK}\ns_cbranch_scc1 {lb}")
A(f"""s_barrier
s_lshl_b32 s20, s{sW}, 7
s_add_u32 s20, s20, 65536
v_lshlrev_b32 v3, 4, v4
v_add_u32 v3, s20, v3""")
for a in range(4): A(f"ds_read_b128 {R(OF+4*a,4)}, v3 offset:{a*32}")
A(f"""s_and_b32 s20, s33, 31
v_and_b32 v3, 31, v{vL}
v_cmp_eq_u32 vcc, s20, v3
s_and_saveexec_b64 s[{sEX}:{sEX+1}], vcc
s_waitcnt lgkmcnt(0)""")
for r in range(16): A(f"v_add_f32 v{PA+r}, v{PA+r}, v{OF+r}")
A(f"s_mov_b64 exec, s[{sEX}:{sEX+1}]")
A.label(lb)
for k in range(8): A(f"v_cvt_pk_bf16_f32 v{XB+k}, v{PA+2*k}, v{PA+2*k+1}")
for pr in range(2):
    b = XB + 4 * pr
    A(f"v_permlane32_swap_b32 v{b}, v{b+2}\nv_permlane32_swap_b32 v{b+1}, v{b+3}")
    A(f"buffer_store_dwordx4 {R(b,4)}, v{vOUT}, {SR(SOUT)}, s{sOUTO} offen offset:{pr*32}")
A("s_branch L_end")
A.label("L_p3help")
A(f"""s_or_b32 s20, s2, s{sHH}
s_cmp_lg_u32 s20, 0
s_cbranch_scc1 L_noep
v_mov_b32 v200, s{sNONCE}
v_mov_b32 v201, {WS_EPOCH}
s_mov_b64 exec, 1
buffer_store_dword v200, v201, {SR(SWS)}, 0 offen sc1
s_mov_b64 exec, -1
L_noep:""")
A(f"s_cmp_lg_u32 s34, s{sQK}\ns_cbranch_scc1 L_end")
def yp_check():
    A(f"v_min3_u32 v3, v10, v14, v18\nv_max3_u32 v4, v10, v14, v18")
    for k in range(3, 11, 2): A(f"v_min3_u32 v3, v3, v{10+4*k}, v{14+4*k}\nv_max3_u32 v4, v4, v{10+4*k}, v{14+4*k}")
    A(f"v_xor_b32 v3, s{sNONCE}, v3\nv_xor_b32 v4, s{sNONCE}, v4\nv_or_b32 v3, v3, v4\nv_cmp_ne_u32 vcc, 0, v3")
validated(yp_issue, yp_check, 0)
A(f"s_cmp_eq_u32 s{sHH}, 3\ns_cselect_b32 s20, 0, 1.0")
for k in range(1, 10): A(f"v_add_f32 v8, v8, v{8+4*k}\nv_add_f32 v9, v9, v{9+4*k}")
A(f"""v_fmac_f32 v8, s20, v48
v_fmac_f32 v9, s20, v49
s_lshl_b32 s20, s{sHH}, 9
s_add_u32 s20, s20, {65536 + 1024}
v_lshl_add_u32 v3, v{vL}, 3, s20
ds_write_b64 v3, v[8:9]
s_waitcnt lgkmcnt(0)
s_barrier""")
lb = A.newlabel("L_hb")
A(f"""s_cmp_lg_u32 s{sW}, 4
s_cbranch_scc1 {lb}
ds_read_b64 v[10:11], v3 offset:512
ds_read_b64 v[12:13], v3 offset:1024
ds_read_b64 v[14:15], v3 offset:1536
s_waitcnt lgkmcnt(0)
v_add_f32 v8, v8, v10
v_add_f32 v9, v9, v11
v_add_f32 v12, v12, v14
v_add_f32 v13, v13, v15
v_add_f32 v8, v8, v12
v_add_f32 v9, v9, v13""")
bf16round(8, 8); bf16round(9, 9)
A(f"""s_and_b32 s20, s{sKEY}, 0xffff0000
s_ashr_i32 s21, s20, 31
s_not_b32 s21, s21
s_or_b32 s21, s21, 0x80000000
s_xor_b32 s20, s20, s21
s_and_b32 s20, s20, 0xffff0000
v_mov_b32 v3, s20
v_mul_f32 v3, {f32(-LOG2E)}, v3
v_exp_f32 v3, v3
v_add_f32 v3, 1.0, v3
v_rcp_f32 v3, v3""")
bf16round(3, 3)
A("v_mul_f32 v8, v8, v3\nv_mul_f32 v9, v9, v3")
bf16round(8, 8); bf16round(9, 9)
A(f"""v_lshrrev_b32 v3, 5, v{vL}
v_lshlrev_b32 v3, 8, v3
v_and_b32 v4, 31, v{vL}
v_lshl_add_u32 v3, v4, 2, v3
v_add_u32 v3, 65536, v3
ds_write_b32 v3, v8
ds_write_b32 v3, v9 offset:128
s_waitcnt lgkmcnt(0)""")
A.label(lb)
A("s_barrier")
A.label("L_end")
if PROF:
    TS(15)
    srd(SWS, WS_SIZE)
    A(f"""s_mov_b64 exec, -1
v_writelane_b32 v{vTS}, s{sRETRY}, 62
s_memrealtime s[96:97]
s_waitcnt lgkmcnt(0)
v_writelane_b32 v{vTS}, s96, 61
s_lshl_b32 s20, s2, 3
s_add_u32 s20, s20, s{sW}
s_lshl_b32 s20, s20, 8
s_add_u32 s20, s20, {WS_TS}
v_lshlrev_b32 v2, 2, v{vL}
buffer_store_dword v{vTS}, v2, {SR(SWS)}, s20 offen""")
A.label("L_exit")
A("s_endpgm")
A.label("L_codeend")
slow_path()

body = A.finalize()
import re as _re
def addflag(srd_, flag, kind="load"):
    global body
    pat = _re.compile(r"^(\s*buffer_%s_\w+ .*s\[%d:%d\], \S+ offen(?: offset:\d+)?)( lds)?$" % (kind, srd_, srd_ + 3), _re.M)
    body = pat.sub(lambda m: m.group(1) + " " + flag + (m.group(2) or ""), body)
for b_ in (SWG, SWU, SWD): addflag(b_, "nt")
if opts.get("ntx"): addflag(SX, "nt")
if opts.get("ntw"): addflag(SW, "nt")
if opts.get("nto"): addflag(SWO, "nt")
if opts.get("outf"): addflag(SOUT, opts["outf"].replace("+", " "), "store")
hdr = open("cdna_kernels/" + NAME + ".s.ref").read().split("; Override launch")[0]
out = hdr + f"""; Fused single kernel: LN stats + router, QKV GEMM, sliding-window attention, MoD FFN, output projection.
; Generated by gen/gen.py (hand-written generator).
; @launch grid=(256,1,1) block=(512,1,1) lds=163840
.amdgcn_target "amdgcn-amd-amdhsa--gfx950"
.text
.globl {NAME}_kernel
.p2align 8
.type {NAME}_kernel,@function
{NAME}_kernel:
L_start:
{body}
.section .rodata,"a"
.p2align 6
.amdhsa_kernel {NAME}_kernel
  .amdhsa_next_free_vgpr 256
  .amdhsa_next_free_sgpr 102
  .amdhsa_accum_offset 256
  .amdhsa_group_segment_fixed_size 0
  .amdhsa_kernarg_size 88
  .amdhsa_user_sgpr_count 2
  .amdhsa_user_sgpr_kernarg_segment_ptr 1
  .amdhsa_system_sgpr_workgroup_id_x 1
  .amdhsa_float_denorm_mode_32 3
.end_amdhsa_kernel
"""
import subprocess, re
def labels(text):
    open("_g.s", "w").write(text)
    r = subprocess.run(["clang", "-x", "assembler", "-target", "amdgcn-amd-amdhsa", "-mcpu=gfx950", "-c", "_g.s", "-o", "_g.o"], capture_output=True, text=True)
    if r.returncode:
        print("\n".join(r.stderr.split("\n")[:30])); sys.exit(1)
    t = subprocess.run(["llvm-objdump", "-t", "_g.o"], capture_output=True, text=True).stdout
    return {m.group(2): int(m.group(1), 16) for m in re.finditer(r"^([0-9a-f]{16}) .*\s(L_\w+)$", t, re.M)}
lab = labels(out.replace("CODE_PF_MAX", "0x11111"))
out = out.replace("CODE_PF_MAX", hex((lab["L_codeend"] - 256) & ~127))
assert labels(out) == lab
print("code bytes", lab["L_codeend"], "instrs", len(A.ins), "nops", A.nnop)
open(sys.argv[1], "w").write(out)
```

```python
import sys, struct
from asmlib import Asm

NAME = "parallel_sum__sliding_block__moe_arch_mod__prompt"
opts = dict(a.split("=") if "=" in a else (a, "1") for a in sys.argv[2:])
PROF = int(opts.get("prof", 0))
LOOPTS = int(opts.get('loopts', 0))
DEPTH = int(opts.get('depth', 3))
FAST = int(opts.get('fast', 1))
SIBU = int(opts.get('sibu', 4))
GWP = int(opts.get('gwp', 2))
DOFF = int(opts.get('doff', 245))
DSH = int(opts.get('dsh', 0))
DNL = int(opts.get('dnl', 43))
DPOS = int(opts.get('dpos', 0))
PWS = int(opts.get('pws', 1))
LGW = int(opts.get('lgw', -1))
PUBU = int(opts.get('pubu', 0))

def f32(x): return "0x%08x" % struct.unpack("<I", struct.pack("<f", x))[0]
LOG2E = 1.4426950408889634

WS_BEST  = 0x0
WS_EPOCH = 0x4000
WS_STATS = 0x8000
WS_YP    = 0x10000
WS_GP    = 0x40000
WS_KV    = 0x100000
WS_KVC   = 0x500000
WS_O     = 0x600000
WS_OC    = 0x800000
WS_TS    = 0x900000
WS_SIZE  = 0x1000000
L_X = 0; L_RING = 65536; L_MISC = 147456; L_TAIL = 131072
def slot_of(u): return (u + 2) % 5
L_QF = L_MISC
L_SM = L_MISC + 8192
L_RT = L_SM
L_NONCE = L_SM + 128
L_IDX = L_SM + 144
L_XSEL = L_SM + 1024
L_QRDY = L_SM + 224
L_CSX = L_SM + 2048
L_STAT = L_SM + 256
L_RINV = L_SM + 768
L_GW = L_RING + 4 * 16384
L_OWN = L_RING + slot_of(8) * 16384
SX, SW, SWS, SDBG, SWR = 40, 44, 48, 52, 56
SWO, SOUT, SWG, SWU, SWD = 60, 64, 68, 72, 76
sI, sC, sW, sROT, sNONCE, sP, sKEY = 3, 4, 5, 6, 7, 8, 9
sXO, sWOFF, sCT, sWB, sHH, sROLE, sH1, sH2 = 10, 11, 12, 13, 14, 15, 16, 17
sSM, sSR = 18, 19
sOUTO, sQK, sWOD, sM0, sWE, sEX, sRETRY = 80, 81, 82, 83, 84, 86, 88
sGU = 89
sDI = 85
DG = [96 + 4 * n for n in range(8)]
GOFF = int(opts.get('goff', 80))
sRB = 90
vL, vZ, vTS = 1, 6, 7
vXA, vWA0, vWA1 = 88, 92, 93
vX0, vX1, vW0, vW1 = 80, 81, 82, 83
vSA, vKA, vKC, vBA = 80, 81, 82, 83
ACC = 96; STB = 128; CS = 200; SEL = 204; GW = 208; ST0, ST1 = 224, 226; XS = 228
OWN = 128; SL = 8
KC, VC, QF, NM, OA, SB, WD, MK = 80, 84, 88, 96, 128, 160, 208, 232
vM0, vM1, vRK, vRV, vRKC, vGA, vEX, vOUT, vPM, vPR, vWO = 240, 241, 242, 243, 244, 245, 246, 247, 248, 249, 250
A = Asm()

def TS(n):
    if PROF == 1: A(f"s_memtime s[98:99]\ns_waitcnt lgkmcnt(0)\nv_writelane_b32 v{vTS}, s98, {n}")
def TSL(n):
    if LOOPTS: TS(n)
def RC(n):
    if PROF == 1: A(f"v_writelane_b32 v{vTS}, s{sRETRY}, {n}")
def srd(base, size): A(f"s_mov_b32 s{base+2}, {size}\ns_mov_b32 s{base+3}, 0x20000")
def R(b, n): return f"v[{b}:{b+n-1}]"
def SR(b): return f"s[{b}:{b+3}]"
DPP8 = ("quad_perm:[1,0,3,2]", "quad_perm:[2,3,0,1]", "row_half_mirror")
def dpp(op, x, m): return f"{op}_dpp v{x}, v{x}, v{x} {m} row_mask:0xf bank_mask:0xf"
def allreduce32(x, t, op):
    for m in DPP8 + ("row_mirror",): A(dpp(op, x, m))
    A(f"v_mov_b32 v{t}, v{x}\nv_permlane16_swap_b32 v{x}, v{t}\n{op} v{x}, v{x}, v{t}")
def bf16round(dst, src):
    A(f"v_cvt_pk_bf16_f32 v{dst}, v{src}, v{src}\nv_and_b32 v{dst}, 0xffff0000, v{dst}")
def retry_check(lbl):
    A(f"s_add_u32 s{sRETRY}, s{sRETRY}, 1\ns_cmp_gt_u32 s{sRETRY}, 20000\ns_cbranch_scc1 L_end")
    A(f"s_cbranch_vccnz {lbl}")
def validated(issue, check, first_wait, retry_wait=0):
    lr = A.newlabel("L_rt"); lo = A.newlabel("L_ok")
    A(f"s_waitcnt vmcnt({first_wait})"); check(); A(f"s_cbranch_vccz {lo}")
    A.label(lr)
    issue(); A(f"s_waitcnt vmcnt({retry_wait})"); check()
    retry_check(lr)
    A.label(lo)
def capture(fn):
    n = len(A.ins); fn(); out = [x.text for x in A.ins[n:]]; del A.ins[n:]
    return out
def emit(l):
    for x in l: A(x)
def split(l, n): return [l[len(l)*k//n: len(l)*(k+1)//n] for k in range(n)]
def mfma32(d, a, b, c=None):
    return f"v_mfma_f32_32x32x16_bf16 {R(d,16)}, {R(a,4)}, {R(b,4)}, {R(d,16) if c is None else c}"
def var_to_rinv(v):
    bf16round(v, v)
    A(f"v_add_f32 v{v}, {f32(1e-5)}, v{v}")
    bf16round(v, v)
    A(f"v_sqrt_f32 v{v}, v{v}")
    bf16round(v, v)
    A(f"v_rcp_f32 v{v}, v{v}")

if PROF: A("s_memrealtime s[96:97]")
if PROF == 1: A("s_memtime s[94:95]")
A("s_cmp_ge_u32 s2, 256\ns_cbranch_scc1 L_exit")
for b, off in ((SX, 0), (SW, 8), (SWR, 32), (SWS, 80)):
    A(f"s_load_dwordx2 s[{b}:{b+1}], s[0:1], {off}")
A(f"""v_lshrrev_b32 v2, 6, v0
v_and_b32 v{vL}, 63, v0
s_bfe_u32 s20, s2, 0x20001
s_bfe_u32 s24, s2, 0x30003
v_readfirstlane_b32 s{sW}, v2
s_lshl3_add_u32 s{sI}, s20, s24
s_and_b32 s20, s2, 1
s_lshr_b32 s24, s2, 6
s_lshl2_add_u32 s{sC}, s20, s24
s_lshl3_add_u32 s{sP}, s{sI}, s{sC}""")
srd(SX, 2048 * 1024)
def late_setup():
    for b, off in ((SWO, 16), (SWG, 40), (SWU, 48), (SWD, 56), (SOUT, 64)):
        A(f"s_load_dwordx2 s[{b}:{b+1}], s[0:1], {off}")
    A(f"""s_sub_u32 s{sGU}, s{sP}, {GOFF}
s_cmp_ge_u32 s{sW}, 4
s_cselect_b32 s26, {DNL}, {43-DNL}
s_cselect_b32 s24, 0, {DNL}
s_add_u32 s{sDI}, s{sP}, s24
s_cmp_lt_u32 s{sP}, s26
s_cselect_b32 s{sDI}, s{sDI}, 255
s_mov_b32 s{sRETRY}, 0""")
    if PROF:
        A(f"v_mov_b32 v{vTS}, 0\nv_writelane_b32 v{vTS}, s96, 63")
A(f"s_cmp_ge_u32 s{sW}, 4\ns_cbranch_scc1 L_lwave")
srd(SWR, 1024)
A(f"""v_and_b32 v2, 31, v{vL}
v_lshlrev_b32 v{vSA}, 4, v2
v_lshrrev_b32 v3, 5, v{vL}
v_lshl_add_u32 v4, v3, 10, v{vSA}
s_lshl2_add_u32 s20, s{sP}, s{sW}
s_lshl_b32 s20, s20, 1
s_lshl_b32 s21, s20, 10
s_waitcnt lgkmcnt(0)
buffer_load_dwordx4 v[8:11], v4, {SR(SX)}, s21 offen
buffer_load_dwordx4 v[12:15], v4, {SR(SX)}, s21 offen offset:512
buffer_load_dwordx4 v[16:19], v{vSA}, {SR(SWR)}, 0 offen
buffer_load_dwordx4 v[20:23], v{vSA}, {SR(SWR)}, 0 offen offset:512
""")
A("s_branch L_cwave")

def frag_addrs():
    A(f"""v_and_b32 v2, 31, v{vL}
v_lshrrev_b32 v3, 5, v{vL}
v_bfe_u32 v4, v2, 1, 3
v_xor_b32 v4, v4, v3
v_lshlrev_b32 v4, 4, v4
v_lshl_add_u32 v4, v2, 7, v4
v_add_u32 v{vXA}, s28, v4
v_xor_b32 v{vXA+1}, 32, v{vXA}
v_xor_b32 v{vXA+2}, 64, v{vXA}
v_xor_b32 v{vXA+3}, 96, v{vXA}
v_bfe_u32 v4, v{vL}, 2, 2
v_lshlrev_b32 v4, 7, v4
v_lshl_add_u32 v4, v3, 11, v4
v_bfe_u32 v5, v{vL}, 3, 1
v_lshl_add_u32 v4, v5, 6, v4
v_bfe_u32 v5, v{vL}, 4, 1
v_lshl_add_u32 v4, v5, 5, v4
v_and_b32 v5, 3, v{vL}
v_lshl_add_u32 v{vGA}, v5, 3, v4
s_lshl_b32 s20, s{sCT}, 6
v_xor_b32 v4, s20, v{vGA}
v_add_u32 v{vWA0}, s29, v4
v_add_u32 v{vWA1}, {3*16384}, v{vWA0}
v_lshrrev_b32 v4, 4, v{vL}
v_xor_b32 v4, v4, v{vL}
v_and_b32 v4, 1, v4
v_add_u32 v4, -1, v4
v_and_b32 v{SEL}, 0x3f803f80, v4
v_mov_b32 v{SEL+1}, v{SEL}
v_mov_b32 v{SEL+2}, v{SEL}
v_mov_b32 v{SEL+3}, v{SEL}""")
    for r in range(4): A(f"v_mov_b32 v{CS+r}, 0")
def wa(slot, off):
    return (vWA0, slot * 16384 + off) if slot < 3 else (vWA1, (slot - 3) * 16384 + off)
def csum_mfma(wf): return f"v_mfma_f32_16x16x32_bf16 {R(CS,4)}, {R(SEL,4)}, {R(wf,4)}, {R(CS,4)}"
def corr_w(dst):
    A(f"""s_mov_b32 s20, 0xffff0000
s_mov_b32 s21, 0xffff0000
v_cndmask_b32_e64 v2, v{CS}, v{CS+1}, s[20:21]
v_mul_f32 v2, 0.5, v2""")
    bf16round(3, 2)
    A("v_sub_f32 v2, v2, v3")
    bf16round(4, 2)
    A(f"""v_sub_f32 v2, v2, v4
v_cvt_pk_bf16_f32 v{dst}, v3, v4
v_cvt_pk_bf16_f32 v{dst+1}, v2, 0""")
def corr_x(dst, m):
    A(f"""v_cvt_pk_bf16_f32 v{dst}, -v{m}, -v{m}
v_cvt_pk_bf16_f32 v{dst+1}, -v{m}, 0
v_mov_b32 v{dst+2}, 0
v_mov_b32 v{dst+3}, 0""")
def Kf(k): return SL + 12 * k
def Vf(k, g): return SL + 12 * k + 4 + 4 * g
def attn_setup_s():
    A(f"""s_sub_u32 s20, 3, s{sROLE}
s_cmp_eq_u32 s{sROLE}, 0
s_cselect_b32 s21, 4, 1
s_sub_u32 s22, s{sI}, s20
s_lshl_b32 s22, s22, 3
s_add_u32 s22, s22, s{sC}
s_cmp_ge_u32 s{sI}, s20
s_cselect_b32 s{sH1}, -1, 0
s_cselect_b32 s22, s22, 0x10000
s_sub_u32 s23, s{sI}, s21
s_lshl_b32 s23, s23, 3
s_add_u32 s23, s23, s{sC}
s_cmp_ge_u32 s{sI}, s21
s_cselect_b32 s{sH2}, -1, 0
s_cselect_b32 s23, s23, 0x10000
s_lshl_b32 s{sRB}, s22, 14
s_add_u32 s{sRB}, s{sRB}, {WS_KV}
s_add_u32 s{sRB+1}, s{sRB}, 4096
s_lshl_b32 s{sRB+2}, s23, 14
s_add_u32 s{sRB+2}, s{sRB+2}, {WS_KV}
s_add_u32 s{sRB+3}, s{sRB+2}, 4096
s_lshl_b32 s{sRB+4}, s22, 12
s_add_u32 s{sRB+4}, s{sRB+4}, {WS_KVC}
s_lshl_b32 s{sRB+5}, s23, 12
s_add_u32 s{sRB+5}, s{sRB+5}, {WS_KVC}
s_lshl_b32 s{sWOD}, s{sW}, 16
s_and_b32 s20, s{sC}, 3
s_lshl_b32 s20, s20, 8
s_add_u32 s{sWOD}, s{sWOD}, s20
s_lshl_b32 s{sM0}, s{sW}, 14
s_mov_b32 s{sWB}, s{sI}
s_add_u32 s{sWE}, s{sI}, 4
s_lshl_b32 s{sQK}, s{sI}, 1
s_lshr_b32 s21, s{sC}, 2
s_add_u32 s{sQK}, s{sQK}, s21
s_lshl_b32 s{sOUTO}, s{sQK}, 15
s_add_u32 s{sOUTO}, s{sOUTO}, s20
s_lshl_b32 s20, s{sHH}, 6
s_add_u32 s{sOUTO}, s{sOUTO}, s20""")
    srd(SWD, 0 if opts.get('nogw') else 1376 * 1024); srd(SOUT, 2048 * 1024); srd(SWO, 0 if opts.get('nowo') else 512 * 1024); srd(SWS, WS_SIZE)
def attn_setup_v():
    A(f"""s_lshl_b32 s20, s{sHH}, 10
v_lshlrev_b32 v{vRK}, 4, v{vL}
s_lshl_b32 s21, s{sW}, 12
s_add_u32 s21, s21, {L_TAIL}
v_add_u32 v{vEX}, s21, v{vRK}
v_add_u32 v{vRK}, s20, v{vRK}
v_lshrrev_b32 v{vRKC}, 1, v{vRK}
v_add_u32 v{vRV}, 8192, v{vRK}
v_lshrrev_b32 v2, 4, v{vL}
v_and_b32 v3, 15, v{vL}
v_lshlrev_b32 v4, 2, v2
v_xor_b32 v3, v3, v4
v_lshlrev_b32 v3, 4, v3
v_lshl_add_u32 v{vWO}, v2, 10, v3
v_add_u32 v{vWO+1}, 3072, v{vWO}
v_add_u32 v{vWO+2}, 6144, v{vWO}
v_add_u32 v{vWO+3}, 9216, v{vWO}
v_and_b32 v3, 31, v{vL}
v_lshrrev_b32 v4, 5, v{vL}
v_lshlrev_b32 v{vOUT}, 10, v3
v_lshl_add_u32 v{vOUT}, v4, 4, v{vOUT}
v_mul_u32_u24 v4, {1408*16}, v4
v_lshl_add_u32 v255, v3, 4, v4
v_mov_b32 v{vM0}, 0
v_mov_b32 v{vM1}, 0""")
def mk_setup():
    A(f"""v_and_b32 v2, 31, v{vL}
v_lshrrev_b32 v3, 5, v{vL}
v_lshlrev_b32 v3, 2, v3
v_sub_u32 v2, v2, v3
v_mov_b32 v192, -1
v_mov_b32 v193, -1""")
    for k in range(8):
        j0 = 8 * (k // 2) + 2 * (k % 2)
        A(f"""v_add_u32 v3, {1 - j0}, v2
v_med3_i32 v3, v3, 0, 2
v_lshlrev_b32 v3, 4, v3
v_lshlrev_b64 v[194:195], v3, v[192:193]
v_mov_b32 v{MK+k}, v194""")
def v_prefill(n):
    A(f"v_mov_b32 v{Vf(0,1)}, 0x3f803f80")
    for k in range(n):
        for r in range(4):
            if k or r: A(f"v_mov_b32 v{Vf(k,1)+r}, v{Vf(0,1)}")
def k_issue():
    for k in range(4):
        A(f"buffer_load_dwordx4 {R(Kf(k),4)}, v{vRK}, {SR(SWS)}, s{sRB+k} offen sc1")
    for p in range(2):
        A(f"buffer_load_dwordx2 {R(KC+2*p,2)}, v{vRKC}, {SR(SWS)}, s{sRB+4+p} offen sc1")
def v_issue():
    for k in range(4):
        A(f"buffer_load_dwordx4 {R(Vf(k,0),4)}, v{vRV}, {SR(SWS)}, s{sRB+k} offen sc1")
    for p in range(2):
        A(f"buffer_load_dwordx2 {R(VC+2*p,2)}, v{vRKC}, {SR(SWS)}, s{sRB+4+p} offen offset:2048 sc1")

A.label("L_lwave")
srd(SW, 512 * 3072)
A(f"""s_add_u32 s20, s{sC}, s{sI}
s_and_b32 s20, s20, 3
s_lshl_b32 s{sROT}, s20, 1
s_sub_u32 s{sHH}, s{sW}, 4
v_lshrrev_b32 v2, 3, v{vL}
v_and_b32 v3, 7, v{vL}
v_lshrrev_b32 v4, 1, v2
v_xor_b32 v5, v3, v4
v_lshlrev_b32 v5, 4, v5
v_lshl_add_u32 v{vX0}, v2, 10, v5
v_xor_b32 v5, 64, v5
v_lshl_add_u32 v{vX1}, v2, 10, v5
v_add_u32 v{vX1}, {8192-1024}, v{vX1}
v_and_b32 v4, 1, v4
v_lshlrev_b32 v4, 2, v4
v_xor_b32 v5, v3, v4
v_lshlrev_b32 v84, 4, v5
v_mul_u32_u24 v{vW0}, 3072, v2
v_add_u32 v{vW0}, v{vW0}, v84
v_add_u32 v{vW1}, {24576-2048}, v{vW0}
s_lshl_b32 s{sXO}, s{sI}, 16
s_lshl_b32 s20, s{sHH}, 14
s_add_u32 s{sXO}, s{sXO}, s20
s_lshl_b32 s{sWOFF}, s{sC}, 7
s_mul_i32 s20, s{sHH}, {16*3072}
s_add_u32 s{sWOFF}, s{sWOFF}, s20
s_lshl_b32 s31, s{sHH}, 11
s_lshl_b32 s32, s{sHH}, 12
s_waitcnt lgkmcnt(0)""")
if PROF == 1: A("s_memtime s[92:93]")
XOF = {u: [u] for u in range(8)}
def issue_unit(u):
    slot = slot_of(u)
    for t in XOF.get(u, []):
        A(f"""s_add_u32 s33, s{sROT}, {t}
s_and_b32 s33, s33, 7
s_lshl_b32 s34, s33, 7
s_add_u32 m0, s31, {L_X + t*8192}
s_add_u32 s34, s34, s{sXO}
buffer_load_dwordx4 v{vX0}, {SR(SX)}, s34 offen lds
buffer_load_dwordx4 v{vX1}, {SR(SX)}, s34 offen offset:1024 lds""")
    if u < 8:
        A(f"""s_add_u32 s33, s{sROT}, {u}
s_and_b32 s33, s33, 7
s_mul_i32 s35, s33, {64*3072}
s_add_u32 s35, s35, s{sWOFF}
s_add_u32 m0, s32, {L_RING + slot*16384}
s_add_u32 s35, s35, 1024
buffer_load_dwordx4 v{vW0}, {SR(SW)}, s35 offen lds
buffer_load_dwordx4 v{vW0}, {SR(SW)}, s35 offen offset:1024 lds
buffer_load_dwordx4 v{vW1}, {SR(SW)}, s35 offen offset:2048 lds
buffer_load_dwordx4 v{vW1}, {SR(SW)}, s35 offen offset:3072 lds""")
    else:
        for e in range(2):
            A(f"""s_add_u32 s33, s{sROT}, {2*(u-8)+e}
s_and_b32 s33, s33, 7
s_mul_i32 s35, s33, {64*3072}
s_add_u32 m0, s32, {L_RING + slot*16384 + e*1024}
s_add_u32 s35, s35, s{sWOFF}
buffer_load_dwordx4 v{vW0}, {SR(SW)}, s35 offen lds
buffer_load_dwordx4 v{vW1}, {SR(SW)}, s35 offen offset:2048 lds""")
def ucount(u): return 4 + 2 * len(XOF.get(u, []))
def lgw_issue():
    srd(SWG, 512 * 2752); srd(SWU, 512 * 2752)
    A(f"""v_lshrrev_b32 v2, 3, v{vL}
v_mul_u32_u24 v3, 2752, v2
v_and_b32 v4, 7, v{vL}
v_lshl_add_u32 v86, v4, 4, v3
s_and_b32 s33, s{sP}, 7
s_lshl_b32 s33, s33, 6
s_lshl_b32 s34, s{sHH}, 4
s_add_u32 s33, s33, s34
s_mul_i32 s33, s33, 2752
s_lshr_b32 s34, s{sGU}, 3
s_lshl_b32 s34, s34, 7
s_add_u32 s33, s33, s34
s_cmp_ge_u32 s{sGU}, 176
s_cselect_b32 s33, 0x40000000, s33
s_add_u32 s34, s33, {8*2752}
buffer_load_dwordx4 {R(GW,4)}, v86, {SR(SWG)}, s33 offen
buffer_load_dwordx4 {R(GW+4,4)}, v86, {SR(SWU)}, s33 offen
buffer_load_dwordx4 {R(GW+8,4)}, v86, {SR(SWG)}, s34 offen
buffer_load_dwordx4 {R(GW+12,4)}, v86, {SR(SWU)}, s34 offen""")
def code_prefetch():
    A(f"""s_getpc_b64 s[22:23]
s_lshr_b32 s20, s2, 3
s_lshl2_add_u32 s20, s20, s{sHH}
s_lshl_b32 s20, s20, 8
s_min_u32 s20, s20, CODE_PF_MAX
s_add_u32 s22, s22, s20
s_addc_u32 s23, s23, 0""")
    for o_ in (0, 64, 128, 192): A(f"s_load_dword s100, s[22:23], {o_}")
CPF = int(opts.get('cpf', 0))
if CPF == -1: code_prefetch()
ops = []
for u in range(DEPTH):
    issue_unit(u); ops += [u] * ucount(u)
    if u == CPF: code_prefetch()
late_setup()
if PROF == 1: A(f"s_waitcnt lgkmcnt(0)\nv_writelane_b32 v{vTS}, s94, 0\nv_writelane_b32 v{vTS}, s92, 48")
TS(1)
SA = 112
A(f"""s_and_b32 s{sCT}, s{sHH}, 1
s_lshr_b32 s28, s{sHH}, 1
s_lshl_b32 s28, s28, 12
s_mov_b32 s29, {L_RING}
s_mov_b32 s{sROLE}, 0
v_lshlrev_b32 v85, 4, v{vL}
s_lshl_b32 s30, s{sI}, 10
s_add_u32 s30, s30, {WS_STATS}
s_cmp_lg_u32 s{sHH}, 0
s_cselect_b32 s30, 0x40000000, s30
s_mov_b32 s36, {WS_BEST}
s_cmp_lg_u32 s{sHH}, 1
s_cselect_b32 s36, 0x40000000, s36""")
A(f"""s_lshl2_add_u32 s20, s{sHH}, {L_QRDY}
v_mov_b32 v198, s20
v_mov_b32 v199, {L_QRDY}
v_mov_b32 v2, 0
ds_write_b32 v198, v2""")
attn_setup_s()
def sib_issue(): A(f"buffer_load_dwordx4 {R(SA,4)}, v85, {SR(SWS)}, s30 offen sc1")
lp = split(capture(lambda: (frag_addrs(), attn_setup_v(), v_prefill(6), mk_setup())), 6)
lpieces = {0: lp[0], 1: lp[1], 2: lp[2], 3: lp[3], 4: lp[4], 5: lp[5]}
def younger_than(tag): return len(ops) - 1 - max(k for k, x in enumerate(ops) if x == tag)
issued = DEPTH
for u in range(8):
    TSL(32 + u)
    A(f"s_waitcnt vmcnt({younger_than(u)})")
    TSL(16 + u)
    A("s_barrier")
    TSL(24 + u)
    if u == SIBU:
        sib_issue(); ops.append("sib")
    tgt = min(12, u + 1 + DEPTH + max(0, u - 1 - DEPTH), u + 5)
    while issued < tgt:
        issue_unit(issued); ops += [issued] * ucount(issued)
        if issued == LGW: lgw_issue(); ops += ['gw'] * 4
        issued += 1
    if u == 5: A(f"v_mov_b32 v122, {L_NONCE}\nds_read_b32 v123, v122")
    emit(lpieces.get(u, []))
    if u == 6:
        lb = A.newlabel("L_nsib")
        A(f"""s_waitcnt lgkmcnt(0)
v_readfirstlane_b32 s{sNONCE}, v123
s_cmp_lg_u32 s{sHH}, 0
s_cbranch_scc1 {lb}""")
        validated(sib_issue, lambda: A(f"v_cmp_ne_u32 vcc, s{sNONCE}, v{SA+3}"), younger_than("sib"))
        A(f"""v_lshrrev_b32 v122, 1, v85
v_lshrrev_b32 v123, 2, v85
v_add_u32 v122, {L_STAT}, v122
v_add_u32 v123, {L_RINV}, v123
ds_write_b64 v122, {R(SA,2)}
ds_write_b32 v123, v{SA+1}
s_waitcnt lgkmcnt(0)""")
        A.label(lb)
assert issued == 12, issued
TS(2)
LST, LSC, LCX, LCW = 116, 118, 120, 124
for r in range(16): A(f"v_mov_b32 v{ACC+r}, 0")
A(f"""v_and_b32 v2, 31, v{vL}
v_lshlrev_b32 v2, 3, v2
s_lshr_b32 s20, s28, 4
s_add_u32 s20, s20, {L_STAT}
v_add_u32 v2, s20, v2
ds_read_b64 {R(LST,2)}, v2
s_waitcnt lgkmcnt(0)""")
corr_x(LCX, LST)
A(f"""v_mul_f32 v{LSC}, {f32(0.25*LOG2E)}, v{LST+1}
v_mov_b32 v{LCW+2}, 0
v_mov_b32 v{LCW+3}, 0
s_lshl_b32 s30, s{sHH}, 11
s_add_u32 s30, s30, {L_QF}
v_lshlrev_b32 v5, 4, v{vL}
v_add_u32 v5, s30, v5""")
Q2 = 192
A(f"""s_lshl_b32 s20, s28, 1
s_lshr_b32 s21, s28, 2
s_xor_b32 s22, s20, 8192
s_xor_b32 s23, s21, 1024""")
for st in range(4): A(f"v_add_u32 v{Q2+st}, s22, v{vXA+st}\nv_add_u32 v{vXA+st}, s20, v{vXA+st}")
A(f"""v_add_u32 v{Q2+4}, s23, v{vWA0}
v_add_u32 v{Q2+5}, s23, v{vWA1}
v_add_u32 v{vWA0}, s21, v{vWA0}
v_add_u32 v{vWA1}, s21, v{vWA1}
s_lshl_b32 s22, s{sHH}, 8
s_add_u32 s22, s22, {L_CSX}
v_lshl_add_u32 v86, v{vL}, 2, s22
v_xor_b32 v87, 512, v86
s_mov_b32 s20, 0xffff0000
s_mov_b32 s21, 0xffff0000""")
def q_reads(n):
    oth = n // 16; m = (n // 4) % 4; st = n % 4; b = STB + 8 * (n % 8)
    out = [f"ds_read_b128 {R(b,4)}, v{(Q2 if oth else vXA)+st} offset:{m*16384}"]
    for j in range(2):
        r, o = wa(slot_of(8 + m), st * 4096 + j * 512)
        if oth: r = Q2 + 4 + (r - vWA0)
        out.append(f"ds_read_b64_tr_b16 {R(b+4+2*j,2)}, v{r} offset:{o}")
    return out
if int(opts.get('nob8', 1)):
    lr = A.newlabel("L_qr")
    A(f"s_waitcnt vmcnt(0)\nds_write_b32 v198, v198")
    A.label(lr)
    A(f"""ds_read_b128 {R(STB,4)}, v199
s_waitcnt lgkmcnt(0)
v_min3_u32 v2, v{STB}, v{STB+1}, v{STB+2}
v_min_u32 v2, v2, v{STB+3}
v_cmp_eq_u32 vcc, 0, v2""")
    retry_check(lr)
else:
    A("s_waitcnt vmcnt(0)\ns_barrier")
TS(3)
QB9 = int(opts.get("qb9", 21))
lq = []
def lds(tag, txt): A(txt); lq.append(tag)
def lwait(tag): A(f"s_waitcnt lgkmcnt({min(15, len(lq) - 1 - max(k for k, x in enumerate(lq) if x == tag))})")
for n in range(4):
    for x in q_reads(n): lds(n, x)
cwl = capture(lambda: corr_w(LCW))[3:]
for n in range(32):
    lwait(n)
    b = STB + 8 * (n % 8)
    if n < 16: A(csum_mfma(b + 4))
    A(mfma32(ACC, b + 4, b))
    if n + 4 < 32:
        for x in q_reads(n + 4): lds(n + 4, x)
    if n == 17:
        A(f"v_cndmask_b32_e64 v2, v{CS}, v{CS+1}, s[20:21]")
        lds("cs", "ds_write_b32 v86, v2")
    if n == QB9:
        lwait("cs")
        A("s_barrier")
        lds("cp", "ds_read_b32 v4, v87")
    if n == QB9 + 4:
        lwait("cp"); A("v_add_f32 v2, v2, v4"); emit(cwl[:4])
    if n == QB9 + 5: emit(cwl[4:])
TS(4)
A(mfma32(ACC, LCW, LCX))
for r in range(16): A(f"v_mul_f32 v{ACC+r}, v{ACC+r}, v{LSC}")
for k in range(8): A(f"v_cvt_pk_bf16_f32 v{STB+k}, v{ACC+2*k}, v{ACC+2*k+1}")
A(f"ds_write_b128 v5, {R(STB,4)}\nds_write_b128 v5, {R(STB+4,4)} offset:1024")
TS(50)
A("s_branch L_join")

A.label("L_cwave")
A(f"s_load_dword s{sNONCE}, s[{SWS}:{SWS+1}], {WS_EPOCH}")
late_setup()
if PROF == 1: A(f"v_writelane_b32 v{vTS}, s94, 0")
srd(SWG, 512 * 2752); srd(SWU, 512 * 2752)
if opts.get("tt"):
    A(f"s_cmp_lg_u32 s{sW}, 3\ns_cbranch_scc1 L_ntt\ns_waitcnt lgkmcnt(0)")
    for b_ in (SWG, SWU, SWO, SOUT, SWD): A(f"s_load_dword s100, s[{b_}:{b_+1}], 0")
    for off in (0x2FF000, 0x4FF000, 0x6FF000, 0x8FF000): A(f"s_mov_b32 s24, {off}\ns_load_dword s100, s[{SWS}:{SWS+1}], s24")
    A.label("L_ntt")
A(f"v_mov_b32 v{vZ}, 0\nv_add_u32 v62, s20, v3")
A(f"""s_and_b32 s{sCT}, s{sW}, 1
s_mov_b32 s28, 0
s_lshr_b32 s29, s{sW}, 1
s_lshl_b32 s29, s29, 10
s_add_u32 s29, s29, {L_RING}
s_mov_b32 s{sHH}, s{sW}
s_mov_b32 s{sROLE}, 1
v_lshlrev_b32 v{vBA}, 4, v{vL}
s_lshl_b32 s35, s{sW}, 10
s_add_u32 s35, s35, {WS_BEST}
s_lshl_b32 s33, s{sP}, 14
s_add_u32 s33, s33, {WS_KV}
s_add_u32 s36, s33, 4096
s_lshl_b32 s34, s{sP}, 12
s_add_u32 s34, s34, {WS_KVC}""")
frag_addrs()
srd(SWS, WS_SIZE)
A(f"""v_lshrrev_b32 v2, 3, v{vL}
v_mul_u32_u24 v3, 2752, v2
v_and_b32 v4, 7, v{vL}
v_lshl_add_u32 v5, v4, 4, v3
s_and_b32 s31, s{sP}, 7
s_lshl_b32 s31, s31, 6
s_lshl_b32 s32, s{sW}, 4
s_add_u32 s31, s31, s32
s_mul_i32 s31, s31, 2752
s_lshr_b32 s32, s{sGU}, 3
s_lshl_b32 s32, s32, 7
s_add_u32 s31, s31, s32
s_cmp_ge_u32 s{sGU}, {0 if (opts.get("nogw") or LGW >= 0) else 176}
s_cselect_b32 s31, 0x40000000, s31
s_add_u32 s32, s31, {8*2752}""")
def gw_issue():
    A(f"""buffer_load_dwordx4 {R(GW,4)}, v5, {SR(SWG)}, s31 offen
buffer_load_dwordx4 {R(GW+4,4)}, v5, {SR(SWU)}, s31 offen
buffer_load_dwordx4 {R(GW+8,4)}, v5, {SR(SWG)}, s32 offen
buffer_load_dwordx4 {R(GW+12,4)}, v5, {SR(SWU)}, s32 offen""")
if int(opts.get("d2", 1)):
    A(f"""v_mov_b32 v40, 0
v_mov_b32 v41, 0
v_mov_b32 v42, 0
v_mov_b32 v43, 0
v_mov_b32 v48, 0x3f803f80
v_sub_u32 v47, 2047, v62
v_and_b32 v46, 7, v62
v_lshlrev_b32 v46, 4, v46
v_add_u32 v46, {L_RT}, v46
s_mov_b32 s26, 0xffff0000""")
    PREW = int(opts.get("prew", 0))
    def prewrite():
        A(f"""s_lshl_b32 s20, s{sW}, 12
s_add_u32 s21, s33, s20
s_lshl_b32 s22, s{sW}, 10
s_add_u32 s22, s34, s22
s_lshl_b32 s23, s{sI}, 4
s_add_u32 s23, s23, s{sC}
s_and_b32 s24, s{sW}, 1
s_lshl_b32 s24, s24, 3
s_add_u32 s23, s23, s24
s_lshl_b32 s24, s23, 12
s_lshr_b32 s25, s{sW}, 1
s_lshl_b32 s25, s25, 11
s_add_u32 s24, s24, s25
s_add_u32 s24, s24, {WS_O}
s_lshl_b32 s23, s23, 10
s_add_u32 s23, s23, {WS_OC}""")
        if PREW & 1:
            for k in range(4): A(f"buffer_store_dwordx4 {R(ACC,4)}, v{vBA}, {SR(SWS)}, s21 offen offset:{k*1024} sc1")
            A(f"buffer_store_dwordx4 {R(ACC,4)}, v{vBA}, {SR(SWS)}, s22 offen sc1")
        if PREW & 2:
            for k in range(2): A(f"buffer_store_dwordx4 {R(ACC,4)}, v{vBA}, {SR(SWS)}, s24 offen offset:{k*1024} sc1")
            A(f"buffer_store_dwordx4 {R(ACC,4)}, v{vBA}, {SR(SWS)}, s23 offen sc1")
    NPW = (5 if PREW & 1 else 0) + (3 if PREW & 2 else 0)
    if PREW: prewrite()
    A(f"s_waitcnt vmcnt({2 + NPW})")
    TS(1)
    if int(opts.get("np1", 0)): A(f"s_lshl_b32 s24, s{sW}, 8\nbuffer_load_dword v60, v{vZ}, {SR(SDBG)}, s24 offen sc1")
    for k in range(8): A(f"v_dot2_f32_bf16 v40, v{8+k}, v48, v40\nv_dot2_f32_bf16 v41, v{8+k}, v{8+k}, v41")
    A("s_waitcnt vmcnt(%d)" % NPW)
    for k in range(8): A(f"v_dot2_f32_bf16 v42, v{8+k}, v{16+k}, v42\nv_dot2_f32_bf16 v43, v{16+k}, v48, v43")
    for m in DPP8 + ("row_mirror",):
        for r in range(4): A(dpp("v_add_f32", 40 + r, m))
    for r in range(4): A(f"v_mov_b32 v{24+r}, v{40+r}")
    for r in range(4): A(f"v_permlane16_swap_b32 v{40+r}, v{24+r}")
    for r in range(4): A(f"v_add_f32 v{40+r}, v{40+r}, v{24+r}")
    A(f"""v_mul_f32 v40, {f32(1.0/512)}, v40
v_mul_f32 v41, {f32(1.0/512)}, v41
v_fma_f32 v41, -v40, v40, v41
v_max_f32 v41, 0, v41""")
    bf16round(40, 40)
    A("v_fma_f32 v42, -v40, v43, v42")
    var_to_rinv(41)
    A("v_mul_f32 v42, v42, v41")
    bf16round(42, 42)
    A(f"""v_ashrrev_i32 v45, 31, v42
v_or_b32 v45, 0x80000000, v45
v_xor_b32 v42, v42, v45
v_and_or_b32 v42, v42, s26, v47
ds_write_b96 v46, v[40:42]""")
else:
    A("s_waitcnt vmcnt(2)")
    TS(1)
    XU = 24
    for k in range(8):
        A(f"v_lshlrev_b32 v{XU+2*k}, 16, v{8+k}\nv_and_b32 v{XU+2*k+1}, 0xffff0000, v{8+k}")
    A(f"v_pk_add_f32 v[40:41], {R(XU,2)}, {R(XU+2,2)}")
    for k in range(4, 16, 2): A(f"v_pk_add_f32 v[40:41], v[40:41], {R(XU+k,2)}")
    A("v_add_f32 v40, v40, v41")
    allreduce32(40, 41, "v_add_f32")
    A(f"v_mul_f32 v40, {f32(-1.0/512)}, v40")
    A("v_cvt_pk_bf16_f32 v42, -v40, -v40\nv_and_b32 v42, 0xffff0000, v42")
    A(f"v_pk_add_f32 v[46:47], {R(XU,2)}, v[40:41] op_sel_hi:[1,0]\nv_pk_mul_f32 v[44:45], v[46:47], v[46:47]")
    for k in range(2, 16, 2):
        A(f"v_pk_add_f32 v[46:47], {R(XU+k,2)}, v[40:41] op_sel_hi:[1,0]\nv_pk_fma_f32 v[44:45], v[46:47], v[46:47], v[44:45]")
    A("v_add_f32 v43, v44, v45")
    allreduce32(43, 41, "v_add_f32")
    for k in range(0, 16, 2): A(f"v_pk_add_f32 {R(XU+k,2)}, {R(XU+k,2)}, v[42:43] op_sel_hi:[1,0] neg_lo:[0,1] neg_hi:[0,1]")
    A(f"v_mul_f32 v43, {f32(1.0/512)}, v43")
    for k in range(8): A(f"v_cvt_pk_bf16_f32 v{8+k}, v{XU+2*k}, v{XU+2*k+1}")
    var_to_rinv(43)
    for k in range(8):
        A(f"v_lshlrev_b32 v{XU+2*k}, 16, v{8+k}\nv_and_b32 v{XU+2*k+1}, 0xffff0000, v{8+k}")
    for k in range(0, 16, 2): A(f"v_pk_mul_f32 {R(XU+k,2)}, {R(XU+k,2)}, v[42:43] op_sel:[0,1]")
    for k in range(8): A(f"v_cvt_pk_bf16_f32 v{8+k}, v{XU+2*k}, v{XU+2*k+1}")
    A("v_mov_b32 v44, 0\ns_waitcnt vmcnt(0)")
    for k in range(8): A(f"v_dot2_f32_bf16 v44, v{8+k}, v{16+k}, v44")
    allreduce32(44, 41, "v_add_f32")
    bf16round(44, 44)
    A(f"""v_ashrrev_i32 v45, 31, v44
v_or_b32 v45, 0x80000000, v45
v_xor_b32 v44, v44, v45
v_and_b32 v44, 0xffff0000, v44
v_sub_u32 v45, 2047, v62
v_or_b32 v44, v44, v45
v_and_b32 v46, 7, v62
v_lshlrev_b32 v46, 4, v46
v_add_u32 v46, {L_RT}, v46
ds_write_b96 v46, v[42:44]
""")
A(f"""s_waitcnt lgkmcnt(0)
s_add_u32 s{sNONCE}, s{sNONCE}, 1""")
A(f"v_mov_b32 v44, s{sNONCE}\nv_mov_b32 v45, {L_NONCE}\nds_write_b32 v45, v44")
if PWS:
    A(f"""v_mov_b32 v43, s{sNONCE}
v_lshlrev_b32 v44, 4, v62
s_mov_b32 s24, 1
s_mov_b32 s25, 1
s_mov_b32 s27, {WS_STATS}
s_mov_b64 exec, s[24:25]
buffer_store_dwordx4 v[40:43], v44, {SR(SWS)}, s27 offen sc1
s_mov_b64 exec, -1""")
A(f"""s_setprio {int(opts.get("prio", 2))}""")
if GWP == 2: gw_issue()
A('v_mov_b32 v54, v5')
TS(2)
A("s_waitcnt lgkmcnt(0)")
A(f"s_cmp_ge_u32 s{sW}, 2\ns_cbranch_scc1 L_vwave")

def kv_reads(n):
    u = n // 4; st = n % 4; b = STB + 12 * (n % 6)
    out = [f"ds_read_b128 {R(b+4*qb,4)}, v{vXA+st} offset:{u*8192 + qb*4096}" for qb in range(2)]
    for j in range(2):
        r, o = wa(slot_of(u), st * 4096 + j * 512)
        out.append(f"ds_read_b64_tr_b16 {R(b+8+2*j,2)}, v{r} offset:{o}")
    return out
def kv_mm(n, isK, cs=True):
    b = STB + 12 * (n % 6)
    out = [csum_mfma(b + 8)] if cs else []
    for qb in range(2):
        c0 = 0 if n == 0 else None
        out.append(mfma32(ACC + 16 * qb, b + 8, b + 4 * qb, c0) if isK else mfma32(ACC + 16 * qb, b + 4 * qb, b + 8, c0))
    return out
def kv_interval(u, isK, fill=(), post_reads=()):
    rd = [x for n in range(4 * u, 4 * u + 4) for x in kv_reads(n)]
    old = [x for n in (4 * u - 2, 4 * u - 1) if n >= 0 for x in kv_mm(n, isK)]
    fill = list(fill)
    per = (len(fill) + 5) // 6
    emit(rd[:4])
    rest = rd[4:]
    for m in old:
        A(m); emit(rest[:2]); rest = rest[2:]
    emit(rest)
    for k, n in enumerate((4 * u, 4 * u + 1)):
        A(f"s_waitcnt lgkmcnt({12 - 4*k})")
        for m in kv_mm(n, isK):
            A(m); emit(fill[:per]); fill = fill[per:]
    emit(post_reads)
    A("s_waitcnt lgkmcnt(0)")
BT = 68
def best_issue(): A(f"buffer_load_dwordx4 {R(BT,4)}, v{vBA}, {SR(SWS)}, s35 offen sc1")
def nonce_issue(): A(f"buffer_load_dword v60, v{vZ}, {SR(SDBG)}, 0 offen sc1")
CX0, CX1, CW = 40, 44, 56
def publish():
    lb = A.newlabel("L_np")
    A(f"s_cmp_lg_u32 s{sW}, 0\ns_cbranch_scc1 {lb}")
    A(f"""v_mov_b32 v51, s{sNONCE}
s_lshl_b32 s20, s{sP}, 4
s_add_u32 s20, s20, {WS_BEST}
s_lshl_b32 s21, s{sP}, 7
s_add_u32 s21, s21, {WS_STATS}
s_mov_b64 exec, 0xff""")
    if not PWS: A(f"buffer_store_dwordx4 v[48:51], v{vBA}, {SR(SWS)}, s21 offen sc1")
    A("v_mov_b32 v52, v50")
    for m in DPP8: A(dpp("v_max_u32", 52, m))
    A(f"""v_cmp_eq_u32 vcc, v52, v50
s_mov_b64 exec, vcc
buffer_store_dwordx4 v[48:51], v{vZ}, {SR(SWS)}, s20 offen sc1
s_mov_b64 exec, -1""")
    A.label(lb)
def cw_loop(isK):
    for u in range(8):
        TSL(16 + u)
        A("s_barrier")
        TSL(24 + u)
        fill = []; post = []
        if u == PUBU and isK:
            fill = [f"v_and_b32 v53, 0x70, v{vBA}", f"v_add_u32 v53, {L_RT}, v53"]; post = ["ds_read_b96 v[48:50], v53"]
        if u in (1, 2): fill = split(capture(attn_setup_s), 2)[u - 1] if False else (capture(attn_setup_s)[:25] if u == 1 else capture(attn_setup_s)[25:])
        if u == 4: fill = capture(attn_setup_v)
        if u == 3:
            fill = capture(lambda: A(f"""v_mov_b32 v{CW+2}, 0
v_mov_b32 v{CW+3}, 0
v_lshrrev_b32 v64, 1, v{vSA}
v_add_u32 v64, {L_STAT}, v64
v_mov_b32 v66, {L_NONCE}"""))
            if isK:
                fill += capture(lambda: A(f"""s_lshl_b32 s20, s{sCT}, 11
v_add_u32 v{vKA}, s20, v{vBA}
v_lshrrev_b32 v{vKC}, 1, v{vKA}"""))
            else:
                fill += capture(lambda: A(f"""v_and_b32 v2, 0x2f, v{vL}
v_bfe_u32 v3, v{vL}, 4, 1
s_lshl_b32 s20, s{sCT}, 1
v_add_u32 v3, s20, v3
v_lshlrev_b32 v{vKA}, 4, v2
v_lshl_add_u32 v{vKA}, v3, 10, v{vKA}
v_lshrrev_b32 v{vKC}, 1, v{vKA}
v_add_u32 v{vKA}, 8192, v{vKA}
v_lshrrev_b32 v65, 5, v{vL}
v_lshlrev_b32 v65, 4, v65
v_add_u32 v65, {L_RINV}, v65"""))
        if u == 7:
            fill = capture(best_issue)
            post = [f"ds_read_b64 {R(ST0,2)}, v64", f"ds_read_b64 {R(ST1,2)}, v64 offset:256"]
            if not isK:
                post += [f"ds_read_b128 {R(8+16*qb+4*a,4)}, v65 offset:{qb*128 + a*32}" for qb in range(2) for a in range(4)]
        kv_interval(u, isK, fill, post)
        TSL(32 + u)
        if u == PUBU and isK: publish()
        if GWP == 10 + u:
            A('v_mov_b32 v5, v54'); gw_issue()
    if not int(opts.get('nob8', 1)): A("s_barrier")
    TS(3)
    A(csum_mfma(STB + 12 * (30 % 6) + 8)); A(csum_mfma(STB + 12 * (31 % 6) + 8))
    mm = kv_mm(30, isK, False) + kv_mm(31, isK, False)
    A(mm[0]); corr_x(CX0, ST0)
    A(mm[1]); corr_x(CX1, ST1)
    cw = capture(lambda: corr_w(CW))
    A(mm[2]); emit(cw[:6]); A(mm[3]); emit(cw[6:])
    for qb, cx in enumerate((CX0, CX1)):
        A(mfma32(ACC + 16 * qb, CW, cx) if isK else mfma32(ACC + 16 * qb, cx, CW))
CSR = 144
def kv_store(isK):
    for qb in range(2):
        st = ST0 if qb == 0 else ST1
        for e in range(2):
            for r in range(8 * e, 8 * e + 8):
                A(f"v_mul_f32 v{ACC+16*qb+r}, v{ACC+16*qb+r}, v{st+1 if isK else 8+16*qb+r}")
            for k in range(4 * e, 4 * e + 4): A(f"v_cvt_pk_bf16_f32 v{OWN+8*qb+k}, v{ACC+16*qb+2*k}, v{ACC+16*qb+2*k+1}")
            b = OWN + 8 * qb + 4 * e; c_ = CSR + 2 * e + qb
            A(f"buffer_store_dwordx4 {R(b,4)}, v{vKA}, {SR(SWS)}, s{33 if qb == 0 else 36} offen offset:{e*(1024 if isK else 256)} sc1")
            A(f"v_add3_u32 v{c_}, v{b}, v{b+1}, v{b+2}\nv_add3_u32 v{c_}, v{c_}, v{b+3}, s{sNONCE}")
    for e in range(2):
        A(f"buffer_store_dwordx2 {R(CSR+2*e,2)}, v{vKC}, {SR(SWS)}, s34 offen offset:{e*512 if isK else 2048+e*128} sc1")

cw_loop(True); kv_store(True)
A("s_mov_b32 s39, 1024\ns_branch L_cpost")
A.label("L_vwave")
cw_loop(False); kv_store(False)
A("s_mov_b32 s39, 256")
A.label("L_cpost")
TS(4)
A("s_setprio 0")
WOW = int(opts.get("wow", 0))
if WOW:
    A(f"""s_and_b32 s20, s{sI}, 7
s_lshl_b32 s20, s20, 2
s_add_u32 s20, s20, s{sW}
s_lshl_b32 s20, s20, 14
s_and_b32 s21, s{sC}, 3
s_lshl_b32 s21, s21, 8
s_add_u32 s20, s20, s21""")
    for k in range(4): A(f"buffer_load_dwordx4 {R(176+4*k,4)}, v{vWO+k}, {SR(SWO)}, s20 offen offset:{k*1024}")
validated(best_issue, lambda: A(f"v_cmp_ne_u32 vcc, s{sNONCE}, v{BT+3}"), 6 + 4 * WOW)
A(f"v_mov_b32 v{BT+4}, v{BT+2}")
allreduce32(BT + 4, BT + 5, "v_max_u32")
A(f"""v_mov_b32 v{BT+5}, v{BT+4}
v_permlane32_swap_b32 v{BT+4}, v{BT+5}
v_max_u32 v{BT+4}, v{BT+4}, v{BT+5}
s_lshl_b32 s20, s{sW}, 4
s_add_u32 s20, s20, {L_IDX}
v_mov_b32 v2, s20
v_cmp_eq_u32 vcc, v{BT+4}, v{BT+2}
s_mov_b64 exec, vcc
ds_write_b128 v2, {R(BT,4)}
s_mov_b64 exec, -1
""")
def winner():
    A(f"v_mov_b32 v5, v{SB+2}")
    for m in DPP8[:2]: A(dpp("v_max_u32", 5, m))
    A(f"""v_cmp_eq_u32 vcc, v5, v{SB+2}
v_readfirstlane_b32 s{sKEY}, v5
s_ff1_i32_b32 s20, vcc_lo
v_readlane_b32 s{sSM}, v{SB}, s20
v_readlane_b32 s{sSR}, v{SB+1}, s20""")
A(f"""v_and_b32 v4, 3, v{vL}
v_lshlrev_b32 v4, 4, v4
v_add_u32 v4, {L_IDX}, v4
v_add_u32 v2, {L_OWN}, v{vKA}
v_add_u32 v3, s39, v2
v_and_b32 v72, 7, v{vL}
v_lshlrev_b32 v72, 2, v72
v_mov_b32 v74, v{vSA}
s_waitcnt lgkmcnt(0)
s_barrier""")
TS(48)
A(f"""ds_read_b128 {R(SB,4)}, v4
ds_write_b128 v2, {R(OWN,4)}
ds_write_b128 v3, {R(OWN+4,4)}
ds_write_b128 v2, {R(OWN+8,4)} offset:4096
ds_write_b128 v3, {R(OWN+12,4)} offset:4096
s_waitcnt lgkmcnt(4)""")
winner()
A(f"""s_and_b32 s24, s{sKEY}, 0x7ff
s_sub_u32 s24, 2047, s24
s_lshl_b32 s24, s24, 10
s_and_b32 s25, s{sP}, 7
s_lshl_b32 s25, s25, 7
s_add_u32 s24, s24, s25
s_lshl_b32 s25, s{sW}, 5
s_add_u32 s24, s24, s25
buffer_load_dword v73, v72, {SR(SX)}, s24 offen""")
A(f"""s_cmp_ge_u32 s{sC}, 4
s_cselect_b64 s[20:21], -1, 0
v_cndmask_b32_e64 v{vPM}, v{ST0}, v{ST1}, s[20:21]
v_cndmask_b32_e64 v{vPR}, v{ST0+1}, v{ST1+1}, s[20:21]
""")
A(f"""v_bfe_u32 v4, v{vL}, 4, 1
v_lshlrev_b32 v4, 6, v4
v_xor_b32 v2, v{vEX}, v4""")
if LGW < 0:
    for k in range(4): A(f"ds_write_b128 v2, {R(GW+4*k,4)} offset:{k*1024}")
v_prefill(4)
A("s_waitcnt vmcnt(1)")
TS(49)
k_issue()
TS(50)
v_issue()
TS(51)
A(f"""s_waitcnt vmcnt(12)
v_lshlrev_b32 v2, 16, v73
v_and_b32 v3, 0xffff0000, v73
v_subrev_f32 v2, s{sSM}, v2
v_subrev_f32 v3, s{sSM}, v3
v_cvt_pk_bf16_f32 v4, v2, v3
v_lshlrev_b32 v2, 16, v4
v_and_b32 v3, 0xffff0000, v4
v_mul_f32 v2, s{sSR}, v2
v_mul_f32 v3, s{sSR}, v3
v_cvt_pk_bf16_f32 v4, v2, v3
s_add_u32 s25, s25, {L_XSEL}
v_add_u32 v72, s25, v72
ds_write_b32 v72, v4
v_mov_b32 v75, v{vWA1}""")

A.label("L_join")
TS(5); RC(41)
A("s_waitcnt lgkmcnt(0)\ns_barrier")
A(f"""s_lshl_b32 s20, s{sROLE}, 12
s_add_u32 s21, s20, {L_QF}
s_xor_b32 s20, s20, 4096
s_add_u32 s20, s20, {L_QF}
v_add_u32 v2, s21, v{vRK}
v_add_u32 v3, s20, v{vRK}
ds_read_b128 {R(QF,4)}, v2
ds_read_b128 {R(QF+4,4)}, v3""")
lb = A.newlabel("L_noown"); lb2 = A.newlabel("L_noown2")
A(f"s_cmp_lg_u32 s{sROLE}, 0\ns_cbranch_scc1 {lb}")
A(f"""v_add_u32 v2, {L_OWN}, v{vRK}
v_and_b32 v4, 3, v{vL}
v_lshlrev_b32 v4, 4, v4
v_add_u32 v4, {L_IDX}, v4
ds_read_b128 {R(SB,4)}, v4
ds_read_b128 {R(Kf(4),4)}, v2
ds_read_b128 {R(Kf(5),4)}, v2 offset:4096
ds_read_b128 {R(Vf(4,0),4)}, v2 offset:8192
ds_read_b128 {R(Vf(5,0),4)}, v2 offset:12288
s_branch {lb2}""")
A.label(lb)
GX = 144; GF = 160
A(f"""s_cmp_ge_u32 s{sGU}, 176
s_cbranch_scc1 {lb2}
s_cmp_ge_u32 s{sW}, 2
s_cbranch_scc1 {lb2}
v_lshrrev_b32 v2, 5, v{vL}
v_lshlrev_b32 v2, 4, v2
v_add_u32 v2, {L_XSEL}, v2""")
for st in range(4): A(f"ds_read_b128 {R(GX+4*st,4)}, v2 offset:{st*32}")
for st in range(4):
    for m in range(2):
        for j in range(2):
            A(f"ds_read_b64_tr_b16 {R(GF+8*st+4*m+2*j,2)}, v75 offset:{16384 + m*1024 + st*4096 + j*512}")
A.label(lb2)
A("s_waitcnt lgkmcnt(0)\ns_barrier")
TS(6)
def g_stage():
    lb = A.newlabel("L_nog"); lb2 = A.newlabel("L_nog2")
    A(f"s_cmp_ge_u32 s{sGU}, 176\ns_cbranch_scc1 {lb}\ns_cmp_ge_u32 s{sW}, 2\ns_cbranch_scc1 {lb}")
    for st in range(4):
        for m in range(2): A(mfma32(ACC + 16 * m, GX + 4 * st, GF + 8 * st + 4 * m, None if st else 0))
    A(f"""s_and_b32 s20, s{sP}, 7
s_mul_i32 s20, s20, {1408*16}
s_lshr_b32 s21, s{sGU}, 3
s_lshl_b32 s21, s21, 10
s_add_u32 s20, s20, s21
s_lshl_b32 s21, s{sW}, 9
s_add_u32 s20, s20, s21
s_add_u32 s20, s20, {WS_GP}
v_mov_b32 v{GW+2}, s{sNONCE}
v_mov_b32 v{GW+3}, s{sNONCE}
s_mov_b32 s22, -1
s_mov_b32 s23, 0
v_mov_b32 v{GW}, v{ACC}
v_mov_b32 v{GW+1}, v{ACC+16}
s_mov_b64 exec, s[22:23]
buffer_store_dwordx4 {R(GW,4)}, v74, {SR(SWS)}, s20 offen sc1
s_mov_b64 exec, -1
s_branch {lb2}""")
    A.label(lb)
    A(f"s_mov_b32 s20, 0x40000000\nbuffer_load_dword v254, v74, {SR(SWS)}, s20 offen")
    A.label(lb2)

GPR = 208
def gp_issue():
    A(f"s_lshl_b32 s36, s{sDI}, 9\ns_add_u32 s36, s36, {WS_GP}")
    for q in range(4): A(f"buffer_load_dwordx4 {R(GPR+4*q,4)}, v255, {SR(SWS)}, s36 offen sc1\ns_add_u32 s36, s36, {2*1408*16}")
def gp_check():
    for q in range(4): A(f"v_xor_b32 v{2+q}, s{sNONCE}, v{GPR+4*q+2}")
    A("v_or3_b32 v2, v2, v3, v4\nv_or_b32 v2, v2, v5\nv_cmp_ne_u32 vcc, 0, v2")
def wd_loads():
    A(f"""s_lshl_b32 s37, s{sDI}, 15
s_lshl_b32 s20, s{sHH}, 8
s_add_u32 s37, s37, s20
v_lshrrev_b32 v2, 4, v{vL}
v_and_b32 v3, 15, v{vL}
v_lshlrev_b32 v3, 4, v3
v_lshl_add_u32 v2, v2, 10, v3""")
    for n in range(8): A(f"buffer_load_dwordx4 {R(DG[n],4)}, v2, {SR(SWD)}, s37 offen\ns_add_u32 s37, s37, 4096")
def wd_issue():
    lb = A.newlabel("L_nwd")
    A(f"s_cmp_ge_u32 s{sDI}, 43\ns_cbranch_scc1 {lb}")
    wd_loads()
    A.label(lb)
def gp_request(pad):
    def h():
        lb = A.newlabel("L_ngp")
        A(f"s_cmp_ge_u32 s{sDI}, 43\ns_cbranch_scc1 {lb}")
        gp_issue()
        if pad: A("s_waitcnt vmcnt(0)")
        A.label(lb)
    return h
def d_block():
    A(f"s_cmp_ge_u32 s{sDI}, 43\ns_cbranch_scc1 L_dend")
    A(f"""v_lshrrev_b32 v3, 4, v{vL}
v_lshlrev_b32 v3, 6, v3
v_xor_b32 v2, v{vEX}, v3
v_xor_b32 v24, {0x4000 if DPOS == 0 else 0}, v2
v_lshrrev_b32 v3, 5, v{vL}
v_bfe_u32 v4, v{vL}, 2, 2
v_lshlrev_b32 v5, 8, v4
v_lshl_add_u32 v5, v3, 11, v5
v_lshl_add_u32 v5, v4, 6, v5
v_bfe_u32 v3, v{vL}, 4, 1
v_lshl_add_u32 v5, v3, 5, v5
v_and_b32 v3, 3, v{vL}
v_lshl_add_u32 v5, v3, 3, v5
s_xor_b32 s38, s{sW}, {4 if DPOS == 0 else 0}
s_lshl_b32 s38, s38, 12
s_add_u32 s38, s38, {L_TAIL}
v_add_u32 v25, s38, v5
v_xor_b32 v26, 64, v25
v_xor_b32 v27, 128, v25
v_xor_b32 v28, 192, v25
s_waitcnt vmcnt(DWAIT+4)""".replace('DWAIT+4', str(DW + 4)))
    for rd in range(2):
        for k in range(4): A(f"ds_write_b128 v24, {R(DG[4*rd+k],4)} offset:{k*1024}")
        for t in range(4):
            for j in range(2): A(f"ds_read_b64_tr_b16 {R(DG[4*rd+t]+2*j,2)}, v{25+t} offset:{j*1024}")
    validated(gp_issue, gp_check, DW)
    A(f"""v_add_f32 v2, v{GPR}, v{GPR+4}
v_add_f32 v3, v{GPR+1}, v{GPR+5}
v_add_f32 v4, v{GPR+8}, v{GPR+12}
v_add_f32 v5, v{GPR+9}, v{GPR+13}
v_add_f32 v2, v2, v4
v_add_f32 v3, v3, v5
v_mov_b32 v4, v2
v_mov_b32 v5, v3
v_permlane32_swap_b32 v2, v4
v_permlane32_swap_b32 v3, v5
v_add_f32 v2, v2, v4
v_add_f32 v3, v3, v5""")
    bf16round(2, 2); bf16round(3, 3)
    A(f"""v_mul_f32 v4, {f32(-LOG2E)}, v2
v_exp_f32 v4, v4
v_add_f32 v4, 1.0, v4
v_rcp_f32 v4, v4
v_mul_f32 v2, v2, v4""")
    bf16round(2, 2)
    A(f"""v_mul_f32 v2, v2, v3
v_cvt_pk_bf16_f32 v2, v2, v2
v_and_b32 v3, 31, v{vL}
v_lshl_add_u32 v3, v3, 1, s38
ds_write_b16 v3, v2
v_lshrrev_b32 v3, 5, v{vL}
v_lshl_add_u32 v3, v3, 4, s38
ds_read_b128 {R(32,4)}, v3
ds_read_b128 {R(36,4)}, v3 offset:32
s_lshl_b32 s20, s{sDI}, 12
s_lshl_b32 s21, s{sHH}, 10
s_add_u32 s20, s20, s21
s_add_u32 s20, s20, {WS_YP}
s_mov_b32 s22, 0
s_mov_b32 s23, -1
v_lshlrev_b32 v2, 4, v{vL}
v_mov_b32 v42, s{sNONCE}
v_mov_b32 v43, s{sNONCE}
s_waitcnt lgkmcnt(0)""")
    DB = [SB, SB + 16, SB + 32, 48]
    for st in range(2):
        for t in range(4): A(mfma32(DB[t], 32 + 4 * st, DG[4 * st + t], None if st else 0))
    A(f"""v_cndmask_b32_e64 v40, v{DB[0]}, v{DB[2]}, s[22:23]
v_cndmask_b32_e64 v41, v{DB[1]}, v{DB[3]}, s[22:23]
buffer_store_dwordx4 {R(40,4)}, v2, {SR(SWS)}, s20 offen sc1
""")
    A.label("L_dend")
def wo_dma4():
    return [f"""s_and_b32 s26, s{sWB}, 3
s_add_u32 s{sWB}, s{sWB}, 1
s_lshl_b32 s27, s26, 12
s_add_u32 m0, s27, s{sM0}
s_lshl_b32 s27, s26, 14
s_add_u32 s27, s27, s{sWOD}"""] + [f"buffer_load_dwordx4 v{vWO+k}, {SR(SWO)}, s27 offen offset:{k*1024} lds" for k in range(4)]
def kv_check(base, cs):
    for k in range(4):
        b = base(k)
        A(f"v_add3_u32 v{2+k}, v{b}, v{b+1}, v{b+2}\nv_add3_u32 v{2+k}, v{2+k}, v{b+3}, s{sNONCE}\nv_xor_b32 v{2+k}, v{2+k}, v{cs+k}")
    A(f"""v_or_b32 v2, v2, v3
v_or_b32 v4, v4, v5
v_and_b32 v2, s{sH1}, v2
v_and_or_b32 v2, v4, s{sH2}, v2
v_cmp_ne_u32 vcc, 0, v2""")
def k_check(): kv_check(Kf, KC)
def v_check(): kv_check(lambda k: Vf(k, 0), VC)
def vswap(ks):
    for k in ks:
        for r in range(4): A(f"v_permlane16_swap_b32 v{Vf(k,0)+r}, v{Vf(k,1)+r}")
def Q(q): return QF + 4 * q
def smf(dst, k, q, c): return mfma32(dst, Kf(k), Q(q), c)
SEG = lambda k0: [(k0, 0, None), (k0, 1, None), (k0 + 1, 0, None), (k0 + 1, 1, None)]
B3 = [SB, SB + 16, SB + 32]
def nm(q): return R(NM + 16 * q, 16)
def p2_run(jobs, cfun, fresh, extra={}, mem={}):
    n = len(jobs)
    pend = []
    A(smf(B3[0], jobs[0][0], jobs[0][1], cfun(jobs[0][1])))
    for t in range(n):
        k, q, mask = jobs[t]; b = B3[t % 3]
        side = []
        if t + 1 < n: side.append(smf(B3[(t + 1) % 3], jobs[t + 1][0], jobs[t + 1][1], cfun(jobs[t + 1][1])))
        side += pend
        val = [f"v_exp_f32 v{b+r}, v{b+r}" for r in range(16)]
        val += [f"v_cvt_pk_bf16_f32 v{b+j}, v{b+2*j}, v{b+2*j+1}" for j in range(8)]
        if mask == "old": val += [f"v_and_b32 v{b+j}, v{b+j}, v{MK+j}" for j in range(8)]
        if mask == "diag": val += [f"v_bfi_b32 v{b+j}, v{MK+j}, 0, v{b+j}" for j in range(8)]
        mm_ = mem.get(t, [])
        if mm_:
            step = len(val) // len(mm_)
            for q_, x in enumerate(mm_): val[q_ * step + step // 2] += "\n" + x
        vi = 0
        for sx in side:
            A(sx); emit(val[vi:vi + 5]); vi += 5
        emit(val[vi:])
        for fn in extra.get(t, []): fn()
        pend = [mfma32(OA + 16 * q, Vf(k, g), b + 4 * g, 0 if (q in fresh and g == 0) else None) for g in range(2)]
        fresh.discard(q)
    emit(pend)
zero = lambda q: 0
XR = 80
dma = lambda: emit(wo_dma4())
def wo_ops():
    out = []
    for b in range(4):
        l = wo_dma4(); out += [l[0] + "\n" + l[1]] + l[2:]
    return out
def dma_upto(n):
    lt = A.newlabel("L_du"); le = A.newlabel("L_de")
    A.label(lt)
    A(f"s_sub_u32 s20, s{sWE}, {4-n}\ns_cmp_ge_u32 s{sWB}, s20\ns_cbranch_scc1 {le}")
    dma()
    A(f"s_branch {lt}")
    A.label(le)
def after_v(isC, wait):
    def h():
        validated(v_issue, v_check, wait)
        vswap(range(4))
        if isC:
            for pr in range(2):
                A(f"buffer_load_dwordx4 {R(XR+4*pr,4)}, v{vOUT}, {SR(SX)}, s{sOUTO} offen offset:{pr*32}")
            if int(opts.get("opt", 0)) == 1:
                A(f"""s_lshl_b32 s20, s{sI}, 4
s_add_u32 s20, s20, s{sC}
s_and_b32 s21, s{sW}, 1
s_lshl_b32 s21, s21, 3
s_add_u32 s20, s20, s21
s_cmp_ge_u32 s{sW}, 2
s_cselect_b32 s21, 10, 12
s_mov_b32 s22, {WS_O}
s_cselect_b32 s22, {WS_OC}, s22
s_cselect_b32 s24, 0xff, -1
s_mov_b32 s25, 0
s_lshl_b32 s20, s20, s21
s_add_u32 s20, s20, s22
v_lshlrev_b32 v2, 7, v{vL}
s_mov_b64 exec, s[24:25]
buffer_load_dword v254, v2, {SR(SWS)}, s20 offen sc1
s_mov_b64 exec, -1""")
        if int(opts.get("opt", 0)) == 4:
            A(f"""s_lshl_b32 s20, s{sI}, 1
s_add_u32 s20, s20, s{sROLE}
s_lshl_b32 s20, s20, 3
s_add_u32 s20, s20, s{sC}
s_lshl_b32 s21, s20, 10
s_add_u32 s21, s21, {WS_OC}
s_lshl_b32 s20, s20, 12
s_add_u32 s20, s20, {WS_O}
v_lshrrev_b32 v5, 2, v{vRK}
v_add3_u32 v4, v{QF}, v{QF+1}, v{QF+2}
v_add3_u32 v4, v4, v{QF+3}, s{sNONCE}
v_add_u32 v4, 1, v4
buffer_store_dwordx4 {R(QF,4)}, v{vRK}, {SR(SWS)}, s20 offen sc1
buffer_store_dword v4, v5, {SR(SWS)}, s21 offen sc1""")
        TS(9); RC(43)
    return h
def k_valid(first_wait):
    validated(lambda: (k_issue(), v_issue()), k_check, first_wait)
    TS(7); RC(42)
def sched(ops, plan):
    out = {}; k = 0
    for t, n in plan:
        out[t] = ops[k:k + n]; k += n
    assert k == len(ops)
    return out
OWNJ = [(4, 0, "diag"), (5, 1, "diag"), (4, 1, None)]
OLDJ = [(3, 0, None), (2, 0, "old"), (3, 1, "old")]
CPL = eval(opts.get('cpl', '[]')); LPL = eval(opts.get('lpl', '[(1,4),(5,4),(6,4)]'))
NCB = sum(n for t, n in CPL) // 4
A(f"s_cmp_eq_u32 s{sROLE}, 0\ns_cbranch_scc1 L_fA")
g_stage()
TS(8)
k_valid(7)
lb = A.newlabel("L_fb1"); lb2 = A.newlabel("L_fb0")
A(f"s_cmp_eq_u32 s{sH1}, 0\ns_cbranch_scc1 {lb}")
p2_run(SEG(0) + SEG(2), zero, {0, 1}, {0: [after_v(1, 1)]}, sched(wo_ops()[:4*NCB], CPL))
A("s_branch L_fchk")
A.label(lb)
A(f"s_cmp_eq_u32 s{sH2}, 0\ns_cbranch_scc1 {lb2}")
p2_run(SEG(2), zero, {0, 1}, {0: [after_v(1, 1), wd_issue]})
dma_upto(NCB)
A("s_branch L_fchk")
A.label(lb2)
after_v(1, 1)()
wd_issue()
dma_upto(NCB)
for r in range(32): A(f"v_mov_b32 v{OA+r}, 0")
A(f"v_mov_b32 v{vM0}, {f32(-1e30)}\nv_mov_b32 v{vM1}, {f32(-1e30)}")
A("s_branch L_p2done")
A.label("L_fA")
GQ = int(opts.get("gq", 4)); DW = sum(n for t, n in LPL if t > GQ)
winner()
vswap((4, 5))
A('s_setprio %d' % int(opts.get('lprio', 1)))
lb = A.newlabel("L_fa1"); lb2 = A.newlabel("L_fa0")
A(f"s_cmp_eq_u32 s{sH1}, 0\ns_cbranch_scc1 {lb2}")
p2_run(OWNJ, zero, {0, 1}, {}, sched(capture(k_issue) + capture(v_issue), [(0, 6), (1, 3), (2, 3)]))
TS(8)
k_valid(6)
A(f"s_cmp_eq_u32 s{sH2}, 0\ns_cbranch_scc1 {lb}")
p2_run(SEG(0) + OLDJ, zero, set(), {0: [after_v(0, 0), wd_issue], GQ: [gp_request(0)]}, sched(wo_ops()[:sum(n for t, n in LPL)], LPL))
A("s_branch L_fchk")
A.label(lb)
p2_run(SEG(0), zero, set(), {0: [after_v(0, 0), wd_issue]})
gp_request(1)()
A("s_branch L_fchk")
A.label(lb2)
wd_issue()
p2_run(OWNJ, zero, {0, 1})
dma_upto(int(opts.get("sb", 1)))
A("s_waitcnt vmcnt(0)")
gp_request(1)()
A.label("L_fchk")
LO = (127 - 40) << 23; RNG = 80 << 23
if not FAST: LO, RNG = 0, 0
A(f"""v_subrev_u32 v2, {hex(LO)}, v{OA+8}
v_subrev_u32 v3, {hex(LO)}, v{OA+24}
v_max_u32 v2, v2, v3
v_cmp_le_u32 vcc, {hex(RNG) if RNG else 0}, v2
s_cbranch_vccnz L_slow""")
A.label("L_p2done")
if DPOS == 0: d_block()
PB0 = int(opts.get("pb0", 0)); NB1 = int(opts.get("nb1", 4)); MB = int(opts.get("mb", 5))
A(f"""s_cmp_lt_u32 s{sW}, 4
s_cbranch_scc1 L_npb0""")
dma_upto(4)
A(f"""s_sub_u32 s{sWOD}, s{sWOD}, {4 << 16}
s_sub_u32 s{sM0}, s{sM0}, {4 << 14}
s_add_u32 s{sWE}, s{sWE}, 4
s_add_u32 s{sWB}, s{sWB}, {NCB}""")
if PB0: dma_upto(NCB + PB0)
A.label("L_npb0")
TS(10)

def slow_path():
    A.label("L_slow")
    A("s_waitcnt vmcnt(0)")
    A(f"v_mov_b32 v{vM0}, {f32(-1e30)}\nv_mov_b32 v{vM1}, {f32(-1e30)}\nv_mov_b32 v5, {f32(-1e30)}")
    def max_run(jobs):
        for (k, q, mask) in jobs:
            m = vM0 if q == 0 else vM1
            A(smf(SB, k, q, 0))
            if mask:
                for r in range(16):
                    j0 = 8 * (r // 4) + r % 4
                    A(f"s_lshl_b32 s20, -1, {j0}\ns_lshl_b32 s21, -1, {j0+4}")
                    if mask == "diag": A(f"v_cndmask_b32_e64 v{SB+r}, v5, v{SB+r}, s[20:21]")
                    else: A(f"v_cndmask_b32_e64 v{SB+r}, v{SB+r}, v5, s[20:21]")
            for r in range(0, 16, 2): A(f"v_max3_f32 v{m}, v{SB+r}, v{SB+r+1}, v{m}")
    def groups(fn):
        l1 = A.newlabel("L_s"); l2 = A.newlabel("L_s"); l3 = A.newlabel("L_s")
        A(f"s_cmp_eq_u32 s{sH1}, 0\ns_cbranch_scc1 {l1}")
        fn(SEG(0))
        A.label(l1)
        A(f"s_cmp_eq_u32 s{sROLE}, 0\ns_cbranch_scc1 {l2}")
        fn(SEG(2))
        A(f"s_branch {l3}")
        A.label(l2)
        fn(OWNJ)
        A(f"s_cmp_eq_u32 s{sH2}, 0\ns_cbranch_scc1 {l3}")
        fn(OLDJ)
        A.label(l3)
    groups(max_run)
    A(f"""v_mov_b32 v2, v{vM0}
v_mov_b32 v3, v{vM1}
v_permlane32_swap_b32 v{vM0}, v2
v_permlane32_swap_b32 v{vM1}, v3
v_max_f32 v{vM0}, v{vM0}, v2
v_max_f32 v{vM1}, v{vM1}, v3""")
    for q, m in enumerate((vM0, vM1)):
        for r in range(16): A(f"v_sub_f32 v{NM+16*q+r}, 0, v{m}")
    for r in range(32): A(f"v_mov_b32 v{OA+r}, 0")
    groups(lambda jobs: p2_run(jobs, nm, set()))
    wd_issue()
    A("s_waitcnt vmcnt(0)\ns_branch L_p2done")

A(f"""v_xor_b32 v3, 0x4000, v{vEX}
s_lshl_b32 s20, s{sI}, 1
s_add_u32 s20, s20, s{sROLE}
s_lshl_b32 s20, s20, 3
s_add_u32 s20, s20, s{sC}
s_lshl_b32 s21, s20, 10
s_add_u32 s21, s21, {WS_OC}
s_lshl_b32 s20, s20, 12
s_add_u32 s20, s20, {WS_O}
v_lshrrev_b32 v5, 2, v{vRK}
v_mov_b32 v{OA+25}, v{vM1}
ds_write_b64 v3, {R(OA+24,2)} offset:2048
ds_write_b128 v3, {R(OA+16,4)}
ds_write_b128 v3, {R(OA+20,4)} offset:1024
s_waitcnt lgkmcnt(0)
s_barrier
ds_read_b64 {R(SB+8,2)}, v{vEX} offset:2048
ds_read_b128 {R(SB,4)}, v{vEX}
ds_read_b128 {R(SB+4,4)}, v{vEX} offset:1024
s_waitcnt lgkmcnt(2)
v_max_f32 v3, v{vM0}, v{SB+9}
v_sub_f32 v{SB+10}, v{vM0}, v3
v_sub_f32 v{SB+11}, v{SB+9}, v3
v_exp_f32 v{SB+10}, v{SB+10}
v_exp_f32 v{SB+11}, v{SB+11}
v_mul_f32 v4, v{SB+10}, v{OA+8}
v_fmac_f32 v4, v{SB+11}, v{SB+8}
v_rcp_f32 v4, v4
v_mul_f32 v{SB+10}, v{SB+10}, v4
v_mul_f32 v{SB+11}, v{SB+11}, v4
s_waitcnt lgkmcnt(0)""")
for r in range(0, 8, 2):
    A(f"v_pk_mul_f32 {R(OA+r,2)}, {R(OA+r,2)}, {R(SB+10,2)} op_sel_hi:[1,0]")
    A(f"v_pk_fma_f32 {R(OA+r,2)}, {R(SB+r,2)}, {R(SB+10,2)}, {R(OA+r,2)} op_sel:[0,1,0]")
for k in range(4): A(f"v_cvt_pk_bf16_f32 v{SB+12+k}, v{OA+2*k}, v{OA+2*k+1}")
A(f"""buffer_store_dwordx4 {R(SB+12,4)}, v{vRK}, {SR(SWS)}, s20 offen sc1
v_add3_u32 v4, v{SB+12}, v{SB+13}, v{SB+14}
v_add3_u32 v4, v4, v{SB+15}, s{sNONCE}
buffer_store_dword v4, v5, {SR(SWS)}, s21 offen sc1""")
TS(11)

A("s_waitcnt vmcnt(2)\ns_barrier")
TS(12); RC(44)

WOF = 8; XB = 136; PA = 160; OF = 176; OL = 208; OLC = 224
A(f"""s_lshl_b32 s20, s{sQK}, 3
s_add_u32 s20, s20, s{sW}
s_lshl_b32 s32, s20, 10
s_add_u32 s32, s32, {WS_OC}
s_lshl_b32 s31, s20, 12
s_add_u32 s31, s31, {WS_O}
v_lshlrev_b32 v2, 4, v{vL}
v_lshlrev_b32 v{vRV}, 2, v{vL}
s_and_b32 s33, s{sKEY}, 0x7ff
s_sub_u32 s33, 2047, s33
s_lshr_b32 s34, s33, 5""")
def o_issue():
    for k in range(4):
        A(f"buffer_load_dwordx4 {R(OL+4*k,4)}, v2, {SR(SWS)}, s31 offen offset:{k*1024} sc1")
    for k in range(4):
        A(f"buffer_load_dword v{OLC+k}, v{vRV}, {SR(SWS)}, s32 offen offset:{k*256} sc1")
def o_check():
    for k in range(4):
        b = OL + 4 * k
        A(f"v_add3_u32 v{228+k}, v{b}, v{b+1}, v{b+2}\nv_add3_u32 v{228+k}, v{228+k}, v{b+3}, s{sNONCE}\nv_xor_b32 v{228+k}, v{228+k}, v{OLC+k}")
    A("v_or3_b32 v228, v228, v229, v230\nv_or_b32 v228, v228, v231\nv_cmp_ne_u32 vcc, 0, v228")
lb = A.newlabel("L_p3l")
A(f"s_cmp_lt_u32 s{sW}, 4\ns_cbranch_scc1 L_nphb")
dma_upto(NB1)
A.label("L_nphb")
if DPOS == 1: d_block()
A(f"v_lshlrev_b32 v2, 4, v{vL}")
A(f"s_cmp_ge_u32 s{sW}, 4\ns_cbranch_scc1 {lb}w")
for pr in range(2):
    b = XR + 4 * pr
    A(f"v_permlane32_swap_b32 v{b}, v{b+2}\nv_permlane32_swap_b32 v{b+1}, v{b+3}")
for k in range(8):
    x = XR + k; p = PA + 2 * k
    A(f"""v_lshlrev_b32 v{p}, 16, v{x}
v_and_b32 v{p+1}, 0xffff0000, v{x}
v_pk_add_f32 {R(XB+8,2)}, {R(p,2)}, {R(vPM,2)} op_sel_hi:[1,0] neg_lo:[0,1] neg_hi:[0,1]
v_cvt_pk_bf16_f32 v{XB+10}, v{XB+8}, v{XB+9}
v_lshlrev_b32 v{XB+8}, 16, v{XB+10}
v_and_b32 v{XB+9}, 0xffff0000, v{XB+10}
v_pk_mul_f32 {R(XB+8,2)}, {R(XB+8,2)}, {R(vPM,2)} op_sel:[0,1]
v_cvt_pk_bf16_f32 v{XB+10}, v{XB+8}, v{XB+9}
v_lshlrev_b32 v{XB+8}, 16, v{XB+10}
v_and_b32 v{XB+9}, 0xffff0000, v{XB+10}
v_pk_add_f32 {R(p,2)}, {R(p,2)}, {R(XB+8,2)}""")
A(f"""v_lshlrev_b32 v2, 4, v{vL}
v_lshrrev_b32 v4, 5, v{vL}
v_bfe_u32 v3, v{vL}, 2, 2
v_lshl_add_u32 v5, v4, 2, v3
v_lshlrev_b32 v5, 8, v5
v_xor_b32 v3, s{sW}, v3
v_lshl_add_u32 v5, v3, 6, v5
v_bfe_u32 v3, v{vL}, 4, 1
v_lshl_add_u32 v5, v3, 5, v5
v_and_b32 v3, 3, v{vL}
v_lshl_add_u32 v5, v3, 3, v5
v_add_u32 v3, 65536, v5""")
def wo_read(g): return [f"ds_read_b64_tr_b16 {R(WOF+4*g+2*j,2)}, v{5 if g < 16 else 3} offset:{(g*4096 + j*2048) % 65536}" for j in range(2)]
for g in range(16, 32): emit(wo_read(g))
A(f"s_waitcnt vmcnt(0)\ns_branch {lb}")
A.label(lb + "w")
A(f"s_waitcnt vmcnt({4*max(0, NB1-NCB-PB0)})")
def yp_issue():
    A(f"""s_and_b32 s20, s{sC}, 3
s_lshl_b32 s20, s20, 10
s_add_u32 s20, s20, {WS_YP}
s_add_u32 s21, s20, {42*4096}
s_mul_i32 s22, s{sHH}, {11*4096}
s_add_u32 s20, s20, s22""")
    for k in range(11):
        if k == 10: A("s_min_u32 s20, s20, s21")
        A(f"buffer_load_dwordx4 {R(8+4*k,4)}, v2, {SR(SWS)}, s20 offen sc1\ns_add_u32 s20, s20, 4096")
NR = 4 * (4 - max(NB1, NCB + PB0))
TS(46)
o_issue()
if NR: dma_upto(4)
A(f"s_cmp_lg_u32 s34, s{sQK}\ns_cbranch_scc1 {lb}z")
yp_issue()
A(f"s_waitcnt vmcnt({11+NR})\ns_branch {lb}y")
A.label(lb + "z")
A(f"s_waitcnt vmcnt({NR})\ns_branch {lb}y")
A.label(lb)
TS(46)
o_issue()
TS(47)
A("s_waitcnt vmcnt(0)")
A.label(lb + "y")
o_check()
retry_check(lb)
for k in range(4):
    A(f"ds_write_b128 v{vEX}, {R(OL+4*k,4)} offset:{k*1024}")
TS(13); RC(45)
A("s_waitcnt lgkmcnt(0)\ns_barrier")
TS(14)
A(f"s_cmp_ge_u32 s{sW}, 4\ns_cbranch_scc1 L_p3help")
A(f"v_add_u32 v2, {L_TAIL}, v2")
order = list(range(16, 32)) + list(range(16))
lq = []
def ofr(n): lds(("o", n), f"ds_read_b128 {R(OF+4*(n%8),4)}, v2 offset:{order[n]*1024}")
for n in range(6): ofr(n)
wq = [x for g in range(16) for x in wo_read(g)]
for n in range(32):
    lwait(("o", n))
    A(mfma32(PA, WOF + 4 * order[n], OF + 4 * (n % 8)))
    if NR:
        if n == MB: A("s_barrier")
        if n >= MB:
            for x in wq[:3]: lds("w", x)
            wq = wq[3:]
    elif n < 16:
        for x in wo_read(n): lds("w", x)
    if n + 6 < 32: ofr(n + 6)
    if n == int(opts.get("zb", 14)):
        A(f"s_cmp_lg_u32 s34, s{sQK}\ns_cbranch_scc1 L_nzb\ns_barrier\nL_nzb:")
lb = A.newlabel("L_noz")
A(f"s_cmp_lg_u32 s34, s{sQK}\ns_cbranch_scc1 {lb}")
A(f"""s_barrier
s_lshl_b32 s20, s{sW}, 7
s_add_u32 s20, s20, 65536
v_lshlrev_b32 v3, 4, v4
v_add_u32 v3, s20, v3""")
for a in range(4): A(f"ds_read_b128 {R(OF+4*a,4)}, v3 offset:{a*32}")
A(f"""s_and_b32 s20, s33, 31
v_and_b32 v3, 31, v{vL}
v_cmp_eq_u32 vcc, s20, v3
s_and_saveexec_b64 s[{sEX}:{sEX+1}], vcc
s_waitcnt lgkmcnt(0)""")
for r in range(16): A(f"v_add_f32 v{PA+r}, v{PA+r}, v{OF+r}")
A(f"s_mov_b64 exec, s[{sEX}:{sEX+1}]")
A.label(lb)
for k in range(8): A(f"v_cvt_pk_bf16_f32 v{XB+k}, v{PA+2*k}, v{PA+2*k+1}")
for pr in range(2):
    b = XB + 4 * pr
    A(f"v_permlane32_swap_b32 v{b}, v{b+2}\nv_permlane32_swap_b32 v{b+1}, v{b+3}")
    A(f"buffer_store_dwordx4 {R(b,4)}, v{vOUT}, {SR(SOUT)}, s{sOUTO} offen offset:{pr*32}")
A("s_branch L_end")
A.label("L_p3help")
if NR:
    A(f"s_cmp_lg_u32 s34, s{sQK}\ns_cbranch_scc1 L_hw0\ns_waitcnt vmcnt(11)\ns_branch L_hw1\nL_hw0:\ns_waitcnt vmcnt(0)\nL_hw1:\ns_barrier")
A(f"""s_or_b32 s20, s2, s{sHH}
s_cmp_lg_u32 s20, 0
s_cbranch_scc1 L_noep
v_mov_b32 v200, s{sNONCE}
v_mov_b32 v201, {WS_EPOCH}
s_mov_b64 exec, 1
buffer_store_dword v200, v201, {SR(SWS)}, 0 offen sc1
s_mov_b64 exec, -1
L_noep:""")
A(f"s_cmp_lg_u32 s34, s{sQK}\ns_cbranch_scc1 L_end")
def yp_check():
    A(f"v_min3_u32 v3, v10, v14, v18\nv_max3_u32 v4, v10, v14, v18")
    for k in range(3, 11, 2): A(f"v_min3_u32 v3, v3, v{10+4*k}, v{14+4*k}\nv_max3_u32 v4, v4, v{10+4*k}, v{14+4*k}")
    A(f"v_xor_b32 v3, s{sNONCE}, v3\nv_xor_b32 v4, s{sNONCE}, v4\nv_or_b32 v3, v3, v4\nv_cmp_ne_u32 vcc, 0, v3")
validated(yp_issue, yp_check, 0)
A(f"s_cmp_eq_u32 s{sHH}, 3\ns_cselect_b32 s20, 0, 1.0")
for k in range(1, 10): A(f"v_add_f32 v8, v8, v{8+4*k}\nv_add_f32 v9, v9, v{9+4*k}")
A(f"""v_fmac_f32 v8, s20, v48
v_fmac_f32 v9, s20, v49
s_lshl_b32 s20, s{sHH}, 9
s_add_u32 s20, s20, {65536 + 1024}
v_lshl_add_u32 v3, v{vL}, 3, s20
ds_write_b64 v3, v[8:9]
s_waitcnt lgkmcnt(0)
s_barrier""")
lb = A.newlabel("L_hb")
A(f"""s_cmp_lg_u32 s{sW}, 4
s_cbranch_scc1 {lb}
ds_read_b64 v[10:11], v3 offset:512
ds_read_b64 v[12:13], v3 offset:1024
ds_read_b64 v[14:15], v3 offset:1536
s_waitcnt lgkmcnt(0)
v_add_f32 v8, v8, v10
v_add_f32 v9, v9, v11
v_add_f32 v12, v12, v14
v_add_f32 v13, v13, v15
v_add_f32 v8, v8, v12
v_add_f32 v9, v9, v13""")
bf16round(8, 8); bf16round(9, 9)
A(f"""s_and_b32 s20, s{sKEY}, 0xffff0000
s_ashr_i32 s21, s20, 31
s_not_b32 s21, s21
s_or_b32 s21, s21, 0x80000000
s_xor_b32 s20, s20, s21
s_and_b32 s20, s20, 0xffff0000
v_mov_b32 v3, s20
v_mul_f32 v3, {f32(-LOG2E)}, v3
v_exp_f32 v3, v3
v_add_f32 v3, 1.0, v3
v_rcp_f32 v3, v3""")
bf16round(3, 3)
A("v_mul_f32 v8, v8, v3\nv_mul_f32 v9, v9, v3")
bf16round(8, 8); bf16round(9, 9)
A(f"""v_lshrrev_b32 v3, 5, v{vL}
v_lshlrev_b32 v3, 8, v3
v_and_b32 v4, 31, v{vL}
v_lshl_add_u32 v3, v4, 2, v3
v_add_u32 v3, 65536, v3
ds_write_b32 v3, v8
ds_write_b32 v3, v9 offset:128
s_waitcnt lgkmcnt(0)""")
A.label(lb)
A("s_barrier")
A.label("L_end")
if PROF:
    TS(15)
    srd(SWS, WS_SIZE)
    A(f"""s_mov_b64 exec, -1
v_writelane_b32 v{vTS}, s{sRETRY}, 62
s_memrealtime s[96:97]
s_waitcnt lgkmcnt(0)
v_writelane_b32 v{vTS}, s96, 61
s_lshl_b32 s20, s2, 3
s_add_u32 s20, s20, s{sW}
s_lshl_b32 s20, s20, 8
s_add_u32 s20, s20, {WS_TS}
v_lshlrev_b32 v2, 2, v{vL}
buffer_store_dword v{vTS}, v2, {SR(SWS)}, s20 offen""")
A.label("L_exit")
A("s_endpgm")
A.label("L_codeend")
slow_path()

body = A.finalize()
import re as _re
def addflag(srd_, flag, kind="load"):
    global body
    pat = _re.compile(r"^(\s*buffer_%s_\w+ .*s\[%d:%d\], \S+ offen(?: offset:\d+)?)( lds)?$" % (kind, srd_, srd_ + 3), _re.M)
    body = pat.sub(lambda m: m.group(1) + " " + flag + (m.group(2) or ""), body)
for b_ in (SWG, SWU, SWD): addflag(b_, "nt")
if opts.get("ntx"): addflag(SX, "nt")
if opts.get("ntw"): addflag(SW, "nt")
if opts.get("nto"): addflag(SWO, "nt")
if opts.get("outf"): addflag(SOUT, opts["outf"].replace("+", " "), "store")
hdr = open("cdna_kernels/" + NAME + ".s.ref").read().split("; Override launch")[0]
out = hdr + f"""; Fused single kernel: LN stats + router, QKV GEMM, sliding-window attention, MoD FFN, output projection.
; Generated by gen/gen.py (hand-written generator).
; @launch grid=(256,1,1) block=(512,1,1) lds=163840
.amdgcn_target "amdgcn-amd-amdhsa--gfx950"
.text
.globl {NAME}_kernel
.p2align 8
.type {NAME}_kernel,@function
{NAME}_kernel:
L_start:
{body}
.section .rodata,"a"
.p2align 6
.amdhsa_kernel {NAME}_kernel
  .amdhsa_next_free_vgpr 256
  .amdhsa_next_free_sgpr 102
  .amdhsa_accum_offset 256
  .amdhsa_group_segment_fixed_size 0
  .amdhsa_kernarg_size 88
  .amdhsa_user_sgpr_count 2
  .amdhsa_user_sgpr_kernarg_segment_ptr 1
  .amdhsa_system_sgpr_workgroup_id_x 1
  .amdhsa_float_denorm_mode_32 3
.end_amdhsa_kernel
"""
import subprocess, re
def labels(text):
    open("_g.s", "w").write(text)
    r = subprocess.run(["clang", "-x", "assembler", "-target", "amdgcn-amd-amdhsa", "-mcpu=gfx950", "-c", "_g.s", "-o", "_g.o"], capture_output=True, text=True)
    if r.returncode:
        print("\n".join(r.stderr.split("\n")[:30])); sys.exit(1)
    t = subprocess.run(["llvm-objdump", "-t", "_g.o"], capture_output=True, text=True).stdout
    return {m.group(2): int(m.group(1), 16) for m in re.finditer(r"^([0-9a-f]{16}) .*\s(L_\w+)$", t, re.M)}
lab = labels(out.replace("CODE_PF_MAX", "0x11111"))
out = out.replace("CODE_PF_MAX", hex((lab["L_codeend"] - 1024) & ~127))
assert labels(out) == lab
print("code bytes", lab["L_codeend"], "instrs", len(A.ins), "nops", A.nnop)
open(sys.argv[1], "w").write(out)
```

```python
import sys, struct
from asmlib import Asm

NAME = "parallel_sum__sliding_block__moe_arch_mod__prompt"
opts = dict(a.split("=") if "=" in a else (a, "1") for a in sys.argv[2:])
PROF = int(opts.get("prof", 0))
LOOPTS = int(opts.get('loopts', 0))
DEPTH = int(opts.get('depth', 3))
FAST = int(opts.get('fast', 1))
SIBU = int(opts.get('sibu', 4))
GWP = int(opts.get('gwp', 2))
DOFF = int(opts.get('doff', 245))
DSH = int(opts.get('dsh', 0))
DNL = int(opts.get('dnl', 43))
DPOS = int(opts.get('dpos', 0))
PWS = int(opts.get('pws', 1))
LGW = int(opts.get('lgw', -1))
PUBU = int(opts.get('pubu', 0))

def f32(x): return "0x%08x" % struct.unpack("<I", struct.pack("<f", x))[0]
LOG2E = 1.4426950408889634

WS_BEST  = 0x0
WS_EPOCH = 0x4000
WS_STATS = 0x8000
WS_YP    = 0x10000
WS_GP    = 0x40000
WS_KV    = 0x100000
WS_KVC   = 0x500000
WS_O     = 0x600000
WS_OC    = 0x800000
WS_TS    = 0x900000
WS_SIZE  = 0x1000000
L_X = 0; L_RING = 65536; L_MISC = 147456; L_TAIL = 131072
def slot_of(u): return (u + 2) % 5
L_QF = L_MISC
L_SM = L_MISC + 8192
L_RT = L_SM
L_NONCE = L_SM + 128
L_IDX = L_SM + 144
L_XSEL = L_SM + 1024
L_QRDY = L_SM + 224
L_CSX = L_SM + 2048
L_STAT = L_SM + 256
L_RINV = L_SM + 768
L_GW = L_RING + 4 * 16384
L_OWN = L_RING + slot_of(8) * 16384
SX, SW, SWS, SDBG, SWR = 40, 44, 48, 52, 56
SWO, SOUT, SWG, SWU, SWD = 60, 64, 68, 72, 76
sI, sC, sW, sROT, sNONCE, sP, sKEY = 3, 4, 5, 6, 7, 8, 9
sXO, sWOFF, sCT, sWB, sHH, sROLE, sH1, sH2 = 10, 11, 12, 13, 14, 15, 16, 17
sSM, sSR = 18, 19
sOUTO, sQK, sWOD, sM0, sWE, sEX, sRETRY = 80, 81, 82, 83, 84, 86, 88
sGU = 89
sDI = 85
DG = [96 + 4 * n for n in range(8)]
GOFF = int(opts.get('goff', 80))
sRB = 90
vL, vZ, vTS = 1, 6, 7
vXA, vWA0, vWA1 = 88, 92, 93
vX0, vX1, vW0, vW1 = 80, 81, 82, 83
vSA, vKA, vKC, vBA = 80, 81, 82, 83
ACC = 96; STB = 128; CS = 200; SEL = 204; GW = 208; ST0, ST1 = 224, 226; XS = 228
OWN = 128; SL = 8
KC, VC, QF, NM, OA, SB, WD, MK = 80, 84, 88, 96, 128, 160, 208, 232
vM0, vM1, vRK, vRV, vRKC, vGA, vEX, vOUT, vPM, vPR, vWO = 240, 241, 242, 243, 244, 245, 246, 247, 248, 249, 250
A = Asm()

def TS(n):
    if PROF == 1: A(f"s_memtime s[98:99]\ns_waitcnt lgkmcnt(0)\nv_writelane_b32 v{vTS}, s98, {n}")
def TSL(n):
    if LOOPTS: TS(n)
def RC(n):
    if PROF == 1: A(f"v_writelane_b32 v{vTS}, s{sRETRY}, {n}")
def srd(base, size): A(f"s_mov_b32 s{base+2}, {size}\ns_mov_b32 s{base+3}, 0x20000")
def R(b, n): return f"v[{b}:{b+n-1}]"
def SR(b): return f"s[{b}:{b+3}]"
DPP8 = ("quad_perm:[1,0,3,2]", "quad_perm:[2,3,0,1]", "row_half_mirror")
def dpp(op, x, m): return f"{op}_dpp v{x}, v{x}, v{x} {m} row_mask:0xf bank_mask:0xf"
def allreduce32(x, t, op):
    for m in DPP8 + ("row_mirror",): A(dpp(op, x, m))
    A(f"v_mov_b32 v{t}, v{x}\nv_permlane16_swap_b32 v{x}, v{t}\n{op} v{x}, v{x}, v{t}")
def bf16round(dst, src):
    A(f"v_cvt_pk_bf16_f32 v{dst}, v{src}, v{src}\nv_and_b32 v{dst}, 0xffff0000, v{dst}")
def retry_check(lbl):
    A(f"s_add_u32 s{sRETRY}, s{sRETRY}, 1\ns_cmp_gt_u32 s{sRETRY}, 20000\ns_cbranch_scc1 L_end")
    A(f"s_cbranch_vccnz {lbl}")
def validated(issue, check, first_wait, retry_wait=0):
    lr = A.newlabel("L_rt"); lo = A.newlabel("L_ok")
    A(f"s_waitcnt vmcnt({first_wait})"); check(); A(f"s_cbranch_vccz {lo}")
    A.label(lr)
    issue(); A(f"s_waitcnt vmcnt({retry_wait})"); check()
    retry_check(lr)
    A.label(lo)
def capture(fn):
    n = len(A.ins); fn(); out = [x.text for x in A.ins[n:]]; del A.ins[n:]
    return out
def emit(l):
    for x in l: A(x)
def split(l, n): return [l[len(l)*k//n: len(l)*(k+1)//n] for k in range(n)]
def mfma32(d, a, b, c=None):
    return f"v_mfma_f32_32x32x16_bf16 {R(d,16)}, {R(a,4)}, {R(b,4)}, {R(d,16) if c is None else c}"
def var_to_rinv(v):
    bf16round(v, v)
    A(f"v_add_f32 v{v}, {f32(1e-5)}, v{v}")
    bf16round(v, v)
    A(f"v_sqrt_f32 v{v}, v{v}")
    bf16round(v, v)
    A(f"v_rcp_f32 v{v}, v{v}")

if PROF: A("s_memrealtime s[96:97]")
if PROF == 1: A("s_memtime s[94:95]")
A("s_cmp_ge_u32 s2, 256\ns_cbranch_scc1 L_exit")
for b, off in ((SX, 0), (SW, 8), (SWR, 32), (SWS, 80)):
    A(f"s_load_dwordx2 s[{b}:{b+1}], s[0:1], {off}")
A(f"""v_lshrrev_b32 v2, 6, v0
v_and_b32 v{vL}, 63, v0
s_bfe_u32 s20, s2, 0x20001
s_bfe_u32 s24, s2, 0x30003
v_readfirstlane_b32 s{sW}, v2
s_lshl3_add_u32 s{sI}, s20, s24
s_and_b32 s20, s2, 1
s_lshr_b32 s24, s2, 6
s_lshl2_add_u32 s{sC}, s20, s24
s_lshl3_add_u32 s{sP}, s{sI}, s{sC}""")
srd(SX, 2048 * 1024)
def late_setup():
    for b, off in ((SWO, 16), (SWG, 40), (SWU, 48), (SWD, 56), (SOUT, 64)):
        A(f"s_load_dwordx2 s[{b}:{b+1}], s[0:1], {off}")
    A(f"""s_sub_u32 s{sGU}, s{sP}, {GOFF}
s_cmp_ge_u32 s{sW}, 4
s_cselect_b32 s26, {DNL}, {43-DNL}
s_cselect_b32 s24, 0, {DNL}
s_add_u32 s{sDI}, s{sP}, s24
s_cmp_lt_u32 s{sP}, s26
s_cselect_b32 s{sDI}, s{sDI}, 255
s_mov_b32 s{sRETRY}, 0""")
    if PROF:
        A(f"v_mov_b32 v{vTS}, 0\nv_writelane_b32 v{vTS}, s96, 63")
A(f"s_cmp_ge_u32 s{sW}, 4\ns_cbranch_scc1 L_lwave")
srd(SWR, 1024)
A(f"""v_and_b32 v2, 31, v{vL}
v_lshlrev_b32 v{vSA}, 4, v2
v_lshrrev_b32 v3, 5, v{vL}
v_lshl_add_u32 v4, v3, 10, v{vSA}
s_lshl2_add_u32 s20, s{sP}, s{sW}
s_lshl_b32 s20, s20, 1
s_lshl_b32 s21, s20, 10
s_waitcnt lgkmcnt(0)
buffer_load_dwordx4 v[8:11], v4, {SR(SX)}, s21 offen
buffer_load_dwordx4 v[12:15], v4, {SR(SX)}, s21 offen offset:512
buffer_load_dwordx4 v[16:19], v{vSA}, {SR(SWR)}, 0 offen
buffer_load_dwordx4 v[20:23], v{vSA}, {SR(SWR)}, 0 offen offset:512
""")
A("s_branch L_cwave")

def frag_addrs():
    A(f"""v_and_b32 v2, 31, v{vL}
v_lshrrev_b32 v3, 5, v{vL}
v_bfe_u32 v4, v2, 1, 3
v_xor_b32 v4, v4, v3
v_lshlrev_b32 v4, 4, v4
v_lshl_add_u32 v4, v2, 7, v4
v_add_u32 v{vXA}, s28, v4
v_xor_b32 v{vXA+1}, 32, v{vXA}
v_xor_b32 v{vXA+2}, 64, v{vXA}
v_xor_b32 v{vXA+3}, 96, v{vXA}
v_bfe_u32 v4, v{vL}, 2, 2
v_lshlrev_b32 v4, 7, v4
v_lshl_add_u32 v4, v3, 11, v4
v_bfe_u32 v5, v{vL}, 3, 1
v_lshl_add_u32 v4, v5, 6, v4
v_bfe_u32 v5, v{vL}, 4, 1
v_lshl_add_u32 v4, v5, 5, v4
v_and_b32 v5, 3, v{vL}
v_lshl_add_u32 v{vGA}, v5, 3, v4
s_lshl_b32 s20, s{sCT}, 6
v_xor_b32 v4, s20, v{vGA}
v_add_u32 v{vWA0}, s29, v4
v_add_u32 v{vWA1}, {3*16384}, v{vWA0}
v_lshrrev_b32 v4, 4, v{vL}
v_xor_b32 v4, v4, v{vL}
v_and_b32 v4, 1, v4
v_add_u32 v4, -1, v4
v_and_b32 v{SEL}, 0x3f803f80, v4
v_mov_b32 v{SEL+1}, v{SEL}
v_mov_b32 v{SEL+2}, v{SEL}
v_mov_b32 v{SEL+3}, v{SEL}""")
    for r in range(4): A(f"v_mov_b32 v{CS+r}, 0")
def wa(slot, off):
    return (vWA0, slot * 16384 + off) if slot < 3 else (vWA1, (slot - 3) * 16384 + off)
def csum_mfma(wf): return f"v_mfma_f32_16x16x32_bf16 {R(CS,4)}, {R(SEL,4)}, {R(wf,4)}, {R(CS,4)}"
def corr_w(dst):
    A(f"""s_mov_b32 s20, 0xffff0000
s_mov_b32 s21, 0xffff0000
v_cndmask_b32_e64 v2, v{CS}, v{CS+1}, s[20:21]
v_mul_f32 v2, 0.5, v2""")
    bf16round(3, 2)
    A("v_sub_f32 v2, v2, v3")
    bf16round(4, 2)
    A(f"""v_sub_f32 v2, v2, v4
v_cvt_pk_bf16_f32 v{dst}, v3, v4
v_cvt_pk_bf16_f32 v{dst+1}, v2, 0""")
def corr_x(dst, m):
    A(f"""v_cvt_pk_bf16_f32 v{dst}, -v{m}, -v{m}
v_cvt_pk_bf16_f32 v{dst+1}, -v{m}, 0
v_mov_b32 v{dst+2}, 0
v_mov_b32 v{dst+3}, 0""")
def Kf(k): return SL + 12 * k
def Vf(k, g): return SL + 12 * k + 4 + 4 * g
def attn_setup_s():
    A(f"""s_sub_u32 s20, 3, s{sROLE}
s_cmp_eq_u32 s{sROLE}, 0
s_cselect_b32 s21, 4, 1
s_sub_u32 s22, s{sI}, s20
s_lshl_b32 s22, s22, 3
s_add_u32 s22, s22, s{sC}
s_cmp_ge_u32 s{sI}, s20
s_cselect_b32 s{sH1}, -1, 0
s_cselect_b32 s22, s22, 0x10000
s_sub_u32 s23, s{sI}, s21
s_lshl_b32 s23, s23, 3
s_add_u32 s23, s23, s{sC}
s_cmp_ge_u32 s{sI}, s21
s_cselect_b32 s{sH2}, -1, 0
s_cselect_b32 s23, s23, 0x10000
s_lshl_b32 s{sRB}, s22, 14
s_add_u32 s{sRB}, s{sRB}, {WS_KV}
s_add_u32 s{sRB+1}, s{sRB}, 4096
s_lshl_b32 s{sRB+2}, s23, 14
s_add_u32 s{sRB+2}, s{sRB+2}, {WS_KV}
s_add_u32 s{sRB+3}, s{sRB+2}, 4096
s_lshl_b32 s{sRB+4}, s22, 12
s_add_u32 s{sRB+4}, s{sRB+4}, {WS_KVC}
s_lshl_b32 s{sRB+5}, s23, 12
s_add_u32 s{sRB+5}, s{sRB+5}, {WS_KVC}
s_lshl_b32 s{sWOD}, s{sW}, 16
s_and_b32 s20, s{sC}, 3
s_lshl_b32 s20, s20, 8
s_add_u32 s{sWOD}, s{sWOD}, s20
s_xor_b32 s{sM0}, s{sW}, 4
s_lshl_b32 s{sM0}, s{sM0}, 14
s_mov_b32 s{sWB}, s{sI}
s_add_u32 s{sWE}, s{sI}, 4
s_lshl_b32 s{sQK}, s{sI}, 1
s_lshr_b32 s21, s{sC}, 2
s_add_u32 s{sQK}, s{sQK}, s21
s_lshl_b32 s{sOUTO}, s{sQK}, 15
s_add_u32 s{sOUTO}, s{sOUTO}, s20
s_lshl_b32 s20, s{sHH}, 6
s_add_u32 s{sOUTO}, s{sOUTO}, s20""")
    srd(SWD, 0 if opts.get('nogw') else 1376 * 1024); srd(SOUT, 2048 * 1024); srd(SWO, 0 if opts.get('nowo') else 512 * 1024); srd(SWS, WS_SIZE)
def attn_setup_v():
    A(f"""s_lshl_b32 s20, s{sHH}, 10
v_lshlrev_b32 v{vRK}, 4, v{vL}
s_lshl_b32 s21, s{sW}, 12
s_add_u32 s21, s21, {L_TAIL}
v_add_u32 v{vEX}, s21, v{vRK}
v_add_u32 v{vRK}, s20, v{vRK}
v_lshrrev_b32 v{vRKC}, 1, v{vRK}
v_add_u32 v{vRV}, 8192, v{vRK}
v_lshrrev_b32 v2, 4, v{vL}
v_and_b32 v3, 15, v{vL}
v_lshlrev_b32 v4, 2, v2
v_xor_b32 v3, v3, v4
v_lshlrev_b32 v3, 4, v3
v_lshl_add_u32 v{vWO}, v2, 10, v3
v_add_u32 v{vWO+1}, 3072, v{vWO}
v_add_u32 v{vWO+2}, 6144, v{vWO}
v_add_u32 v{vWO+3}, 9216, v{vWO}
v_and_b32 v3, 31, v{vL}
v_lshrrev_b32 v4, 5, v{vL}
v_lshlrev_b32 v{vOUT}, 10, v3
v_lshl_add_u32 v{vOUT}, v4, 4, v{vOUT}
v_mul_u32_u24 v4, {1408*16}, v4
v_lshl_add_u32 v255, v3, 4, v4
v_mov_b32 v{vM0}, 0
v_mov_b32 v{vM1}, 0""")
def mk_setup():
    A(f"""v_and_b32 v2, 31, v{vL}
v_lshrrev_b32 v3, 5, v{vL}
v_lshlrev_b32 v3, 2, v3
v_sub_u32 v2, v2, v3
v_mov_b32 v192, -1
v_mov_b32 v193, -1""")
    for k in range(8):
        j0 = 8 * (k // 2) + 2 * (k % 2)
        A(f"""v_add_u32 v3, {1 - j0}, v2
v_med3_i32 v3, v3, 0, 2
v_lshlrev_b32 v3, 4, v3
v_lshlrev_b64 v[194:195], v3, v[192:193]
v_mov_b32 v{MK+k}, v194""")
def v_prefill(n):
    A(f"v_mov_b32 v{Vf(0,1)}, 0x3f803f80")
    for k in range(n):
        for r in range(4):
            if k or r: A(f"v_mov_b32 v{Vf(k,1)+r}, v{Vf(0,1)}")
def k_issue():
    for k in range(4):
        A(f"buffer_load_dwordx4 {R(Kf(k),4)}, v{vRK}, {SR(SWS)}, s{sRB+k} offen sc1")
    for p in range(2):
        A(f"buffer_load_dwordx2 {R(KC+2*p,2)}, v{vRKC}, {SR(SWS)}, s{sRB+4+p} offen sc1")
def v_issue():
    for k in range(4):
        A(f"buffer_load_dwordx4 {R(Vf(k,0),4)}, v{vRV}, {SR(SWS)}, s{sRB+k} offen sc1")
    for p in range(2):
        A(f"buffer_load_dwordx2 {R(VC+2*p,2)}, v{vRKC}, {SR(SWS)}, s{sRB+4+p} offen offset:2048 sc1")

A.label("L_lwave")
srd(SW, 512 * 3072)
A(f"""s_add_u32 s20, s{sC}, s{sI}
s_and_b32 s20, s20, 3
s_lshl_b32 s{sROT}, s20, 1
s_sub_u32 s{sHH}, s{sW}, 4
v_lshrrev_b32 v2, 3, v{vL}
v_and_b32 v3, 7, v{vL}
v_lshrrev_b32 v4, 1, v2
v_xor_b32 v5, v3, v4
v_lshlrev_b32 v5, 4, v5
v_lshl_add_u32 v{vX0}, v2, 10, v5
v_xor_b32 v5, 64, v5
v_lshl_add_u32 v{vX1}, v2, 10, v5
v_add_u32 v{vX1}, {8192-1024}, v{vX1}
v_and_b32 v4, 1, v4
v_lshlrev_b32 v4, 2, v4
v_xor_b32 v5, v3, v4
v_lshlrev_b32 v84, 4, v5
v_mul_u32_u24 v{vW0}, 3072, v2
v_add_u32 v{vW0}, v{vW0}, v84
v_add_u32 v{vW1}, {24576-2048}, v{vW0}
s_lshl_b32 s{sXO}, s{sI}, 16
s_lshl_b32 s20, s{sHH}, 14
s_add_u32 s{sXO}, s{sXO}, s20
s_lshl_b32 s{sWOFF}, s{sC}, 7
s_mul_i32 s20, s{sHH}, {16*3072}
s_add_u32 s{sWOFF}, s{sWOFF}, s20
s_lshl_b32 s31, s{sHH}, 11
s_lshl_b32 s32, s{sHH}, 12
s_waitcnt lgkmcnt(0)""")
if PROF == 1: A("s_memtime s[92:93]")
XOF = {u: [u] for u in range(8)}
def issue_unit(u):
    slot = slot_of(u)
    for t in XOF.get(u, []):
        A(f"""s_add_u32 s33, s{sROT}, {t}
s_and_b32 s33, s33, 7
s_lshl_b32 s34, s33, 7
s_add_u32 m0, s31, {L_X + t*8192}
s_add_u32 s34, s34, s{sXO}
buffer_load_dwordx4 v{vX0}, {SR(SX)}, s34 offen lds
buffer_load_dwordx4 v{vX1}, {SR(SX)}, s34 offen offset:1024 lds""")
    if u < 8:
        A(f"""s_add_u32 s33, s{sROT}, {u}
s_and_b32 s33, s33, 7
s_mul_i32 s35, s33, {64*3072}
s_add_u32 s35, s35, s{sWOFF}
s_add_u32 m0, s32, {L_RING + slot*16384}
s_add_u32 s35, s35, 1024
buffer_load_dwordx4 v{vW0}, {SR(SW)}, s35 offen lds
buffer_load_dwordx4 v{vW0}, {SR(SW)}, s35 offen offset:1024 lds
buffer_load_dwordx4 v{vW1}, {SR(SW)}, s35 offen offset:2048 lds
buffer_load_dwordx4 v{vW1}, {SR(SW)}, s35 offen offset:3072 lds""")
    else:
        for e in range(2):
            A(f"""s_add_u32 s33, s{sROT}, {2*(u-8)+e}
s_and_b32 s33, s33, 7
s_mul_i32 s35, s33, {64*3072}
s_add_u32 m0, s32, {L_RING + slot*16384 + e*1024}
s_add_u32 s35, s35, s{sWOFF}
buffer_load_dwordx4 v{vW0}, {SR(SW)}, s35 offen lds
buffer_load_dwordx4 v{vW1}, {SR(SW)}, s35 offen offset:2048 lds""")
def ucount(u): return 4 + 2 * len(XOF.get(u, []))
def lgw_issue():
    srd(SWG, 512 * 2752); srd(SWU, 512 * 2752)
    A(f"""v_lshrrev_b32 v2, 3, v{vL}
v_mul_u32_u24 v3, 2752, v2
v_and_b32 v4, 7, v{vL}
v_lshl_add_u32 v86, v4, 4, v3
s_and_b32 s33, s{sP}, 7
s_lshl_b32 s33, s33, 6
s_lshl_b32 s34, s{sHH}, 4
s_add_u32 s33, s33, s34
s_mul_i32 s33, s33, 2752
s_lshr_b32 s34, s{sGU}, 3
s_lshl_b32 s34, s34, 7
s_add_u32 s33, s33, s34
s_cmp_ge_u32 s{sGU}, 176
s_cselect_b32 s33, 0x40000000, s33
s_add_u32 s34, s33, {8*2752}
buffer_load_dwordx4 {R(GW,4)}, v86, {SR(SWG)}, s33 offen
buffer_load_dwordx4 {R(GW+4,4)}, v86, {SR(SWU)}, s33 offen
buffer_load_dwordx4 {R(GW+8,4)}, v86, {SR(SWG)}, s34 offen
buffer_load_dwordx4 {R(GW+12,4)}, v86, {SR(SWU)}, s34 offen""")
ops = []
for u in range(DEPTH):
    issue_unit(u); ops += [u] * ucount(u)
    if u == 0 and not opts.get("nocpf"):
        A(f"""s_getpc_b64 s[22:23]
s_lshr_b32 s20, s2, 3
s_lshl2_add_u32 s20, s20, s{sHH}
s_lshl_b32 s20, s20, 8
s_min_u32 s20, s20, CODE_PF_MAX
s_add_u32 s22, s22, s20
s_addc_u32 s23, s23, 0""")
        for o_ in (0, 64, 128, 192): A(f"s_load_dword s100, s[22:23], {o_}")
late_setup()
if PROF == 1: A(f"s_waitcnt lgkmcnt(0)\nv_writelane_b32 v{vTS}, s94, 0\nv_writelane_b32 v{vTS}, s92, 48")
TS(1)
SA = 112
A(f"""s_and_b32 s{sCT}, s{sHH}, 1
s_lshr_b32 s28, s{sHH}, 1
s_lshl_b32 s28, s28, 12
s_mov_b32 s29, {L_RING}
s_mov_b32 s{sROLE}, 0
v_lshlrev_b32 v85, 4, v{vL}
s_lshl_b32 s30, s{sI}, 10
s_add_u32 s30, s30, {WS_STATS}
s_cmp_lg_u32 s{sHH}, 0
s_cselect_b32 s30, 0x40000000, s30
s_mov_b32 s36, {WS_BEST}
s_cmp_lg_u32 s{sHH}, 1
s_cselect_b32 s36, 0x40000000, s36""")
A(f"""s_lshl2_add_u32 s20, s{sHH}, {L_QRDY}
v_mov_b32 v198, s20
v_mov_b32 v199, {L_QRDY}
v_mov_b32 v2, 0
ds_write_b32 v198, v2""")
attn_setup_s()
def sib_issue(): A(f"buffer_load_dwordx4 {R(SA,4)}, v85, {SR(SWS)}, s30 offen sc1")
lp = split(capture(lambda: (frag_addrs(), attn_setup_v(), v_prefill(6), mk_setup())), 6)
lpieces = {0: lp[0], 1: lp[1], 2: lp[2], 3: lp[3], 4: lp[4], 5: lp[5]}
def younger_than(tag): return len(ops) - 1 - max(k for k, x in enumerate(ops) if x == tag)
issued = DEPTH
for u in range(8):
    TSL(32 + u)
    A(f"s_waitcnt vmcnt({younger_than(u)})")
    TSL(16 + u)
    A("s_barrier")
    TSL(24 + u)
    if u == SIBU:
        sib_issue(); ops.append("sib")
    tgt = min(12, u + 1 + DEPTH + max(0, u - 1 - DEPTH), u + 5)
    while issued < tgt:
        issue_unit(issued); ops += [issued] * ucount(issued)
        if issued == LGW: lgw_issue(); ops += ['gw'] * 4
        issued += 1
    if u == 5: A(f"v_mov_b32 v122, {L_NONCE}\nds_read_b32 v123, v122")
    emit(lpieces.get(u, []))
    if u == 6:
        lb = A.newlabel("L_nsib")
        A(f"""s_waitcnt lgkmcnt(0)
v_readfirstlane_b32 s{sNONCE}, v123
s_cmp_lg_u32 s{sHH}, 0
s_cbranch_scc1 {lb}""")
        validated(sib_issue, lambda: A(f"v_cmp_ne_u32 vcc, s{sNONCE}, v{SA+3}"), younger_than("sib"))
        A(f"""v_lshrrev_b32 v122, 1, v85
v_lshrrev_b32 v123, 2, v85
v_add_u32 v122, {L_STAT}, v122
v_add_u32 v123, {L_RINV}, v123
ds_write_b64 v122, {R(SA,2)}
ds_write_b32 v123, v{SA+1}
s_waitcnt lgkmcnt(0)""")
        A.label(lb)
assert issued == 12, issued
TS(2)
LST, LSC, LCX, LCW = 116, 118, 120, 124
for r in range(16): A(f"v_mov_b32 v{ACC+r}, 0")
A(f"""v_and_b32 v2, 31, v{vL}
v_lshlrev_b32 v2, 3, v2
s_lshr_b32 s20, s28, 4
s_add_u32 s20, s20, {L_STAT}
v_add_u32 v2, s20, v2
ds_read_b64 {R(LST,2)}, v2
s_waitcnt lgkmcnt(0)""")
corr_x(LCX, LST)
A(f"""v_mul_f32 v{LSC}, {f32(0.25*LOG2E)}, v{LST+1}
v_mov_b32 v{LCW+2}, 0
v_mov_b32 v{LCW+3}, 0
s_lshl_b32 s30, s{sHH}, 11
s_add_u32 s30, s30, {L_QF}
v_lshlrev_b32 v5, 4, v{vL}
v_add_u32 v5, s30, v5""")
Q2 = 192
A(f"""s_lshl_b32 s20, s28, 1
s_lshr_b32 s21, s28, 2
s_xor_b32 s22, s20, 8192
s_xor_b32 s23, s21, 1024""")
for st in range(4): A(f"v_add_u32 v{Q2+st}, s22, v{vXA+st}\nv_add_u32 v{vXA+st}, s20, v{vXA+st}")
A(f"""v_add_u32 v{Q2+4}, s23, v{vWA0}
v_add_u32 v{Q2+5}, s23, v{vWA1}
v_add_u32 v{vWA0}, s21, v{vWA0}
v_add_u32 v{vWA1}, s21, v{vWA1}
s_lshl_b32 s22, s{sHH}, 8
s_add_u32 s22, s22, {L_CSX}
v_lshl_add_u32 v86, v{vL}, 2, s22
v_xor_b32 v87, 512, v86
s_mov_b32 s20, 0xffff0000
s_mov_b32 s21, 0xffff0000""")
def q_reads(n):
    oth = n // 16; m = (n // 4) % 4; st = n % 4; b = STB + 8 * (n % 8)
    out = [f"ds_read_b128 {R(b,4)}, v{(Q2 if oth else vXA)+st} offset:{m*16384}"]
    for j in range(2):
        r, o = wa(slot_of(8 + m), st * 4096 + j * 512)
        if oth: r = Q2 + 4 + (r - vWA0)
        out.append(f"ds_read_b64_tr_b16 {R(b+4+2*j,2)}, v{r} offset:{o}")
    return out
if int(opts.get('nob8', 1)):
    lr = A.newlabel("L_qr")
    A(f"s_waitcnt vmcnt(0)\nds_write_b32 v198, v198")
    A.label(lr)
    A(f"""ds_read_b128 {R(STB,4)}, v199
s_waitcnt lgkmcnt(0)
v_min3_u32 v2, v{STB}, v{STB+1}, v{STB+2}
v_min_u32 v2, v2, v{STB+3}
v_cmp_eq_u32 vcc, 0, v2""")
    retry_check(lr)
else:
    A("s_waitcnt vmcnt(0)\ns_barrier")
TS(3)
QB9 = int(opts.get("qb9", 21))
lq = []
def lds(tag, txt): A(txt); lq.append(tag)
def lwait(tag): A(f"s_waitcnt lgkmcnt({min(15, len(lq) - 1 - max(k for k, x in enumerate(lq) if x == tag))})")
for n in range(4):
    for x in q_reads(n): lds(n, x)
cwl = capture(lambda: corr_w(LCW))[3:]
for n in range(32):
    lwait(n)
    b = STB + 8 * (n % 8)
    if n < 16: A(csum_mfma(b + 4))
    A(mfma32(ACC, b + 4, b))
    if n + 4 < 32:
        for x in q_reads(n + 4): lds(n + 4, x)
    if n == 17:
        A(f"v_cndmask_b32_e64 v2, v{CS}, v{CS+1}, s[20:21]")
        lds("cs", "ds_write_b32 v86, v2")
    if n == QB9:
        lwait("cs")
        A("s_barrier")
        lds("cp", "ds_read_b32 v4, v87")
    if n == QB9 + 4:
        lwait("cp"); A("v_add_f32 v2, v2, v4"); emit(cwl[:4])
    if n == QB9 + 5: emit(cwl[4:])
TS(4)
A(mfma32(ACC, LCW, LCX))
for r in range(16): A(f"v_mul_f32 v{ACC+r}, v{ACC+r}, v{LSC}")
for k in range(8): A(f"v_cvt_pk_bf16_f32 v{STB+k}, v{ACC+2*k}, v{ACC+2*k+1}")
A(f"ds_write_b128 v5, {R(STB,4)}\nds_write_b128 v5, {R(STB+4,4)} offset:1024")
TS(50)
A("s_branch L_join")

A.label("L_cwave")
A(f"s_load_dword s{sNONCE}, s[{SWS}:{SWS+1}], {WS_EPOCH}")
late_setup()
if PROF == 1: A(f"v_writelane_b32 v{vTS}, s94, 0")
srd(SWG, 512 * 2752); srd(SWU, 512 * 2752)
A(f"v_mov_b32 v{vZ}, 0\nv_add_u32 v62, s20, v3")
A(f"""s_and_b32 s{sCT}, s{sW}, 1
s_mov_b32 s28, 0
s_lshr_b32 s29, s{sW}, 1
s_lshl_b32 s29, s29, 10
s_add_u32 s29, s29, {L_RING}
s_mov_b32 s{sHH}, s{sW}
s_mov_b32 s{sROLE}, 1
v_lshlrev_b32 v{vBA}, 4, v{vL}
s_lshl_b32 s35, s{sW}, 10
s_add_u32 s35, s35, {WS_BEST}
s_lshl_b32 s33, s{sP}, 14
s_add_u32 s33, s33, {WS_KV}
s_add_u32 s36, s33, 4096
s_lshl_b32 s34, s{sP}, 12
s_add_u32 s34, s34, {WS_KVC}""")
frag_addrs()
srd(SWS, WS_SIZE)
A(f"""v_lshrrev_b32 v2, 3, v{vL}
v_mul_u32_u24 v3, 2752, v2
v_and_b32 v4, 7, v{vL}
v_lshl_add_u32 v5, v4, 4, v3
s_and_b32 s31, s{sP}, 7
s_lshl_b32 s31, s31, 6
s_lshl_b32 s32, s{sW}, 4
s_add_u32 s31, s31, s32
s_mul_i32 s31, s31, 2752
s_lshr_b32 s32, s{sGU}, 3
s_lshl_b32 s32, s32, 7
s_add_u32 s31, s31, s32
s_cmp_ge_u32 s{sGU}, {0 if (opts.get("nogw") or LGW >= 0) else 176}
s_cselect_b32 s31, 0x40000000, s31
s_add_u32 s32, s31, {8*2752}""")
def gw_issue():
    A(f"""buffer_load_dwordx4 {R(GW,4)}, v5, {SR(SWG)}, s31 offen
buffer_load_dwordx4 {R(GW+4,4)}, v5, {SR(SWU)}, s31 offen
buffer_load_dwordx4 {R(GW+8,4)}, v5, {SR(SWG)}, s32 offen
buffer_load_dwordx4 {R(GW+12,4)}, v5, {SR(SWU)}, s32 offen""")
if int(opts.get("d2", 1)):
    A(f"""v_mov_b32 v40, 0
v_mov_b32 v41, 0
v_mov_b32 v42, 0
v_mov_b32 v43, 0
v_mov_b32 v48, 0x3f803f80
v_sub_u32 v47, 2047, v62
v_and_b32 v46, 7, v62
v_lshlrev_b32 v46, 4, v46
v_add_u32 v46, {L_RT}, v46
s_mov_b32 s26, 0xffff0000""")
    PREW = int(opts.get("prew", 0))
    def prewrite():
        A(f"""s_lshl_b32 s20, s{sW}, 12
s_add_u32 s21, s33, s20
s_lshl_b32 s22, s{sW}, 10
s_add_u32 s22, s34, s22
s_lshl_b32 s23, s{sI}, 4
s_add_u32 s23, s23, s{sC}
s_and_b32 s24, s{sW}, 1
s_lshl_b32 s24, s24, 3
s_add_u32 s23, s23, s24
s_lshl_b32 s24, s23, 12
s_lshr_b32 s25, s{sW}, 1
s_lshl_b32 s25, s25, 11
s_add_u32 s24, s24, s25
s_add_u32 s24, s24, {WS_O}
s_lshl_b32 s23, s23, 10
s_add_u32 s23, s23, {WS_OC}""")
        if PREW & 1:
            for k in range(4): A(f"buffer_store_dwordx4 {R(ACC,4)}, v{vBA}, {SR(SWS)}, s21 offen offset:{k*1024} sc1")
            A(f"buffer_store_dwordx4 {R(ACC,4)}, v{vBA}, {SR(SWS)}, s22 offen sc1")
        if PREW & 2:
            for k in range(2): A(f"buffer_store_dwordx4 {R(ACC,4)}, v{vBA}, {SR(SWS)}, s24 offen offset:{k*1024} sc1")
            A(f"buffer_store_dwordx4 {R(ACC,4)}, v{vBA}, {SR(SWS)}, s23 offen sc1")
    NPW = (5 if PREW & 1 else 0) + (3 if PREW & 2 else 0)
    if PREW: prewrite()
    A(f"s_waitcnt vmcnt({2 + NPW})")
    TS(1)
    if int(opts.get("np1", 0)): A(f"s_lshl_b32 s24, s{sW}, 8\nbuffer_load_dword v60, v{vZ}, {SR(SDBG)}, s24 offen sc1")
    for k in range(8): A(f"v_dot2_f32_bf16 v40, v{8+k}, v48, v40\nv_dot2_f32_bf16 v41, v{8+k}, v{8+k}, v41")
    A("s_waitcnt vmcnt(%d)" % NPW)
    for k in range(8): A(f"v_dot2_f32_bf16 v42, v{8+k}, v{16+k}, v42\nv_dot2_f32_bf16 v43, v{16+k}, v48, v43")
    for m in DPP8 + ("row_mirror",):
        for r in range(4): A(dpp("v_add_f32", 40 + r, m))
    for r in range(4): A(f"v_mov_b32 v{24+r}, v{40+r}")
    for r in range(4): A(f"v_permlane16_swap_b32 v{40+r}, v{24+r}")
    for r in range(4): A(f"v_add_f32 v{40+r}, v{40+r}, v{24+r}")
    A(f"""v_mul_f32 v40, {f32(1.0/512)}, v40
v_mul_f32 v41, {f32(1.0/512)}, v41
v_fma_f32 v41, -v40, v40, v41
v_max_f32 v41, 0, v41""")
    bf16round(40, 40)
    A("v_fma_f32 v42, -v40, v43, v42")
    var_to_rinv(41)
    A("v_mul_f32 v42, v42, v41")
    bf16round(42, 42)
    A(f"""v_ashrrev_i32 v45, 31, v42
v_or_b32 v45, 0x80000000, v45
v_xor_b32 v42, v42, v45
v_and_or_b32 v42, v42, s26, v47
ds_write_b96 v46, v[40:42]""")
else:
    A("s_waitcnt vmcnt(2)")
    TS(1)
    XU = 24
    for k in range(8):
        A(f"v_lshlrev_b32 v{XU+2*k}, 16, v{8+k}\nv_and_b32 v{XU+2*k+1}, 0xffff0000, v{8+k}")
    A(f"v_pk_add_f32 v[40:41], {R(XU,2)}, {R(XU+2,2)}")
    for k in range(4, 16, 2): A(f"v_pk_add_f32 v[40:41], v[40:41], {R(XU+k,2)}")
    A("v_add_f32 v40, v40, v41")
    allreduce32(40, 41, "v_add_f32")
    A(f"v_mul_f32 v40, {f32(-1.0/512)}, v40")
    A("v_cvt_pk_bf16_f32 v42, -v40, -v40\nv_and_b32 v42, 0xffff0000, v42")
    A(f"v_pk_add_f32 v[46:47], {R(XU,2)}, v[40:41] op_sel_hi:[1,0]\nv_pk_mul_f32 v[44:45], v[46:47], v[46:47]")
    for k in range(2, 16, 2):
        A(f"v_pk_add_f32 v[46:47], {R(XU+k,2)}, v[40:41] op_sel_hi:[1,0]\nv_pk_fma_f32 v[44:45], v[46:47], v[46:47], v[44:45]")
    A("v_add_f32 v43, v44, v45")
    allreduce32(43, 41, "v_add_f32")
    for k in range(0, 16, 2): A(f"v_pk_add_f32 {R(XU+k,2)}, {R(XU+k,2)}, v[42:43] op_sel_hi:[1,0] neg_lo:[0,1] neg_hi:[0,1]")
    A(f"v_mul_f32 v43, {f32(1.0/512)}, v43")
    for k in range(8): A(f"v_cvt_pk_bf16_f32 v{8+k}, v{XU+2*k}, v{XU+2*k+1}")
    var_to_rinv(43)
    for k in range(8):
        A(f"v_lshlrev_b32 v{XU+2*k}, 16, v{8+k}\nv_and_b32 v{XU+2*k+1}, 0xffff0000, v{8+k}")
    for k in range(0, 16, 2): A(f"v_pk_mul_f32 {R(XU+k,2)}, {R(XU+k,2)}, v[42:43] op_sel:[0,1]")
    for k in range(8): A(f"v_cvt_pk_bf16_f32 v{8+k}, v{XU+2*k}, v{XU+2*k+1}")
    A("v_mov_b32 v44, 0\ns_waitcnt vmcnt(0)")
    for k in range(8): A(f"v_dot2_f32_bf16 v44, v{8+k}, v{16+k}, v44")
    allreduce32(44, 41, "v_add_f32")
    bf16round(44, 44)
    A(f"""v_ashrrev_i32 v45, 31, v44
v_or_b32 v45, 0x80000000, v45
v_xor_b32 v44, v44, v45
v_and_b32 v44, 0xffff0000, v44
v_sub_u32 v45, 2047, v62
v_or_b32 v44, v44, v45
v_and_b32 v46, 7, v62
v_lshlrev_b32 v46, 4, v46
v_add_u32 v46, {L_RT}, v46
ds_write_b96 v46, v[42:44]
""")
A(f"""s_waitcnt lgkmcnt(0)
s_add_u32 s{sNONCE}, s{sNONCE}, 1""")
A(f"v_mov_b32 v44, s{sNONCE}\nv_mov_b32 v45, {L_NONCE}\nds_write_b32 v45, v44")
if PWS:
    A(f"""v_mov_b32 v43, s{sNONCE}
v_lshlrev_b32 v44, 4, v62
s_mov_b32 s24, 1
s_mov_b32 s25, 1
s_mov_b32 s27, {WS_STATS}
s_mov_b64 exec, s[24:25]
buffer_store_dwordx4 v[40:43], v44, {SR(SWS)}, s27 offen sc1
s_mov_b64 exec, -1""")
A(f"""s_setprio {int(opts.get("prio", 2))}""")
if GWP == 2: gw_issue()
A('v_mov_b32 v54, v5')
TS(2)
A("s_waitcnt lgkmcnt(0)")
A(f"s_cmp_ge_u32 s{sW}, 2\ns_cbranch_scc1 L_vwave")

def kv_reads(n):
    u = n // 4; st = n % 4; b = STB + 12 * (n % 6)
    out = [f"ds_read_b128 {R(b+4*qb,4)}, v{vXA+st} offset:{u*8192 + qb*4096}" for qb in range(2)]
    for j in range(2):
        r, o = wa(slot_of(u), st * 4096 + j * 512)
        out.append(f"ds_read_b64_tr_b16 {R(b+8+2*j,2)}, v{r} offset:{o}")
    return out
def kv_mm(n, isK, cs=True):
    b = STB + 12 * (n % 6)
    out = [csum_mfma(b + 8)] if cs else []
    for qb in range(2):
        c0 = 0 if n == 0 else None
        out.append(mfma32(ACC + 16 * qb, b + 8, b + 4 * qb, c0) if isK else mfma32(ACC + 16 * qb, b + 4 * qb, b + 8, c0))
    return out
def kv_interval(u, isK, fill=(), post_reads=()):
    rd = [x for n in range(4 * u, 4 * u + 4) for x in kv_reads(n)]
    old = [x for n in (4 * u - 2, 4 * u - 1) if n >= 0 for x in kv_mm(n, isK)]
    fill = list(fill)
    per = (len(fill) + 5) // 6
    emit(rd[:4])
    rest = rd[4:]
    for m in old:
        A(m); emit(rest[:2]); rest = rest[2:]
    emit(rest)
    for k, n in enumerate((4 * u, 4 * u + 1)):
        A(f"s_waitcnt lgkmcnt({12 - 4*k})")
        for m in kv_mm(n, isK):
            A(m); emit(fill[:per]); fill = fill[per:]
    emit(post_reads)
    A("s_waitcnt lgkmcnt(0)")
BT = 68
def best_issue(): A(f"buffer_load_dwordx4 {R(BT,4)}, v{vBA}, {SR(SWS)}, s35 offen sc1")
def nonce_issue(): A(f"buffer_load_dword v60, v{vZ}, {SR(SDBG)}, 0 offen sc1")
CX0, CX1, CW = 40, 44, 56
def publish():
    lb = A.newlabel("L_np")
    A(f"s_cmp_lg_u32 s{sW}, 0\ns_cbranch_scc1 {lb}")
    A(f"""v_mov_b32 v51, s{sNONCE}
s_lshl_b32 s20, s{sP}, 4
s_add_u32 s20, s20, {WS_BEST}
s_lshl_b32 s21, s{sP}, 7
s_add_u32 s21, s21, {WS_STATS}
s_mov_b64 exec, 0xff""")
    if not PWS: A(f"buffer_store_dwordx4 v[48:51], v{vBA}, {SR(SWS)}, s21 offen sc1")
    A("v_mov_b32 v52, v50")
    for m in DPP8: A(dpp("v_max_u32", 52, m))
    A(f"""v_cmp_eq_u32 vcc, v52, v50
s_mov_b64 exec, vcc
buffer_store_dwordx4 v[48:51], v{vZ}, {SR(SWS)}, s20 offen sc1
s_mov_b64 exec, -1""")
    A.label(lb)
def cw_loop(isK):
    for u in range(8):
        TSL(16 + u)
        A("s_barrier")
        TSL(24 + u)
        fill = []; post = []
        if u == PUBU and isK:
            fill = [f"v_and_b32 v53, 0x70, v{vBA}", f"v_add_u32 v53, {L_RT}, v53"]; post = ["ds_read_b96 v[48:50], v53"]
        if u in (1, 2): fill = split(capture(attn_setup_s), 2)[u - 1] if False else (capture(attn_setup_s)[:25] if u == 1 else capture(attn_setup_s)[25:])
        if u == 4: fill = capture(attn_setup_v)
        if u == 3:
            fill = capture(lambda: A(f"""v_mov_b32 v{CW+2}, 0
v_mov_b32 v{CW+3}, 0
v_lshrrev_b32 v64, 1, v{vSA}
v_add_u32 v64, {L_STAT}, v64
v_mov_b32 v66, {L_NONCE}"""))
            if isK:
                fill += capture(lambda: A(f"""s_lshl_b32 s20, s{sCT}, 11
v_add_u32 v{vKA}, s20, v{vBA}
v_lshrrev_b32 v{vKC}, 1, v{vKA}"""))
            else:
                fill += capture(lambda: A(f"""v_and_b32 v2, 0x2f, v{vL}
v_bfe_u32 v3, v{vL}, 4, 1
s_lshl_b32 s20, s{sCT}, 1
v_add_u32 v3, s20, v3
v_lshlrev_b32 v{vKA}, 4, v2
v_lshl_add_u32 v{vKA}, v3, 10, v{vKA}
v_lshrrev_b32 v{vKC}, 1, v{vKA}
v_add_u32 v{vKA}, 8192, v{vKA}
v_lshrrev_b32 v65, 5, v{vL}
v_lshlrev_b32 v65, 4, v65
v_add_u32 v65, {L_RINV}, v65"""))
        if u == 7:
            fill = capture(best_issue)
            post = [f"ds_read_b64 {R(ST0,2)}, v64", f"ds_read_b64 {R(ST1,2)}, v64 offset:256"]
            if not isK:
                post += [f"ds_read_b128 {R(8+16*qb+4*a,4)}, v65 offset:{qb*128 + a*32}" for qb in range(2) for a in range(4)]
        kv_interval(u, isK, fill, post)
        TSL(32 + u)
        if u == PUBU and isK: publish()
        if GWP == 10 + u:
            A('v_mov_b32 v5, v54'); gw_issue()
    if not int(opts.get('nob8', 1)): A("s_barrier")
    TS(3)
    A(csum_mfma(STB + 12 * (30 % 6) + 8)); A(csum_mfma(STB + 12 * (31 % 6) + 8))
    mm = kv_mm(30, isK, False) + kv_mm(31, isK, False)
    A(mm[0]); corr_x(CX0, ST0)
    A(mm[1]); corr_x(CX1, ST1)
    cw = capture(lambda: corr_w(CW))
    A(mm[2]); emit(cw[:6]); A(mm[3]); emit(cw[6:])
    for qb, cx in enumerate((CX0, CX1)):
        A(mfma32(ACC + 16 * qb, CW, cx) if isK else mfma32(ACC + 16 * qb, cx, CW))
CSR = 144
def kv_store(isK):
    for qb in range(2):
        st = ST0 if qb == 0 else ST1
        for e in range(2):
            for r in range(8 * e, 8 * e + 8):
                A(f"v_mul_f32 v{ACC+16*qb+r}, v{ACC+16*qb+r}, v{st+1 if isK else 8+16*qb+r}")
            for k in range(4 * e, 4 * e + 4): A(f"v_cvt_pk_bf16_f32 v{OWN+8*qb+k}, v{ACC+16*qb+2*k}, v{ACC+16*qb+2*k+1}")
            b = OWN + 8 * qb + 4 * e; c_ = CSR + 2 * e + qb
            A(f"buffer_store_dwordx4 {R(b,4)}, v{vKA}, {SR(SWS)}, s{33 if qb == 0 else 36} offen offset:{e*(1024 if isK else 256)} sc1")
            A(f"v_add3_u32 v{c_}, v{b}, v{b+1}, v{b+2}\nv_add3_u32 v{c_}, v{c_}, v{b+3}, s{sNONCE}")
    for e in range(2):
        A(f"buffer_store_dwordx2 {R(CSR+2*e,2)}, v{vKC}, {SR(SWS)}, s34 offen offset:{e*512 if isK else 2048+e*128} sc1")

cw_loop(True); kv_store(True)
A("s_mov_b32 s39, 1024\ns_branch L_cpost")
A.label("L_vwave")
cw_loop(False); kv_store(False)
A("s_mov_b32 s39, 256")
A.label("L_cpost")
TS(4)
A("s_setprio 0")
WOW = int(opts.get("wow", 0))
if WOW:
    A(f"""s_and_b32 s20, s{sI}, 7
s_lshl_b32 s20, s20, 2
s_add_u32 s20, s20, s{sW}
s_lshl_b32 s20, s20, 14
s_and_b32 s21, s{sC}, 3
s_lshl_b32 s21, s21, 8
s_add_u32 s20, s20, s21""")
    for k in range(4): A(f"buffer_load_dwordx4 {R(176+4*k,4)}, v{vWO+k}, {SR(SWO)}, s20 offen offset:{k*1024}")
validated(best_issue, lambda: A(f"v_cmp_ne_u32 vcc, s{sNONCE}, v{BT+3}"), 6 + 4 * WOW)
A(f"v_mov_b32 v{BT+4}, v{BT+2}")
allreduce32(BT + 4, BT + 5, "v_max_u32")
A(f"""v_mov_b32 v{BT+5}, v{BT+4}
v_permlane32_swap_b32 v{BT+4}, v{BT+5}
v_max_u32 v{BT+4}, v{BT+4}, v{BT+5}
s_lshl_b32 s20, s{sW}, 4
s_add_u32 s20, s20, {L_IDX}
v_mov_b32 v2, s20
v_cmp_eq_u32 vcc, v{BT+4}, v{BT+2}
s_mov_b64 exec, vcc
ds_write_b128 v2, {R(BT,4)}
s_mov_b64 exec, -1
""")
def winner():
    A(f"v_mov_b32 v5, v{SB+2}")
    for m in DPP8[:2]: A(dpp("v_max_u32", 5, m))
    A(f"""v_cmp_eq_u32 vcc, v5, v{SB+2}
v_readfirstlane_b32 s{sKEY}, v5
s_ff1_i32_b32 s20, vcc_lo
v_readlane_b32 s{sSM}, v{SB}, s20
v_readlane_b32 s{sSR}, v{SB+1}, s20""")
A(f"""v_and_b32 v4, 3, v{vL}
v_lshlrev_b32 v4, 4, v4
v_add_u32 v4, {L_IDX}, v4
v_add_u32 v2, {L_OWN}, v{vKA}
v_add_u32 v3, s39, v2
v_and_b32 v72, 7, v{vL}
v_lshlrev_b32 v72, 2, v72
v_mov_b32 v74, v{vSA}
s_waitcnt lgkmcnt(0)
s_barrier""")
TS(48)
A(f"""ds_read_b128 {R(SB,4)}, v4
ds_write_b128 v2, {R(OWN,4)}
ds_write_b128 v3, {R(OWN+4,4)}
ds_write_b128 v2, {R(OWN+8,4)} offset:4096
ds_write_b128 v3, {R(OWN+12,4)} offset:4096
s_waitcnt lgkmcnt(4)""")
winner()
A(f"""s_and_b32 s24, s{sKEY}, 0x7ff
s_sub_u32 s24, 2047, s24
s_lshl_b32 s24, s24, 10
s_and_b32 s25, s{sP}, 7
s_lshl_b32 s25, s25, 7
s_add_u32 s24, s24, s25
s_lshl_b32 s25, s{sW}, 5
s_add_u32 s24, s24, s25
buffer_load_dword v73, v72, {SR(SX)}, s24 offen""")
A(f"""s_cmp_ge_u32 s{sC}, 4
s_cselect_b64 s[20:21], -1, 0
v_cndmask_b32_e64 v{vPM}, v{ST0}, v{ST1}, s[20:21]
v_cndmask_b32_e64 v{vPR}, v{ST0+1}, v{ST1+1}, s[20:21]
""")
A(f"""v_bfe_u32 v4, v{vL}, 4, 1
v_lshlrev_b32 v4, 6, v4
v_xor_b32 v2, v{vEX}, v4""")
if LGW < 0:
    for k in range(4): A(f"ds_write_b128 v2, {R(GW+4*k,4)} offset:{k*1024}")
v_prefill(4)
A("s_waitcnt vmcnt(1)")
TS(49)
k_issue()
TS(50)
if not int(opts.get('vl', 1)): v_issue()
TS(51)
A(f"""s_waitcnt vmcnt({6 if int(opts.get('vl', 1)) else 12})
v_lshlrev_b32 v2, 16, v73
v_and_b32 v3, 0xffff0000, v73
v_subrev_f32 v2, s{sSM}, v2
v_subrev_f32 v3, s{sSM}, v3
v_cvt_pk_bf16_f32 v4, v2, v3
v_lshlrev_b32 v2, 16, v4
v_and_b32 v3, 0xffff0000, v4
v_mul_f32 v2, s{sSR}, v2
v_mul_f32 v3, s{sSR}, v3
v_cvt_pk_bf16_f32 v4, v2, v3
s_add_u32 s25, s25, {L_XSEL}
v_add_u32 v72, s25, v72
ds_write_b32 v72, v4
v_mov_b32 v75, v{vWA1}""")

A.label("L_join")
TS(5); RC(41)
A("s_waitcnt lgkmcnt(0)\ns_barrier")
A(f"""s_lshl_b32 s20, s{sROLE}, 12
s_add_u32 s21, s20, {L_QF}
s_xor_b32 s20, s20, 4096
s_add_u32 s20, s20, {L_QF}
v_add_u32 v2, s21, v{vRK}
v_add_u32 v3, s20, v{vRK}
ds_read_b128 {R(QF,4)}, v2
ds_read_b128 {R(QF+4,4)}, v3""")
lb = A.newlabel("L_noown"); lb2 = A.newlabel("L_noown2")
A(f"s_cmp_lg_u32 s{sROLE}, 0\ns_cbranch_scc1 {lb}")
A(f"""v_add_u32 v2, {L_OWN}, v{vRK}
v_and_b32 v4, 3, v{vL}
v_lshlrev_b32 v4, 4, v4
v_add_u32 v4, {L_IDX}, v4
ds_read_b128 {R(SB,4)}, v4
ds_read_b128 {R(Kf(4),4)}, v2
ds_read_b128 {R(Kf(5),4)}, v2 offset:4096
ds_read_b128 {R(Vf(4,0),4)}, v2 offset:8192
ds_read_b128 {R(Vf(5,0),4)}, v2 offset:12288
s_branch {lb2}""")
A.label(lb)
GX = 144; GF = 160
if int(opts.get('vl', 1)): v_issue()
A(f"""s_cmp_ge_u32 s{sGU}, 176
s_cbranch_scc1 {lb2}
s_cmp_ge_u32 s{sW}, 2
s_cbranch_scc1 {lb2}
v_lshrrev_b32 v2, 5, v{vL}
v_lshlrev_b32 v2, 4, v2
v_add_u32 v2, {L_XSEL}, v2""")
for st in range(4): A(f"ds_read_b128 {R(GX+4*st,4)}, v2 offset:{st*32}")
for st in range(4):
    for m in range(2):
        for j in range(2):
            A(f"ds_read_b64_tr_b16 {R(GF+8*st+4*m+2*j,2)}, v75 offset:{16384 + m*1024 + st*4096 + j*512}")
A.label(lb2)
A("s_waitcnt lgkmcnt(0)")
TS(6)
def g_stage():
    lb = A.newlabel("L_nog"); lb2 = A.newlabel("L_nog2")
    A(f"s_cmp_ge_u32 s{sGU}, 176\ns_cbranch_scc1 {lb}\ns_cmp_ge_u32 s{sW}, 2\ns_cbranch_scc1 {lb}")
    for st in range(4):
        for m in range(2): A(mfma32(ACC + 16 * m, GX + 4 * st, GF + 8 * st + 4 * m, None if st else 0))
    A(f"""s_and_b32 s20, s{sP}, 7
s_mul_i32 s20, s20, {1408*16}
s_lshr_b32 s21, s{sGU}, 3
s_lshl_b32 s21, s21, 10
s_add_u32 s20, s20, s21
s_lshl_b32 s21, s{sW}, 9
s_add_u32 s20, s20, s21
s_add_u32 s20, s20, {WS_GP}
v_mov_b32 v{GW+2}, s{sNONCE}
v_mov_b32 v{GW+3}, s{sNONCE}
s_mov_b32 s22, -1
s_mov_b32 s23, 0
v_mov_b32 v{GW}, v{ACC}
v_mov_b32 v{GW+1}, v{ACC+16}
s_mov_b64 exec, s[22:23]
buffer_store_dwordx4 {R(GW,4)}, v74, {SR(SWS)}, s20 offen sc1
s_mov_b64 exec, -1
s_branch {lb2}""")
    A.label(lb)
    A(f"s_mov_b32 s20, 0x40000000\nbuffer_load_dword v254, v74, {SR(SWS)}, s20 offen")
    A.label(lb2)

GPR = 208
def gp_issue():
    A(f"s_lshl_b32 s36, s{sDI}, 9\ns_add_u32 s36, s36, {WS_GP}")
    for q in range(4): A(f"buffer_load_dwordx4 {R(GPR+4*q,4)}, v255, {SR(SWS)}, s36 offen sc1\ns_add_u32 s36, s36, {2*1408*16}")
def gp_check():
    for q in range(4): A(f"v_xor_b32 v{2+q}, s{sNONCE}, v{GPR+4*q+2}")
    A("v_or3_b32 v2, v2, v3, v4\nv_or_b32 v2, v2, v5\nv_cmp_ne_u32 vcc, 0, v2")
def wd_loads():
    A(f"""s_lshl_b32 s37, s{sDI}, 15
s_lshl_b32 s20, s{sHH}, 8
s_add_u32 s37, s37, s20
v_lshrrev_b32 v2, 4, v{vL}
v_and_b32 v3, 15, v{vL}
v_lshlrev_b32 v3, 4, v3
v_lshl_add_u32 v2, v2, 10, v3""")
    for n in range(8): A(f"buffer_load_dwordx4 {R(DG[n],4)}, v2, {SR(SWD)}, s37 offen\ns_add_u32 s37, s37, 4096")
def wd_issue():
    lb = A.newlabel("L_nwd")
    A(f"s_cmp_ge_u32 s{sDI}, 43\ns_cbranch_scc1 {lb}")
    wd_loads()
    A.label(lb)
def gp_request(pad):
    def h():
        lb = A.newlabel("L_ngp")
        A(f"s_cmp_ge_u32 s{sDI}, 43\ns_cbranch_scc1 {lb}")
        gp_issue()
        if pad: A("s_waitcnt vmcnt(0)")
        A.label(lb)
    return h
def d_block():
    A(f"s_cmp_ge_u32 s{sDI}, 43\ns_cbranch_scc1 L_dend")
    A(f"""v_lshrrev_b32 v3, 4, v{vL}
v_lshlrev_b32 v3, 6, v3
v_xor_b32 v2, v{vEX}, v3
v_xor_b32 v24, {0x4000 if DPOS == 0 else 0}, v2
v_lshrrev_b32 v3, 5, v{vL}
v_bfe_u32 v4, v{vL}, 2, 2
v_lshlrev_b32 v5, 8, v4
v_lshl_add_u32 v5, v3, 11, v5
v_lshl_add_u32 v5, v4, 6, v5
v_bfe_u32 v3, v{vL}, 4, 1
v_lshl_add_u32 v5, v3, 5, v5
v_and_b32 v3, 3, v{vL}
v_lshl_add_u32 v5, v3, 3, v5
s_xor_b32 s38, s{sW}, {4 if DPOS == 0 else 0}
s_lshl_b32 s38, s38, 12
s_add_u32 s38, s38, {L_TAIL}
v_add_u32 v25, s38, v5
v_xor_b32 v26, 64, v25
v_xor_b32 v27, 128, v25
v_xor_b32 v28, 192, v25
s_waitcnt vmcnt(DWAIT+4)""".replace('DWAIT+4', str(DW + 4)))
    for rd in range(2):
        for k in range(4): A(f"ds_write_b128 v24, {R(DG[4*rd+k],4)} offset:{k*1024}")
        for t in range(4):
            for j in range(2): A(f"ds_read_b64_tr_b16 {R(DG[4*rd+t]+2*j,2)}, v{25+t} offset:{j*1024}")
    validated(gp_issue, gp_check, DW)
    A(f"""v_add_f32 v2, v{GPR}, v{GPR+4}
v_add_f32 v3, v{GPR+1}, v{GPR+5}
v_add_f32 v4, v{GPR+8}, v{GPR+12}
v_add_f32 v5, v{GPR+9}, v{GPR+13}
v_add_f32 v2, v2, v4
v_add_f32 v3, v3, v5
v_mov_b32 v4, v2
v_mov_b32 v5, v3
v_permlane32_swap_b32 v2, v4
v_permlane32_swap_b32 v3, v5
v_add_f32 v2, v2, v4
v_add_f32 v3, v3, v5""")
    bf16round(2, 2); bf16round(3, 3)
    A(f"""v_mul_f32 v4, {f32(-LOG2E)}, v2
v_exp_f32 v4, v4
v_add_f32 v4, 1.0, v4
v_rcp_f32 v4, v4
v_mul_f32 v2, v2, v4""")
    bf16round(2, 2)
    A(f"""v_mul_f32 v2, v2, v3
v_cvt_pk_bf16_f32 v2, v2, v2
v_and_b32 v3, 31, v{vL}
v_lshl_add_u32 v3, v3, 1, s38
ds_write_b16 v3, v2
v_lshrrev_b32 v3, 5, v{vL}
v_lshl_add_u32 v3, v3, 4, s38
ds_read_b128 {R(32,4)}, v3
ds_read_b128 {R(36,4)}, v3 offset:32
s_lshl_b32 s20, s{sDI}, 12
s_lshl_b32 s21, s{sHH}, 10
s_add_u32 s20, s20, s21
s_add_u32 s20, s20, {WS_YP}
s_mov_b32 s22, 0
s_mov_b32 s23, -1
v_lshlrev_b32 v2, 4, v{vL}
v_mov_b32 v42, s{sNONCE}
v_mov_b32 v43, s{sNONCE}
s_waitcnt lgkmcnt(0)""")
    DB = [SB, SB + 16, SB + 32, 48]
    for st in range(2):
        for t in range(4): A(mfma32(DB[t], 32 + 4 * st, DG[4 * st + t], None if st else 0))
    A(f"""v_cndmask_b32_e64 v40, v{DB[0]}, v{DB[2]}, s[22:23]
v_cndmask_b32_e64 v41, v{DB[1]}, v{DB[3]}, s[22:23]
buffer_store_dwordx4 {R(40,4)}, v2, {SR(SWS)}, s20 offen sc1
""")
    A.label("L_dend")
def wo_dma4():
    return [f"""s_and_b32 s26, s{sWB}, 3
s_add_u32 s{sWB}, s{sWB}, 1
s_lshl_b32 s27, s26, 12
s_add_u32 m0, s27, s{sM0}
s_lshl_b32 s27, s26, 14
s_add_u32 s27, s27, s{sWOD}"""] + [f"buffer_load_dwordx4 v{vWO+k}, {SR(SWO)}, s27 offen offset:{k*1024} lds" for k in range(4)]
def kv_check(base, cs):
    for k in range(4):
        b = base(k)
        A(f"v_add3_u32 v{2+k}, v{b}, v{b+1}, v{b+2}\nv_add3_u32 v{2+k}, v{2+k}, v{b+3}, s{sNONCE}\nv_xor_b32 v{2+k}, v{2+k}, v{cs+k}")
    A(f"""v_or_b32 v2, v2, v3
v_or_b32 v4, v4, v5
v_and_b32 v2, s{sH1}, v2
v_and_or_b32 v2, v4, s{sH2}, v2
v_cmp_ne_u32 vcc, 0, v2""")
def k_check(): kv_check(Kf, KC)
def v_check(): kv_check(lambda k: Vf(k, 0), VC)
def vswap(ks):
    for k in ks:
        for r in range(4): A(f"v_permlane16_swap_b32 v{Vf(k,0)+r}, v{Vf(k,1)+r}")
def Q(q): return QF + 4 * q
def smf(dst, k, q, c): return mfma32(dst, Kf(k), Q(q), c)
SEG = lambda k0: [(k0, 0, None), (k0, 1, None), (k0 + 1, 0, None), (k0 + 1, 1, None)]
B3 = [SB, SB + 16, SB + 32]
def nm(q): return R(NM + 16 * q, 16)
def p2_run(jobs, cfun, fresh, extra={}, mem={}):
    n = len(jobs)
    pend = []
    A(smf(B3[0], jobs[0][0], jobs[0][1], cfun(jobs[0][1])))
    for t in range(n):
        k, q, mask = jobs[t]; b = B3[t % 3]
        side = []
        if t + 1 < n: side.append(smf(B3[(t + 1) % 3], jobs[t + 1][0], jobs[t + 1][1], cfun(jobs[t + 1][1])))
        side += pend
        val = [f"v_exp_f32 v{b+r}, v{b+r}" for r in range(16)]
        val += [f"v_cvt_pk_bf16_f32 v{b+j}, v{b+2*j}, v{b+2*j+1}" for j in range(8)]
        if mask == "old": val += [f"v_and_b32 v{b+j}, v{b+j}, v{MK+j}" for j in range(8)]
        if mask == "diag": val += [f"v_bfi_b32 v{b+j}, v{MK+j}, 0, v{b+j}" for j in range(8)]
        mm_ = mem.get(t, [])
        if mm_:
            step = len(val) // len(mm_)
            for q_, x in enumerate(mm_): val[q_ * step + step // 2] += "\n" + x
        vi = 0
        for sx in side:
            A(sx); emit(val[vi:vi + 5]); vi += 5
        emit(val[vi:])
        for fn in extra.get(t, []): fn()
        pend = [mfma32(OA + 16 * q, Vf(k, g), b + 4 * g, 0 if (q in fresh and g == 0) else None) for g in range(2)]
        fresh.discard(q)
    emit(pend)
zero = lambda q: 0
XR = 80
dma = lambda: emit(wo_dma4())
def wo_ops():
    out = []
    for b in range(4):
        l = wo_dma4(); out += [l[0] + "\n" + l[1]] + l[2:]
    return out
def dma_upto(n):
    lt = A.newlabel("L_du"); le = A.newlabel("L_de")
    A.label(lt)
    A(f"s_sub_u32 s20, s{sWE}, {4-n}\ns_cmp_ge_u32 s{sWB}, s20\ns_cbranch_scc1 {le}")
    dma()
    A(f"s_branch {lt}")
    A.label(le)
def after_v(isC, wait):
    def h():
        validated(v_issue, v_check, wait)
        vswap(range(4))
        if isC:
            for pr in range(2):
                A(f"buffer_load_dwordx4 {R(XR+4*pr,4)}, v{vOUT}, {SR(SX)}, s{sOUTO} offen offset:{pr*32}")
            if int(opts.get("opt", 0)) == 1:
                A(f"""s_lshl_b32 s20, s{sI}, 4
s_add_u32 s20, s20, s{sC}
s_and_b32 s21, s{sW}, 1
s_lshl_b32 s21, s21, 3
s_add_u32 s20, s20, s21
s_cmp_ge_u32 s{sW}, 2
s_cselect_b32 s21, 10, 12
s_mov_b32 s22, {WS_O}
s_cselect_b32 s22, {WS_OC}, s22
s_cselect_b32 s24, 0xff, -1
s_mov_b32 s25, 0
s_lshl_b32 s20, s20, s21
s_add_u32 s20, s20, s22
v_lshlrev_b32 v2, 7, v{vL}
s_mov_b64 exec, s[24:25]
buffer_load_dword v254, v2, {SR(SWS)}, s20 offen sc1
s_mov_b64 exec, -1""")
        if int(opts.get("opt", 0)) == 4:
            A(f"""s_lshl_b32 s20, s{sI}, 1
s_add_u32 s20, s20, s{sROLE}
s_lshl_b32 s20, s20, 3
s_add_u32 s20, s20, s{sC}
s_lshl_b32 s21, s20, 10
s_add_u32 s21, s21, {WS_OC}
s_lshl_b32 s20, s20, 12
s_add_u32 s20, s20, {WS_O}
v_lshrrev_b32 v5, 2, v{vRK}
v_add3_u32 v4, v{QF}, v{QF+1}, v{QF+2}
v_add3_u32 v4, v4, v{QF+3}, s{sNONCE}
v_add_u32 v4, 1, v4
buffer_store_dwordx4 {R(QF,4)}, v{vRK}, {SR(SWS)}, s20 offen sc1
buffer_store_dword v4, v5, {SR(SWS)}, s21 offen sc1""")
        TS(9); RC(43)
    return h
def k_valid(first_wait):
    validated(lambda: (k_issue(), v_issue()), k_check, first_wait)
    TS(7); RC(42)
def sched(ops, plan):
    out = {}; k = 0
    for t, n in plan:
        out[t] = ops[k:k + n]; k += n
    assert k == len(ops)
    return out
OWNJ = [(4, 0, "diag"), (5, 1, "diag"), (4, 1, None)]
OLDJ = [(3, 0, None), (2, 0, "old"), (3, 1, "old")]
CPL = eval(opts.get('cpl', '[]')); LPL = eval(opts.get('lpl', '[(1,4),(5,4),(6,4)]'))
NCB = sum(n for t, n in CPL) // 4
A(f"s_cmp_eq_u32 s{sROLE}, 0\ns_cbranch_scc1 L_fA")
g_stage()
TS(8)
k_valid(7)
lb = A.newlabel("L_fb1"); lb2 = A.newlabel("L_fb0")
A(f"s_cmp_eq_u32 s{sH1}, 0\ns_cbranch_scc1 {lb}")
p2_run(SEG(0) + SEG(2), zero, {0, 1}, {0: [after_v(1, 1)]}, sched(wo_ops()[:4*NCB], CPL))
A("s_branch L_fchk")
A.label(lb)
A(f"s_cmp_eq_u32 s{sH2}, 0\ns_cbranch_scc1 {lb2}")
p2_run(SEG(2), zero, {0, 1}, {0: [after_v(1, 1), wd_issue]})
dma_upto(NCB)
A("s_branch L_fchk")
A.label(lb2)
after_v(1, 1)()
wd_issue()
dma_upto(NCB)
for r in range(32): A(f"v_mov_b32 v{OA+r}, 0")
A(f"v_mov_b32 v{vM0}, {f32(-1e30)}\nv_mov_b32 v{vM1}, {f32(-1e30)}")
A("s_branch L_p2done")
A.label("L_fA")
GQ = int(opts.get("gq", 4)); DW = sum(n for t, n in LPL if t > GQ)
winner()
vswap((4, 5))
A('s_setprio %d' % int(opts.get('lprio', 1)))
lb = A.newlabel("L_fa1"); lb2 = A.newlabel("L_fa0")
A(f"s_cmp_eq_u32 s{sH1}, 0\ns_cbranch_scc1 {lb2}")
p2_run(OWNJ, zero, {0, 1}, {}, sched(capture(k_issue) + capture(v_issue), [(0, 6), (1, 3), (2, 3)]))
TS(8)
k_valid(6)
A(f"s_cmp_eq_u32 s{sH2}, 0\ns_cbranch_scc1 {lb}")
p2_run(SEG(0) + OLDJ, zero, set(), {0: [after_v(0, 0), wd_issue], GQ: [gp_request(0)]}, sched(wo_ops()[:sum(n for t, n in LPL)], LPL))
A("s_branch L_fchk")
A.label(lb)
p2_run(SEG(0), zero, set(), {0: [after_v(0, 0), wd_issue]})
gp_request(1)()
A("s_branch L_fchk")
A.label(lb2)
wd_issue()
p2_run(OWNJ, zero, {0, 1})
dma_upto(int(opts.get("sb", 1)))
A("s_waitcnt vmcnt(0)")
gp_request(1)()
A.label("L_fchk")
LO = (127 - 40) << 23; RNG = 80 << 23
if not FAST: LO, RNG = 0, 0
A(f"""v_subrev_u32 v2, {hex(LO)}, v{OA+8}
v_subrev_u32 v3, {hex(LO)}, v{OA+24}
v_max_u32 v2, v2, v3
v_cmp_le_u32 vcc, {hex(RNG) if RNG else 0}, v2
s_cbranch_vccnz L_slow""")
A.label("L_p2done")
if DPOS == 0: d_block()
PB0 = int(opts.get("pb0", 0)); NB1 = int(opts.get("nb1", 4)); MB = int(opts.get("mb", 5))
A(f"""s_cmp_lt_u32 s{sW}, 4
s_cbranch_scc1 L_npb0""")
dma_upto(4)
A(f"""s_sub_u32 s{sWOD}, s{sWOD}, {4 << 16}
s_add_u32 s{sM0}, s{sM0}, {4 << 14}
s_add_u32 s{sWE}, s{sWE}, 4
s_add_u32 s{sWB}, s{sWB}, {NCB}""")
if PB0: dma_upto(NCB + PB0)
A.label("L_npb0")
TS(10)

def slow_path():
    A.label("L_slow")
    A("s_waitcnt vmcnt(0)")
    A(f"v_mov_b32 v{vM0}, {f32(-1e30)}\nv_mov_b32 v{vM1}, {f32(-1e30)}\nv_mov_b32 v5, {f32(-1e30)}")
    def max_run(jobs):
        for (k, q, mask) in jobs:
            m = vM0 if q == 0 else vM1
            A(smf(SB, k, q, 0))
            if mask:
                for r in range(16):
                    j0 = 8 * (r // 4) + r % 4
                    A(f"s_lshl_b32 s20, -1, {j0}\ns_lshl_b32 s21, -1, {j0+4}")
                    if mask == "diag": A(f"v_cndmask_b32_e64 v{SB+r}, v5, v{SB+r}, s[20:21]")
                    else: A(f"v_cndmask_b32_e64 v{SB+r}, v{SB+r}, v5, s[20:21]")
            for r in range(0, 16, 2): A(f"v_max3_f32 v{m}, v{SB+r}, v{SB+r+1}, v{m}")
    def groups(fn):
        l1 = A.newlabel("L_s"); l2 = A.newlabel("L_s"); l3 = A.newlabel("L_s")
        A(f"s_cmp_eq_u32 s{sH1}, 0\ns_cbranch_scc1 {l1}")
        fn(SEG(0))
        A.label(l1)
        A(f"s_cmp_eq_u32 s{sROLE}, 0\ns_cbranch_scc1 {l2}")
        fn(SEG(2))
        A(f"s_branch {l3}")
        A.label(l2)
        fn(OWNJ)
        A(f"s_cmp_eq_u32 s{sH2}, 0\ns_cbranch_scc1 {l3}")
        fn(OLDJ)
        A.label(l3)
    groups(max_run)
    A(f"""v_mov_b32 v2, v{vM0}
v_mov_b32 v3, v{vM1}
v_permlane32_swap_b32 v{vM0}, v2
v_permlane32_swap_b32 v{vM1}, v3
v_max_f32 v{vM0}, v{vM0}, v2
v_max_f32 v{vM1}, v{vM1}, v3""")
    for q, m in enumerate((vM0, vM1)):
        for r in range(16): A(f"v_sub_f32 v{NM+16*q+r}, 0, v{m}")
    for r in range(32): A(f"v_mov_b32 v{OA+r}, 0")
    groups(lambda jobs: p2_run(jobs, nm, set()))
    wd_issue()
    A("s_waitcnt vmcnt(0)\ns_branch L_p2done")

A(f"""v_xor_b32 v3, 0x4000, v{vEX}
v_add_u32 v3, {81920 - L_TAIL}, v3
v_add_u32 v2, {81920 - L_TAIL}, v{vEX}
s_lshl_b32 s20, s{sI}, 1
s_add_u32 s20, s20, s{sROLE}
s_lshl_b32 s20, s20, 3
s_add_u32 s20, s20, s{sC}
s_lshl_b32 s21, s20, 10
s_add_u32 s21, s21, {WS_OC}
s_lshl_b32 s20, s20, 12
s_add_u32 s20, s20, {WS_O}
v_lshrrev_b32 v5, 2, v{vRK}
v_mov_b32 v{OA+25}, v{vM1}
ds_write_b64 v3, {R(OA+24,2)} offset:2048
ds_write_b128 v3, {R(OA+16,4)}
ds_write_b128 v3, {R(OA+20,4)} offset:1024
s_waitcnt lgkmcnt(0)
s_barrier
ds_read_b64 {R(SB+8,2)}, v2 offset:2048
ds_read_b128 {R(SB,4)}, v2
ds_read_b128 {R(SB+4,4)}, v2 offset:1024
s_waitcnt lgkmcnt(2)
v_max_f32 v3, v{vM0}, v{SB+9}
v_sub_f32 v{SB+10}, v{vM0}, v3
v_sub_f32 v{SB+11}, v{SB+9}, v3
v_exp_f32 v{SB+10}, v{SB+10}
v_exp_f32 v{SB+11}, v{SB+11}
v_mul_f32 v4, v{SB+10}, v{OA+8}
v_fmac_f32 v4, v{SB+11}, v{SB+8}
v_rcp_f32 v4, v4
v_mul_f32 v{SB+10}, v{SB+10}, v4
v_mul_f32 v{SB+11}, v{SB+11}, v4
s_waitcnt lgkmcnt(0)""")
for r in range(0, 8, 2):
    A(f"v_pk_mul_f32 {R(OA+r,2)}, {R(OA+r,2)}, {R(SB+10,2)} op_sel_hi:[1,0]")
    A(f"v_pk_fma_f32 {R(OA+r,2)}, {R(SB+r,2)}, {R(SB+10,2)}, {R(OA+r,2)} op_sel:[0,1,0]")
for k in range(4): A(f"v_cvt_pk_bf16_f32 v{SB+12+k}, v{OA+2*k}, v{OA+2*k+1}")
A(f"""buffer_store_dwordx4 {R(SB+12,4)}, v{vRK}, {SR(SWS)}, s20 offen sc1
v_add3_u32 v4, v{SB+12}, v{SB+13}, v{SB+14}
v_add3_u32 v4, v4, v{SB+15}, s{sNONCE}
buffer_store_dword v4, v5, {SR(SWS)}, s21 offen sc1""")
TS(11)

A("s_waitcnt vmcnt(2)\ns_barrier")
TS(12); RC(44)

WOF = 8; XB = 136; PA = 160; OF = 176; OL = 208; OLC = 224
A(f"""s_lshl_b32 s20, s{sQK}, 3
s_add_u32 s20, s20, s{sW}
s_lshl_b32 s32, s20, 10
s_add_u32 s32, s32, {WS_OC}
s_lshl_b32 s31, s20, 12
s_add_u32 s31, s31, {WS_O}
v_lshlrev_b32 v2, 4, v{vL}
v_lshlrev_b32 v{vRV}, 2, v{vL}
s_and_b32 s33, s{sKEY}, 0x7ff
s_sub_u32 s33, 2047, s33
s_lshr_b32 s34, s33, 5""")
def o_issue():
    for k in range(4):
        A(f"buffer_load_dwordx4 {R(OL+4*k,4)}, v2, {SR(SWS)}, s31 offen offset:{k*1024} sc1")
    for k in range(4):
        A(f"buffer_load_dword v{OLC+k}, v{vRV}, {SR(SWS)}, s32 offen offset:{k*256} sc1")
def o_check():
    for k in range(4):
        b = OL + 4 * k
        A(f"v_add3_u32 v{228+k}, v{b}, v{b+1}, v{b+2}\nv_add3_u32 v{228+k}, v{228+k}, v{b+3}, s{sNONCE}\nv_xor_b32 v{228+k}, v{228+k}, v{OLC+k}")
    A("v_or3_b32 v228, v228, v229, v230\nv_or_b32 v228, v228, v231\nv_cmp_ne_u32 vcc, 0, v228")
lb = A.newlabel("L_p3l")
A(f"s_cmp_lt_u32 s{sW}, 4\ns_cbranch_scc1 L_nphb")
dma_upto(NB1)
A.label("L_nphb")
if DPOS == 1: d_block()
A(f"v_lshlrev_b32 v2, 4, v{vL}")
A(f"s_cmp_ge_u32 s{sW}, 4\ns_cbranch_scc1 {lb}w")
for pr in range(2):
    b = XR + 4 * pr
    A(f"v_permlane32_swap_b32 v{b}, v{b+2}\nv_permlane32_swap_b32 v{b+1}, v{b+3}")
for k in range(8):
    x = XR + k; p = PA + 2 * k
    A(f"""v_lshlrev_b32 v{p}, 16, v{x}
v_and_b32 v{p+1}, 0xffff0000, v{x}
v_pk_add_f32 {R(XB+8,2)}, {R(p,2)}, {R(vPM,2)} op_sel_hi:[1,0] neg_lo:[0,1] neg_hi:[0,1]
v_cvt_pk_bf16_f32 v{XB+10}, v{XB+8}, v{XB+9}
v_lshlrev_b32 v{XB+8}, 16, v{XB+10}
v_and_b32 v{XB+9}, 0xffff0000, v{XB+10}
v_pk_mul_f32 {R(XB+8,2)}, {R(XB+8,2)}, {R(vPM,2)} op_sel:[0,1]
v_cvt_pk_bf16_f32 v{XB+10}, v{XB+8}, v{XB+9}
v_lshlrev_b32 v{XB+8}, 16, v{XB+10}
v_and_b32 v{XB+9}, 0xffff0000, v{XB+10}
v_pk_add_f32 {R(p,2)}, {R(p,2)}, {R(XB+8,2)}""")
A(f"""v_lshlrev_b32 v2, 4, v{vL}
v_lshrrev_b32 v4, 5, v{vL}
v_bfe_u32 v3, v{vL}, 2, 2
v_lshl_add_u32 v5, v4, 2, v3
v_lshlrev_b32 v5, 8, v5
v_xor_b32 v3, s{sW}, v3
v_lshl_add_u32 v5, v3, 6, v5
v_bfe_u32 v3, v{vL}, 4, 1
v_lshl_add_u32 v5, v3, 5, v5
v_and_b32 v3, 3, v{vL}
v_lshl_add_u32 v5, v3, 3, v5
v_add_u32 v3, 65536, v5""")
def wo_read(g): return [f"ds_read_b64_tr_b16 {R(WOF+4*g+2*j,2)}, v{3 if g < 16 else 5} offset:{(g*4096 + j*2048) % 65536}" for j in range(2)]
for g in range(16, 32): emit(wo_read(g))
A(f"s_waitcnt vmcnt(0)\ns_branch {lb}")
A.label(lb + "w")
A(f"s_waitcnt vmcnt({4*max(0, NB1-NCB-PB0)})")
def yp_issue():
    A(f"""s_and_b32 s20, s{sC}, 3
s_lshl_b32 s20, s20, 10
s_add_u32 s20, s20, {WS_YP}
s_add_u32 s21, s20, {42*4096}
s_mul_i32 s22, s{sHH}, {11*4096}
s_add_u32 s20, s20, s22""")
    for k in range(11):
        if k == 10: A("s_min_u32 s20, s20, s21")
        A(f"buffer_load_dwordx4 {R(8+4*k,4)}, v2, {SR(SWS)}, s20 offen sc1\ns_add_u32 s20, s20, 4096")
NR = 4 * (4 - max(NB1, NCB + PB0))
TS(46)
o_issue()
if NR: dma_upto(4)
A(f"s_cmp_lg_u32 s34, s{sQK}\ns_cbranch_scc1 {lb}z")
yp_issue()
A(f"s_waitcnt vmcnt({11+NR})\ns_branch {lb}y")
A.label(lb + "z")
A(f"s_waitcnt vmcnt({NR})\ns_branch {lb}y")
A.label(lb)
TS(46)
o_issue()
TS(47)
A("s_waitcnt vmcnt(0)")
A.label(lb + "y")
o_check()
retry_check(lb)
for k in range(4):
    A(f"ds_write_b128 v{vEX}, {R(OL+4*k,4)} offset:{k*1024}")
TS(13); RC(45)
A("s_waitcnt lgkmcnt(0)\ns_barrier")
TS(14)
A(f"s_cmp_ge_u32 s{sW}, 4\ns_cbranch_scc1 L_p3help")
A(f"v_add_u32 v2, {L_TAIL}, v2")
order = list(range(16, 32)) + list(range(16))
lq = []
def ofr(n): lds(("o", n), f"ds_read_b128 {R(OF+4*(n%8),4)}, v2 offset:{order[n]*1024}")
for n in range(6): ofr(n)
wq = [x for g in range(16) for x in wo_read(g)]
for n in range(32):
    lwait(("o", n))
    A(mfma32(PA, WOF + 4 * order[n], OF + 4 * (n % 8)))
    if NR:
        if n == MB: A("s_barrier")
        if n >= MB:
            for x in wq[:3]: lds("w", x)
            wq = wq[3:]
    elif n < 16:
        for x in wo_read(n): lds("w", x)
    if n + 6 < 32: ofr(n + 6)
    if n == int(opts.get("zb", 14)):
        A(f"s_cmp_lg_u32 s34, s{sQK}\ns_cbranch_scc1 L_nzb\ns_barrier\nL_nzb:")
lb = A.newlabel("L_noz")
A(f"s_cmp_lg_u32 s34, s{sQK}\ns_cbranch_scc1 {lb}")
A(f"""s_barrier
s_lshl_b32 s20, s{sW}, 7
v_lshlrev_b32 v3, 4, v4
v_add_u32 v3, s20, v3""")
for a in range(4): A(f"ds_read_b128 {R(OF+4*a,4)}, v3 offset:{a*32}")
A(f"""s_and_b32 s20, s33, 31
v_and_b32 v3, 31, v{vL}
v_cmp_eq_u32 vcc, s20, v3
s_and_saveexec_b64 s[{sEX}:{sEX+1}], vcc
s_waitcnt lgkmcnt(0)""")
for r in range(16): A(f"v_add_f32 v{PA+r}, v{PA+r}, v{OF+r}")
A(f"s_mov_b64 exec, s[{sEX}:{sEX+1}]")
A.label(lb)
for k in range(8): A(f"v_cvt_pk_bf16_f32 v{XB+k}, v{PA+2*k}, v{PA+2*k+1}")
for pr in range(2):
    b = XB + 4 * pr
    A(f"v_permlane32_swap_b32 v{b}, v{b+2}\nv_permlane32_swap_b32 v{b+1}, v{b+3}")
    A(f"buffer_store_dwordx4 {R(b,4)}, v{vOUT}, {SR(SOUT)}, s{sOUTO} offen offset:{pr*32}")
A("s_branch L_end")
A.label("L_p3help")
if NR:
    A(f"s_cmp_lg_u32 s34, s{sQK}\ns_cbranch_scc1 L_hw0\ns_waitcnt vmcnt(11)\ns_branch L_hw1\nL_hw0:\ns_waitcnt vmcnt(0)\nL_hw1:\ns_barrier")
A(f"""s_or_b32 s20, s2, s{sHH}
s_cmp_lg_u32 s20, 0
s_cbranch_scc1 L_noep
v_mov_b32 v200, s{sNONCE}
v_mov_b32 v201, {WS_EPOCH}
s_mov_b64 exec, 1
buffer_store_dword v200, v201, {SR(SWS)}, 0 offen sc1
s_mov_b64 exec, -1
L_noep:""")
A(f"s_cmp_lg_u32 s34, s{sQK}\ns_cbranch_scc1 L_end")
def yp_check():
    A(f"v_min3_u32 v3, v10, v14, v18\nv_max3_u32 v4, v10, v14, v18")
    for k in range(3, 11, 2): A(f"v_min3_u32 v3, v3, v{10+4*k}, v{14+4*k}\nv_max3_u32 v4, v4, v{10+4*k}, v{14+4*k}")
    A(f"v_xor_b32 v3, s{sNONCE}, v3\nv_xor_b32 v4, s{sNONCE}, v4\nv_or_b32 v3, v3, v4\nv_cmp_ne_u32 vcc, 0, v3")
validated(yp_issue, yp_check, 0)
A(f"s_cmp_eq_u32 s{sHH}, 3\ns_cselect_b32 s20, 0, 1.0")
for k in range(1, 10): A(f"v_add_f32 v8, v8, v{8+4*k}\nv_add_f32 v9, v9, v{9+4*k}")
A(f"""v_fmac_f32 v8, s20, v48
v_fmac_f32 v9, s20, v49
s_lshl_b32 s20, s{sHH}, 9
s_add_u32 s20, s20, 1024
v_lshl_add_u32 v3, v{vL}, 3, s20
ds_write_b64 v3, v[8:9]
s_waitcnt lgkmcnt(0)
s_barrier""")
lb = A.newlabel("L_hb")
A(f"""s_cmp_lg_u32 s{sW}, 4
s_cbranch_scc1 {lb}
ds_read_b64 v[10:11], v3 offset:512
ds_read_b64 v[12:13], v3 offset:1024
ds_read_b64 v[14:15], v3 offset:1536
s_waitcnt lgkmcnt(0)
v_add_f32 v8, v8, v10
v_add_f32 v9, v9, v11
v_add_f32 v12, v12, v14
v_add_f32 v13, v13, v15
v_add_f32 v8, v8, v12
v_add_f32 v9, v9, v13""")
bf16round(8, 8); bf16round(9, 9)
A(f"""s_and_b32 s20, s{sKEY}, 0xffff0000
s_ashr_i32 s21, s20, 31
s_not_b32 s21, s21
s_or_b32 s21, s21, 0x80000000
s_xor_b32 s20, s20, s21
s_and_b32 s20, s20, 0xffff0000
v_mov_b32 v3, s20
v_mul_f32 v3, {f32(-LOG2E)}, v3
v_exp_f32 v3, v3
v_add_f32 v3, 1.0, v3
v_rcp_f32 v3, v3""")
bf16round(3, 3)
A("v_mul_f32 v8, v8, v3\nv_mul_f32 v9, v9, v3")
bf16round(8, 8); bf16round(9, 9)
A(f"""v_lshrrev_b32 v3, 5, v{vL}
v_lshlrev_b32 v3, 8, v3
v_and_b32 v4, 31, v{vL}
v_lshl_add_u32 v3, v4, 2, v3
ds_write_b32 v3, v8
ds_write_b32 v3, v9 offset:128
s_waitcnt lgkmcnt(0)""")
A.label(lb)
A("s_barrier")
A.label("L_end")
if PROF:
    TS(15)
    srd(SWS, WS_SIZE)
    A(f"""s_mov_b64 exec, -1
v_writelane_b32 v{vTS}, s{sRETRY}, 62
s_memrealtime s[96:97]
s_waitcnt lgkmcnt(0)
v_writelane_b32 v{vTS}, s96, 61
s_lshl_b32 s20, s2, 3
s_add_u32 s20, s20, s{sW}
s_lshl_b32 s20, s20, 8
s_add_u32 s20, s20, {WS_TS}
v_lshlrev_b32 v2, 2, v{vL}
buffer_store_dword v{vTS}, v2, {SR(SWS)}, s20 offen""")
A.label("L_exit")
A("s_endpgm")
A.label("L_codeend")
slow_path()

body = A.finalize()
import re as _re
def addflag(srd_, flag, kind="load"):
    global body
    pat = _re.compile(r"^(\s*buffer_%s_\w+ .*s\[%d:%d\], \S+ offen(?: offset:\d+)?)( lds)?$" % (kind, srd_, srd_ + 3), _re.M)
    body = pat.sub(lambda m: m.group(1) + " " + flag + (m.group(2) or ""), body)
for b_ in (SWG, SWU, SWD): addflag(b_, "nt")
if opts.get("ntx"): addflag(SX, "nt")
if opts.get("ntw"): addflag(SW, "nt")
if opts.get("nto"): addflag(SWO, "nt")
if opts.get("outf"): addflag(SOUT, opts["outf"].replace("+", " "), "store")
hdr = open("cdna_kernels/" + NAME + ".s.ref").read().split("; Override launch")[0]
out = hdr + f"""; Fused single kernel: LN stats + router, QKV GEMM, sliding-window attention, MoD FFN, output projection.
; Generated by gen/gen.py (hand-written generator).
; @launch grid=(256,1,1) block=(512,1,1) lds=163840
.amdgcn_target "amdgcn-amd-amdhsa--gfx950"
.text
.globl {NAME}_kernel
.p2align 8
.type {NAME}_kernel,@function
{NAME}_kernel:
L_start:
{body}
.section .rodata,"a"
.p2align 6
.amdhsa_kernel {NAME}_kernel
  .amdhsa_next_free_vgpr 256
  .amdhsa_next_free_sgpr 102
  .amdhsa_accum_offset 256
  .amdhsa_group_segment_fixed_size 0
  .amdhsa_kernarg_size 88
  .amdhsa_user_sgpr_count 2
  .amdhsa_user_sgpr_kernarg_segment_ptr 1
  .amdhsa_system_sgpr_workgroup_id_x 1
  .amdhsa_float_denorm_mode_32 3
.end_amdhsa_kernel
"""
import subprocess, re
def labels(text):
    open("_g.s", "w").write(text)
    r = subprocess.run(["clang", "-x", "assembler", "-target", "amdgcn-amd-amdhsa", "-mcpu=gfx950", "-c", "_g.s", "-o", "_g.o"], capture_output=True, text=True)
    if r.returncode:
        print("\n".join(r.stderr.split("\n")[:30])); sys.exit(1)
    t = subprocess.run(["llvm-objdump", "-t", "_g.o"], capture_output=True, text=True).stdout
    return {m.group(2): int(m.group(1), 16) for m in re.finditer(r"^([0-9a-f]{16}) .*\s(L_\w+)$", t, re.M)}
lab = labels(out.replace("CODE_PF_MAX", "0x11111"))
out = out.replace("CODE_PF_MAX", hex((lab["L_codeend"] - 1024) & ~127))
assert labels(out) == lab
print("code bytes", lab["L_codeend"], "instrs", len(A.ins), "nops", A.nnop)
open(sys.argv[1], "w").write(out)
```

```python
import sys, struct
from asmlib import Asm

NAME = "parallel_sum__sliding_block__moe_arch_mod__prompt"
opts = dict(a.split("=") if "=" in a else (a, "1") for a in sys.argv[2:])
PROF = int(opts.get("prof", 0))
LOOPTS = int(opts.get('loopts', 0))
DEPTH = int(opts.get('depth', 3))
FAST = int(opts.get('fast', 1))
SIBU = int(opts.get('sibu', 4))
GWP = int(opts.get('gwp', 2))
DOFF = int(opts.get('doff', 245))
DSH = int(opts.get('dsh', 0))
DNL = int(opts.get('dnl', 43))
DPOS = int(opts.get('dpos', 0))
PWS = int(opts.get('pws', 1))
LGW = int(opts.get('lgw', -1))
PUBU = int(opts.get('pubu', 0))

def f32(x): return "0x%08x" % struct.unpack("<I", struct.pack("<f", x))[0]
LOG2E = 1.4426950408889634

WS_BEST  = 0x0
WS_EPOCH = 0x4000
WS_STATS = 0x8000
WS_YP    = 0x10000
WS_GP    = 0x40000
WS_KV    = 0x100000
WS_KVC   = 0x500000
WS_O     = 0x600000
WS_OC    = 0x800000
WS_TS    = 0x900000
WS_SIZE  = 0x1000000
L_X = 0; L_RING = 65536; L_MISC = 147456; L_TAIL = 131072
def slot_of(u): return (u + 2) % 5
L_QF = L_MISC
L_SM = L_MISC + 8192
L_RT = L_SM
L_NONCE = L_SM + 128
L_IDX = L_SM + 144
L_XSEL = L_SM + 1024
L_QRDY = L_SM + 224
L_CSX = L_SM + 2048
L_STAT = L_SM + 256
L_RINV = L_SM + 768
L_GW = L_RING + 4 * 16384
L_OWN = L_RING + slot_of(8) * 16384
SX, SW, SWS, SDBG, SWR = 40, 44, 48, 52, 56
SWO, SOUT, SWG, SWU, SWD = 60, 64, 68, 72, 76
sI, sC, sW, sROT, sNONCE, sP, sKEY = 3, 4, 5, 6, 7, 8, 9
sXO, sWOFF, sCT, sWB, sHH, sROLE, sH1, sH2 = 10, 11, 12, 13, 14, 15, 16, 17
sSM, sSR = 18, 19
sOUTO, sQK, sWOD, sM0, sWE, sEX, sRETRY = 80, 81, 82, 83, 84, 86, 88
sGU = 89
sDI = 85
DG = [96 + 4 * n for n in range(8)]
GOFF = int(opts.get('goff', 80))
sRB = 90
vL, vZ, vTS = 1, 6, 7
vXA, vWA0, vWA1 = 88, 92, 93
vX0, vX1, vW0, vW1 = 80, 81, 82, 83
vSA, vKA, vKC, vBA = 80, 81, 82, 83
ACC = 96; STB = 128; CS = 200; SEL = 204; GW = 208; ST0, ST1 = 224, 226; XS = 228
OWN = 128; SL = 8
KC, VC, QF, NM, OA, SB, WD, MK = 80, 84, 88, 96, 128, 160, 208, 232
vM0, vM1, vRK, vRV, vRKC, vGA, vEX, vOUT, vPM, vPR, vWO = 240, 241, 242, 243, 244, 245, 246, 247, 248, 249, 250
A = Asm()

def TS(n):
    if PROF == 1: A(f"s_memtime s[98:99]\ns_waitcnt lgkmcnt(0)\nv_writelane_b32 v{vTS}, s98, {n}")
def TSL(n):
    if LOOPTS: TS(n)
def RC(n):
    if PROF == 1: A(f"v_writelane_b32 v{vTS}, s{sRETRY}, {n}")
def srd(base, size): A(f"s_mov_b32 s{base+2}, {size}\ns_mov_b32 s{base+3}, 0x20000")
def R(b, n): return f"v[{b}:{b+n-1}]"
def SR(b): return f"s[{b}:{b+3}]"
DPP8 = ("quad_perm:[1,0,3,2]", "quad_perm:[2,3,0,1]", "row_half_mirror")
def dpp(op, x, m): return f"{op}_dpp v{x}, v{x}, v{x} {m} row_mask:0xf bank_mask:0xf"
def allreduce32(x, t, op):
    for m in DPP8 + ("row_mirror",): A(dpp(op, x, m))
    A(f"v_mov_b32 v{t}, v{x}\nv_permlane16_swap_b32 v{x}, v{t}\n{op} v{x}, v{x}, v{t}")
def bf16round(dst, src):
    A(f"v_cvt_pk_bf16_f32 v{dst}, v{src}, v{src}\nv_and_b32 v{dst}, 0xffff0000, v{dst}")
def retry_check(lbl):
    A(f"s_add_u32 s{sRETRY}, s{sRETRY}, 1\ns_cmp_gt_u32 s{sRETRY}, 20000\ns_cbranch_scc1 L_end")
    A(f"s_cbranch_vccnz {lbl}")
def validated(issue, check, first_wait, retry_wait=0):
    lr = A.newlabel("L_rt"); lo = A.newlabel("L_ok")
    A(f"s_waitcnt vmcnt({first_wait})"); check(); A(f"s_cbranch_vccz {lo}")
    A.label(lr)
    issue(); A(f"s_waitcnt vmcnt({retry_wait})"); check()
    retry_check(lr)
    A.label(lo)
def capture(fn):
    n = len(A.ins); fn(); out = [x.text for x in A.ins[n:]]; del A.ins[n:]
    return out
def emit(l):
    for x in l: A(x)
def split(l, n): return [l[len(l)*k//n: len(l)*(k+1)//n] for k in range(n)]
def mfma32(d, a, b, c=None):
    return f"v_mfma_f32_32x32x16_bf16 {R(d,16)}, {R(a,4)}, {R(b,4)}, {R(d,16) if c is None else c}"
def var_to_rinv(v):
    bf16round(v, v)
    A(f"v_add_f32 v{v}, {f32(1e-5)}, v{v}")
    bf16round(v, v)
    A(f"v_sqrt_f32 v{v}, v{v}")
    bf16round(v, v)
    A(f"v_rcp_f32 v{v}, v{v}")

if PROF: A("s_memrealtime s[96:97]")
if PROF == 1: A("s_memtime s[94:95]")
A("s_cmp_ge_u32 s2, 256\ns_cbranch_scc1 L_exit")
for b, off in ((SX, 0), (SW, 8), (SWR, 32), (SWS, 80)):
    A(f"s_load_dwordx2 s[{b}:{b+1}], s[0:1], {off}")
A(f"""v_lshrrev_b32 v2, 6, v0
v_and_b32 v{vL}, 63, v0
s_bfe_u32 s20, s2, 0x20001
s_bfe_u32 s24, s2, 0x30003
v_readfirstlane_b32 s{sW}, v2
s_lshl3_add_u32 s{sI}, s20, s24
s_and_b32 s20, s2, 1
s_lshr_b32 s24, s2, 6
s_lshl2_add_u32 s{sC}, s20, s24
s_lshl3_add_u32 s{sP}, s{sI}, s{sC}""")
srd(SX, 2048 * 1024)
def late_setup():
    for b, off in ((SWO, 16), (SWG, 40), (SWU, 48), (SWD, 56), (SOUT, 64)):
        A(f"s_load_dwordx2 s[{b}:{b+1}], s[0:1], {off}")
    if opts.get("gmap"):
        lo = int(opts["gmap"])
        A(f"""s_cmp_ge_u32 s{sP}, {lo}
s_cselect_b32 s26, 80, 16
s_sub_u32 s{sGU}, s{sP}, s26
s_sub_u32 s26, s{sP}, {lo}
s_cmp_lt_u32 s26, 64
s_cselect_b32 s{sGU}, 255, s{sGU}""")
    else:
        A(f"s_sub_u32 s{sGU}, s{sP}, {GOFF}")
    A(f"""s_cmp_ge_u32 s{sW}, 4
s_cselect_b32 s26, {DNL}, {43-DNL}
s_cselect_b32 s24, 0, {DNL}
s_add_u32 s{sDI}, s{sP}, s24
s_cmp_lt_u32 s{sP}, s26
s_cselect_b32 s{sDI}, s{sDI}, 255
s_mov_b32 s{sRETRY}, 0""")
    if PROF:
        A(f"v_mov_b32 v{vTS}, 0\nv_writelane_b32 v{vTS}, s96, 63")
A(f"s_cmp_ge_u32 s{sW}, 4\ns_cbranch_scc1 L_lwave")
srd(SWR, 1024)
A(f"""v_and_b32 v2, 31, v{vL}
v_lshlrev_b32 v{vSA}, 4, v2
v_lshrrev_b32 v3, 5, v{vL}
v_lshl_add_u32 v4, v3, 10, v{vSA}
s_lshl2_add_u32 s20, s{sP}, s{sW}
s_lshl_b32 s20, s20, 1
s_lshl_b32 s21, s20, 10
s_waitcnt lgkmcnt(0)
buffer_load_dwordx4 v[8:11], v4, {SR(SX)}, s21 offen
buffer_load_dwordx4 v[12:15], v4, {SR(SX)}, s21 offen offset:512
buffer_load_dwordx4 v[16:19], v{vSA}, {SR(SWR)}, 0 offen
buffer_load_dwordx4 v[20:23], v{vSA}, {SR(SWR)}, 0 offen offset:512
""")
A("s_branch L_cwave")

def frag_addrs():
    A(f"""v_and_b32 v2, 31, v{vL}
v_lshrrev_b32 v3, 5, v{vL}
v_bfe_u32 v4, v2, 1, 3
v_xor_b32 v4, v4, v3
v_lshlrev_b32 v4, 4, v4
v_lshl_add_u32 v4, v2, 7, v4
v_add_u32 v{vXA}, s28, v4
v_xor_b32 v{vXA+1}, 32, v{vXA}
v_xor_b32 v{vXA+2}, 64, v{vXA}
v_xor_b32 v{vXA+3}, 96, v{vXA}
v_bfe_u32 v4, v{vL}, 2, 2
v_lshlrev_b32 v4, 7, v4
v_lshl_add_u32 v4, v3, 11, v4
v_bfe_u32 v5, v{vL}, 3, 1
v_lshl_add_u32 v4, v5, 6, v4
v_bfe_u32 v5, v{vL}, 4, 1
v_lshl_add_u32 v4, v5, 5, v4
v_and_b32 v5, 3, v{vL}
v_lshl_add_u32 v{vGA}, v5, 3, v4
s_lshl_b32 s20, s{sCT}, 6
v_xor_b32 v4, s20, v{vGA}
v_add_u32 v{vWA0}, s29, v4
v_add_u32 v{vWA1}, {3*16384}, v{vWA0}
v_lshrrev_b32 v4, 4, v{vL}
v_xor_b32 v4, v4, v{vL}
v_and_b32 v4, 1, v4
v_add_u32 v4, -1, v4
v_and_b32 v{SEL}, 0x3f803f80, v4
v_mov_b32 v{SEL+1}, v{SEL}
v_mov_b32 v{SEL+2}, v{SEL}
v_mov_b32 v{SEL+3}, v{SEL}""")
    for r in range(4): A(f"v_mov_b32 v{CS+r}, 0")
def wa(slot, off):
    return (vWA0, slot * 16384 + off) if slot < 3 else (vWA1, (slot - 3) * 16384 + off)
def csum_mfma(wf): return f"v_mfma_f32_16x16x32_bf16 {R(CS,4)}, {R(SEL,4)}, {R(wf,4)}, {R(CS,4)}"
def corr_w(dst):
    A(f"""s_mov_b32 s20, 0xffff0000
s_mov_b32 s21, 0xffff0000
v_cndmask_b32_e64 v2, v{CS}, v{CS+1}, s[20:21]
v_mul_f32 v2, 0.5, v2""")
    bf16round(3, 2)
    A("v_sub_f32 v2, v2, v3")
    bf16round(4, 2)
    A(f"""v_sub_f32 v2, v2, v4
v_cvt_pk_bf16_f32 v{dst}, v3, v4
v_cvt_pk_bf16_f32 v{dst+1}, v2, 0""")
def corr_x(dst, m):
    A(f"""v_cvt_pk_bf16_f32 v{dst}, -v{m}, -v{m}
v_cvt_pk_bf16_f32 v{dst+1}, -v{m}, 0
v_mov_b32 v{dst+2}, 0
v_mov_b32 v{dst+3}, 0""")
def Kf(k): return SL + 12 * k
def Vf(k, g): return SL + 12 * k + 4 + 4 * g
def attn_setup_s():
    A(f"""s_sub_u32 s20, 3, s{sROLE}
s_cmp_eq_u32 s{sROLE}, 0
s_cselect_b32 s21, 4, 1
s_sub_u32 s22, s{sI}, s20
s_lshl_b32 s22, s22, 3
s_add_u32 s22, s22, s{sC}
s_cmp_ge_u32 s{sI}, s20
s_cselect_b32 s{sH1}, -1, 0
s_cselect_b32 s22, s22, 0x10000
s_sub_u32 s23, s{sI}, s21
s_lshl_b32 s23, s23, 3
s_add_u32 s23, s23, s{sC}
s_cmp_ge_u32 s{sI}, s21
s_cselect_b32 s{sH2}, -1, 0
s_cselect_b32 s23, s23, 0x10000
s_lshl_b32 s{sRB}, s22, 14
s_add_u32 s{sRB}, s{sRB}, {WS_KV}
s_add_u32 s{sRB+1}, s{sRB}, 4096
s_lshl_b32 s{sRB+2}, s23, 14
s_add_u32 s{sRB+2}, s{sRB+2}, {WS_KV}
s_add_u32 s{sRB+3}, s{sRB+2}, 4096
s_lshl_b32 s{sRB+4}, s22, 12
s_add_u32 s{sRB+4}, s{sRB+4}, {WS_KVC}
s_lshl_b32 s{sRB+5}, s23, 12
s_add_u32 s{sRB+5}, s{sRB+5}, {WS_KVC}
s_lshl_b32 s{sWOD}, s{sW}, 16
s_and_b32 s20, s{sC}, 3
s_lshl_b32 s20, s20, 8
s_add_u32 s{sWOD}, s{sWOD}, s20
s_xor_b32 s{sM0}, s{sW}, 4
s_lshl_b32 s{sM0}, s{sM0}, 14
s_mov_b32 s{sWB}, s{sI}
s_add_u32 s{sWE}, s{sI}, 4
s_lshl_b32 s{sQK}, s{sI}, 1
s_lshr_b32 s21, s{sC}, 2
s_add_u32 s{sQK}, s{sQK}, s21
s_lshl_b32 s{sOUTO}, s{sQK}, 15
s_add_u32 s{sOUTO}, s{sOUTO}, s20
s_lshl_b32 s20, s{sHH}, 6
s_add_u32 s{sOUTO}, s{sOUTO}, s20""")
    srd(SWD, 0 if opts.get('nogw') else 1376 * 1024); srd(SOUT, 2048 * 1024); srd(SWO, 0 if opts.get('nowo') else 512 * 1024); srd(SWS, WS_SIZE)
def attn_setup_v():
    A(f"""s_lshl_b32 s20, s{sHH}, 10
v_lshlrev_b32 v{vRK}, 4, v{vL}
s_lshl_b32 s21, s{sW}, 12
s_add_u32 s21, s21, {L_TAIL}
v_add_u32 v{vEX}, s21, v{vRK}
v_add_u32 v{vRK}, s20, v{vRK}
v_lshrrev_b32 v{vRKC}, 1, v{vRK}
v_add_u32 v{vRV}, 8192, v{vRK}
v_lshrrev_b32 v2, 4, v{vL}
v_and_b32 v3, 15, v{vL}
v_lshlrev_b32 v4, 2, v2
v_xor_b32 v3, v3, v4
v_lshlrev_b32 v3, 4, v3
v_lshl_add_u32 v{vWO}, v2, 10, v3
v_add_u32 v{vWO+1}, 3072, v{vWO}
v_add_u32 v{vWO+2}, 6144, v{vWO}
v_add_u32 v{vWO+3}, 9216, v{vWO}
v_and_b32 v3, 31, v{vL}
v_lshrrev_b32 v4, 5, v{vL}
v_lshlrev_b32 v{vOUT}, 10, v3
v_lshl_add_u32 v{vOUT}, v4, 4, v{vOUT}
v_mul_u32_u24 v4, {1408*16}, v4
v_lshl_add_u32 v255, v3, 4, v4
v_mov_b32 v{vM0}, 0
v_mov_b32 v{vM1}, 0""")
def mk_setup():
    A(f"""v_and_b32 v2, 31, v{vL}
v_lshrrev_b32 v3, 5, v{vL}
v_lshlrev_b32 v3, 2, v3
v_sub_u32 v2, v2, v3
v_mov_b32 v192, -1
v_mov_b32 v193, -1""")
    for k in range(8):
        j0 = 8 * (k // 2) + 2 * (k % 2)
        A(f"""v_add_u32 v3, {1 - j0}, v2
v_med3_i32 v3, v3, 0, 2
v_lshlrev_b32 v3, 4, v3
v_lshlrev_b64 v[194:195], v3, v[192:193]
v_mov_b32 v{MK+k}, v194""")
def v_prefill(n):
    A(f"v_mov_b32 v{Vf(0,1)}, 0x3f803f80")
    for k in range(n):
        for r in range(4):
            if k or r: A(f"v_mov_b32 v{Vf(k,1)+r}, v{Vf(0,1)}")
def k_issue():
    for k in range(4):
        A(f"buffer_load_dwordx4 {R(Kf(k),4)}, v{vRK}, {SR(SWS)}, s{sRB+k} offen sc1")
    for p in range(2):
        A(f"buffer_load_dwordx2 {R(KC+2*p,2)}, v{vRKC}, {SR(SWS)}, s{sRB+4+p} offen sc1")
def v_issue():
    for k in range(4):
        A(f"buffer_load_dwordx4 {R(Vf(k,0),4)}, v{vRV}, {SR(SWS)}, s{sRB+k} offen sc1")
    for p in range(2):
        A(f"buffer_load_dwordx2 {R(VC+2*p,2)}, v{vRKC}, {SR(SWS)}, s{sRB+4+p} offen offset:2048 sc1")

A.label("L_lwave")
srd(SW, 512 * 3072)
A(f"""s_add_u32 s20, s{sC}, s{sI}
s_and_b32 s20, s20, 3
s_lshl_b32 s{sROT}, s20, 1
s_sub_u32 s{sHH}, s{sW}, 4
v_lshrrev_b32 v2, 3, v{vL}
v_and_b32 v3, 7, v{vL}
v_lshrrev_b32 v4, 1, v2
v_xor_b32 v5, v3, v4
v_lshlrev_b32 v5, 4, v5
v_lshl_add_u32 v{vX0}, v2, 10, v5
v_xor_b32 v5, 64, v5
v_lshl_add_u32 v{vX1}, v2, 10, v5
v_add_u32 v{vX1}, {8192-1024}, v{vX1}
v_and_b32 v4, 1, v4
v_lshlrev_b32 v4, 2, v4
v_xor_b32 v5, v3, v4
v_lshlrev_b32 v84, 4, v5
v_mul_u32_u24 v{vW0}, 3072, v2
v_add_u32 v{vW0}, v{vW0}, v84
v_add_u32 v{vW1}, {24576-2048}, v{vW0}
s_lshl_b32 s{sXO}, s{sI}, 16
s_lshl_b32 s20, s{sHH}, 14
s_add_u32 s{sXO}, s{sXO}, s20
s_lshl_b32 s{sWOFF}, s{sC}, 7
s_mul_i32 s20, s{sHH}, {16*3072}
s_add_u32 s{sWOFF}, s{sWOFF}, s20
s_lshl_b32 s31, s{sHH}, 11
s_lshl_b32 s32, s{sHH}, 12
s_waitcnt lgkmcnt(0)""")
if PROF == 1: A("s_memtime s[92:93]")
XOF = {u: [u] for u in range(8)}
def issue_unit(u):
    slot = slot_of(u)
    for t in XOF.get(u, []):
        A(f"""s_add_u32 s33, s{sROT}, {t}
s_and_b32 s33, s33, 7
s_lshl_b32 s34, s33, 7
s_add_u32 m0, s31, {L_X + t*8192}
s_add_u32 s34, s34, s{sXO}
buffer_load_dwordx4 v{vX0}, {SR(SX)}, s34 offen lds
buffer_load_dwordx4 v{vX1}, {SR(SX)}, s34 offen offset:1024 lds""")
    if u < 8:
        A(f"""s_add_u32 s33, s{sROT}, {u}
s_and_b32 s33, s33, 7
s_mul_i32 s35, s33, {64*3072}
s_add_u32 s35, s35, s{sWOFF}
s_add_u32 m0, s32, {L_RING + slot*16384}
s_add_u32 s35, s35, 1024
buffer_load_dwordx4 v{vW0}, {SR(SW)}, s35 offen lds
buffer_load_dwordx4 v{vW0}, {SR(SW)}, s35 offen offset:1024 lds
buffer_load_dwordx4 v{vW1}, {SR(SW)}, s35 offen offset:2048 lds
buffer_load_dwordx4 v{vW1}, {SR(SW)}, s35 offen offset:3072 lds""")
    else:
        for e in range(2):
            A(f"""s_add_u32 s33, s{sROT}, {2*(u-8)+e}
s_and_b32 s33, s33, 7
s_mul_i32 s35, s33, {64*3072}
s_add_u32 m0, s32, {L_RING + slot*16384 + e*1024}
s_add_u32 s35, s35, s{sWOFF}
buffer_load_dwordx4 v{vW0}, {SR(SW)}, s35 offen lds
buffer_load_dwordx4 v{vW1}, {SR(SW)}, s35 offen offset:2048 lds""")
def ucount(u): return 4 + 2 * len(XOF.get(u, []))
def lgw_issue():
    srd(SWG, 512 * 2752); srd(SWU, 512 * 2752)
    A(f"""v_lshrrev_b32 v2, 3, v{vL}
v_mul_u32_u24 v3, 2752, v2
v_and_b32 v4, 7, v{vL}
v_lshl_add_u32 v86, v4, 4, v3
s_and_b32 s33, s{sP}, 7
s_lshl_b32 s33, s33, 6
s_lshl_b32 s34, s{sHH}, 4
s_add_u32 s33, s33, s34
s_mul_i32 s33, s33, 2752
s_lshr_b32 s34, s{sGU}, 3
s_lshl_b32 s34, s34, 7
s_add_u32 s33, s33, s34
s_cmp_ge_u32 s{sGU}, 176
s_cselect_b32 s33, 0x40000000, s33
s_add_u32 s34, s33, {8*2752}
buffer_load_dwordx4 {R(GW,4)}, v86, {SR(SWG)}, s33 offen
buffer_load_dwordx4 {R(GW+4,4)}, v86, {SR(SWU)}, s33 offen
buffer_load_dwordx4 {R(GW+8,4)}, v86, {SR(SWG)}, s34 offen
buffer_load_dwordx4 {R(GW+12,4)}, v86, {SR(SWU)}, s34 offen""")
ops = []
for u in range(DEPTH):
    issue_unit(u); ops += [u] * ucount(u)
    if u == 0 and not opts.get("nocpf"):
        A(f"""s_getpc_b64 s[22:23]
s_lshr_b32 s20, s2, 3
s_lshl2_add_u32 s20, s20, s{sHH}
s_lshl_b32 s20, s20, 8
s_min_u32 s20, s20, CODE_PF_MAX
s_add_u32 s22, s22, s20
s_addc_u32 s23, s23, 0""")
        for o_ in (0, 64, 128, 192): A(f"s_load_dword s100, s[22:23], {o_}")
late_setup()
if PROF == 1: A(f"s_waitcnt lgkmcnt(0)\nv_writelane_b32 v{vTS}, s94, 0\nv_writelane_b32 v{vTS}, s92, 48")
TS(1)
SA = 112
A(f"""s_and_b32 s{sCT}, s{sHH}, 1
s_lshr_b32 s28, s{sHH}, 1
s_lshl_b32 s28, s28, 12
s_mov_b32 s29, {L_RING}
s_mov_b32 s{sROLE}, 0
v_lshlrev_b32 v85, 4, v{vL}
s_lshl_b32 s30, s{sI}, 10
s_add_u32 s30, s30, {WS_STATS}
s_cmp_lg_u32 s{sHH}, 0
s_cselect_b32 s30, 0x40000000, s30
s_mov_b32 s36, {WS_BEST}
s_cmp_lg_u32 s{sHH}, 1
s_cselect_b32 s36, 0x40000000, s36""")
A(f"""s_lshl2_add_u32 s20, s{sHH}, {L_QRDY}
v_mov_b32 v198, s20
v_mov_b32 v199, {L_QRDY}
v_mov_b32 v2, 0
ds_write_b32 v198, v2""")
attn_setup_s()
def sib_issue(): A(f"buffer_load_dwordx4 {R(SA,4)}, v85, {SR(SWS)}, s30 offen sc1")
lp = split(capture(lambda: (frag_addrs(), attn_setup_v(), v_prefill(6), mk_setup())), 6)
lpieces = {0: lp[0], 1: lp[1], 2: lp[2], 3: lp[3], 4: lp[4], 5: lp[5]}
def younger_than(tag): return len(ops) - 1 - max(k for k, x in enumerate(ops) if x == tag)
issued = DEPTH
for u in range(8):
    TSL(32 + u)
    A(f"s_waitcnt vmcnt({younger_than(u)})")
    TSL(16 + u)
    A("s_barrier")
    TSL(24 + u)
    if u == SIBU:
        sib_issue(); ops.append("sib")
    tgt = min(12, u + 1 + DEPTH + max(0, u - 1 - DEPTH), u + 5)
    while issued < tgt:
        issue_unit(issued); ops += [issued] * ucount(issued)
        if issued == LGW: lgw_issue(); ops += ['gw'] * 4
        issued += 1
    if u == 5: A(f"v_mov_b32 v122, {L_NONCE}\nds_read_b32 v123, v122")
    emit(lpieces.get(u, []))
    if u == 6:
        lb = A.newlabel("L_nsib")
        A(f"""s_waitcnt lgkmcnt(0)
v_readfirstlane_b32 s{sNONCE}, v123
s_cmp_lg_u32 s{sHH}, 0
s_cbranch_scc1 {lb}""")
        validated(sib_issue, lambda: A(f"v_cmp_ne_u32 vcc, s{sNONCE}, v{SA+3}"), younger_than("sib"))
        A(f"""v_lshrrev_b32 v122, 1, v85
v_lshrrev_b32 v123, 2, v85
v_add_u32 v122, {L_STAT}, v122
v_add_u32 v123, {L_RINV}, v123
ds_write_b64 v122, {R(SA,2)}
ds_write_b32 v123, v{SA+1}
s_waitcnt lgkmcnt(0)""")
        A.label(lb)
assert issued == 12, issued
TS(2)
LST, LSC, LCX, LCW = 116, 118, 120, 124
for r in range(16): A(f"v_mov_b32 v{ACC+r}, 0")
A(f"""v_and_b32 v2, 31, v{vL}
v_lshlrev_b32 v2, 3, v2
s_lshr_b32 s20, s28, 4
s_add_u32 s20, s20, {L_STAT}
v_add_u32 v2, s20, v2
ds_read_b64 {R(LST,2)}, v2
s_waitcnt lgkmcnt(0)""")
corr_x(LCX, LST)
A(f"""v_mul_f32 v{LSC}, {f32(0.25*LOG2E)}, v{LST+1}
v_mov_b32 v{LCW+2}, 0
v_mov_b32 v{LCW+3}, 0
s_lshl_b32 s30, s{sHH}, 11
s_add_u32 s30, s30, {L_QF}
v_lshlrev_b32 v5, 4, v{vL}
v_add_u32 v5, s30, v5""")
Q2 = 192
A(f"""s_lshl_b32 s20, s28, 1
s_lshr_b32 s21, s28, 2
s_xor_b32 s22, s20, 8192
s_xor_b32 s23, s21, 1024""")
for st in range(4): A(f"v_add_u32 v{Q2+st}, s22, v{vXA+st}\nv_add_u32 v{vXA+st}, s20, v{vXA+st}")
A(f"""v_add_u32 v{Q2+4}, s23, v{vWA0}
v_add_u32 v{Q2+5}, s23, v{vWA1}
v_add_u32 v{vWA0}, s21, v{vWA0}
v_add_u32 v{vWA1}, s21, v{vWA1}
s_lshl_b32 s22, s{sHH}, 8
s_add_u32 s22, s22, {L_CSX}
v_lshl_add_u32 v86, v{vL}, 2, s22
v_xor_b32 v87, 512, v86
s_mov_b32 s20, 0xffff0000
s_mov_b32 s21, 0xffff0000""")
def q_reads(n):
    oth = n // 16; m = (n // 4) % 4; st = n % 4; b = STB + 8 * (n % 8)
    out = [f"ds_read_b128 {R(b,4)}, v{(Q2 if oth else vXA)+st} offset:{m*16384}"]
    for j in range(2):
        r, o = wa(slot_of(8 + m), st * 4096 + j * 512)
        if oth: r = Q2 + 4 + (r - vWA0)
        out.append(f"ds_read_b64_tr_b16 {R(b+4+2*j,2)}, v{r} offset:{o}")
    return out
if int(opts.get('nob8', 1)):
    lr = A.newlabel("L_qr")
    A(f"s_waitcnt vmcnt(0)\nds_write_b32 v198, v198")
    A.label(lr)
    A(f"""ds_read_b128 {R(STB,4)}, v199
s_waitcnt lgkmcnt(0)
v_min3_u32 v2, v{STB}, v{STB+1}, v{STB+2}
v_min_u32 v2, v2, v{STB+3}
v_cmp_eq_u32 vcc, 0, v2""")
    retry_check(lr)
else:
    A("s_waitcnt vmcnt(0)\ns_barrier")
TS(3)
QB9 = int(opts.get("qb9", 21))
lq = []
def lds(tag, txt): A(txt); lq.append(tag)
def lwait(tag): A(f"s_waitcnt lgkmcnt({min(15, len(lq) - 1 - max(k for k, x in enumerate(lq) if x == tag))})")
for n in range(4):
    for x in q_reads(n): lds(n, x)
cwl = capture(lambda: corr_w(LCW))[3:]
for n in range(32):
    lwait(n)
    b = STB + 8 * (n % 8)
    if n < 16: A(csum_mfma(b + 4))
    A(mfma32(ACC, b + 4, b))
    if n + 4 < 32:
        for x in q_reads(n + 4): lds(n + 4, x)
    if n == 17:
        A(f"v_cndmask_b32_e64 v2, v{CS}, v{CS+1}, s[20:21]")
        lds("cs", "ds_write_b32 v86, v2")
    if n == QB9:
        lwait("cs")
        A("s_barrier")
        lds("cp", "ds_read_b32 v4, v87")
    if n == QB9 + 4:
        lwait("cp"); A("v_add_f32 v2, v2, v4"); emit(cwl[:4])
    if n == QB9 + 5: emit(cwl[4:])
TS(4)
A(mfma32(ACC, LCW, LCX))
for r in range(16): A(f"v_mul_f32 v{ACC+r}, v{ACC+r}, v{LSC}")
for k in range(8): A(f"v_cvt_pk_bf16_f32 v{STB+k}, v{ACC+2*k}, v{ACC+2*k+1}")
A(f"ds_write_b128 v5, {R(STB,4)}\nds_write_b128 v5, {R(STB+4,4)} offset:1024")
TS(50)
A("s_branch L_join")

A.label("L_cwave")
A(f"s_load_dword s{sNONCE}, s[{SWS}:{SWS+1}], {WS_EPOCH}")
late_setup()
if PROF == 1: A(f"v_writelane_b32 v{vTS}, s94, 0")
srd(SWG, 512 * 2752); srd(SWU, 512 * 2752)
A(f"v_mov_b32 v{vZ}, 0\nv_add_u32 v62, s20, v3")
A(f"""s_and_b32 s{sCT}, s{sW}, 1
s_mov_b32 s28, 0
s_lshr_b32 s29, s{sW}, 1
s_lshl_b32 s29, s29, 10
s_add_u32 s29, s29, {L_RING}
s_mov_b32 s{sHH}, s{sW}
s_mov_b32 s{sROLE}, 1
v_lshlrev_b32 v{vBA}, 4, v{vL}
s_lshl_b32 s35, s{sW}, 10
s_add_u32 s35, s35, {WS_BEST}
s_lshl_b32 s33, s{sP}, 14
s_add_u32 s33, s33, {WS_KV}
s_add_u32 s36, s33, 4096
s_lshl_b32 s34, s{sP}, 12
s_add_u32 s34, s34, {WS_KVC}""")
frag_addrs()
srd(SWS, WS_SIZE)
A(f"""v_lshrrev_b32 v2, 3, v{vL}
v_mul_u32_u24 v3, 2752, v2
v_and_b32 v4, 7, v{vL}
v_lshl_add_u32 v5, v4, 4, v3
s_and_b32 s31, s{sP}, 7
s_lshl_b32 s31, s31, 6
s_lshl_b32 s32, s{sW}, 4
s_add_u32 s31, s31, s32
s_mul_i32 s31, s31, 2752
s_lshr_b32 s32, s{sGU}, 3
s_lshl_b32 s32, s32, 7
s_add_u32 s31, s31, s32
s_cmp_ge_u32 s{sGU}, {0 if (opts.get("nogw") or LGW >= 0) else 176}
s_cselect_b32 s31, 0x40000000, s31
s_add_u32 s32, s31, {8*2752}""")
def gw_issue():
    A(f"""buffer_load_dwordx4 {R(GW,4)}, v5, {SR(SWG)}, s31 offen
buffer_load_dwordx4 {R(GW+4,4)}, v5, {SR(SWU)}, s31 offen
buffer_load_dwordx4 {R(GW+8,4)}, v5, {SR(SWG)}, s32 offen
buffer_load_dwordx4 {R(GW+12,4)}, v5, {SR(SWU)}, s32 offen""")
if int(opts.get("d2", 1)):
    A(f"""v_mov_b32 v40, 0
v_mov_b32 v41, 0
v_mov_b32 v42, 0
v_mov_b32 v43, 0
v_mov_b32 v48, 0x3f803f80
v_sub_u32 v47, 2047, v62
v_and_b32 v46, 7, v62
v_lshlrev_b32 v46, 4, v46
v_add_u32 v46, {L_RT}, v46
s_mov_b32 s26, 0xffff0000""")
    PREW = int(opts.get("prew", 0))
    def prewrite():
        A(f"""s_lshl_b32 s20, s{sW}, 12
s_add_u32 s21, s33, s20
s_lshl_b32 s22, s{sW}, 10
s_add_u32 s22, s34, s22
s_lshl_b32 s23, s{sI}, 4
s_add_u32 s23, s23, s{sC}
s_and_b32 s24, s{sW}, 1
s_lshl_b32 s24, s24, 3
s_add_u32 s23, s23, s24
s_lshl_b32 s24, s23, 12
s_lshr_b32 s25, s{sW}, 1
s_lshl_b32 s25, s25, 11
s_add_u32 s24, s24, s25
s_add_u32 s24, s24, {WS_O}
s_lshl_b32 s23, s23, 10
s_add_u32 s23, s23, {WS_OC}""")
        if PREW & 1:
            for k in range(4): A(f"buffer_store_dwordx4 {R(ACC,4)}, v{vBA}, {SR(SWS)}, s21 offen offset:{k*1024} sc1")
            A(f"buffer_store_dwordx4 {R(ACC,4)}, v{vBA}, {SR(SWS)}, s22 offen sc1")
        if PREW & 2:
            for k in range(2): A(f"buffer_store_dwordx4 {R(ACC,4)}, v{vBA}, {SR(SWS)}, s24 offen offset:{k*1024} sc1")
            A(f"buffer_store_dwordx4 {R(ACC,4)}, v{vBA}, {SR(SWS)}, s23 offen sc1")
    NPW = (5 if PREW & 1 else 0) + (3 if PREW & 2 else 0)
    if PREW: prewrite()
    A(f"s_waitcnt vmcnt({2 + NPW})")
    TS(1)
    if int(opts.get("np1", 0)): A(f"s_lshl_b32 s24, s{sW}, 8\nbuffer_load_dword v60, v{vZ}, {SR(SDBG)}, s24 offen sc1")
    for k in range(8): A(f"v_dot2_f32_bf16 v40, v{8+k}, v48, v40\nv_dot2_f32_bf16 v41, v{8+k}, v{8+k}, v41")
    A("s_waitcnt vmcnt(%d)" % NPW)
    for k in range(8): A(f"v_dot2_f32_bf16 v42, v{8+k}, v{16+k}, v42\nv_dot2_f32_bf16 v43, v{16+k}, v48, v43")
    for m in DPP8 + ("row_mirror",):
        for r in range(4): A(dpp("v_add_f32", 40 + r, m))
    for r in range(4): A(f"v_mov_b32 v{24+r}, v{40+r}")
    for r in range(4): A(f"v_permlane16_swap_b32 v{40+r}, v{24+r}")
    for r in range(4): A(f"v_add_f32 v{40+r}, v{40+r}, v{24+r}")
    A(f"""v_mul_f32 v40, {f32(1.0/512)}, v40
v_mul_f32 v41, {f32(1.0/512)}, v41
v_fma_f32 v41, -v40, v40, v41
v_max_f32 v41, 0, v41""")
    bf16round(40, 40)
    A("v_fma_f32 v42, -v40, v43, v42")
    var_to_rinv(41)
    A("v_mul_f32 v42, v42, v41")
    bf16round(42, 42)
    A(f"""v_ashrrev_i32 v45, 31, v42
v_or_b32 v45, 0x80000000, v45
v_xor_b32 v42, v42, v45
v_and_or_b32 v42, v42, s26, v47
ds_write_b96 v46, v[40:42]""")
else:
    A("s_waitcnt vmcnt(2)")
    TS(1)
    XU = 24
    for k in range(8):
        A(f"v_lshlrev_b32 v{XU+2*k}, 16, v{8+k}\nv_and_b32 v{XU+2*k+1}, 0xffff0000, v{8+k}")
    A(f"v_pk_add_f32 v[40:41], {R(XU,2)}, {R(XU+2,2)}")
    for k in range(4, 16, 2): A(f"v_pk_add_f32 v[40:41], v[40:41], {R(XU+k,2)}")
    A("v_add_f32 v40, v40, v41")
    allreduce32(40, 41, "v_add_f32")
    A(f"v_mul_f32 v40, {f32(-1.0/512)}, v40")
    A("v_cvt_pk_bf16_f32 v42, -v40, -v40\nv_and_b32 v42, 0xffff0000, v42")
    A(f"v_pk_add_f32 v[46:47], {R(XU,2)}, v[40:41] op_sel_hi:[1,0]\nv_pk_mul_f32 v[44:45], v[46:47], v[46:47]")
    for k in range(2, 16, 2):
        A(f"v_pk_add_f32 v[46:47], {R(XU+k,2)}, v[40:41] op_sel_hi:[1,0]\nv_pk_fma_f32 v[44:45], v[46:47], v[46:47], v[44:45]")
    A("v_add_f32 v43, v44, v45")
    allreduce32(43, 41, "v_add_f32")
    for k in range(0, 16, 2): A(f"v_pk_add_f32 {R(XU+k,2)}, {R(XU+k,2)}, v[42:43] op_sel_hi:[1,0] neg_lo:[0,1] neg_hi:[0,1]")
    A(f"v_mul_f32 v43, {f32(1.0/512)}, v43")
    for k in range(8): A(f"v_cvt_pk_bf16_f32 v{8+k}, v{XU+2*k}, v{XU+2*k+1}")
    var_to_rinv(43)
    for k in range(8):
        A(f"v_lshlrev_b32 v{XU+2*k}, 16, v{8+k}\nv_and_b32 v{XU+2*k+1}, 0xffff0000, v{8+k}")
    for k in range(0, 16, 2): A(f"v_pk_mul_f32 {R(XU+k,2)}, {R(XU+k,2)}, v[42:43] op_sel:[0,1]")
    for k in range(8): A(f"v_cvt_pk_bf16_f32 v{8+k}, v{XU+2*k}, v{XU+2*k+1}")
    A("v_mov_b32 v44, 0\ns_waitcnt vmcnt(0)")
    for k in range(8): A(f"v_dot2_f32_bf16 v44, v{8+k}, v{16+k}, v44")
    allreduce32(44, 41, "v_add_f32")
    bf16round(44, 44)
    A(f"""v_ashrrev_i32 v45, 31, v44
v_or_b32 v45, 0x80000000, v45
v_xor_b32 v44, v44, v45
v_and_b32 v44, 0xffff0000, v44
v_sub_u32 v45, 2047, v62
v_or_b32 v44, v44, v45
v_and_b32 v46, 7, v62
v_lshlrev_b32 v46, 4, v46
v_add_u32 v46, {L_RT}, v46
ds_write_b96 v46, v[42:44]
""")
A(f"""s_waitcnt lgkmcnt(0)
s_add_u32 s{sNONCE}, s{sNONCE}, 1""")
A(f"v_mov_b32 v44, s{sNONCE}\nv_mov_b32 v45, {L_NONCE}\nds_write_b32 v45, v44")
if PWS:
    A(f"""v_mov_b32 v43, s{sNONCE}
v_lshlrev_b32 v44, 4, v62
s_mov_b32 s24, 1
s_mov_b32 s25, 1
s_mov_b32 s27, {WS_STATS}
s_mov_b64 exec, s[24:25]
buffer_store_dwordx4 v[40:43], v44, {SR(SWS)}, s27 offen sc1
s_mov_b64 exec, -1""")
A(f"""s_setprio {int(opts.get("prio", 2))}""")
if GWP == 2: gw_issue()
A('v_mov_b32 v54, v5')
TS(2)
A("s_waitcnt lgkmcnt(0)")
A(f"s_cmp_ge_u32 s{sW}, 2\ns_cbranch_scc1 L_vwave")

def kv_reads(n):
    u = n // 4; st = n % 4; b = STB + 12 * (n % 6)
    out = [f"ds_read_b128 {R(b+4*qb,4)}, v{vXA+st} offset:{u*8192 + qb*4096}" for qb in range(2)]
    for j in range(2):
        r, o = wa(slot_of(u), st * 4096 + j * 512)
        out.append(f"ds_read_b64_tr_b16 {R(b+8+2*j,2)}, v{r} offset:{o}")
    return out
def kv_mm(n, isK, cs=True):
    b = STB + 12 * (n % 6)
    out = [csum_mfma(b + 8)] if cs else []
    for qb in range(2):
        c0 = 0 if n == 0 else None
        out.append(mfma32(ACC + 16 * qb, b + 8, b + 4 * qb, c0) if isK else mfma32(ACC + 16 * qb, b + 4 * qb, b + 8, c0))
    return out
def kv_interval(u, isK, fill=(), post_reads=()):
    rd = [x for n in range(4 * u, 4 * u + 4) for x in kv_reads(n)]
    old = [x for n in (4 * u - 2, 4 * u - 1) if n >= 0 for x in kv_mm(n, isK)]
    fill = list(fill)
    per = (len(fill) + 5) // 6
    emit(rd[:4])
    rest = rd[4:]
    for m in old:
        A(m); emit(rest[:2]); rest = rest[2:]
    emit(rest)
    for k, n in enumerate((4 * u, 4 * u + 1)):
        A(f"s_waitcnt lgkmcnt({12 - 4*k})")
        for m in kv_mm(n, isK):
            A(m); emit(fill[:per]); fill = fill[per:]
    emit(fill)
    emit(post_reads)
    A("s_waitcnt lgkmcnt(0)")
BT = 68
def best_issue(): A(f"buffer_load_dwordx4 {R(BT,4)}, v{vBA}, {SR(SWS)}, s35 offen sc1")
def nonce_issue(): A(f"buffer_load_dword v60, v{vZ}, {SR(SDBG)}, 0 offen sc1")
CX0, CX1, CW = 40, 44, 56
def publish():
    lb = A.newlabel("L_np")
    A(f"s_cmp_lg_u32 s{sW}, 0\ns_cbranch_scc1 {lb}")
    A(f"""v_mov_b32 v51, s{sNONCE}
s_lshl_b32 s20, s{sP}, 4
s_add_u32 s20, s20, {WS_BEST}
s_lshl_b32 s21, s{sP}, 7
s_add_u32 s21, s21, {WS_STATS}
s_mov_b64 exec, 0xff""")
    if not PWS: A(f"buffer_store_dwordx4 v[48:51], v{vBA}, {SR(SWS)}, s21 offen sc1")
    A("v_mov_b32 v52, v50")
    for m in DPP8: A(dpp("v_max_u32", 52, m))
    A(f"""v_cmp_eq_u32 vcc, v52, v50
s_mov_b64 exec, vcc
buffer_store_dwordx4 v[48:51], v{vZ}, {SR(SWS)}, s20 offen sc1
s_mov_b64 exec, -1""")
    A.label(lb)
def cw_loop(isK):
    for u in range(8):
        TSL(16 + u)
        A("s_barrier")
        TSL(24 + u)
        fill = []; post = []
        if u == PUBU and isK:
            fill = [f"v_and_b32 v53, 0x70, v{vBA}", f"v_add_u32 v53, {L_RT}, v53"]; post = ["ds_read_b96 v[48:50], v53"]
        if u in (1, 2): fill = split(capture(attn_setup_s), 2)[u - 1] if False else (capture(attn_setup_s)[:25] if u == 1 else capture(attn_setup_s)[25:])
        if u == 4: fill = capture(attn_setup_v)
        if u == 3:
            fill = capture(lambda: A(f"""v_mov_b32 v{CW+2}, 0
v_mov_b32 v{CW+3}, 0
v_lshrrev_b32 v64, 1, v{vSA}
v_add_u32 v64, {L_STAT}, v64
v_mov_b32 v66, {L_NONCE}"""))
            if isK:
                fill += capture(lambda: A(f"""s_lshl_b32 s20, s{sCT}, 11
v_add_u32 v{vKA}, s20, v{vBA}
v_lshrrev_b32 v{vKC}, 1, v{vKA}"""))
            else:
                fill += capture(lambda: A(f"""v_and_b32 v2, 0x2f, v{vL}
v_bfe_u32 v3, v{vL}, 4, 1
s_lshl_b32 s20, s{sCT}, 1
v_add_u32 v3, s20, v3
v_lshlrev_b32 v{vKA}, 4, v2
v_lshl_add_u32 v{vKA}, v3, 10, v{vKA}
v_lshrrev_b32 v{vKC}, 1, v{vKA}
v_add_u32 v{vKA}, 8192, v{vKA}
v_lshrrev_b32 v65, 5, v{vL}
v_lshlrev_b32 v65, 4, v65
v_add_u32 v65, {L_RINV}, v65"""))
        if u == int(opts.get('bu', 7)): fill = fill + capture(best_issue)
        if u == 7:
            post = [f"ds_read_b64 {R(ST0,2)}, v64", f"ds_read_b64 {R(ST1,2)}, v64 offset:256"]
            if not isK:
                post += [f"ds_read_b128 {R(8+16*qb+4*a,4)}, v65 offset:{qb*128 + a*32}" for qb in range(2) for a in range(4)]
        kv_interval(u, isK, fill, post)
        TSL(32 + u)
        if u == PUBU and isK: publish()
        if GWP == 10 + u:
            A('v_mov_b32 v5, v54'); gw_issue()
    if not int(opts.get('nob8', 1)): A("s_barrier")
    TS(3)
    A(csum_mfma(STB + 12 * (30 % 6) + 8)); A(csum_mfma(STB + 12 * (31 % 6) + 8))
    mm = kv_mm(30, isK, False) + kv_mm(31, isK, False)
    A(mm[0]); corr_x(CX0, ST0)
    A(mm[1]); corr_x(CX1, ST1)
    cw = capture(lambda: corr_w(CW))
    A(mm[2]); emit(cw[:6]); A(mm[3]); emit(cw[6:])
    for qb, cx in enumerate((CX0, CX1)):
        A(mfma32(ACC + 16 * qb, CW, cx) if isK else mfma32(ACC + 16 * qb, cx, CW))
CSR = 144
def kv_store(isK):
    for qb in range(2):
        st = ST0 if qb == 0 else ST1
        for e in range(2):
            for r in range(8 * e, 8 * e + 8):
                A(f"v_mul_f32 v{ACC+16*qb+r}, v{ACC+16*qb+r}, v{st+1 if isK else 8+16*qb+r}")
            for k in range(4 * e, 4 * e + 4): A(f"v_cvt_pk_bf16_f32 v{OWN+8*qb+k}, v{ACC+16*qb+2*k}, v{ACC+16*qb+2*k+1}")
            b = OWN + 8 * qb + 4 * e; c_ = CSR + 2 * e + qb
            A(f"buffer_store_dwordx4 {R(b,4)}, v{vKA}, {SR(SWS)}, s{33 if qb == 0 else 36} offen offset:{e*(1024 if isK else 256)} sc1")
            A(f"v_add3_u32 v{c_}, v{b}, v{b+1}, v{b+2}\nv_add3_u32 v{c_}, v{c_}, v{b+3}, s{sNONCE}")
    for e in range(2):
        A(f"buffer_store_dwordx2 {R(CSR+2*e,2)}, v{vKC}, {SR(SWS)}, s34 offen offset:{e*512 if isK else 2048+e*128} sc1")

cw_loop(True); kv_store(True)
A("s_mov_b32 s39, 1024\ns_branch L_cpost")
A.label("L_vwave")
cw_loop(False); kv_store(False)
A("s_mov_b32 s39, 256")
A.label("L_cpost")
TS(4)
A("s_setprio %d" % int(opts.get("cp2", 0)))
WOW = int(opts.get("wow", 0))
if WOW:
    A(f"""s_and_b32 s20, s{sI}, 7
s_lshl_b32 s20, s20, 2
s_add_u32 s20, s20, s{sW}
s_lshl_b32 s20, s20, 14
s_and_b32 s21, s{sC}, 3
s_lshl_b32 s21, s21, 8
s_add_u32 s20, s20, s21""")
    for k in range(4): A(f"buffer_load_dwordx4 {R(176+4*k,4)}, v{vWO+k}, {SR(SWO)}, s20 offen offset:{k*1024}")
validated(best_issue, lambda: A(f"v_cmp_ne_u32 vcc, s{sNONCE}, v{BT+3}"), 6 + 4 * WOW)
A(f"v_mov_b32 v{BT+4}, v{BT+2}")
allreduce32(BT + 4, BT + 5, "v_max_u32")
A(f"""v_mov_b32 v{BT+5}, v{BT+4}
v_permlane32_swap_b32 v{BT+4}, v{BT+5}
v_max_u32 v{BT+4}, v{BT+4}, v{BT+5}
s_lshl_b32 s20, s{sW}, 4
s_add_u32 s20, s20, {L_IDX}
v_mov_b32 v2, s20
v_cmp_eq_u32 vcc, v{BT+4}, v{BT+2}
s_mov_b64 exec, vcc
ds_write_b128 v2, {R(BT,4)}
s_mov_b64 exec, -1
""")
def winner():
    A(f"v_mov_b32 v5, v{SB+2}")
    for m in DPP8[:2]: A(dpp("v_max_u32", 5, m))
    A(f"""v_cmp_eq_u32 vcc, v5, v{SB+2}
v_readfirstlane_b32 s{sKEY}, v5
s_ff1_i32_b32 s20, vcc_lo
v_readlane_b32 s{sSM}, v{SB}, s20
v_readlane_b32 s{sSR}, v{SB+1}, s20""")
A(f"""v_and_b32 v4, 3, v{vL}
v_lshlrev_b32 v4, 4, v4
v_add_u32 v4, {L_IDX}, v4
v_add_u32 v2, {L_OWN}, v{vKA}
v_add_u32 v3, s39, v2
v_and_b32 v72, 7, v{vL}
v_lshlrev_b32 v72, 2, v72
v_mov_b32 v74, v{vSA}
s_waitcnt lgkmcnt(0)
s_barrier""")
TS(48)
A(f"""ds_read_b128 {R(SB,4)}, v4
ds_write_b128 v2, {R(OWN,4)}
ds_write_b128 v3, {R(OWN+4,4)}
ds_write_b128 v2, {R(OWN+8,4)} offset:4096
ds_write_b128 v3, {R(OWN+12,4)} offset:4096
s_waitcnt lgkmcnt(4)""")
winner()
A(f"""s_and_b32 s24, s{sKEY}, 0x7ff
s_sub_u32 s24, 2047, s24
s_lshl_b32 s24, s24, 10
s_and_b32 s25, s{sP}, 7
s_lshl_b32 s25, s25, 7
s_add_u32 s24, s24, s25
s_lshl_b32 s25, s{sW}, 5
s_add_u32 s24, s24, s25
buffer_load_dword v73, v72, {SR(SX)}, s24 offen""")
A(f"""s_cmp_ge_u32 s{sC}, 4
s_cselect_b64 s[20:21], -1, 0
v_cndmask_b32_e64 v{vPM}, v{ST0}, v{ST1}, s[20:21]
v_cndmask_b32_e64 v{vPR}, v{ST0+1}, v{ST1+1}, s[20:21]
""")
A(f"""v_bfe_u32 v4, v{vL}, 4, 1
v_lshlrev_b32 v4, 6, v4
v_xor_b32 v2, v{vEX}, v4""")
if LGW < 0:
    for k in range(4): A(f"ds_write_b128 v2, {R(GW+4*k,4)} offset:{k*1024}")
v_prefill(4)
A("s_waitcnt vmcnt(1)")
TS(49)
k_issue()
TS(50)
if not int(opts.get('vl', 1)): v_issue()
TS(51)
A(f"""s_waitcnt vmcnt({6 if int(opts.get('vl', 1)) else 12})
v_lshlrev_b32 v2, 16, v73
v_and_b32 v3, 0xffff0000, v73
v_subrev_f32 v2, s{sSM}, v2
v_subrev_f32 v3, s{sSM}, v3
v_cvt_pk_bf16_f32 v4, v2, v3
v_lshlrev_b32 v2, 16, v4
v_and_b32 v3, 0xffff0000, v4
v_mul_f32 v2, s{sSR}, v2
v_mul_f32 v3, s{sSR}, v3
v_cvt_pk_bf16_f32 v4, v2, v3
s_add_u32 s25, s25, {L_XSEL}
v_add_u32 v72, s25, v72
ds_write_b32 v72, v4
v_mov_b32 v75, v{vWA1}""")

A.label("L_join")
A("s_setprio 0")
TS(5); RC(41)
A("s_waitcnt lgkmcnt(0)\ns_barrier")
A(f"""s_lshl_b32 s20, s{sROLE}, 12
s_add_u32 s21, s20, {L_QF}
s_xor_b32 s20, s20, 4096
s_add_u32 s20, s20, {L_QF}
v_add_u32 v2, s21, v{vRK}
v_add_u32 v3, s20, v{vRK}
ds_read_b128 {R(QF,4)}, v2
ds_read_b128 {R(QF+4,4)}, v3""")
lb = A.newlabel("L_noown"); lb2 = A.newlabel("L_noown2")
A(f"s_cmp_lg_u32 s{sROLE}, 0\ns_cbranch_scc1 {lb}")
A(f"""v_add_u32 v2, {L_OWN}, v{vRK}
v_and_b32 v4, 3, v{vL}
v_lshlrev_b32 v4, 4, v4
v_add_u32 v4, {L_IDX}, v4
ds_read_b128 {R(SB,4)}, v4
ds_read_b128 {R(Kf(4),4)}, v2
ds_read_b128 {R(Kf(5),4)}, v2 offset:4096
ds_read_b128 {R(Vf(4,0),4)}, v2 offset:8192
ds_read_b128 {R(Vf(5,0),4)}, v2 offset:12288
s_branch {lb2}""")
A.label(lb)
GX = 144; GF = 160
if int(opts.get('vl', 1)): v_issue()
A(f"""s_cmp_ge_u32 s{sGU}, 176
s_cbranch_scc1 {lb2}
s_cmp_ge_u32 s{sW}, 2
s_cbranch_scc1 {lb2}
v_lshrrev_b32 v2, 5, v{vL}
v_lshlrev_b32 v2, 4, v2
v_add_u32 v2, {L_XSEL}, v2""")
for st in range(4): A(f"ds_read_b128 {R(GX+4*st,4)}, v2 offset:{st*32}")
for st in range(4):
    for m in range(2):
        for j in range(2):
            A(f"ds_read_b64_tr_b16 {R(GF+8*st+4*m+2*j,2)}, v75 offset:{16384 + m*1024 + st*4096 + j*512}")
A.label(lb2)
A("s_waitcnt lgkmcnt(0)")
TS(6)
def g_stage():
    lb = A.newlabel("L_nog"); lb2 = A.newlabel("L_nog2")
    A(f"s_cmp_ge_u32 s{sGU}, 176\ns_cbranch_scc1 {lb}\ns_cmp_ge_u32 s{sW}, 2\ns_cbranch_scc1 {lb}")
    for st in range(4):
        for m in range(2): A(mfma32(ACC + 16 * m, GX + 4 * st, GF + 8 * st + 4 * m, None if st else 0))
    A(f"""s_and_b32 s20, s{sP}, 7
s_mul_i32 s20, s20, {1408*16}
s_lshr_b32 s21, s{sGU}, 3
s_lshl_b32 s21, s21, 10
s_add_u32 s20, s20, s21
s_lshl_b32 s21, s{sW}, 9
s_add_u32 s20, s20, s21
s_add_u32 s20, s20, {WS_GP}
v_mov_b32 v{GW+2}, s{sNONCE}
v_mov_b32 v{GW+3}, s{sNONCE}
s_mov_b32 s22, -1
s_mov_b32 s23, 0
v_mov_b32 v{GW}, v{ACC}
v_mov_b32 v{GW+1}, v{ACC+16}
s_mov_b64 exec, s[22:23]
buffer_store_dwordx4 {R(GW,4)}, v74, {SR(SWS)}, s20 offen sc1
s_mov_b64 exec, -1
s_branch {lb2}""")
    A.label(lb)
    A(f"s_mov_b32 s20, 0x40000000\nbuffer_load_dword v254, v74, {SR(SWS)}, s20 offen")
    A.label(lb2)

GPR = 208
def gp_issue():
    A(f"s_lshl_b32 s36, s{sDI}, 9\ns_add_u32 s36, s36, {WS_GP}")
    for q in range(4): A(f"buffer_load_dwordx4 {R(GPR+4*q,4)}, v255, {SR(SWS)}, s36 offen sc1\ns_add_u32 s36, s36, {2*1408*16}")
def gp_check():
    for q in range(4): A(f"v_xor_b32 v{2+q}, s{sNONCE}, v{GPR+4*q+2}")
    A("v_or3_b32 v2, v2, v3, v4\nv_or_b32 v2, v2, v5\nv_cmp_ne_u32 vcc, 0, v2")
def wd_loads():
    A(f"""s_lshl_b32 s37, s{sDI}, 15
s_lshl_b32 s20, s{sHH}, 8
s_add_u32 s37, s37, s20
v_lshrrev_b32 v2, 4, v{vL}
v_and_b32 v3, 15, v{vL}
v_lshlrev_b32 v3, 4, v3
v_lshl_add_u32 v2, v2, 10, v3""")
    for n in range(8): A(f"buffer_load_dwordx4 {R(DG[n],4)}, v2, {SR(SWD)}, s37 offen\ns_add_u32 s37, s37, 4096")
def wd_issue():
    lb = A.newlabel("L_nwd")
    A(f"s_cmp_ge_u32 s{sDI}, 43\ns_cbranch_scc1 {lb}")
    wd_loads()
    A.label(lb)
def gp_request(pad):
    def h():
        lb = A.newlabel("L_ngp")
        A(f"s_cmp_ge_u32 s{sDI}, 43\ns_cbranch_scc1 {lb}")
        gp_issue()
        if pad: A("s_waitcnt vmcnt(0)")
        A.label(lb)
    return h
def d_block():
    A(f"s_cmp_ge_u32 s{sDI}, 43\ns_cbranch_scc1 L_dend")
    A(f"""v_lshrrev_b32 v3, 4, v{vL}
v_lshlrev_b32 v3, 6, v3
v_lshlrev_b32 v2, 4, v{vL}
v_xor_b32 v24, v2, v3
v_lshrrev_b32 v3, 5, v{vL}
v_bfe_u32 v4, v{vL}, 2, 2
v_lshlrev_b32 v5, 8, v4
v_lshl_add_u32 v5, v3, 11, v5
v_lshl_add_u32 v5, v4, 6, v5
v_bfe_u32 v3, v{vL}, 4, 1
v_lshl_add_u32 v5, v3, 5, v5
v_and_b32 v3, 3, v{vL}
v_lshl_add_u32 v5, v3, 3, v5
s_lshl_b32 s38, s{sHH}, 12
s_add_u32 s38, s38, 114688
v_add_u32 v24, s38, v24
v_add_u32 v25, s38, v5
v_xor_b32 v26, 64, v25
v_xor_b32 v27, 128, v25
v_xor_b32 v28, 192, v25
s_waitcnt vmcnt(DWAIT+4)""".replace('DWAIT+4', str(DW + 4)))
    for rd in range(2):
        for k in range(4): A(f"ds_write_b128 v24, {R(DG[4*rd+k],4)} offset:{k*1024}")
        for t in range(4):
            for j in range(2): A(f"ds_read_b64_tr_b16 {R(DG[4*rd+t]+2*j,2)}, v{25+t} offset:{j*1024}")
    validated(gp_issue, gp_check, DW)
    A(f"""v_add_f32 v2, v{GPR}, v{GPR+4}
v_add_f32 v3, v{GPR+1}, v{GPR+5}
v_add_f32 v4, v{GPR+8}, v{GPR+12}
v_add_f32 v5, v{GPR+9}, v{GPR+13}
v_add_f32 v2, v2, v4
v_add_f32 v3, v3, v5
v_mov_b32 v4, v2
v_mov_b32 v5, v3
v_permlane32_swap_b32 v2, v4
v_permlane32_swap_b32 v3, v5
v_add_f32 v2, v2, v4
v_add_f32 v3, v3, v5""")
    bf16round(2, 2); bf16round(3, 3)
    A(f"""v_mul_f32 v4, {f32(-LOG2E)}, v2
v_exp_f32 v4, v4
v_add_f32 v4, 1.0, v4
v_rcp_f32 v4, v4
v_mul_f32 v2, v2, v4""")
    bf16round(2, 2)
    A(f"""v_mul_f32 v2, v2, v3
v_cvt_pk_bf16_f32 v2, v2, v2
v_and_b32 v3, 31, v{vL}
v_lshl_add_u32 v3, v3, 1, s38
ds_write_b16 v3, v2
v_lshrrev_b32 v3, 5, v{vL}
v_lshl_add_u32 v3, v3, 4, s38
ds_read_b128 {R(32,4)}, v3
ds_read_b128 {R(36,4)}, v3 offset:32
s_lshl_b32 s20, s{sDI}, 12
s_lshl_b32 s21, s{sHH}, 10
s_add_u32 s20, s20, s21
s_add_u32 s20, s20, {WS_YP}
s_mov_b32 s22, 0
s_mov_b32 s23, -1
v_lshlrev_b32 v2, 4, v{vL}
v_mov_b32 v42, s{sNONCE}
v_mov_b32 v43, s{sNONCE}
s_waitcnt lgkmcnt(0)""")
    DB = [SB, SB + 16, SB + 32, 48]
    for st in range(2):
        for t in range(4): A(mfma32(DB[t], 32 + 4 * st, DG[4 * st + t], None if st else 0))
    A(f"""v_cndmask_b32_e64 v40, v{DB[0]}, v{DB[2]}, s[22:23]
v_cndmask_b32_e64 v41, v{DB[1]}, v{DB[3]}, s[22:23]
buffer_store_dwordx4 {R(40,4)}, v2, {SR(SWS)}, s20 offen sc1
""")
    A.label("L_dend")
def wo_dma4():
    return [f"""s_and_b32 s26, s{sWB}, 3
s_add_u32 s{sWB}, s{sWB}, 1
s_lshl_b32 s27, s26, 12
s_add_u32 m0, s27, s{sM0}
s_lshl_b32 s27, s26, 14
s_add_u32 s27, s27, s{sWOD}"""] + [f"buffer_load_dwordx4 v{vWO+k}, {SR(SWO)}, s27 offen offset:{k*1024} lds" for k in range(4)]
def kv_check(base, cs):
    for k in range(4):
        b = base(k)
        A(f"v_add3_u32 v{2+k}, v{b}, v{b+1}, v{b+2}\nv_add3_u32 v{2+k}, v{2+k}, v{b+3}, s{sNONCE}\nv_xor_b32 v{2+k}, v{2+k}, v{cs+k}")
    A(f"""v_or_b32 v2, v2, v3
v_or_b32 v4, v4, v5
v_and_b32 v2, s{sH1}, v2
v_and_or_b32 v2, v4, s{sH2}, v2
v_cmp_ne_u32 vcc, 0, v2""")
def k_check(): kv_check(Kf, KC)
def v_check(): kv_check(lambda k: Vf(k, 0), VC)
def vswap(ks):
    for k in ks:
        for r in range(4): A(f"v_permlane16_swap_b32 v{Vf(k,0)+r}, v{Vf(k,1)+r}")
def Q(q): return QF + 4 * q
def smf(dst, k, q, c): return mfma32(dst, Kf(k), Q(q), c)
SEG = lambda k0: [(k0, 0, None), (k0, 1, None), (k0 + 1, 0, None), (k0 + 1, 1, None)]
B3 = [SB, SB + 16, SB + 32]
def nm(q): return R(NM + 16 * q, 16)
def p2_run(jobs, cfun, fresh, extra={}, mem={}):
    n = len(jobs)
    pend = []
    A(smf(B3[0], jobs[0][0], jobs[0][1], cfun(jobs[0][1])))
    for t in range(n):
        k, q, mask = jobs[t]; b = B3[t % 3]
        side = []
        if t + 1 < n: side.append(smf(B3[(t + 1) % 3], jobs[t + 1][0], jobs[t + 1][1], cfun(jobs[t + 1][1])))
        side += pend
        val = [f"v_exp_f32 v{b+r}, v{b+r}" for r in range(16)]
        val += [f"v_cvt_pk_bf16_f32 v{b+j}, v{b+2*j}, v{b+2*j+1}" for j in range(8)]
        if mask == "old": val += [f"v_and_b32 v{b+j}, v{b+j}, v{MK+j}" for j in range(8)]
        if mask == "diag": val += [f"v_bfi_b32 v{b+j}, v{MK+j}, 0, v{b+j}" for j in range(8)]
        mm_ = mem.get(t, [])
        if mm_:
            step = len(val) // len(mm_)
            for q_, x in enumerate(mm_): val[q_ * step + step // 2] += "\n" + x
        vi = 0
        for sx in side:
            A(sx); emit(val[vi:vi + 5]); vi += 5
        emit(val[vi:])
        for fn in extra.get(t, []): fn()
        pend = [mfma32(OA + 16 * q, Vf(k, g), b + 4 * g, 0 if (q in fresh and g == 0) else None) for g in range(2)]
        fresh.discard(q)
    emit(pend)
zero = lambda q: 0
XR = 80
dma = lambda: emit(wo_dma4())
def wo_ops():
    out = []
    for b in range(4):
        l = wo_dma4(); out += [l[0] + "\n" + l[1]] + l[2:]
    return out
def dma_upto(n):
    lt = A.newlabel("L_du"); le = A.newlabel("L_de")
    A.label(lt)
    A(f"s_sub_u32 s20, s{sWE}, {4-n}\ns_cmp_ge_u32 s{sWB}, s20\ns_cbranch_scc1 {le}")
    dma()
    A(f"s_branch {lt}")
    A.label(le)
def after_v(isC, wait):
    def h():
        validated(v_issue, v_check, wait)
        vswap(range(4))
        if isC:
            for pr in range(2):
                A(f"buffer_load_dwordx4 {R(XR+4*pr,4)}, v{vOUT}, {SR(SX)}, s{sOUTO} offen offset:{pr*32}")
            if int(opts.get("opt", 0)) == 1:
                A(f"""s_lshl_b32 s20, s{sI}, 4
s_add_u32 s20, s20, s{sC}
s_and_b32 s21, s{sW}, 1
s_lshl_b32 s21, s21, 3
s_add_u32 s20, s20, s21
s_cmp_ge_u32 s{sW}, 2
s_cselect_b32 s21, 10, 12
s_mov_b32 s22, {WS_O}
s_cselect_b32 s22, {WS_OC}, s22
s_cselect_b32 s24, 0xff, -1
s_mov_b32 s25, 0
s_lshl_b32 s20, s20, s21
s_add_u32 s20, s20, s22
v_lshlrev_b32 v2, 7, v{vL}
s_mov_b64 exec, s[24:25]
buffer_load_dword v254, v2, {SR(SWS)}, s20 offen sc1
s_mov_b64 exec, -1""")
        if int(opts.get("opt", 0)) == 4:
            A(f"""s_lshl_b32 s20, s{sI}, 1
s_add_u32 s20, s20, s{sROLE}
s_lshl_b32 s20, s20, 3
s_add_u32 s20, s20, s{sC}
s_lshl_b32 s21, s20, 10
s_add_u32 s21, s21, {WS_OC}
s_lshl_b32 s20, s20, 12
s_add_u32 s20, s20, {WS_O}
v_lshrrev_b32 v5, 2, v{vRK}
v_add3_u32 v4, v{QF}, v{QF+1}, v{QF+2}
v_add3_u32 v4, v4, v{QF+3}, s{sNONCE}
v_add_u32 v4, 1, v4
buffer_store_dwordx4 {R(QF,4)}, v{vRK}, {SR(SWS)}, s20 offen sc1
buffer_store_dword v4, v5, {SR(SWS)}, s21 offen sc1""")
        TS(9); RC(43)
    return h
def k_valid(first_wait):
    validated(lambda: (k_issue(), v_issue()), k_check, first_wait)
    TS(7); RC(42)
def sched(ops, plan):
    out = {}; k = 0
    for t, n in plan:
        out[t] = ops[k:k + n]; k += n
    assert k == len(ops)
    return out
OWNJ = [(4, 0, "diag"), (5, 1, "diag"), (4, 1, None)]
OLDJ = [(3, 0, None), (2, 0, "old"), (3, 1, "old")]
CPL = eval(opts.get('cpl', '[]')); LPL = eval(opts.get('lpl', '[(1,4),(5,4),(6,4)]'))
NCB = sum(n for t, n in CPL) // 4
A(f"s_cmp_eq_u32 s{sROLE}, 0\ns_cbranch_scc1 L_fA")
g_stage()
TS(8)
k_valid(7)
lb = A.newlabel("L_fb1"); lb2 = A.newlabel("L_fb0")
A(f"s_cmp_eq_u32 s{sH1}, 0\ns_cbranch_scc1 {lb}")
p2_run(SEG(0) + SEG(2), zero, {0, 1}, {0: [after_v(1, 1)]}, sched(wo_ops()[:4*NCB], CPL))
A("s_branch L_fchk")
A.label(lb)
A(f"s_cmp_eq_u32 s{sH2}, 0\ns_cbranch_scc1 {lb2}")
p2_run(SEG(2), zero, {0, 1}, {0: [after_v(1, 1), wd_issue]})
dma_upto(NCB)
A("s_branch L_fchk")
A.label(lb2)
after_v(1, 1)()
wd_issue()
dma_upto(NCB)
for r in range(32): A(f"v_mov_b32 v{OA+r}, 0")
A(f"v_mov_b32 v{vM0}, {f32(-1e30)}\nv_mov_b32 v{vM1}, {f32(-1e30)}")
A("s_branch L_p2done")
A.label("L_fA")
GQ = int(opts.get("gq", 4)); DW = sum(n for t, n in LPL if t > GQ)
winner()
vswap((4, 5))
A('s_setprio %d' % int(opts.get('lprio', 1)))
lb = A.newlabel("L_fa1"); lb2 = A.newlabel("L_fa0")
A(f"s_cmp_eq_u32 s{sH1}, 0\ns_cbranch_scc1 {lb2}")
p2_run(OWNJ, zero, {0, 1}, {}, sched(capture(k_issue) + capture(v_issue), [(0, 6), (1, 3), (2, 3)]))
TS(8)
k_valid(6)
A(f"s_cmp_eq_u32 s{sH2}, 0\ns_cbranch_scc1 {lb}")
p2_run(SEG(0) + OLDJ, zero, set(), {0: [after_v(0, 0), wd_issue], GQ: [gp_request(0)]}, sched(wo_ops()[:sum(n for t, n in LPL)], LPL))
A("s_branch L_fchk")
A.label(lb)
p2_run(SEG(0), zero, set(), {0: [after_v(0, 0), wd_issue]})
if int(opts.get('s3', 2)): dma_upto(int(opts.get('s3', 2)))
gp_request(1)()
A("s_branch L_fchk")
A.label(lb2)
wd_issue()
p2_run(OWNJ, zero, {0, 1})
dma_upto(int(opts.get("sb", 3)))
A("s_waitcnt vmcnt(0)")
gp_request(1)()
A.label("L_fchk")
LO = (127 - 40) << 23; RNG = 80 << 23
if not FAST: LO, RNG = 0, 0
A(f"""v_subrev_u32 v2, {hex(LO)}, v{OA+8}
v_subrev_u32 v3, {hex(LO)}, v{OA+24}
v_max_u32 v2, v2, v3
v_cmp_le_u32 vcc, {hex(RNG) if RNG else 0}, v2
s_cbranch_vccnz L_slow""")
A.label("L_p2done")
if DPOS == 0: d_block()
PB0 = int(opts.get("pb0", 0)); NB1 = int(opts.get("nb1", 4)); MB = int(opts.get("mb", 5))
A(f"""s_cmp_lt_u32 s{sW}, 4
s_cbranch_scc1 L_npb0""")
dma_upto(4)
A(f"""s_sub_u32 s{sWOD}, s{sWOD}, {4 << 16}
s_add_u32 s{sM0}, s{sM0}, {4 << 14}
s_add_u32 s{sWE}, s{sWE}, 4
s_add_u32 s{sWB}, s{sWB}, {NCB}""")
if PB0: dma_upto(NCB + PB0)
A.label("L_npb0")
TS(10)

def slow_path():
    A.label("L_slow")
    A("s_waitcnt vmcnt(0)")
    A(f"v_mov_b32 v{vM0}, {f32(-1e30)}\nv_mov_b32 v{vM1}, {f32(-1e30)}\nv_mov_b32 v5, {f32(-1e30)}")
    def max_run(jobs):
        for (k, q, mask) in jobs:
            m = vM0 if q == 0 else vM1
            A(smf(SB, k, q, 0))
            if mask:
                for r in range(16):
                    j0 = 8 * (r // 4) + r % 4
                    A(f"s_lshl_b32 s20, -1, {j0}\ns_lshl_b32 s21, -1, {j0+4}")
                    if mask == "diag": A(f"v_cndmask_b32_e64 v{SB+r}, v5, v{SB+r}, s[20:21]")
                    else: A(f"v_cndmask_b32_e64 v{SB+r}, v{SB+r}, v5, s[20:21]")
            for r in range(0, 16, 2): A(f"v_max3_f32 v{m}, v{SB+r}, v{SB+r+1}, v{m}")
    def groups(fn):
        l1 = A.newlabel("L_s"); l2 = A.newlabel("L_s"); l3 = A.newlabel("L_s")
        A(f"s_cmp_eq_u32 s{sH1}, 0\ns_cbranch_scc1 {l1}")
        fn(SEG(0))
        A.label(l1)
        A(f"s_cmp_eq_u32 s{sROLE}, 0\ns_cbranch_scc1 {l2}")
        fn(SEG(2))
        A(f"s_branch {l3}")
        A.label(l2)
        fn(OWNJ)
        A(f"s_cmp_eq_u32 s{sH2}, 0\ns_cbranch_scc1 {l3}")
        fn(OLDJ)
        A.label(l3)
    groups(max_run)
    A(f"""v_mov_b32 v2, v{vM0}
v_mov_b32 v3, v{vM1}
v_permlane32_swap_b32 v{vM0}, v2
v_permlane32_swap_b32 v{vM1}, v3
v_max_f32 v{vM0}, v{vM0}, v2
v_max_f32 v{vM1}, v{vM1}, v3""")
    for q, m in enumerate((vM0, vM1)):
        for r in range(16): A(f"v_sub_f32 v{NM+16*q+r}, 0, v{m}")
    for r in range(32): A(f"v_mov_b32 v{OA+r}, 0")
    groups(lambda jobs: p2_run(jobs, nm, set()))
    wd_issue()
    A("s_waitcnt vmcnt(0)\ns_branch L_p2done")

A(f"""v_xor_b32 v3, 0x4000, v{vEX}
v_add_u32 v3, {81920 - L_TAIL}, v3
v_add_u32 v2, {81920 - L_TAIL}, v{vEX}
s_lshl_b32 s20, s{sI}, 1
s_add_u32 s20, s20, s{sROLE}
s_lshl_b32 s20, s20, 3
s_add_u32 s20, s20, s{sC}
s_lshl_b32 s21, s20, 10
s_add_u32 s21, s21, {WS_OC}
s_lshl_b32 s20, s20, 12
s_add_u32 s20, s20, {WS_O}
v_lshrrev_b32 v5, 2, v{vRK}
v_mov_b32 v{OA+25}, v{vM1}
ds_write_b64 v3, {R(OA+24,2)} offset:2048
ds_write_b128 v3, {R(OA+16,4)}
ds_write_b128 v3, {R(OA+20,4)} offset:1024
s_waitcnt lgkmcnt(0)
s_barrier
ds_read_b64 {R(SB+8,2)}, v2 offset:2048
ds_read_b128 {R(SB,4)}, v2
ds_read_b128 {R(SB+4,4)}, v2 offset:1024
s_waitcnt lgkmcnt(2)
v_max_f32 v3, v{vM0}, v{SB+9}
v_sub_f32 v{SB+10}, v{vM0}, v3
v_sub_f32 v{SB+11}, v{SB+9}, v3
v_exp_f32 v{SB+10}, v{SB+10}
v_exp_f32 v{SB+11}, v{SB+11}
v_mul_f32 v4, v{SB+10}, v{OA+8}
v_fmac_f32 v4, v{SB+11}, v{SB+8}
v_rcp_f32 v4, v4
v_mul_f32 v{SB+10}, v{SB+10}, v4
v_mul_f32 v{SB+11}, v{SB+11}, v4
s_waitcnt lgkmcnt(0)""")
for r in range(0, 8, 2):
    A(f"v_pk_mul_f32 {R(OA+r,2)}, {R(OA+r,2)}, {R(SB+10,2)} op_sel_hi:[1,0]")
    A(f"v_pk_fma_f32 {R(OA+r,2)}, {R(SB+r,2)}, {R(SB+10,2)}, {R(OA+r,2)} op_sel:[0,1,0]")
for k in range(4): A(f"v_cvt_pk_bf16_f32 v{SB+12+k}, v{OA+2*k}, v{OA+2*k+1}")
A(f"""buffer_store_dwordx4 {R(SB+12,4)}, v{vRK}, {SR(SWS)}, s20 offen sc1
v_add3_u32 v4, v{SB+12}, v{SB+13}, v{SB+14}
v_add3_u32 v4, v4, v{SB+15}, s{sNONCE}
buffer_store_dword v4, v5, {SR(SWS)}, s21 offen sc1""")
TS(11)

A("s_waitcnt vmcnt(2)\ns_barrier")
TS(12); RC(44)

WOF = 8; XB = 136; PA = 160; OF = 176; OL = 208; OLC = 224
A(f"""s_lshl_b32 s20, s{sQK}, 3
s_add_u32 s20, s20, s{sW}
s_lshl_b32 s32, s20, 10
s_add_u32 s32, s32, {WS_OC}
s_lshl_b32 s31, s20, 12
s_add_u32 s31, s31, {WS_O}
v_lshlrev_b32 v2, 4, v{vL}
v_lshlrev_b32 v{vRV}, 2, v{vL}
s_and_b32 s33, s{sKEY}, 0x7ff
s_sub_u32 s33, 2047, s33
s_lshr_b32 s34, s33, 5""")
def o_issue():
    for k in range(4):
        A(f"buffer_load_dwordx4 {R(OL+4*k,4)}, v2, {SR(SWS)}, s31 offen offset:{k*1024} sc1")
    for k in range(4):
        A(f"buffer_load_dword v{OLC+k}, v{vRV}, {SR(SWS)}, s32 offen offset:{k*256} sc1")
def o_check():
    for k in range(4):
        b = OL + 4 * k
        A(f"v_add3_u32 v{228+k}, v{b}, v{b+1}, v{b+2}\nv_add3_u32 v{228+k}, v{228+k}, v{b+3}, s{sNONCE}\nv_xor_b32 v{228+k}, v{228+k}, v{OLC+k}")
    A("v_or3_b32 v228, v228, v229, v230\nv_or_b32 v228, v228, v231\nv_cmp_ne_u32 vcc, 0, v228")
lb = A.newlabel("L_p3l")
A(f"s_cmp_lt_u32 s{sW}, 4\ns_cbranch_scc1 L_nphb")
dma_upto(NB1)
A.label("L_nphb")
if DPOS == 1: d_block()
A(f"v_lshlrev_b32 v2, 4, v{vL}")
A(f"s_cmp_ge_u32 s{sW}, 4\ns_cbranch_scc1 {lb}w")
for pr in range(2):
    b = XR + 4 * pr
    A(f"v_permlane32_swap_b32 v{b}, v{b+2}\nv_permlane32_swap_b32 v{b+1}, v{b+3}")
for k in range(8):
    x = XR + k; p = PA + 2 * k
    A(f"""v_lshlrev_b32 v{p}, 16, v{x}
v_and_b32 v{p+1}, 0xffff0000, v{x}
v_pk_add_f32 {R(XB+8,2)}, {R(p,2)}, {R(vPM,2)} op_sel_hi:[1,0] neg_lo:[0,1] neg_hi:[0,1]
v_cvt_pk_bf16_f32 v{XB+10}, v{XB+8}, v{XB+9}
v_lshlrev_b32 v{XB+8}, 16, v{XB+10}
v_and_b32 v{XB+9}, 0xffff0000, v{XB+10}
v_pk_mul_f32 {R(XB+8,2)}, {R(XB+8,2)}, {R(vPM,2)} op_sel:[0,1]
v_cvt_pk_bf16_f32 v{XB+10}, v{XB+8}, v{XB+9}
v_lshlrev_b32 v{XB+8}, 16, v{XB+10}
v_and_b32 v{XB+9}, 0xffff0000, v{XB+10}
v_pk_add_f32 {R(p,2)}, {R(p,2)}, {R(XB+8,2)}""")
A(f"""v_lshlrev_b32 v2, 4, v{vL}
v_lshrrev_b32 v4, 5, v{vL}
v_bfe_u32 v3, v{vL}, 2, 2
v_lshl_add_u32 v5, v4, 2, v3
v_lshlrev_b32 v5, 8, v5
v_xor_b32 v3, s{sW}, v3
v_lshl_add_u32 v5, v3, 6, v5
v_bfe_u32 v3, v{vL}, 4, 1
v_lshl_add_u32 v5, v3, 5, v5
v_and_b32 v3, 3, v{vL}
v_lshl_add_u32 v5, v3, 3, v5
v_add_u32 v3, 65536, v5""")
def wo_read(g): return [f"ds_read_b64_tr_b16 {R(WOF+4*g+2*j,2)}, v{3 if g < 16 else 5} offset:{(g*4096 + j*2048) % 65536}" for j in range(2)]
for g in range(16, 32): emit(wo_read(g))
A(f"s_waitcnt vmcnt(0)\ns_branch {lb}")
A.label(lb + "w")
A(f"s_waitcnt vmcnt({4*max(0, NB1-NCB-PB0)})")
def yp_issue():
    A(f"""s_and_b32 s20, s{sC}, 3
s_lshl_b32 s20, s20, 10
s_add_u32 s20, s20, {WS_YP}
s_add_u32 s21, s20, {42*4096}
s_mul_i32 s22, s{sHH}, {11*4096}
s_add_u32 s20, s20, s22""")
    for k in range(11):
        if k == 10: A("s_min_u32 s20, s20, s21")
        A(f"buffer_load_dwordx4 {R(8+4*k,4)}, v2, {SR(SWS)}, s20 offen sc1\ns_add_u32 s20, s20, 4096")
NR = 4 * (4 - max(NB1, NCB + PB0))
TS(46)
o_issue()
if NR: dma_upto(4)
YL = int(opts.get("yl", 1))
if not YL:
    A(f"s_cmp_lg_u32 s34, s{sQK}\ns_cbranch_scc1 {lb}z")
    yp_issue()
    A(f"s_waitcnt vmcnt({11+NR})\ns_branch {lb}y")
    A.label(lb + "z")
A(f"s_waitcnt vmcnt({NR})\ns_branch {lb}y")
A.label(lb)
TS(46)
o_issue()
TS(47)
A("s_waitcnt vmcnt(0)")
A.label(lb + "y")
o_check()
retry_check(lb)
for k in range(4):
    A(f"ds_write_b128 v{vEX}, {R(OL+4*k,4)} offset:{k*1024}")
if YL:
    A(f"s_cmp_lg_u32 s34, s{sQK}\ns_cbranch_scc1 L_nyl\ns_cmp_lt_u32 s{sW}, 4\ns_cbranch_scc1 L_nyl")
    yp_issue()
    A.label("L_nyl")
TS(13); RC(45)
A("s_waitcnt lgkmcnt(0)\ns_barrier")
TS(14)
A(f"s_cmp_ge_u32 s{sW}, 4\ns_cbranch_scc1 L_p3help")
A(f"v_add_u32 v2, {L_TAIL}, v2")
order = list(range(16, 32)) + list(range(16))
lq = []
def ofr(n): lds(("o", n), f"ds_read_b128 {R(OF+4*(n%8),4)}, v2 offset:{order[n]*1024}")
for n in range(6): ofr(n)
wq = [x for g in range(16) for x in wo_read(g)]
for n in range(32):
    lwait(("o", n))
    A(mfma32(PA, WOF + 4 * order[n], OF + 4 * (n % 8)))
    if NR:
        if n == MB: A("s_barrier")
        if n >= MB:
            for x in wq[:3]: lds("w", x)
            wq = wq[3:]
    elif n < 16:
        for x in wo_read(n): lds("w", x)
    if n + 6 < 32: ofr(n + 6)
    if n == int(opts.get("zb", 27)):
        A(f"s_cmp_lg_u32 s34, s{sQK}\ns_cbranch_scc1 L_nzb\ns_barrier\nL_nzb:")
lb = A.newlabel("L_noz")
A(f"s_cmp_lg_u32 s34, s{sQK}\ns_cbranch_scc1 {lb}")
A(f"""s_barrier
s_lshl_b32 s20, s{sW}, 7
v_lshlrev_b32 v3, 4, v4
v_add_u32 v3, s20, v3""")
for a in range(4): A(f"ds_read_b128 {R(OF+4*a,4)}, v3 offset:{a*32}")
A(f"""s_and_b32 s20, s33, 31
v_and_b32 v3, 31, v{vL}
v_cmp_eq_u32 vcc, s20, v3
s_and_saveexec_b64 s[{sEX}:{sEX+1}], vcc
s_waitcnt lgkmcnt(0)""")
for r in range(16): A(f"v_add_f32 v{PA+r}, v{PA+r}, v{OF+r}")
A(f"s_mov_b64 exec, s[{sEX}:{sEX+1}]")
A.label(lb)
for k in range(8): A(f"v_cvt_pk_bf16_f32 v{XB+k}, v{PA+2*k}, v{PA+2*k+1}")
for pr in range(2):
    b = XB + 4 * pr
    A(f"v_permlane32_swap_b32 v{b}, v{b+2}\nv_permlane32_swap_b32 v{b+1}, v{b+3}")
    A(f"buffer_store_dwordx4 {R(b,4)}, v{vOUT}, {SR(SOUT)}, s{sOUTO} offen offset:{pr*32}")
A("s_branch L_end")
A.label("L_p3help")
if NR:
    A(f"s_cmp_lg_u32 s34, s{sQK}\ns_cbranch_scc1 L_hw0\ns_waitcnt vmcnt(11)\ns_branch L_hw1\nL_hw0:\ns_waitcnt vmcnt(0)\nL_hw1:\ns_barrier")
A(f"""s_or_b32 s20, s2, s{sHH}
s_cmp_lg_u32 s20, 0
s_cbranch_scc1 L_noep
v_mov_b32 v200, s{sNONCE}
v_mov_b32 v201, {WS_EPOCH}
s_mov_b64 exec, 1
buffer_store_dword v200, v201, {SR(SWS)}, 0 offen sc1
s_mov_b64 exec, -1
L_noep:""")
A(f"s_cmp_lg_u32 s34, s{sQK}\ns_cbranch_scc1 L_end")
def yp_check():
    A(f"v_min3_u32 v3, v10, v14, v18\nv_max3_u32 v4, v10, v14, v18")
    for k in range(3, 11, 2): A(f"v_min3_u32 v3, v3, v{10+4*k}, v{14+4*k}\nv_max3_u32 v4, v4, v{10+4*k}, v{14+4*k}")
    A(f"v_xor_b32 v3, s{sNONCE}, v3\nv_xor_b32 v4, s{sNONCE}, v4\nv_or_b32 v3, v3, v4\nv_cmp_ne_u32 vcc, 0, v3")
validated(yp_issue, yp_check, 0)
A(f"s_cmp_eq_u32 s{sHH}, 3\ns_cselect_b32 s20, 0, 1.0")
for k in range(1, 10): A(f"v_add_f32 v8, v8, v{8+4*k}\nv_add_f32 v9, v9, v{9+4*k}")
A(f"""v_fmac_f32 v8, s20, v48
v_fmac_f32 v9, s20, v49
s_lshl_b32 s20, s{sHH}, 9
s_add_u32 s20, s20, 1024
v_lshl_add_u32 v3, v{vL}, 3, s20
ds_write_b64 v3, v[8:9]
s_waitcnt lgkmcnt(0)
s_barrier""")
lb = A.newlabel("L_hb")
A(f"""s_cmp_lg_u32 s{sW}, 4
s_cbranch_scc1 {lb}
ds_read_b64 v[10:11], v3 offset:512
ds_read_b64 v[12:13], v3 offset:1024
ds_read_b64 v[14:15], v3 offset:1536
s_waitcnt lgkmcnt(0)
v_add_f32 v8, v8, v10
v_add_f32 v9, v9, v11
v_add_f32 v12, v12, v14
v_add_f32 v13, v13, v15
v_add_f32 v8, v8, v12
v_add_f32 v9, v9, v13""")
bf16round(8, 8); bf16round(9, 9)
A(f"""s_and_b32 s20, s{sKEY}, 0xffff0000
s_ashr_i32 s21, s20, 31
s_not_b32 s21, s21
s_or_b32 s21, s21, 0x80000000
s_xor_b32 s20, s20, s21
s_and_b32 s20, s20, 0xffff0000
v_mov_b32 v3, s20
v_mul_f32 v3, {f32(-LOG2E)}, v3
v_exp_f32 v3, v3
v_add_f32 v3, 1.0, v3
v_rcp_f32 v3, v3""")
bf16round(3, 3)
A("v_mul_f32 v8, v8, v3\nv_mul_f32 v9, v9, v3")
bf16round(8, 8); bf16round(9, 9)
A(f"""v_lshrrev_b32 v3, 5, v{vL}
v_lshlrev_b32 v3, 8, v3
v_and_b32 v4, 31, v{vL}
v_lshl_add_u32 v3, v4, 2, v3
ds_write_b32 v3, v8
ds_write_b32 v3, v9 offset:128
s_waitcnt lgkmcnt(0)""")
A.label(lb)
A("s_barrier")
A.label("L_end")
if PROF:
    TS(15)
    srd(SWS, WS_SIZE)
    A(f"""s_mov_b64 exec, -1
v_writelane_b32 v{vTS}, s{sRETRY}, 62
s_memrealtime s[96:97]
s_waitcnt lgkmcnt(0)
v_writelane_b32 v{vTS}, s96, 61
s_lshl_b32 s20, s2, 3
s_add_u32 s20, s20, s{sW}
s_lshl_b32 s20, s20, 8
s_add_u32 s20, s20, {WS_TS}
v_lshlrev_b32 v2, 2, v{vL}
buffer_store_dword v{vTS}, v2, {SR(SWS)}, s20 offen""")
A.label("L_exit")
A("s_endpgm")
A.label("L_codeend")
slow_path()

body = A.finalize()
import re as _re
def addflag(srd_, flag, kind="load"):
    global body
    pat = _re.compile(r"^(\s*buffer_%s_\w+ .*s\[%d:%d\], \S+ offen(?: offset:\d+)?)( lds)?$" % (kind, srd_, srd_ + 3), _re.M)
    body = pat.sub(lambda m: m.group(1) + " " + flag + (m.group(2) or ""), body)
for b_ in (SWG, SWU, SWD): addflag(b_, "nt")
if opts.get("ntx"): addflag(SX, "nt")
if opts.get("ntw"): addflag(SW, "nt")
if opts.get("nto"): addflag(SWO, "nt")
if opts.get("outf"): addflag(SOUT, opts["outf"].replace("+", " "), "store")
hdr = open("cdna_kernels/" + NAME + ".s.ref").read().split("; Override launch")[0]
out = hdr + f"""; Fused single kernel: LN stats + router, QKV GEMM, sliding-window attention, MoD FFN, output projection.
; Generated by gen/gen.py (hand-written generator).
; @launch grid=(256,1,1) block=(512,1,1) lds=163840
.amdgcn_target "amdgcn-amd-amdhsa--gfx950"
.text
.globl {NAME}_kernel
.p2align 8
.type {NAME}_kernel,@function
{NAME}_kernel:
L_start:
{body}
.section .rodata,"a"
.p2align 6
.amdhsa_kernel {NAME}_kernel
  .amdhsa_next_free_vgpr 256
  .amdhsa_next_free_sgpr 102
  .amdhsa_accum_offset 256
  .amdhsa_group_segment_fixed_size 0
  .amdhsa_kernarg_size 88
  .amdhsa_user_sgpr_count 2
  .amdhsa_user_sgpr_kernarg_segment_ptr 1
  .amdhsa_system_sgpr_workgroup_id_x 1
  .amdhsa_float_denorm_mode_32 3
.end_amdhsa_kernel
"""
import subprocess, re
def labels(text):
    open("_g.s", "w").write(text)
    r = subprocess.run(["clang", "-x", "assembler", "-target", "amdgcn-amd-amdhsa", "-mcpu=gfx950", "-c", "_g.s", "-o", "_g.o"], capture_output=True, text=True)
    if r.returncode:
        print("\n".join(r.stderr.split("\n")[:30])); sys.exit(1)
    t = subprocess.run(["llvm-objdump", "-t", "_g.o"], capture_output=True, text=True).stdout
    return {m.group(2): int(m.group(1), 16) for m in re.finditer(r"^([0-9a-f]{16}) .*\s(L_\w+)$", t, re.M)}
lab = labels(out.replace("CODE_PF_MAX", "0x11111"))
out = out.replace("CODE_PF_MAX", hex((lab["L_codeend"] - 1024) & ~127))
assert labels(out) == lab
print("code bytes", lab["L_codeend"], "instrs", len(A.ins), "nops", A.nnop)
open(sys.argv[1], "w").write(out)
```

```python
import sys, struct
from asmlib import Asm

NAME = "parallel_sum__sliding_block__moe_arch_mod__prompt"
opts = dict(a.split("=") if "=" in a else (a, "1") for a in sys.argv[2:])
PROF = int(opts.get("prof", 0))
LOOPTS = int(opts.get('loopts', 0))
DEPTH = int(opts.get('depth', 3))
FAST = int(opts.get('fast', 1))
SIBU = int(opts.get('sibu', 4))
GWP = int(opts.get('gwp', 2))
DOFF = int(opts.get('doff', 245))
DSH = int(opts.get('dsh', 0))
DNL = int(opts.get('dnl', 43))
DPOS = int(opts.get('dpos', 3))
PWS = int(opts.get('pws', 1))
LGW = int(opts.get('lgw', -1))
PUBU = int(opts.get('pubu', 0))

def f32(x): return "0x%08x" % struct.unpack("<I", struct.pack("<f", x))[0]
LOG2E = 1.4426950408889634

WS_BEST  = 0x0
WS_EPOCH = 0x4000
WS_STATS = 0x8000
WS_YP    = 0x10000
WS_GP    = 0x40000
WS_KV    = 0x100000
WS_KVC   = 0x500000
WS_O     = 0x600000
WS_OC    = 0x800000
WS_TS    = 0x900000
WS_SIZE  = 0x1000000
L_X = 0; L_RING = 65536; L_MISC = 147456; L_TAIL = 131072
def slot_of(u): return (u + 2) % 5
L_QF = L_MISC
L_SM = L_MISC + 8192
L_RT = L_SM
L_NONCE = L_SM + 128
L_IDX = L_SM + 144
L_XSEL = L_SM + 1024
L_QRDY = L_SM + 224
L_CSX = L_SM + 2048
L_STAT = L_SM + 256
L_RINV = L_SM + 768
L_GW = L_RING + 4 * 16384
L_OWN = L_RING + slot_of(8) * 16384
SX, SW, SWS, SDBG, SWR = 40, 44, 48, 52, 56
SWO, SOUT, SWG, SWU, SWD = 60, 64, 68, 72, 76
sI, sC, sW, sROT, sNONCE, sP, sKEY = 3, 4, 5, 6, 7, 8, 9
sXO, sWOFF, sCT, sWB, sHH, sROLE, sH1, sH2 = 10, 11, 12, 13, 14, 15, 16, 17
sSM, sSR = 18, 19
sOUTO, sQK, sWOD, sM0, sWE, sEX, sRETRY = 80, 81, 82, 83, 84, 86, 88
sGU = 89
sDI = 85
DG = [96 + 4 * n for n in range(8)]
GOFF = int(opts.get('goff', 80))
sRB = 90
vL, vZ, vTS = 1, 6, 7
vXA, vWA0, vWA1 = 88, 92, 93
vX0, vX1, vW0, vW1 = 80, 81, 82, 83
vSA, vKA, vKC, vBA = 80, 81, 82, 83
ACC = 96; STB = 128; CS = 200; SEL = 204; GW = 208; ST0, ST1 = 224, 226; XS = 228
OWN = 128; SL = 8
KC, VC, QF, NM, OA, SB, WD, MK = 80, 84, 88, 96, 128, 160, 208, 232
vM0, vM1, vRK, vRV, vRKC, vGA, vEX, vOUT, vPM, vPR, vWO = 240, 241, 242, 243, 244, 245, 246, 247, 248, 249, 250
A = Asm()

def TS(n):
    if PROF == 1: A(f"s_memtime s[98:99]\ns_waitcnt lgkmcnt(0)\nv_writelane_b32 v{vTS}, s98, {n}")
def TSL(n):
    if LOOPTS: TS(n)
def RC(n):
    if PROF == 1: A(f"v_writelane_b32 v{vTS}, s{sRETRY}, {n}")
def srd(base, size): A(f"s_mov_b32 s{base+2}, {size}\ns_mov_b32 s{base+3}, 0x20000")
def R(b, n): return f"v[{b}:{b+n-1}]"
def SR(b): return f"s[{b}:{b+3}]"
DPP8 = ("quad_perm:[1,0,3,2]", "quad_perm:[2,3,0,1]", "row_half_mirror")
def dpp(op, x, m): return f"{op}_dpp v{x}, v{x}, v{x} {m} row_mask:0xf bank_mask:0xf"
def allreduce32(x, t, op):
    for m in DPP8 + ("row_mirror",): A(dpp(op, x, m))
    A(f"v_mov_b32 v{t}, v{x}\nv_permlane16_swap_b32 v{x}, v{t}\n{op} v{x}, v{x}, v{t}")
def bf16round(dst, src):
    A(f"v_cvt_pk_bf16_f32 v{dst}, v{src}, v{src}\nv_and_b32 v{dst}, 0xffff0000, v{dst}")
def retry_check(lbl):
    A(f"s_add_u32 s{sRETRY}, s{sRETRY}, 1\ns_cmp_gt_u32 s{sRETRY}, 20000\ns_cbranch_scc1 L_end")
    A(f"s_cbranch_vccnz {lbl}")
def validated(issue, check, first_wait, retry_wait=0):
    lr = A.newlabel("L_rt"); lo = A.newlabel("L_ok")
    A(f"s_waitcnt vmcnt({first_wait})"); check(); A(f"s_cbranch_vccz {lo}")
    A.label(lr)
    issue(); A(f"s_waitcnt vmcnt({retry_wait})"); check()
    retry_check(lr)
    A.label(lo)
def capture(fn):
    n = len(A.ins); fn(); out = [x.text for x in A.ins[n:]]; del A.ins[n:]
    return out
def emit(l):
    for x in l: A(x)
def split(l, n): return [l[len(l)*k//n: len(l)*(k+1)//n] for k in range(n)]
def mfma32(d, a, b, c=None):
    return f"v_mfma_f32_32x32x16_bf16 {R(d,16)}, {R(a,4)}, {R(b,4)}, {R(d,16) if c is None else c}"
def var_to_rinv(v):
    bf16round(v, v)
    A(f"v_add_f32 v{v}, {f32(1e-5)}, v{v}")
    bf16round(v, v)
    A(f"v_sqrt_f32 v{v}, v{v}")
    bf16round(v, v)
    A(f"v_rcp_f32 v{v}, v{v}")

if PROF: A("s_memrealtime s[96:97]")
if PROF == 1: A("s_memtime s[94:95]")
A("s_cmp_ge_u32 s2, 256\ns_cbranch_scc1 L_exit")
for b, off in ((SX, 0), (SW, 8), (SWR, 32), (SWS, 80)):
    A(f"s_load_dwordx2 s[{b}:{b+1}], s[0:1], {off}")
A(f"""v_lshrrev_b32 v2, 6, v0
v_and_b32 v{vL}, 63, v0
s_bfe_u32 s20, s2, 0x20001
{'s_lshr_b32 s24, s2, 5' if int(opts.get('m4', 1)) else 's_bfe_u32 s24, s2, 0x30003'}
v_readfirstlane_b32 s{sW}, v2
s_lshl3_add_u32 s{sI}, s20, s24
s_and_b32 s20, s2, 1
{'s_bfe_u32 s24, s2, 0x20003' if int(opts.get('m4', 1)) else 's_lshr_b32 s24, s2, 6'}
s_lshl2_add_u32 s{sC}, s20, s24
s_lshl3_add_u32 s{sP}, s{sI}, s{sC}""")
srd(SX, 2048 * 1024)
def late_setup():
    for b, off in ((SWO, 16), (SWG, 40), (SWU, 48), (SWD, 56), (SOUT, 64)):
        A(f"s_load_dwordx2 s[{b}:{b+1}], s[0:1], {off}")
    if opts.get("gmap"):
        lo = int(opts["gmap"])
        A(f"""s_cmp_ge_u32 s{sP}, {lo}
s_cselect_b32 s26, 80, 16
s_sub_u32 s{sGU}, s{sP}, s26
s_sub_u32 s26, s{sP}, {lo}
s_cmp_lt_u32 s26, 64
s_cselect_b32 s{sGU}, 255, s{sGU}""")
    else:
        A(f"s_sub_u32 s{sGU}, s{sP}, {GOFF}")
    A(f"""s_cmp_ge_u32 s{sW}, 4
s_cselect_b32 s26, {DNL}, {43-DNL}
s_cselect_b32 s24, 0, {DNL}
s_add_u32 s{sDI}, s{sP}, s24
s_cmp_lt_u32 s{sP}, s26
s_cselect_b32 s{sDI}, s{sDI}, 255
s_mov_b32 s{sRETRY}, 0""")
    if PROF:
        A(f"v_mov_b32 v{vTS}, 0\nv_writelane_b32 v{vTS}, s96, 63")
A(f"s_cmp_ge_u32 s{sW}, 4\ns_cbranch_scc1 L_lwave")
srd(SWR, 1024)
A(f"""v_and_b32 v2, 31, v{vL}
v_lshlrev_b32 v{vSA}, 4, v2
v_lshrrev_b32 v3, 5, v{vL}
v_lshl_add_u32 v4, v3, 10, v{vSA}
s_lshl2_add_u32 s20, s{sP}, s{sW}
s_lshl_b32 s20, s20, 1
s_lshl_b32 s21, s20, 10
s_waitcnt lgkmcnt(0)
buffer_load_dwordx4 v[8:11], v4, {SR(SX)}, s21 offen
buffer_load_dwordx4 v[12:15], v4, {SR(SX)}, s21 offen offset:512
buffer_load_dwordx4 v[16:19], v{vSA}, {SR(SWR)}, 0 offen
buffer_load_dwordx4 v[20:23], v{vSA}, {SR(SWR)}, 0 offen offset:512
""")
A("s_branch L_cwave")

def frag_addrs():
    A(f"""v_and_b32 v2, 31, v{vL}
v_lshrrev_b32 v3, 5, v{vL}
v_bfe_u32 v4, v2, 1, 3
v_xor_b32 v4, v4, v3
v_lshlrev_b32 v4, 4, v4
v_lshl_add_u32 v4, v2, 7, v4
v_add_u32 v{vXA}, s28, v4
v_xor_b32 v{vXA+1}, 32, v{vXA}
v_xor_b32 v{vXA+2}, 64, v{vXA}
v_xor_b32 v{vXA+3}, 96, v{vXA}
v_bfe_u32 v4, v{vL}, 2, 2
v_lshlrev_b32 v4, 7, v4
v_lshl_add_u32 v4, v3, 11, v4
v_bfe_u32 v5, v{vL}, 3, 1
v_lshl_add_u32 v4, v5, 6, v4
v_bfe_u32 v5, v{vL}, 4, 1
v_lshl_add_u32 v4, v5, 5, v4
v_and_b32 v5, 3, v{vL}
v_lshl_add_u32 v{vGA}, v5, 3, v4
s_lshl_b32 s20, s{sCT}, 6
v_xor_b32 v4, s20, v{vGA}
v_add_u32 v{vWA0}, s29, v4
v_add_u32 v{vWA1}, {3*16384}, v{vWA0}
v_lshrrev_b32 v4, 4, v{vL}
v_xor_b32 v4, v4, v{vL}
v_and_b32 v4, 1, v4
v_add_u32 v4, -1, v4
v_and_b32 v{SEL}, 0x3f803f80, v4
v_mov_b32 v{SEL+1}, v{SEL}
v_mov_b32 v{SEL+2}, v{SEL}
v_mov_b32 v{SEL+3}, v{SEL}""")
    for r in range(4): A(f"v_mov_b32 v{CS+r}, 0")
def wa(slot, off):
    return (vWA0, slot * 16384 + off) if slot < 3 else (vWA1, (slot - 3) * 16384 + off)
def csum_mfma(wf): return f"v_mfma_f32_16x16x32_bf16 {R(CS,4)}, {R(SEL,4)}, {R(wf,4)}, {R(CS,4)}"
def corr_w(dst):
    A(f"""s_mov_b32 s20, 0xffff0000
s_mov_b32 s21, 0xffff0000
v_cndmask_b32_e64 v2, v{CS}, v{CS+1}, s[20:21]
v_mul_f32 v2, 0.5, v2""")
    bf16round(3, 2)
    A("v_sub_f32 v2, v2, v3")
    bf16round(4, 2)
    A(f"""v_sub_f32 v2, v2, v4
v_cvt_pk_bf16_f32 v{dst}, v3, v4
v_cvt_pk_bf16_f32 v{dst+1}, v2, 0""")
def corr_x(dst, m):
    A(f"""v_cvt_pk_bf16_f32 v{dst}, -v{m}, -v{m}
v_cvt_pk_bf16_f32 v{dst+1}, -v{m}, 0
v_mov_b32 v{dst+2}, 0
v_mov_b32 v{dst+3}, 0""")
def Kf(k): return SL + 12 * k
def Vf(k, g): return SL + 12 * k + 4 + 4 * g
def attn_setup_s():
    A(f"""s_sub_u32 s20, 3, s{sROLE}
s_cmp_eq_u32 s{sROLE}, 0
s_cselect_b32 s21, 4, 1
s_sub_u32 s22, s{sI}, s20
s_lshl_b32 s22, s22, 3
s_add_u32 s22, s22, s{sC}
s_cmp_ge_u32 s{sI}, s20
s_cselect_b32 s{sH1}, -1, 0
s_cselect_b32 s22, s22, 0x10000
s_sub_u32 s23, s{sI}, s21
s_lshl_b32 s23, s23, 3
s_add_u32 s23, s23, s{sC}
s_cmp_ge_u32 s{sI}, s21
s_cselect_b32 s{sH2}, -1, 0
s_cselect_b32 s23, s23, 0x10000
s_lshl_b32 s{sRB}, s22, 14
s_add_u32 s{sRB}, s{sRB}, {WS_KV}
s_add_u32 s{sRB+1}, s{sRB}, 4096
s_lshl_b32 s{sRB+2}, s23, 14
s_add_u32 s{sRB+2}, s{sRB+2}, {WS_KV}
s_add_u32 s{sRB+3}, s{sRB+2}, 4096
s_lshl_b32 s{sRB+4}, s22, 12
s_add_u32 s{sRB+4}, s{sRB+4}, {WS_KVC}
s_lshl_b32 s{sRB+5}, s23, 12
s_add_u32 s{sRB+5}, s{sRB+5}, {WS_KVC}
s_lshl_b32 s{sWOD}, s{sW}, 16
s_and_b32 s20, s{sC}, 3
s_lshl_b32 s20, s20, 8
s_add_u32 s{sWOD}, s{sWOD}, s20
s_xor_b32 s{sM0}, s{sW}, 4
s_lshl_b32 s{sM0}, s{sM0}, 14
s_mov_b32 s{sWB}, s{sI}
s_add_u32 s{sWE}, s{sI}, 4
s_lshl_b32 s{sQK}, s{sI}, 1
s_lshr_b32 s21, s{sC}, 2
s_add_u32 s{sQK}, s{sQK}, s21
s_lshl_b32 s{sOUTO}, s{sQK}, 15
s_add_u32 s{sOUTO}, s{sOUTO}, s20
s_lshl_b32 s20, s{sHH}, 6
s_add_u32 s{sOUTO}, s{sOUTO}, s20""")
    srd(SWD, 0 if opts.get('nogw') else 1376 * 1024); srd(SOUT, 2048 * 1024); srd(SWO, 0 if opts.get('nowo') else 512 * 1024); srd(SWS, WS_SIZE)
def attn_setup_v():
    A(f"""s_lshl_b32 s20, s{sHH}, 10
v_lshlrev_b32 v{vRK}, 4, v{vL}
s_lshl_b32 s21, s{sW}, 12
s_add_u32 s21, s21, {L_TAIL}
v_add_u32 v{vEX}, s21, v{vRK}
v_add_u32 v{vRK}, s20, v{vRK}
v_lshrrev_b32 v{vRKC}, 1, v{vRK}
v_add_u32 v{vRV}, 8192, v{vRK}
v_lshrrev_b32 v2, 4, v{vL}
v_and_b32 v3, 15, v{vL}
v_lshlrev_b32 v4, 2, v2
v_xor_b32 v3, v3, v4
v_lshlrev_b32 v3, 4, v3
v_lshl_add_u32 v{vWO}, v2, 10, v3
v_add_u32 v{vWO+1}, 3072, v{vWO}
v_add_u32 v{vWO+2}, 6144, v{vWO}
v_add_u32 v{vWO+3}, 9216, v{vWO}
v_and_b32 v3, 31, v{vL}
v_lshrrev_b32 v4, 5, v{vL}
v_lshlrev_b32 v{vOUT}, 10, v3
v_lshl_add_u32 v{vOUT}, v4, 4, v{vOUT}
v_mul_u32_u24 v4, {1408*8}, v4
v_lshl_add_u32 v255, v3, 3, v4
v_mov_b32 v{vM0}, 0
v_mov_b32 v{vM1}, 0""")
def mk_setup():
    A(f"""v_and_b32 v2, 31, v{vL}
v_lshrrev_b32 v3, 5, v{vL}
v_lshlrev_b32 v3, 2, v3
v_sub_u32 v2, v2, v3
v_mov_b32 v192, -1
v_mov_b32 v193, -1""")
    for k in range(8):
        j0 = 8 * (k // 2) + 2 * (k % 2)
        A(f"""v_add_u32 v3, {1 - j0}, v2
v_med3_i32 v3, v3, 0, 2
v_lshlrev_b32 v3, 4, v3
v_lshlrev_b64 v[194:195], v3, v[192:193]
v_mov_b32 v{MK+k}, v194""")
def v_prefill(n):
    A(f"v_mov_b32 v{Vf(0,1)}, 0x3f803f80")
    for k in range(n):
        for r in range(4):
            if k or r: A(f"v_mov_b32 v{Vf(k,1)+r}, v{Vf(0,1)}")
def k_issue():
    for k in range(4):
        A(f"buffer_load_dwordx4 {R(Kf(k),4)}, v{vRK}, {SR(SWS)}, s{sRB+k} offen sc1")
    for p in range(2):
        A(f"buffer_load_dwordx2 {R(KC+2*p,2)}, v{vRKC}, {SR(SWS)}, s{sRB+4+p} offen sc1")
def v_issue():
    for k in range(4):
        A(f"buffer_load_dwordx4 {R(Vf(k,0),4)}, v{vRV}, {SR(SWS)}, s{sRB+k} offen sc1")
    for p in range(2):
        A(f"buffer_load_dwordx2 {R(VC+2*p,2)}, v{vRKC}, {SR(SWS)}, s{sRB+4+p} offen offset:2048 sc1")

A.label("L_lwave")
srd(SW, 512 * 3072)
A(f"""s_add_u32 s20, s{sC}, s{sI}
s_and_b32 s20, s20, 3
s_lshl_b32 s{sROT}, s20, 1
s_sub_u32 s{sHH}, s{sW}, 4
v_lshrrev_b32 v2, 3, v{vL}
v_and_b32 v3, 7, v{vL}
v_lshrrev_b32 v4, 1, v2
v_xor_b32 v5, v3, v4
v_lshlrev_b32 v5, 4, v5
v_lshl_add_u32 v{vX0}, v2, 10, v5
v_xor_b32 v5, 64, v5
v_lshl_add_u32 v{vX1}, v2, 10, v5
v_add_u32 v{vX1}, {8192-1024}, v{vX1}
v_and_b32 v4, 1, v4
v_lshlrev_b32 v4, 2, v4
v_xor_b32 v5, v3, v4
v_lshlrev_b32 v84, 4, v5
v_mul_u32_u24 v{vW0}, 3072, v2
v_add_u32 v{vW0}, v{vW0}, v84
v_add_u32 v{vW1}, {24576-2048}, v{vW0}
s_lshl_b32 s{sXO}, s{sI}, 16
s_lshl_b32 s20, s{sHH}, 14
s_add_u32 s{sXO}, s{sXO}, s20
s_lshl_b32 s{sWOFF}, s{sC}, 7
s_mul_i32 s20, s{sHH}, {16*3072}
s_add_u32 s{sWOFF}, s{sWOFF}, s20
s_lshl_b32 s31, s{sHH}, 11
s_lshl_b32 s32, s{sHH}, 12
s_waitcnt lgkmcnt(0)""")
if PROF == 1: A("s_memtime s[92:93]")
XOF = {u: [u] for u in range(8)}
def issue_unit(u):
    slot = slot_of(u)
    for t in XOF.get(u, []):
        A(f"""s_add_u32 s33, s{sROT}, {t}
s_and_b32 s33, s33, 7
s_lshl_b32 s34, s33, 7
s_add_u32 m0, s31, {L_X + t*8192}
s_add_u32 s34, s34, s{sXO}
buffer_load_dwordx4 v{vX0}, {SR(SX)}, s34 offen lds
buffer_load_dwordx4 v{vX1}, {SR(SX)}, s34 offen offset:1024 lds""")
    if u < 8:
        A(f"""s_add_u32 s33, s{sROT}, {u}
s_and_b32 s33, s33, 7
s_mul_i32 s35, s33, {64*3072}
s_add_u32 s35, s35, s{sWOFF}
s_add_u32 m0, s32, {L_RING + slot*16384}
s_add_u32 s35, s35, 1024
buffer_load_dwordx4 v{vW0}, {SR(SW)}, s35 offen lds
buffer_load_dwordx4 v{vW0}, {SR(SW)}, s35 offen offset:1024 lds
buffer_load_dwordx4 v{vW1}, {SR(SW)}, s35 offen offset:2048 lds
buffer_load_dwordx4 v{vW1}, {SR(SW)}, s35 offen offset:3072 lds""")
    else:
        for e in range(2):
            A(f"""s_add_u32 s33, s{sROT}, {2*(u-8)+e}
s_and_b32 s33, s33, 7
s_mul_i32 s35, s33, {64*3072}
s_add_u32 m0, s32, {L_RING + slot*16384 + e*1024}
s_add_u32 s35, s35, s{sWOFF}
buffer_load_dwordx4 v{vW0}, {SR(SW)}, s35 offen lds
buffer_load_dwordx4 v{vW1}, {SR(SW)}, s35 offen offset:2048 lds""")
def ucount(u): return 4 + 2 * len(XOF.get(u, []))
def lgw_issue():
    srd(SWG, 512 * 2752); srd(SWU, 512 * 2752)
    A(f"""v_lshrrev_b32 v2, 3, v{vL}
v_mul_u32_u24 v3, 2752, v2
v_and_b32 v4, 7, v{vL}
v_lshl_add_u32 v86, v4, 4, v3
s_and_b32 s33, s{sP}, 7
s_lshl_b32 s33, s33, 6
s_lshl_b32 s34, s{sHH}, 4
s_add_u32 s33, s33, s34
s_mul_i32 s33, s33, 2752
s_lshr_b32 s34, s{sGU}, 3
s_lshl_b32 s34, s34, 7
s_add_u32 s33, s33, s34
s_cmp_ge_u32 s{sGU}, 176
s_cselect_b32 s33, 0x40000000, s33
s_add_u32 s34, s33, {8*2752}
buffer_load_dwordx4 {R(GW,4)}, v86, {SR(SWG)}, s33 offen
buffer_load_dwordx4 {R(GW+4,4)}, v86, {SR(SWU)}, s33 offen
buffer_load_dwordx4 {R(GW+8,4)}, v86, {SR(SWG)}, s34 offen
buffer_load_dwordx4 {R(GW+12,4)}, v86, {SR(SWU)}, s34 offen""")
ops = []
for u in range(DEPTH):
    issue_unit(u); ops += [u] * ucount(u)
    if u == 0 and not opts.get("nocpf"):
        A(f"""s_getpc_b64 s[22:23]
s_lshr_b32 s20, s2, 3
s_lshl2_add_u32 s20, s20, s{sHH}
s_lshl_b32 s20, s20, 8
s_min_u32 s20, s20, CODE_PF_MAX
s_add_u32 s22, s22, s20
s_addc_u32 s23, s23, 0""")
        for o_ in (0, 64, 128, 192): A(f"s_load_dword s100, s[22:23], {o_}")
late_setup()
if PROF == 1: A(f"s_waitcnt lgkmcnt(0)\nv_writelane_b32 v{vTS}, s94, 0\nv_writelane_b32 v{vTS}, s92, 48")
TS(1)
SA = 112
A(f"""s_and_b32 s{sCT}, s{sHH}, 1
s_lshr_b32 s28, s{sHH}, 1
s_lshl_b32 s28, s28, 12
s_mov_b32 s29, {L_RING}
s_mov_b32 s{sROLE}, 0
v_lshlrev_b32 v85, 4, v{vL}
s_lshl_b32 s30, s{sI}, 10
s_add_u32 s30, s30, {WS_STATS}
s_cmp_lg_u32 s{sHH}, 0
s_cselect_b32 s30, 0x40000000, s30
s_mov_b32 s36, {WS_BEST}
s_cmp_lg_u32 s{sHH}, 1
s_cselect_b32 s36, 0x40000000, s36""")
A(f"""s_lshl2_add_u32 s20, s{sHH}, {L_QRDY}
v_mov_b32 v198, s20
v_mov_b32 v199, {L_QRDY}
v_mov_b32 v2, 0
ds_write_b32 v198, v2""")
attn_setup_s()
def sib_issue(): A(f"buffer_load_dwordx4 {R(SA,4)}, v85, {SR(SWS)}, s30 offen sc1")
lp = split(capture(lambda: (frag_addrs(), attn_setup_v(), v_prefill(6), mk_setup())), 6)
lpieces = {0: lp[0], 1: lp[1], 2: lp[2], 3: lp[3], 4: lp[4], 5: lp[5]}
def younger_than(tag): return len(ops) - 1 - max(k for k, x in enumerate(ops) if x == tag)
issued = DEPTH
for u in range(8):
    TSL(32 + u)
    A(f"s_waitcnt vmcnt({younger_than(u)})")
    TSL(16 + u)
    A("s_barrier")
    TSL(24 + u)
    if u == SIBU:
        sib_issue(); ops.append("sib")
    tgt = min(12, u + 1 + DEPTH + max(0, u - 1 - DEPTH), u + 5)
    while issued < tgt:
        issue_unit(issued); ops += [issued] * ucount(issued)
        if issued == LGW: lgw_issue(); ops += ['gw'] * 4
        issued += 1
    if u == 5: A(f"v_mov_b32 v122, {L_NONCE}\nds_read_b32 v123, v122")
    emit(lpieces.get(u, []))
    if u == 6:
        lb = A.newlabel("L_nsib")
        A(f"""s_waitcnt lgkmcnt(0)
v_readfirstlane_b32 s{sNONCE}, v123
s_cmp_lg_u32 s{sHH}, 0
s_cbranch_scc1 {lb}""")
        validated(sib_issue, lambda: A(f"v_cmp_ne_u32 vcc, s{sNONCE}, v{SA+3}"), younger_than("sib"))
        A(f"""v_lshrrev_b32 v122, 1, v85
v_lshrrev_b32 v123, 2, v85
v_add_u32 v122, {L_STAT}, v122
v_add_u32 v123, {L_RINV}, v123
ds_write_b64 v122, {R(SA,2)}
ds_write_b32 v123, v{SA+1}
s_waitcnt lgkmcnt(0)""")
        A.label(lb)
assert issued == 12, issued
TS(2)
LST, LSC, LCX, LCW = 116, 118, 120, 124
for r in range(16): A(f"v_mov_b32 v{ACC+r}, 0")
A(f"""v_and_b32 v2, 31, v{vL}
v_lshlrev_b32 v2, 3, v2
s_lshr_b32 s20, s28, 4
s_add_u32 s20, s20, {L_STAT}
v_add_u32 v2, s20, v2
ds_read_b64 {R(LST,2)}, v2
s_waitcnt lgkmcnt(0)""")
corr_x(LCX, LST)
A(f"""v_mul_f32 v{LSC}, {f32(0.25*LOG2E)}, v{LST+1}
v_mov_b32 v{LCW+2}, 0
v_mov_b32 v{LCW+3}, 0
s_lshl_b32 s30, s{sHH}, 11
s_add_u32 s30, s30, {L_QF}
v_lshlrev_b32 v5, 4, v{vL}
v_add_u32 v5, s30, v5""")
Q2 = 192
A(f"""s_lshl_b32 s20, s28, 1
s_lshr_b32 s21, s28, 2
s_xor_b32 s22, s20, 8192
s_xor_b32 s23, s21, 1024""")
for st in range(4): A(f"v_add_u32 v{Q2+st}, s22, v{vXA+st}\nv_add_u32 v{vXA+st}, s20, v{vXA+st}")
A(f"""v_add_u32 v{Q2+4}, s23, v{vWA0}
v_add_u32 v{Q2+5}, s23, v{vWA1}
v_add_u32 v{vWA0}, s21, v{vWA0}
v_add_u32 v{vWA1}, s21, v{vWA1}
s_lshl_b32 s22, s{sHH}, 8
s_add_u32 s22, s22, {L_CSX}
v_lshl_add_u32 v86, v{vL}, 2, s22
v_xor_b32 v87, 512, v86
s_mov_b32 s20, 0xffff0000
s_mov_b32 s21, 0xffff0000""")
QORD = [(0, 0), (1, 0), (2, 0), (0, 1), (1, 1), (3, 0), (2, 1), (3, 1)]
def q_reads(n):
    m, oth = QORD[n // 4]; st = n % 4; b = STB + 8 * (n % 8)
    out = [f"ds_read_b128 {R(b,4)}, v{(Q2 if oth else vXA)+st} offset:{m*16384}"]
    for j in range(2):
        r, o = wa(slot_of(8 + m), st * 4096 + j * 512)
        if oth: r = Q2 + 4 + (r - vWA0)
        out.append(f"ds_read_b64_tr_b16 {R(b+4+2*j,2)}, v{r} offset:{o}")
    return out
def rendezvous(level):
    lr = A.newlabel("L_qr")
    A.label(lr)
    A(f"""ds_read_b128 {R(220,4)}, v199
s_waitcnt lgkmcnt(0)
v_min3_u32 v3, v220, v221, v222
v_min_u32 v3, v3, v223
v_cmp_gt_u32 vcc, {level}, v3""")
    retry_check(lr)
A("v_mov_b32 v218, 1\nv_mov_b32 v219, 2\ns_waitcnt vmcnt(4)\nds_write_b32 v198, v218")
rendezvous(1)
TS(3)
QB9 = int(opts.get("qb9", 25))
lq = []
def lds(tag, txt): A(txt); lq.append(tag)
def lwait(tag): A(f"s_waitcnt lgkmcnt({min(15, len(lq) - 1 - max(k for k, x in enumerate(lq) if x == tag))})")
for n in range(4):
    for x in q_reads(n): lds(n, x)
cwl = capture(lambda: corr_w(LCW))[3:]
for n in range(32):
    lwait(n)
    b = STB + 8 * (n % 8)
    if not QORD[n // 4][1]: A(csum_mfma(b + 4))
    A(mfma32(ACC, b + 4, b))
    if n == 10:
        A("s_waitcnt vmcnt(0)"); lds("fl", "ds_write_b32 v198, v219")
    if n == 16: rendezvous(2)
    if n + 4 < 32:
        for x in q_reads(n + 4): lds(n + 4, x)
    if n == 24:
        A(f"v_cndmask_b32_e64 v2, v{CS}, v{CS+1}, s[20:21]")
        lds("cs", "ds_write_b32 v86, v2")
    if n == QB9:
        lwait("cs")
        A("s_barrier")
        lds("cp", "ds_read_b32 v4, v87")
    if n == 30:
        lwait("cp"); A("v_add_f32 v2, v2, v4"); emit(cwl[:4])
    if n == 31: emit(cwl[4:])
TS(4)
A(mfma32(ACC, LCW, LCX))
for r in range(16): A(f"v_mul_f32 v{ACC+r}, v{ACC+r}, v{LSC}")
for k in range(8): A(f"v_cvt_pk_bf16_f32 v{STB+k}, v{ACC+2*k}, v{ACC+2*k+1}")
A(f"ds_write_b128 v5, {R(STB,4)}\nds_write_b128 v5, {R(STB+4,4)} offset:1024")
TS(50)
A("s_branch L_join")

A.label("L_cwave")
A(f"s_load_dword s{sNONCE}, s[{SWS}:{SWS+1}], {WS_EPOCH}")
late_setup()
if PROF == 1: A(f"v_writelane_b32 v{vTS}, s94, 0")
srd(SWG, 512 * 2752); srd(SWU, 512 * 2752)
A(f"v_mov_b32 v{vZ}, 0\nv_add_u32 v62, s20, v3")
A(f"""s_and_b32 s{sCT}, s{sW}, 1
s_mov_b32 s28, 0
s_lshr_b32 s29, s{sW}, 1
s_lshl_b32 s29, s29, 10
s_add_u32 s29, s29, {L_RING}
s_mov_b32 s{sHH}, s{sW}
s_mov_b32 s{sROLE}, 1
v_lshlrev_b32 v{vBA}, 4, v{vL}
s_lshl_b32 s35, s{sW}, 10
s_add_u32 s35, s35, {WS_BEST}
s_lshl_b32 s33, s{sP}, 14
s_add_u32 s33, s33, {WS_KV}
s_add_u32 s36, s33, 4096
s_lshl_b32 s34, s{sP}, 12
s_add_u32 s34, s34, {WS_KVC}""")
frag_addrs()
srd(SWS, WS_SIZE)
A(f"""v_lshrrev_b32 v2, 3, v{vL}
v_mul_u32_u24 v3, 2752, v2
v_and_b32 v4, 7, v{vL}
v_lshl_add_u32 v5, v4, 4, v3
s_and_b32 s31, s{sP}, 7
s_lshl_b32 s31, s31, 6
s_lshl_b32 s32, s{sW}, 4
s_add_u32 s31, s31, s32
s_mul_i32 s31, s31, 2752
s_lshr_b32 s32, s{sGU}, 3
s_lshl_b32 s32, s32, 7
s_add_u32 s31, s31, s32
s_cmp_ge_u32 s{sGU}, {0 if (opts.get("nogw") or LGW >= 0) else 176}
s_cselect_b32 s31, 0x40000000, s31
s_add_u32 s32, s31, {8*2752}""")
def gw_issue():
    A(f"""buffer_load_dwordx4 {R(GW,4)}, v5, {SR(SWG)}, s31 offen
buffer_load_dwordx4 {R(GW+4,4)}, v5, {SR(SWU)}, s31 offen
buffer_load_dwordx4 {R(GW+8,4)}, v5, {SR(SWG)}, s32 offen
buffer_load_dwordx4 {R(GW+12,4)}, v5, {SR(SWU)}, s32 offen""")
if int(opts.get("d2", 1)):
    A(f"""v_mov_b32 v40, 0
v_mov_b32 v41, 0
v_mov_b32 v42, 0
v_mov_b32 v43, 0
v_mov_b32 v48, 0x3f803f80
v_sub_u32 v47, 2047, v62
v_and_b32 v46, 7, v62
v_lshlrev_b32 v46, 4, v46
v_add_u32 v46, {L_RT}, v46
s_mov_b32 s26, 0xffff0000""")
    PREW = int(opts.get("prew", 0))
    def prewrite():
        A(f"""s_lshl_b32 s20, s{sW}, 12
s_add_u32 s21, s33, s20
s_lshl_b32 s22, s{sW}, 10
s_add_u32 s22, s34, s22
s_lshl_b32 s23, s{sI}, 4
s_add_u32 s23, s23, s{sC}
s_and_b32 s24, s{sW}, 1
s_lshl_b32 s24, s24, 3
s_add_u32 s23, s23, s24
s_lshl_b32 s24, s23, 12
s_lshr_b32 s25, s{sW}, 1
s_lshl_b32 s25, s25, 11
s_add_u32 s24, s24, s25
s_add_u32 s24, s24, {WS_O}
s_lshl_b32 s23, s23, 10
s_add_u32 s23, s23, {WS_OC}""")
        if PREW & 1:
            for k in range(4): A(f"buffer_store_dwordx4 {R(ACC,4)}, v{vBA}, {SR(SWS)}, s21 offen offset:{k*1024} sc1")
            A(f"buffer_store_dwordx4 {R(ACC,4)}, v{vBA}, {SR(SWS)}, s22 offen sc1")
        if PREW & 2:
            for k in range(2): A(f"buffer_store_dwordx4 {R(ACC,4)}, v{vBA}, {SR(SWS)}, s24 offen offset:{k*1024} sc1")
            A(f"buffer_store_dwordx4 {R(ACC,4)}, v{vBA}, {SR(SWS)}, s23 offen sc1")
    NPW = (5 if PREW & 1 else 0) + (3 if PREW & 2 else 0)
    if PREW: prewrite()
    A(f"s_waitcnt vmcnt({2 + NPW})")
    TS(1)
    if int(opts.get("np1", 0)): A(f"s_lshl_b32 s24, s{sW}, 8\nbuffer_load_dword v60, v{vZ}, {SR(SDBG)}, s24 offen sc1")
    for k in range(8): A(f"v_dot2_f32_bf16 v40, v{8+k}, v48, v40\nv_dot2_f32_bf16 v41, v{8+k}, v{8+k}, v41")
    A("s_waitcnt vmcnt(%d)" % NPW)
    for k in range(8): A(f"v_dot2_f32_bf16 v42, v{8+k}, v{16+k}, v42\nv_dot2_f32_bf16 v43, v{16+k}, v48, v43")
    for m in DPP8 + ("row_mirror",):
        for r in range(4): A(dpp("v_add_f32", 40 + r, m))
    for r in range(4): A(f"v_mov_b32 v{24+r}, v{40+r}")
    for r in range(4): A(f"v_permlane16_swap_b32 v{40+r}, v{24+r}")
    for r in range(4): A(f"v_add_f32 v{40+r}, v{40+r}, v{24+r}")
    A(f"""v_mul_f32 v40, {f32(1.0/512)}, v40
v_mul_f32 v41, {f32(1.0/512)}, v41
v_fma_f32 v41, -v40, v40, v41
v_max_f32 v41, 0, v41""")
    bf16round(40, 40)
    A("v_fma_f32 v42, -v40, v43, v42")
    var_to_rinv(41)
    A("v_mul_f32 v42, v42, v41")
    bf16round(42, 42)
    A(f"""v_ashrrev_i32 v45, 31, v42
v_or_b32 v45, 0x80000000, v45
v_xor_b32 v42, v42, v45
v_and_or_b32 v42, v42, s26, v47
ds_write_b96 v46, v[40:42]""")
else:
    A("s_waitcnt vmcnt(2)")
    TS(1)
    XU = 24
    for k in range(8):
        A(f"v_lshlrev_b32 v{XU+2*k}, 16, v{8+k}\nv_and_b32 v{XU+2*k+1}, 0xffff0000, v{8+k}")
    A(f"v_pk_add_f32 v[40:41], {R(XU,2)}, {R(XU+2,2)}")
    for k in range(4, 16, 2): A(f"v_pk_add_f32 v[40:41], v[40:41], {R(XU+k,2)}")
    A("v_add_f32 v40, v40, v41")
    allreduce32(40, 41, "v_add_f32")
    A(f"v_mul_f32 v40, {f32(-1.0/512)}, v40")
    A("v_cvt_pk_bf16_f32 v42, -v40, -v40\nv_and_b32 v42, 0xffff0000, v42")
    A(f"v_pk_add_f32 v[46:47], {R(XU,2)}, v[40:41] op_sel_hi:[1,0]\nv_pk_mul_f32 v[44:45], v[46:47], v[46:47]")
    for k in range(2, 16, 2):
        A(f"v_pk_add_f32 v[46:47], {R(XU+k,2)}, v[40:41] op_sel_hi:[1,0]\nv_pk_fma_f32 v[44:45], v[46:47], v[46:47], v[44:45]")
    A("v_add_f32 v43, v44, v45")
    allreduce32(43, 41, "v_add_f32")
    for k in range(0, 16, 2): A(f"v_pk_add_f32 {R(XU+k,2)}, {R(XU+k,2)}, v[42:43] op_sel_hi:[1,0] neg_lo:[0,1] neg_hi:[0,1]")
    A(f"v_mul_f32 v43, {f32(1.0/512)}, v43")
    for k in range(8): A(f"v_cvt_pk_bf16_f32 v{8+k}, v{XU+2*k}, v{XU+2*k+1}")
    var_to_rinv(43)
    for k in range(8):
        A(f"v_lshlrev_b32 v{XU+2*k}, 16, v{8+k}\nv_and_b32 v{XU+2*k+1}, 0xffff0000, v{8+k}")
    for k in range(0, 16, 2): A(f"v_pk_mul_f32 {R(XU+k,2)}, {R(XU+k,2)}, v[42:43] op_sel:[0,1]")
    for k in range(8): A(f"v_cvt_pk_bf16_f32 v{8+k}, v{XU+2*k}, v{XU+2*k+1}")
    A("v_mov_b32 v44, 0\ns_waitcnt vmcnt(0)")
    for k in range(8): A(f"v_dot2_f32_bf16 v44, v{8+k}, v{16+k}, v44")
    allreduce32(44, 41, "v_add_f32")
    bf16round(44, 44)
    A(f"""v_ashrrev_i32 v45, 31, v44
v_or_b32 v45, 0x80000000, v45
v_xor_b32 v44, v44, v45
v_and_b32 v44, 0xffff0000, v44
v_sub_u32 v45, 2047, v62
v_or_b32 v44, v44, v45
v_and_b32 v46, 7, v62
v_lshlrev_b32 v46, 4, v46
v_add_u32 v46, {L_RT}, v46
ds_write_b96 v46, v[42:44]
""")
A(f"""s_waitcnt lgkmcnt(0)
s_add_u32 s{sNONCE}, s{sNONCE}, 1""")
A(f"v_mov_b32 v44, s{sNONCE}\nv_mov_b32 v45, {L_NONCE}\nds_write_b32 v45, v44")
if PWS:
    A(f"""v_mov_b32 v43, s{sNONCE}
v_lshlrev_b32 v44, 4, v62
s_mov_b32 s24, 1
s_mov_b32 s25, 1
s_mov_b32 s27, {WS_STATS}""")
    PUBG = f"s_mov_b64 exec, s[24:25]\nbuffer_store_dwordx4 v[40:43], v44, {SR(SWS)}, s27 offen sc1\ns_mov_b64 exec, -1"
    F0 = int(opts.get("f0", 2))
    if not (F0 & 1): A(PUBG)
A(f"""s_setprio {int(opts.get("prio", 2))}""")
if GWP == 2 and not (F0 & 2): gw_issue()
A('v_mov_b32 v54, v5')
TS(2)
A("s_waitcnt lgkmcnt(0)")
A(f"s_cmp_ge_u32 s{sW}, 2\ns_cbranch_scc1 L_vwave")

def kv_reads(n):
    u = n // 4; st = n % 4; b = STB + 12 * (n % 6)
    out = [f"ds_read_b128 {R(b+4*qb,4)}, v{vXA+st} offset:{u*8192 + qb*4096}" for qb in range(2)]
    for j in range(2):
        r, o = wa(slot_of(u), st * 4096 + j * 512)
        out.append(f"ds_read_b64_tr_b16 {R(b+8+2*j,2)}, v{r} offset:{o}")
    return out
def kv_mm(n, isK, cs=True):
    b = STB + 12 * (n % 6)
    out = [csum_mfma(b + 8)] if cs else []
    for qb in range(2):
        c0 = 0 if n == 0 else None
        out.append(mfma32(ACC + 16 * qb, b + 8, b + 4 * qb, c0) if isK else mfma32(ACC + 16 * qb, b + 4 * qb, b + 8, c0))
    return out
def kv_interval(u, isK, fill=(), post_reads=()):
    rd = [x for n in range(4 * u, 4 * u + 4) for x in kv_reads(n)]
    old = [x for n in (4 * u - 2, 4 * u - 1) if n >= 0 for x in kv_mm(n, isK)]
    fill = list(fill)
    per = (len(fill) + 5) // 6
    emit(rd[:4])
    rest = rd[4:]
    for m in old:
        A(m); emit(rest[:2]); rest = rest[2:]
    emit(rest)
    for k, n in enumerate((4 * u, 4 * u + 1)):
        A(f"s_waitcnt lgkmcnt({12 - 4*k})")
        for m in kv_mm(n, isK):
            A(m); emit(fill[:per]); fill = fill[per:]
    emit(fill)
    emit(post_reads)
    A("s_waitcnt lgkmcnt(0)")
BT = 68
def best_issue(): A(f"buffer_load_dwordx4 {R(BT,4)}, v{vBA}, {SR(SWS)}, s35 offen sc1")
def nonce_issue(): A(f"buffer_load_dword v60, v{vZ}, {SR(SDBG)}, 0 offen sc1")
CX0, CX1, CW = 40, 44, 56
def publish():
    lb = A.newlabel("L_np")
    A(f"s_cmp_lg_u32 s{sW}, 0\ns_cbranch_scc1 {lb}")
    A(f"""v_mov_b32 v51, s{sNONCE}
s_lshl_b32 s20, s{sP}, 4
s_add_u32 s20, s20, {WS_BEST}
s_lshl_b32 s21, s{sP}, 7
s_add_u32 s21, s21, {WS_STATS}
s_mov_b64 exec, 0xff""")
    if not PWS: A(f"buffer_store_dwordx4 v[48:51], v{vBA}, {SR(SWS)}, s21 offen sc1")
    A("v_mov_b32 v52, v50")
    for m in DPP8: A(dpp("v_max_u32", 52, m))
    A(f"""v_cmp_eq_u32 vcc, v52, v50
s_mov_b64 exec, vcc
buffer_store_dwordx4 v[48:51], v{vZ}, {SR(SWS)}, s20 offen sc1
s_mov_b64 exec, -1""")
    A.label(lb)
def cw_loop(isK):
    for u in range(8):
        TSL(16 + u)
        A("s_barrier")
        TSL(24 + u)
        fill = []; post = []
        if u == PUBU and isK:
            fill = [f"v_and_b32 v53, 0x70, v{vBA}", f"v_add_u32 v53, {L_RT}, v53"]; post = ["ds_read_b96 v[48:50], v53"]
        if u == 0: fill = fill + ([PUBG] if F0 & 1 else []) + (capture(gw_issue) if F0 & 2 else [])
        if u in (1, 2): fill = split(capture(attn_setup_s), 2)[u - 1] if False else (capture(attn_setup_s)[:25] if u == 1 else capture(attn_setup_s)[25:])
        if u == 4: fill = capture(attn_setup_v)
        if u == 3:
            fill = capture(lambda: A(f"""v_mov_b32 v{CW+2}, 0
v_mov_b32 v{CW+3}, 0
v_lshrrev_b32 v64, 1, v{vSA}
v_add_u32 v64, {L_STAT}, v64
v_mov_b32 v66, {L_NONCE}"""))
            if isK:
                fill += capture(lambda: A(f"""s_lshl_b32 s20, s{sCT}, 11
v_add_u32 v{vKA}, s20, v{vBA}
v_lshrrev_b32 v{vKC}, 1, v{vKA}"""))
            else:
                fill += capture(lambda: A(f"""v_and_b32 v2, 0x2f, v{vL}
v_bfe_u32 v3, v{vL}, 4, 1
s_lshl_b32 s20, s{sCT}, 1
v_add_u32 v3, s20, v3
v_lshlrev_b32 v{vKA}, 4, v2
v_lshl_add_u32 v{vKA}, v3, 10, v{vKA}
v_lshrrev_b32 v{vKC}, 1, v{vKA}
v_add_u32 v{vKA}, 8192, v{vKA}
v_lshrrev_b32 v65, 5, v{vL}
v_lshlrev_b32 v65, 4, v65
v_add_u32 v65, {L_RINV}, v65"""))
        if u == int(opts.get('bu', 7)): fill = fill + capture(best_issue)
        if u == 7:
            post = [f"ds_read_b64 {R(ST0,2)}, v64", f"ds_read_b64 {R(ST1,2)}, v64 offset:256"]
            if not isK:
                post += [f"ds_read_b128 {R(8+16*qb+4*a,4)}, v65 offset:{qb*128 + a*32}" for qb in range(2) for a in range(4)]
        kv_interval(u, isK, fill, post)
        TSL(32 + u)
        if u == PUBU and isK: publish()
        if GWP == 10 + u:
            A('v_mov_b32 v5, v54'); gw_issue()
    if not int(opts.get('nob8', 1)): A("s_barrier")
    TS(3)
    A(csum_mfma(STB + 12 * (30 % 6) + 8)); A(csum_mfma(STB + 12 * (31 % 6) + 8))
    mm = kv_mm(30, isK, False) + kv_mm(31, isK, False)
    A(mm[0]); corr_x(CX0, ST0)
    A(mm[1]); corr_x(CX1, ST1)
    cw = capture(lambda: corr_w(CW))
    A(mm[2]); emit(cw[:6]); A(mm[3]); emit(cw[6:])
    for qb, cx in enumerate((CX0, CX1)):
        A(mfma32(ACC + 16 * qb, CW, cx) if isK else mfma32(ACC + 16 * qb, cx, CW))
CSR = 144
def kv_store(isK):
    for qb in range(2):
        st = ST0 if qb == 0 else ST1
        for e in range(2):
            for r in range(8 * e, 8 * e + 8):
                A(f"v_mul_f32 v{ACC+16*qb+r}, v{ACC+16*qb+r}, v{st+1 if isK else 8+16*qb+r}")
            for k in range(4 * e, 4 * e + 4): A(f"v_cvt_pk_bf16_f32 v{OWN+8*qb+k}, v{ACC+16*qb+2*k}, v{ACC+16*qb+2*k+1}")
            b = OWN + 8 * qb + 4 * e; c_ = CSR + 2 * e + qb
            A(f"buffer_store_dwordx4 {R(b,4)}, v{vKA}, {SR(SWS)}, s{33 if qb == 0 else 36} offen offset:{e*(1024 if isK else 256)} sc1")
            A(f"v_add3_u32 v{c_}, v{b}, v{b+1}, v{b+2}\nv_add3_u32 v{c_}, v{c_}, v{b+3}, s{sNONCE}")
    for e in range(2):
        A(f"buffer_store_dwordx2 {R(CSR+2*e,2)}, v{vKC}, {SR(SWS)}, s34 offen offset:{e*512 if isK else 2048+e*128} sc1")

cw_loop(True); kv_store(True)
A("s_mov_b32 s39, 1024\ns_branch L_cpost")
A.label("L_vwave")
cw_loop(False); kv_store(False)
A("s_mov_b32 s39, 256")
A.label("L_cpost")
TS(4)
A("s_setprio %d" % int(opts.get("cp2", 0)))
WOW = int(opts.get("wow", 0))
if WOW:
    A(f"""s_and_b32 s20, s{sI}, 7
s_lshl_b32 s20, s20, 2
s_add_u32 s20, s20, s{sW}
s_lshl_b32 s20, s20, 14
s_and_b32 s21, s{sC}, 3
s_lshl_b32 s21, s21, 8
s_add_u32 s20, s20, s21""")
    for k in range(4): A(f"buffer_load_dwordx4 {R(176+4*k,4)}, v{vWO+k}, {SR(SWO)}, s20 offen offset:{k*1024}")
validated(best_issue, lambda: A(f"v_cmp_ne_u32 vcc, s{sNONCE}, v{BT+3}"), 6 + 4 * WOW)
A(f"v_mov_b32 v{BT+4}, v{BT+2}")
allreduce32(BT + 4, BT + 5, "v_max_u32")
A(f"""v_mov_b32 v{BT+5}, v{BT+4}
v_permlane32_swap_b32 v{BT+4}, v{BT+5}
v_max_u32 v{BT+4}, v{BT+4}, v{BT+5}
s_lshl_b32 s20, s{sW}, 4
s_add_u32 s20, s20, {L_IDX}
v_mov_b32 v2, s20
v_cmp_eq_u32 vcc, v{BT+4}, v{BT+2}
s_mov_b64 exec, vcc
ds_write_b128 v2, {R(BT,4)}
s_mov_b64 exec, -1
""")
def winner():
    A(f"v_mov_b32 v5, v{SB+2}")
    for m in DPP8[:2]: A(dpp("v_max_u32", 5, m))
    A(f"""v_cmp_eq_u32 vcc, v5, v{SB+2}
v_readfirstlane_b32 s{sKEY}, v5
s_ff1_i32_b32 s20, vcc_lo
v_readlane_b32 s{sSM}, v{SB}, s20
v_readlane_b32 s{sSR}, v{SB+1}, s20""")
A(f"""v_and_b32 v4, 3, v{vL}
v_lshlrev_b32 v4, 4, v4
v_add_u32 v4, {L_IDX}, v4
v_add_u32 v2, {L_OWN}, v{vKA}
v_add_u32 v3, s39, v2
v_and_b32 v72, 7, v{vL}
v_lshlrev_b32 v72, 2, v72
v_mov_b32 v74, v{vSA}
s_waitcnt lgkmcnt(0)
s_barrier""")
TS(48)
A(f"""ds_read_b128 {R(SB,4)}, v4
ds_write_b128 v2, {R(OWN,4)}
ds_write_b128 v3, {R(OWN+4,4)}
ds_write_b128 v2, {R(OWN+8,4)} offset:4096
ds_write_b128 v3, {R(OWN+12,4)} offset:4096
s_waitcnt lgkmcnt(4)""")
winner()
A(f"""s_and_b32 s24, s{sKEY}, 0x7ff
s_sub_u32 s24, 2047, s24
s_lshl_b32 s24, s24, 10
s_and_b32 s25, s{sP}, 7
s_lshl_b32 s25, s25, 7
s_add_u32 s24, s24, s25
s_lshl_b32 s25, s{sW}, 5
s_add_u32 s24, s24, s25
buffer_load_dword v73, v72, {SR(SX)}, s24 offen""")
A(f"""s_cmp_ge_u32 s{sC}, 4
s_cselect_b64 s[20:21], -1, 0
v_cndmask_b32_e64 v{vPM}, v{ST0}, v{ST1}, s[20:21]
v_cndmask_b32_e64 v{vPR}, v{ST0+1}, v{ST1+1}, s[20:21]
""")
A(f"""v_bfe_u32 v4, v{vL}, 4, 1
v_lshlrev_b32 v4, 6, v4
v_xor_b32 v2, v{vEX}, v4""")
if LGW < 0:
    for k in range(4): A(f"ds_write_b128 v2, {R(GW+4*k,4)} offset:{k*1024}")
v_prefill(4)
A("s_waitcnt vmcnt(1)")
TS(49)
k_issue()
TS(50)
if not int(opts.get('vl', 1)): v_issue()
TS(51)
A(f"""s_waitcnt vmcnt({6 if int(opts.get('vl', 1)) else 12})
v_lshlrev_b32 v2, 16, v73
v_and_b32 v3, 0xffff0000, v73
v_subrev_f32 v2, s{sSM}, v2
v_subrev_f32 v3, s{sSM}, v3
v_cvt_pk_bf16_f32 v4, v2, v3
v_lshlrev_b32 v2, 16, v4
v_and_b32 v3, 0xffff0000, v4
v_mul_f32 v2, s{sSR}, v2
v_mul_f32 v3, s{sSR}, v3
v_cvt_pk_bf16_f32 v4, v2, v3
s_add_u32 s25, s25, {L_XSEL}
v_add_u32 v72, s25, v72
ds_write_b32 v72, v4
v_mov_b32 v75, v{vWA1}""")

A.label("L_join")
A("s_setprio 0")
TS(5); RC(41)
A("s_waitcnt lgkmcnt(0)\ns_barrier")
A(f"""s_lshl_b32 s20, s{sROLE}, 12
s_add_u32 s21, s20, {L_QF}
s_xor_b32 s20, s20, 4096
s_add_u32 s20, s20, {L_QF}
v_add_u32 v2, s21, v{vRK}
v_add_u32 v3, s20, v{vRK}
ds_read_b128 {R(QF,4)}, v2
ds_read_b128 {R(QF+4,4)}, v3""")
lb = A.newlabel("L_noown"); lb2 = A.newlabel("L_noown2")
A(f"s_cmp_lg_u32 s{sROLE}, 0\ns_cbranch_scc1 {lb}")
A(f"""v_add_u32 v2, {L_OWN}, v{vRK}
v_and_b32 v4, 3, v{vL}
v_lshlrev_b32 v4, 4, v4
v_add_u32 v4, {L_IDX}, v4
ds_read_b128 {R(SB,4)}, v4
ds_read_b128 {R(Kf(4),4)}, v2
ds_read_b128 {R(Kf(5),4)}, v2 offset:4096
ds_read_b128 {R(Vf(4,0),4)}, v2 offset:8192
ds_read_b128 {R(Vf(5,0),4)}, v2 offset:12288
s_branch {lb2}""")
A.label(lb)
GX = 144; GF = 160
if int(opts.get('vl', 1)): v_issue()
A(f"""s_cmp_ge_u32 s{sGU}, 176
s_cbranch_scc1 {lb2}
v_lshrrev_b32 v2, 5, v{vL}
v_lshlrev_b32 v2, 4, v2
v_add_u32 v2, {L_XSEL}, v2""")
for st in range(4): A(f"ds_read_b128 {R(GX+4*st,4)}, v2 offset:{st*32}")
for st in range(4):
    for j in range(2):
        A(f"ds_read_b64_tr_b16 {R(GF+4*st+2*j,2)}, v75 offset:{16384 + st*4096 + j*512}")
A.label(lb2)
A("s_waitcnt lgkmcnt(0)")
TS(6)
def g_stage():
    lb = A.newlabel("L_nog"); lb2 = A.newlabel("L_nog2")
    A(f"s_cmp_ge_u32 s{sGU}, 176\ns_cbranch_scc1 {lb}")
    for st in range(4): A(mfma32(ACC, GX + 4 * st, GF + 4 * st, None if st else 0))
    A(f"""s_and_b32 s20, s{sP}, 7
s_lshl_b32 s20, s20, 1
s_lshr_b32 s21, s{sW}, 1
s_add_u32 s20, s20, s21
s_mul_i32 s20, s20, {1408*8}
s_lshr_b32 s21, s{sGU}, 3
s_lshl_b32 s21, s21, 9
s_add_u32 s20, s20, s21
s_lshl_b32 s21, s{sCT}, 8
s_add_u32 s20, s20, s21
s_add_u32 s20, s20, {WS_GP}
v_lshrrev_b32 v74, 1, v74
s_mov_b32 s22, -1
s_mov_b32 s23, 0
v_mov_b32 v{ACC+1}, s{sNONCE}
s_mov_b64 exec, s[22:23]
buffer_store_dwordx2 {R(ACC,2)}, v74, {SR(SWS)}, s20 offen sc1
s_mov_b64 exec, -1
s_branch {lb2}""")
    A.label(lb)
    A(f"s_mov_b32 s20, 0x40000000\nbuffer_load_dword v254, v74, {SR(SWS)}, s20 offen")
    A.label(lb2)

GPR = 208
def gp_issue():
    A(f"s_lshl_b32 s36, s{sDI}, 8\ns_add_u32 s36, s36, {WS_GP}")
    for q in range(8): A(f"buffer_load_dwordx2 {R(GPR+2*q,2)}, v255, {SR(SWS)}, s36 offen sc1\ns_add_u32 s36, s36, {2*1408*8}")
def gp_check():
    A(f"""v_min3_u32 v2, v{GPR+1}, v{GPR+3}, v{GPR+5}
v_min3_u32 v2, v2, v{GPR+7}, v{GPR+9}
v_min3_u32 v2, v2, v{GPR+11}, v{GPR+13}
v_min_u32 v2, v2, v{GPR+15}
v_max3_u32 v3, v{GPR+1}, v{GPR+3}, v{GPR+5}
v_max3_u32 v3, v3, v{GPR+7}, v{GPR+9}
v_max3_u32 v3, v3, v{GPR+11}, v{GPR+13}
v_max_u32 v3, v3, v{GPR+15}
v_xor_b32 v2, s{sNONCE}, v2
v_xor_b32 v3, s{sNONCE}, v3
v_or_b32 v2, v2, v3
v_cmp_ne_u32 vcc, 0, v2""")
def wd_loads():
    A(f"""s_lshl_b32 s37, s{sDI}, 15
s_lshl_b32 s20, s{sHH}, 8
s_add_u32 s37, s37, s20
v_lshrrev_b32 v2, 4, v{vL}
v_and_b32 v3, 15, v{vL}
v_lshlrev_b32 v3, 4, v3
v_lshl_add_u32 v2, v2, 10, v3""")
    for n in range(8): A(f"buffer_load_dwordx4 {R(DG[n],4)}, v2, {SR(SWD)}, s37 offen\ns_add_u32 s37, s37, 4096")
def wd_issue():
    lb = A.newlabel("L_nwd")
    A(f"s_cmp_ge_u32 s{sDI}, 43\ns_cbranch_scc1 {lb}")
    wd_loads()
    A.label(lb)
def gp_request(pad):
    def h():
        lb = A.newlabel("L_ngp")
        A(f"s_cmp_ge_u32 s{sDI}, 43\ns_cbranch_scc1 {lb}")
        gp_issue()
        if pad and DPOS == 0: A("s_waitcnt vmcnt(0)")
        A.label(lb)
    return h
def d_block():
    A(f"s_cmp_ge_u32 s{sDI}, 43\ns_cbranch_scc1 L_dend")
    A(f"""v_lshrrev_b32 v3, 4, v{vL}
v_lshlrev_b32 v3, 6, v3
v_lshlrev_b32 v2, 4, v{vL}
v_xor_b32 v24, v2, v3
v_lshrrev_b32 v3, 5, v{vL}
v_bfe_u32 v4, v{vL}, 2, 2
v_lshlrev_b32 v5, 8, v4
v_lshl_add_u32 v5, v3, 11, v5
v_lshl_add_u32 v5, v4, 6, v5
v_bfe_u32 v3, v{vL}, 4, 1
v_lshl_add_u32 v5, v3, 5, v5
v_and_b32 v3, 3, v{vL}
v_lshl_add_u32 v5, v3, 3, v5
s_lshl_b32 s38, s{sHH}, {12 if DPOS == 0 else 14}
s_add_u32 s38, s38, {114688 if DPOS == 0 else 65536}
v_add_u32 v24, s38, v24
v_add_u32 v25, s38, v5
v_xor_b32 v26, 64, v25
v_xor_b32 v27, 128, v25
v_xor_b32 v28, 192, v25
s_waitcnt vmcnt(DWAIT+4)""".replace('DWAIT+4', str(DW + 4 if DPOS == 0 else 63)))
    for rd in range(2):
        for k in range(4): A(f"ds_write_b128 v24, {R(DG[4*rd+k],4)} offset:{k*1024}")
        for t in range(4):
            for j in range(2): A(f"ds_read_b64_tr_b16 {R(DG[4*rd+t]+2*j,2)}, v{25+t} offset:{j*1024}")
    validated(gp_issue, gp_check, DW if DPOS == 0 else 2)
    A(f"""v_add_f32 v2, v{GPR}, v{GPR+2}
v_add_f32 v3, v{GPR+4}, v{GPR+6}
v_add_f32 v4, v{GPR+8}, v{GPR+10}
v_add_f32 v5, v{GPR+12}, v{GPR+14}
v_add_f32 v2, v2, v3
v_add_f32 v4, v4, v5
v_add_f32 v2, v2, v4
v_mov_b32 v3, v2
v_permlane32_swap_b32 v2, v3""")
    bf16round(2, 2); bf16round(3, 3)
    A(f"""v_mul_f32 v4, {f32(-LOG2E)}, v2
v_exp_f32 v4, v4
v_add_f32 v4, 1.0, v4
v_rcp_f32 v4, v4
v_mul_f32 v2, v2, v4""")
    bf16round(2, 2)
    A(f"""v_mul_f32 v2, v2, v3
v_cvt_pk_bf16_f32 v2, v2, v2
v_and_b32 v3, 31, v{vL}
v_lshl_add_u32 v3, v3, 1, s38
ds_write_b16 v3, v2
v_lshrrev_b32 v3, 5, v{vL}
v_lshl_add_u32 v3, v3, 4, s38
ds_read_b128 {R(32,4)}, v3
ds_read_b128 {R(36,4)}, v3 offset:32
s_lshl_b32 s20, s{sDI}, 12
s_lshl_b32 s21, s{sHH}, 10
s_add_u32 s20, s20, s21
s_add_u32 s20, s20, {WS_YP}
s_mov_b32 s22, 0
s_mov_b32 s23, -1
v_lshlrev_b32 v2, 4, v{vL}
v_mov_b32 v42, s{sNONCE}
v_mov_b32 v43, s{sNONCE}
s_waitcnt lgkmcnt(0)""")
    DB = [SB, SB + 16, SB + 32, 48]
    for st in range(2):
        for t in range(4): A(mfma32(DB[t], 32 + 4 * st, DG[4 * st + t], None if st else 0))
    A(f"""v_cndmask_b32_e64 v40, v{DB[0]}, v{DB[2]}, s[22:23]
v_cndmask_b32_e64 v41, v{DB[1]}, v{DB[3]}, s[22:23]
buffer_store_dwordx4 {R(40,4)}, v2, {SR(SWS)}, s20 offen sc1
""")
    A.label("L_dend")
def wo_dma4():
    return [f"""s_and_b32 s26, s{sWB}, 3
s_add_u32 s{sWB}, s{sWB}, 1
s_lshl_b32 s27, s26, 12
s_add_u32 m0, s27, s{sM0}
s_lshl_b32 s27, s26, 14
s_add_u32 s27, s27, s{sWOD}"""] + [f"buffer_load_dwordx4 v{vWO+k}, {SR(SWO)}, s27 offen offset:{k*1024} lds" for k in range(4)]
def kv_check(base, cs):
    for k in range(4):
        b = base(k)
        A(f"v_add3_u32 v{2+k}, v{b}, v{b+1}, v{b+2}\nv_add3_u32 v{2+k}, v{2+k}, v{b+3}, s{sNONCE}\nv_xor_b32 v{2+k}, v{2+k}, v{cs+k}")
    A(f"""v_or_b32 v2, v2, v3
v_or_b32 v4, v4, v5
v_and_b32 v2, s{sH1}, v2
v_and_or_b32 v2, v4, s{sH2}, v2
v_cmp_ne_u32 vcc, 0, v2""")
def k_check(): kv_check(Kf, KC)
def v_check(): kv_check(lambda k: Vf(k, 0), VC)
def vswap(ks):
    for k in ks:
        for r in range(4): A(f"v_permlane16_swap_b32 v{Vf(k,0)+r}, v{Vf(k,1)+r}")
def Q(q): return QF + 4 * q
def smf(dst, k, q, c): return mfma32(dst, Kf(k), Q(q), c)
SEG = lambda k0: [(k0, 0, None), (k0, 1, None), (k0 + 1, 0, None), (k0 + 1, 1, None)]
B3 = [SB, SB + 16, SB + 32]
def nm(q): return R(NM + 16 * q, 16)
def p2_run(jobs, cfun, fresh, extra={}, mem={}):
    n = len(jobs)
    pend = []
    A(smf(B3[0], jobs[0][0], jobs[0][1], cfun(jobs[0][1])))
    for t in range(n):
        k, q, mask = jobs[t]; b = B3[t % 3]
        side = []
        if t + 1 < n: side.append(smf(B3[(t + 1) % 3], jobs[t + 1][0], jobs[t + 1][1], cfun(jobs[t + 1][1])))
        side += pend
        val = [f"v_exp_f32 v{b+r}, v{b+r}" for r in range(16)]
        val += [f"v_cvt_pk_bf16_f32 v{b+j}, v{b+2*j}, v{b+2*j+1}" for j in range(8)]
        if mask == "old": val += [f"v_and_b32 v{b+j}, v{b+j}, v{MK+j}" for j in range(8)]
        if mask == "diag": val += [f"v_bfi_b32 v{b+j}, v{MK+j}, 0, v{b+j}" for j in range(8)]
        mm_ = mem.get(t, [])
        if mm_:
            step = len(val) // len(mm_)
            for q_, x in enumerate(mm_): val[q_ * step + step // 2] += "\n" + x
        vi = 0
        for sx in side:
            A(sx); emit(val[vi:vi + 5]); vi += 5
        emit(val[vi:])
        for fn in extra.get(t, []): fn()
        pend = [mfma32(OA + 16 * q, Vf(k, g), b + 4 * g, 0 if (q in fresh and g == 0) else None) for g in range(2)]
        fresh.discard(q)
    emit(pend)
zero = lambda q: 0
XR = 80
dma = lambda: emit(wo_dma4())
def wo_ops():
    out = []
    for b in range(4):
        l = wo_dma4(); out += [l[0] + "\n" + l[1]] + l[2:]
    return out
def dma_upto(n):
    lt = A.newlabel("L_du"); le = A.newlabel("L_de")
    A.label(lt)
    A(f"s_sub_u32 s20, s{sWE}, {4-n}\ns_cmp_ge_u32 s{sWB}, s20\ns_cbranch_scc1 {le}")
    dma()
    A(f"s_branch {lt}")
    A.label(le)
def after_v(isC, wait):
    def h():
        validated(v_issue, v_check, wait)
        vswap(range(4))
        if isC:
            for pr in range(2):
                A(f"buffer_load_dwordx4 {R(XR+4*pr,4)}, v{vOUT}, {SR(SX)}, s{sOUTO} offen offset:{pr*32}")
            if int(opts.get("opt", 0)) == 1:
                A(f"""s_lshl_b32 s20, s{sI}, 4
s_add_u32 s20, s20, s{sC}
s_and_b32 s21, s{sW}, 1
s_lshl_b32 s21, s21, 3
s_add_u32 s20, s20, s21
s_cmp_ge_u32 s{sW}, 2
s_cselect_b32 s21, 10, 12
s_mov_b32 s22, {WS_O}
s_cselect_b32 s22, {WS_OC}, s22
s_cselect_b32 s24, 0xff, -1
s_mov_b32 s25, 0
s_lshl_b32 s20, s20, s21
s_add_u32 s20, s20, s22
v_lshlrev_b32 v2, 7, v{vL}
s_mov_b64 exec, s[24:25]
buffer_load_dword v254, v2, {SR(SWS)}, s20 offen sc1
s_mov_b64 exec, -1""")
        if int(opts.get("opt", 0)) == 4:
            A(f"""s_lshl_b32 s20, s{sI}, 1
s_add_u32 s20, s20, s{sROLE}
s_lshl_b32 s20, s20, 3
s_add_u32 s20, s20, s{sC}
s_lshl_b32 s21, s20, 10
s_add_u32 s21, s21, {WS_OC}
s_lshl_b32 s20, s20, 12
s_add_u32 s20, s20, {WS_O}
v_lshrrev_b32 v5, 2, v{vRK}
v_add3_u32 v4, v{QF}, v{QF+1}, v{QF+2}
v_add3_u32 v4, v4, v{QF+3}, s{sNONCE}
v_add_u32 v4, 1, v4
buffer_store_dwordx4 {R(QF,4)}, v{vRK}, {SR(SWS)}, s20 offen sc1
buffer_store_dword v4, v5, {SR(SWS)}, s21 offen sc1""")
        TS(9); RC(43)
    return h
def k_valid(first_wait):
    validated(lambda: (k_issue(), v_issue()), k_check, first_wait)
    TS(7); RC(42)
def sched(ops, plan):
    out = {}; k = 0
    for t, n in plan:
        out[t] = ops[k:k + n]; k += n
    assert k == len(ops)
    return out
OWNJ = [(4, 0, "diag"), (5, 1, "diag"), (4, 1, None)]
OLDJ = [(3, 0, None), (2, 0, "old"), (3, 1, "old")]
CPL = eval(opts.get('cpl', '[]')); LPL = eval(opts.get('lpl', '[(1,4),(5,4),(6,4)]'))
NCB = sum(n for t, n in CPL) // 4
A(f"s_cmp_eq_u32 s{sROLE}, 0\ns_cbranch_scc1 L_fA")
g_stage()
TS(8)
k_valid(7)
lb = A.newlabel("L_fb1"); lb2 = A.newlabel("L_fb0")
A(f"s_cmp_eq_u32 s{sH1}, 0\ns_cbranch_scc1 {lb}")
WRM = int(opts.get("wrm", -1)); WRN = int(opts.get("wrn", 4))
def wo_warm():
    if WRN == 4:
        A(f"s_and_b32 s26, s{sI}, 3\ns_lshl_b32 s27, s26, 14\ns_add_u32 s27, s27, s{sWOD}")
    else:
        A(f"s_and_b32 s26, s{sI}, 7\ns_lshl_b32 s27, s26, 13\ns_add_u32 s27, s27, s{sWOD}")
    for k in range(WRN): A(f"buffer_load_dwordx4 {R(224+4*k,4)}, v{vWO+k}, {SR(SWO)}, s27 offen offset:{k*1024}")
exs = {0: [after_v(1, 1)]}
if WRM >= 0: exs.setdefault(WRM, []).append(wo_warm)
p2_run(SEG(0) + SEG(2), zero, {0, 1}, exs)
A("s_branch L_fchk")
A.label(lb)
A(f"s_cmp_eq_u32 s{sH2}, 0\ns_cbranch_scc1 {lb2}")
p2_run(SEG(2), zero, {0, 1}, {0: [after_v(1, 1), wd_issue]})
dma_upto(NCB)
A("s_branch L_fchk")
A.label(lb2)
after_v(1, 1)()
wd_issue()
dma_upto(NCB)
for r in range(32): A(f"v_mov_b32 v{OA+r}, 0")
A(f"v_mov_b32 v{vM0}, {f32(-1e30)}\nv_mov_b32 v{vM1}, {f32(-1e30)}")
A("s_branch L_p2done")
A.label("L_fA")
GQ = int(opts.get("gq", 4)); DW = sum(n for t, n in LPL if t > GQ)
winner()
vswap((4, 5))
A('s_setprio %d' % int(opts.get('lprio', 1)))
lb = A.newlabel("L_fa1"); lb2 = A.newlabel("L_fa0")
A(f"s_cmp_eq_u32 s{sH1}, 0\ns_cbranch_scc1 {lb2}")
p2_run(OWNJ, zero, {0, 1}, {}, sched(capture(k_issue) + capture(v_issue), eval(opts.get('lkp', '[(0,6),(1,3),(2,3)]'))))
TS(8)
k_valid(6)
A(f"s_cmp_eq_u32 s{sH2}, 0\ns_cbranch_scc1 {lb}")
p2_run(SEG(0) + OLDJ, zero, set(), {0: [after_v(0, 0), wd_issue], GQ: [gp_request(0)]}, sched(wo_ops()[:sum(n for t, n in LPL)], LPL))
A("s_branch L_fchk")
A.label(lb)
p2_run(SEG(0), zero, set(), {0: [after_v(0, 0), wd_issue]})
if int(opts.get('s3', 2)): dma_upto(int(opts.get('s3', 2)))
gp_request(1)()
A("s_branch L_fchk")
A.label(lb2)
wd_issue()
p2_run(OWNJ, zero, {0, 1})
dma_upto(int(opts.get("sb", 3)))
A("s_waitcnt vmcnt(0)")
gp_request(1)()
A.label("L_fchk")
LO = (127 - 40) << 23; RNG = 80 << 23
if not FAST: LO, RNG = 0, 0
A(f"""v_subrev_u32 v2, {hex(LO)}, v{OA+8}
v_subrev_u32 v3, {hex(LO)}, v{OA+24}
v_max_u32 v2, v2, v3
v_cmp_le_u32 vcc, {hex(RNG) if RNG else 0}, v2
s_cbranch_vccnz L_slow""")
A.label("L_p2done")
if DPOS == 0: d_block()
PB0 = int(opts.get("pb0", 0)); NB1 = int(opts.get("nb1", 4)); MB = int(opts.get("mb", 5))
A(f"""s_cmp_lt_u32 s{sW}, 4
s_cbranch_scc1 L_npb0""")
dma_upto(4)
A(f"""s_sub_u32 s{sWOD}, s{sWOD}, {4 << 16}
s_add_u32 s{sM0}, s{sM0}, {4 << 14}
s_add_u32 s{sWE}, s{sWE}, 4
s_add_u32 s{sWB}, s{sWB}, {NCB}""")
if PB0: dma_upto(NCB + PB0)
A.label("L_npb0")
TS(10)

def slow_path():
    A.label("L_slow")
    A("s_waitcnt vmcnt(0)")
    A(f"v_mov_b32 v{vM0}, {f32(-1e30)}\nv_mov_b32 v{vM1}, {f32(-1e30)}\nv_mov_b32 v5, {f32(-1e30)}")
    def max_run(jobs):
        for (k, q, mask) in jobs:
            m = vM0 if q == 0 else vM1
            A(smf(SB, k, q, 0))
            if mask:
                for r in range(16):
                    j0 = 8 * (r // 4) + r % 4
                    A(f"s_lshl_b32 s20, -1, {j0}\ns_lshl_b32 s21, -1, {j0+4}")
                    if mask == "diag": A(f"v_cndmask_b32_e64 v{SB+r}, v5, v{SB+r}, s[20:21]")
                    else: A(f"v_cndmask_b32_e64 v{SB+r}, v{SB+r}, v5, s[20:21]")
            for r in range(0, 16, 2): A(f"v_max3_f32 v{m}, v{SB+r}, v{SB+r+1}, v{m}")
    def groups(fn):
        l1 = A.newlabel("L_s"); l2 = A.newlabel("L_s"); l3 = A.newlabel("L_s")
        A(f"s_cmp_eq_u32 s{sH1}, 0\ns_cbranch_scc1 {l1}")
        fn(SEG(0))
        A.label(l1)
        A(f"s_cmp_eq_u32 s{sROLE}, 0\ns_cbranch_scc1 {l2}")
        fn(SEG(2))
        A(f"s_branch {l3}")
        A.label(l2)
        fn(OWNJ)
        A(f"s_cmp_eq_u32 s{sH2}, 0\ns_cbranch_scc1 {l3}")
        fn(OLDJ)
        A.label(l3)
    groups(max_run)
    A(f"""v_mov_b32 v2, v{vM0}
v_mov_b32 v3, v{vM1}
v_permlane32_swap_b32 v{vM0}, v2
v_permlane32_swap_b32 v{vM1}, v3
v_max_f32 v{vM0}, v{vM0}, v2
v_max_f32 v{vM1}, v{vM1}, v3""")
    for q, m in enumerate((vM0, vM1)):
        for r in range(16): A(f"v_sub_f32 v{NM+16*q+r}, 0, v{m}")
    for r in range(32): A(f"v_mov_b32 v{OA+r}, 0")
    groups(lambda jobs: p2_run(jobs, nm, set()))
    wd_issue()
    A("s_waitcnt vmcnt(0)\ns_branch L_p2done")

A(f"""v_xor_b32 v3, 0x4000, v{vEX}
v_add_u32 v3, {81920 - L_TAIL}, v3
v_add_u32 v2, {81920 - L_TAIL}, v{vEX}
s_lshl_b32 s20, s{sI}, 1
s_add_u32 s20, s20, s{sROLE}
s_lshl_b32 s20, s20, 3
s_add_u32 s20, s20, s{sC}
s_lshl_b32 s21, s20, 10
s_add_u32 s21, s21, {WS_OC}
s_lshl_b32 s20, s20, 12
s_add_u32 s20, s20, {WS_O}
v_lshrrev_b32 v5, 2, v{vRK}
v_mov_b32 v{OA+25}, v{vM1}
ds_write_b64 v3, {R(OA+24,2)} offset:2048
ds_write_b128 v3, {R(OA+16,4)}
ds_write_b128 v3, {R(OA+20,4)} offset:1024
s_waitcnt lgkmcnt(0)
s_barrier
ds_read_b64 {R(SB+8,2)}, v2 offset:2048
ds_read_b128 {R(SB,4)}, v2
ds_read_b128 {R(SB+4,4)}, v2 offset:1024
s_waitcnt lgkmcnt(2)
v_max_f32 v3, v{vM0}, v{SB+9}
v_sub_f32 v{SB+10}, v{vM0}, v3
v_sub_f32 v{SB+11}, v{SB+9}, v3
v_exp_f32 v{SB+10}, v{SB+10}
v_exp_f32 v{SB+11}, v{SB+11}
v_mul_f32 v4, v{SB+10}, v{OA+8}
v_fmac_f32 v4, v{SB+11}, v{SB+8}
v_rcp_f32 v4, v4
v_mul_f32 v{SB+10}, v{SB+10}, v4
v_mul_f32 v{SB+11}, v{SB+11}, v4
s_waitcnt lgkmcnt(0)""")
for r in range(0, 8, 2):
    A(f"v_pk_mul_f32 {R(OA+r,2)}, {R(OA+r,2)}, {R(SB+10,2)} op_sel_hi:[1,0]")
    A(f"v_pk_fma_f32 {R(OA+r,2)}, {R(SB+r,2)}, {R(SB+10,2)}, {R(OA+r,2)} op_sel:[0,1,0]")
for k in range(4): A(f"v_cvt_pk_bf16_f32 v{SB+12+k}, v{OA+2*k}, v{OA+2*k+1}")
A(f"""buffer_store_dwordx4 {R(SB+12,4)}, v{vRK}, {SR(SWS)}, s20 offen sc1
v_add3_u32 v4, v{SB+12}, v{SB+13}, v{SB+14}
v_add3_u32 v4, v4, v{SB+15}, s{sNONCE}
buffer_store_dword v4, v5, {SR(SWS)}, s21 offen sc1""")
TS(11)

A("s_waitcnt vmcnt(2)\ns_barrier")
TS(12); RC(44)

WOF = 8; XB = 136; PA = 160; OF = 176; OL = 208; OLC = 224
A(f"""s_lshl_b32 s20, s{sQK}, 3
s_add_u32 s20, s20, s{sW}
s_lshl_b32 s32, s20, 10
s_add_u32 s32, s32, {WS_OC}
s_lshl_b32 s31, s20, 12
s_add_u32 s31, s31, {WS_O}
v_lshlrev_b32 v2, 4, v{vL}
v_lshlrev_b32 v{vRV}, 2, v{vL}
s_and_b32 s33, s{sKEY}, 0x7ff
s_sub_u32 s33, 2047, s33
s_lshr_b32 s34, s33, 5""")
def o_issue():
    for k in range(4):
        A(f"buffer_load_dwordx4 {R(OL+4*k,4)}, v2, {SR(SWS)}, s31 offen offset:{k*1024} sc1")
    for k in range(4):
        A(f"buffer_load_dword v{OLC+k}, v{vRV}, {SR(SWS)}, s32 offen offset:{k*256} sc1")
def o_check():
    for k in range(4):
        b = OL + 4 * k
        A(f"v_add3_u32 v{228+k}, v{b}, v{b+1}, v{b+2}\nv_add3_u32 v{228+k}, v{228+k}, v{b+3}, s{sNONCE}\nv_xor_b32 v{228+k}, v{228+k}, v{OLC+k}")
    A("v_or3_b32 v228, v228, v229, v230\nv_or_b32 v228, v228, v231\nv_cmp_ne_u32 vcc, 0, v228")
lb = A.newlabel("L_p3l")
A(f"s_cmp_lt_u32 s{sW}, 4\ns_cbranch_scc1 L_nphb")
BPB = int(opts.get("bpb", 0))
if DPOS == 3: d_block()
if BPB:
    dma_upto(BPB)
    if opts.get("bpw"): A("s_waitcnt vmcnt(%d)" % int(opts["bpw"]))
    A("s_barrier")
dma_upto(NB1)
A.label("L_nphb")
if DPOS == 1: d_block()
A(f"v_lshlrev_b32 v2, 4, v{vL}")
A(f"s_cmp_ge_u32 s{sW}, 4\ns_cbranch_scc1 {lb}w")
for pr in range(2):
    b = XR + 4 * pr
    A(f"v_permlane32_swap_b32 v{b}, v{b+2}\nv_permlane32_swap_b32 v{b+1}, v{b+3}")
for k in range(8):
    x = XR + k; p = PA + 2 * k
    A(f"""v_lshlrev_b32 v{p}, 16, v{x}
v_and_b32 v{p+1}, 0xffff0000, v{x}
v_pk_add_f32 {R(XB+8,2)}, {R(p,2)}, {R(vPM,2)} op_sel_hi:[1,0] neg_lo:[0,1] neg_hi:[0,1]
v_cvt_pk_bf16_f32 v{XB+10}, v{XB+8}, v{XB+9}
v_lshlrev_b32 v{XB+8}, 16, v{XB+10}
v_and_b32 v{XB+9}, 0xffff0000, v{XB+10}
v_pk_mul_f32 {R(XB+8,2)}, {R(XB+8,2)}, {R(vPM,2)} op_sel:[0,1]
v_cvt_pk_bf16_f32 v{XB+10}, v{XB+8}, v{XB+9}
v_lshlrev_b32 v{XB+8}, 16, v{XB+10}
v_and_b32 v{XB+9}, 0xffff0000, v{XB+10}
v_pk_add_f32 {R(p,2)}, {R(p,2)}, {R(XB+8,2)}""")
A(f"""v_lshlrev_b32 v2, 4, v{vL}
v_lshrrev_b32 v4, 5, v{vL}
v_bfe_u32 v3, v{vL}, 2, 2
v_lshl_add_u32 v5, v4, 2, v3
v_lshlrev_b32 v5, 8, v5
v_xor_b32 v3, s{sW}, v3
v_lshl_add_u32 v5, v3, 6, v5
v_bfe_u32 v3, v{vL}, 4, 1
v_lshl_add_u32 v5, v3, 5, v5
v_and_b32 v3, 3, v{vL}
v_lshl_add_u32 v5, v3, 3, v5
v_add_u32 v3, 65536, v5""")
def wo_read(g): return [f"ds_read_b64_tr_b16 {R(WOF+4*g+2*j,2)}, v{3 if g < 16 else 5} offset:{(g*4096 + j*2048) % 65536}" for j in range(2)]
for g in range(16, 32): emit(wo_read(g))
if BPB: A("s_barrier")
A(f"s_waitcnt vmcnt(0)\ns_branch {lb}")
A.label(lb + "w")
A(f"s_waitcnt vmcnt({4*max(0, NB1-NCB-PB0)})")
def yp_issue():
    A(f"""s_and_b32 s20, s{sC}, 3
s_lshl_b32 s20, s20, 10
s_add_u32 s20, s20, {WS_YP}
s_add_u32 s21, s20, {42*4096}
s_mul_i32 s22, s{sHH}, {11*4096}
s_add_u32 s20, s20, s22""")
    for k in range(11):
        if k == 10: A("s_min_u32 s20, s20, s21")
        A(f"buffer_load_dwordx4 {R(8+4*k,4)}, v2, {SR(SWS)}, s20 offen sc1\ns_add_u32 s20, s20, 4096")
NR = 4 * (4 - max(NB1, NCB + PB0))
TS(46)
o_issue()
if NR: dma_upto(4)
YL = int(opts.get("yl", 1))
if not YL:
    A(f"s_cmp_lg_u32 s34, s{sQK}\ns_cbranch_scc1 {lb}z")
    yp_issue()
    A(f"s_waitcnt vmcnt({11+NR})\ns_branch {lb}y")
    A.label(lb + "z")
A(f"s_waitcnt vmcnt({NR})\ns_branch {lb}y")
A.label(lb)
TS(46)
o_issue()
TS(47)
A("s_waitcnt vmcnt(0)")
A.label(lb + "y")
o_check()
retry_check(lb)
for k in range(4):
    A(f"ds_write_b128 v{vEX}, {R(OL+4*k,4)} offset:{k*1024}")
if YL:
    A(f"s_cmp_lg_u32 s34, s{sQK}\ns_cbranch_scc1 L_nyl\ns_cmp_lt_u32 s{sW}, 4\ns_cbranch_scc1 L_nyl")
    yp_issue()
    A.label("L_nyl")
TS(13); RC(45)
A("s_waitcnt lgkmcnt(0)\ns_barrier")
TS(14)
A(f"s_cmp_ge_u32 s{sW}, 4\ns_cbranch_scc1 L_p3help")
A(f"v_add_u32 v2, {L_TAIL}, v2")
order = list(range(16, 32)) + list(range(16))
lq = []
def ofr(n): lds(("o", n), f"ds_read_b128 {R(OF+4*(n%8),4)}, v2 offset:{order[n]*1024}")
for n in range(6): ofr(n)
wq = [x for g in range(16) for x in wo_read(g)]
for n in range(32):
    lwait(("o", n))
    A(mfma32(PA, WOF + 4 * order[n], OF + 4 * (n % 8)))
    if NR:
        if n == MB: A("s_barrier")
        if n >= MB:
            for x in wq[:3]: lds("w", x)
            wq = wq[3:]
    elif n < 16:
        for x in wo_read(n): lds("w", x)
    if n + 6 < 32: ofr(n + 6)
    if n == int(opts.get("zb", 27)):
        A(f"s_cmp_lg_u32 s34, s{sQK}\ns_cbranch_scc1 L_nzb\ns_barrier\nL_nzb:")
lb = A.newlabel("L_noz")
A(f"s_cmp_lg_u32 s34, s{sQK}\ns_cbranch_scc1 {lb}")
A(f"""s_barrier
s_lshl_b32 s20, s{sW}, 7
v_lshlrev_b32 v3, 4, v4
v_add_u32 v3, s20, v3""")
for a in range(4): A(f"ds_read_b128 {R(OF+4*a,4)}, v3 offset:{a*32}")
A(f"""s_and_b32 s20, s33, 31
v_and_b32 v3, 31, v{vL}
v_cmp_eq_u32 vcc, s20, v3
s_and_saveexec_b64 s[{sEX}:{sEX+1}], vcc
s_waitcnt lgkmcnt(0)""")
for r in range(16): A(f"v_add_f32 v{PA+r}, v{PA+r}, v{OF+r}")
A(f"s_mov_b64 exec, s[{sEX}:{sEX+1}]")
A.label(lb)
for k in range(8): A(f"v_cvt_pk_bf16_f32 v{XB+k}, v{PA+2*k}, v{PA+2*k+1}")
for pr in range(2):
    b = XB + 4 * pr
    A(f"v_permlane32_swap_b32 v{b}, v{b+2}\nv_permlane32_swap_b32 v{b+1}, v{b+3}")
    A(f"buffer_store_dwordx4 {R(b,4)}, v{vOUT}, {SR(SOUT)}, s{sOUTO} offen offset:{pr*32}")
A("s_branch L_end")
A.label("L_p3help")
if NR:
    A(f"s_cmp_lg_u32 s34, s{sQK}\ns_cbranch_scc1 L_hw0\ns_waitcnt vmcnt(11)\ns_branch L_hw1\nL_hw0:\ns_waitcnt vmcnt(0)\nL_hw1:\ns_barrier")
A(f"""s_or_b32 s20, s2, s{sHH}
s_cmp_lg_u32 s20, 0
s_cbranch_scc1 L_noep
v_mov_b32 v200, s{sNONCE}
v_mov_b32 v201, {WS_EPOCH}
s_mov_b64 exec, 1
buffer_store_dword v200, v201, {SR(SWS)}, 0 offen sc1
s_mov_b64 exec, -1
L_noep:""")
A(f"s_cmp_lg_u32 s34, s{sQK}\ns_cbranch_scc1 L_end")
def yp_check():
    A(f"v_min3_u32 v3, v10, v14, v18\nv_max3_u32 v4, v10, v14, v18")
    for k in range(3, 11, 2): A(f"v_min3_u32 v3, v3, v{10+4*k}, v{14+4*k}\nv_max3_u32 v4, v4, v{10+4*k}, v{14+4*k}")
    A(f"v_xor_b32 v3, s{sNONCE}, v3\nv_xor_b32 v4, s{sNONCE}, v4\nv_or_b32 v3, v3, v4\nv_cmp_ne_u32 vcc, 0, v3")
validated(yp_issue, yp_check, 0)
A(f"s_cmp_eq_u32 s{sHH}, 3\ns_cselect_b32 s20, 0, 1.0")
for k in range(1, 10): A(f"v_add_f32 v8, v8, v{8+4*k}\nv_add_f32 v9, v9, v{9+4*k}")
A(f"""v_fmac_f32 v8, s20, v48
v_fmac_f32 v9, s20, v49
s_lshl_b32 s20, s{sHH}, 9
s_add_u32 s20, s20, 1024
v_lshl_add_u32 v3, v{vL}, 3, s20
ds_write_b64 v3, v[8:9]
s_waitcnt lgkmcnt(0)
s_barrier""")
lb = A.newlabel("L_hb")
A(f"""s_cmp_lg_u32 s{sW}, 4
s_cbranch_scc1 {lb}
ds_read_b64 v[10:11], v3 offset:512
ds_read_b64 v[12:13], v3 offset:1024
ds_read_b64 v[14:15], v3 offset:1536
s_waitcnt lgkmcnt(0)
v_add_f32 v8, v8, v10
v_add_f32 v9, v9, v11
v_add_f32 v12, v12, v14
v_add_f32 v13, v13, v15
v_add_f32 v8, v8, v12
v_add_f32 v9, v9, v13""")
bf16round(8, 8); bf16round(9, 9)
A(f"""s_and_b32 s20, s{sKEY}, 0xffff0000
s_ashr_i32 s21, s20, 31
s_not_b32 s21, s21
s_or_b32 s21, s21, 0x80000000
s_xor_b32 s20, s20, s21
s_and_b32 s20, s20, 0xffff0000
v_mov_b32 v3, s20
v_mul_f32 v3, {f32(-LOG2E)}, v3
v_exp_f32 v3, v3
v_add_f32 v3, 1.0, v3
v_rcp_f32 v3, v3""")
bf16round(3, 3)
A("v_mul_f32 v8, v8, v3\nv_mul_f32 v9, v9, v3")
bf16round(8, 8); bf16round(9, 9)
A(f"""v_lshrrev_b32 v3, 5, v{vL}
v_lshlrev_b32 v3, 8, v3
v_and_b32 v4, 31, v{vL}
v_lshl_add_u32 v3, v4, 2, v3
ds_write_b32 v3, v8
ds_write_b32 v3, v9 offset:128
s_waitcnt lgkmcnt(0)""")
A.label(lb)
A("s_barrier")
A.label("L_end")
if PROF:
    TS(15)
    srd(SWS, WS_SIZE)
    A(f"""s_mov_b64 exec, -1
v_writelane_b32 v{vTS}, s{sRETRY}, 62
s_memrealtime s[96:97]
s_waitcnt lgkmcnt(0)
v_writelane_b32 v{vTS}, s96, 61
s_lshl_b32 s20, s2, 3
s_add_u32 s20, s20, s{sW}
s_lshl_b32 s20, s20, 8
s_add_u32 s20, s20, {WS_TS}
v_lshlrev_b32 v2, 2, v{vL}
buffer_store_dword v{vTS}, v2, {SR(SWS)}, s20 offen""")
A.label("L_exit")
A("s_endpgm")
A.label("L_codeend")
slow_path()

body = A.finalize()
import re as _re
def addflag(srd_, flag, kind="load"):
    global body
    pat = _re.compile(r"^(\s*buffer_%s_\w+ .*s\[%d:%d\], \S+ offen(?: offset:\d+)?)( lds)?$" % (kind, srd_, srd_ + 3), _re.M)
    body = pat.sub(lambda m: m.group(1) + " " + flag + (m.group(2) or ""), body)
for b_ in (SWG, SWU, SWD): addflag(b_, "nt")
if opts.get("ntx"): addflag(SX, "nt")
if opts.get("ntw"): addflag(SW, "nt")
if opts.get("nto"): addflag(SWO, "nt")
if opts.get("outf"): addflag(SOUT, opts["outf"].replace("+", " "), "store")
hdr = open("cdna_kernels/" + NAME + ".s.ref").read().split("; Override launch")[0]
out = hdr + f"""; One fused launch, 256 workgroups x 8 waves; workgroup = (64 rows, 4 heads).
;   phase 1  QKV GEMM on raw x (LDS-DMA ring; LayerNorm folded in as a rank-1 correction + row scale), router scores
;   phase 2  sliding-window attention; unshifted exponentials, row sums range-checked at run time, exact two-pass
;            true-max softmax as fallback (L_slow)
;   FFN      gate/up partials -> down-projection partials -> owner workgroups of the routed row
;   phase 3  output projection + residuals
; Hand-offs between workgroups go through d_ws with write-through stores and carry tags / checksums built from a
; generation word kept in d_ws, so they are valid under any placement; every spin is bounded.
; Generated by gen/gen.py + gen/asmlib.py (own generator scripts).
; @launch grid=(256,1,1) block=(512,1,1) lds=163840
.amdgcn_target "amdgcn-amd-amdhsa--gfx950"
.text
.globl {NAME}_kernel
.p2align 8
.type {NAME}_kernel,@function
{NAME}_kernel:
L_start:
{body}
.section .rodata,"a"
.p2align 6
.amdhsa_kernel {NAME}_kernel
  .amdhsa_next_free_vgpr 256
  .amdhsa_next_free_sgpr 102
  .amdhsa_accum_offset 256
  .amdhsa_group_segment_fixed_size 0
  .amdhsa_kernarg_size 88
  .amdhsa_user_sgpr_count 2
  .amdhsa_user_sgpr_kernarg_segment_ptr 1
  .amdhsa_system_sgpr_workgroup_id_x 1
  .amdhsa_float_denorm_mode_32 3
.end_amdhsa_kernel
"""
import subprocess, re
def labels(text):
    open("_g.s", "w").write(text)
    r = subprocess.run(["clang", "-x", "assembler", "-target", "amdgcn-amd-amdhsa", "-mcpu=gfx950", "-c", "_g.s", "-o", "_g.o"], capture_output=True, text=True)
    if r.returncode:
        print("\n".join(r.stderr.split("\n")[:30])); sys.exit(1)
    t = subprocess.run(["llvm-objdump", "-t", "_g.o"], capture_output=True, text=True).stdout
    return {m.group(2): int(m.group(1), 16) for m in re.finditer(r"^([0-9a-f]{16}) .*\s(L_\w+)$", t, re.M)}
lab = labels(out.replace("CODE_PF_MAX", "0x11111"))
out = out.replace("CODE_PF_MAX", hex((lab["L_codeend"] - 1024) & ~127))
assert labels(out) == lab
print("code bytes", lab["L_codeend"], "instrs", len(A.ins), "nops", A.nnop)
open(sys.argv[1], "w").write(out)
```

```python
import sys, struct
from asmlib import Asm

NAME = "parallel_sum__sliding_block__moe_arch_mod__prompt"
opts = dict(a.split("=") if "=" in a else (a, "1") for a in sys.argv[2:])
PROF = int(opts.get("prof", 0))
LOOPTS = int(opts.get('loopts', 0))
DEPTH = int(opts.get('depth', 3))
FAST = int(opts.get('fast', 1))
SIBU = int(opts.get('sibu', 4))
GWP = int(opts.get('gwp', 2))
DOFF = int(opts.get('doff', 245))
DSH = int(opts.get('dsh', 0))
DNL = int(opts.get('dnl', 43))
DPOS = int(opts.get('dpos', 3))
PWS = int(opts.get('pws', 1))
LGW = int(opts.get('lgw', -1))
PUBU = int(opts.get('pubu', 0))

def f32(x): return "0x%08x" % struct.unpack("<I", struct.pack("<f", x))[0]
LOG2E = 1.4426950408889634

WS_BEST  = 0x0
WS_EPOCH = 0x4000
WS_STATS = 0x8000
WS_YP    = 0x10000
WS_GP    = 0x40000
WS_KV    = 0x100000
WS_KVC   = 0x500000
WS_O     = 0x600000
WS_OC    = 0x800000
WS_TS    = 0x900000
WS_SIZE  = 0x1000000
L_X = 0; L_RING = 65536; L_MISC = 147456; L_TAIL = 131072
def slot_of(u): return (u + 2) % 5
L_QF = L_MISC
L_SM = L_MISC + 8192
L_RT = L_SM
L_NONCE = L_SM + 128
L_IDX = L_SM + 144
L_XSEL = L_SM + 1024
L_QRDY = L_SM + 224
L_CSX = L_SM + 2048
L_STAT = L_SM + 256
L_RINV = L_SM + 768
L_GW = L_RING + 4 * 16384
L_OWN = L_RING + slot_of(8) * 16384
SX, SW, SWS, SDBG, SWR = 40, 44, 48, 52, 56
SWO, SOUT, SWG, SWU, SWD = 60, 64, 68, 72, 76
sI, sC, sW, sROT, sNONCE, sP, sKEY = 3, 4, 5, 6, 7, 8, 9
sXO, sWOFF, sCT, sWB, sHH, sROLE, sH1, sH2 = 10, 11, 12, 13, 14, 15, 16, 17
sSM, sSR = 18, 19
sOUTO, sQK, sWOD, sM0, sWE, sEX, sRETRY = 80, 81, 82, 83, 84, 86, 88
sGU = 89
sDI = 85
DG = [96 + 4 * n for n in range(8)]
GOFF = int(opts.get('goff', 80))
sRB = 90
vL, vZ, vTS = 1, 6, 7
vXA, vWA0, vWA1 = 88, 92, 93
vX0, vX1, vW0, vW1 = 80, 81, 82, 83
vSA, vKA, vKC, vBA = 80, 81, 82, 83
ACC = 96; STB = 128; CS = 200; SEL = 204; GW = 208; ST0, ST1 = 224, 226; XS = 228
OWN = 128; SL = 8
KC, VC, QF, NM, OA, SB, WD, MK = 80, 84, 88, 96, 128, 160, 208, 232
vM0, vM1, vRK, vRV, vRKC, vGA, vEX, vOUT, vPM, vPR, vWO = 240, 241, 242, 243, 244, 245, 246, 247, 248, 249, 250
A = Asm()

def TS(n):
    if PROF == 1: A(f"s_memtime s[98:99]\ns_waitcnt lgkmcnt(0)\nv_writelane_b32 v{vTS}, s98, {n}")
def TSL(n):
    if LOOPTS: TS(n)
def RC(n):
    if PROF == 1: A(f"v_writelane_b32 v{vTS}, s{sRETRY}, {n}")
def srd(base, size): A(f"s_mov_b32 s{base+2}, {size}\ns_mov_b32 s{base+3}, 0x20000")
def R(b, n): return f"v[{b}:{b+n-1}]"
def SR(b): return f"s[{b}:{b+3}]"
DPP8 = ("quad_perm:[1,0,3,2]", "quad_perm:[2,3,0,1]", "row_half_mirror")
def dpp(op, x, m): return f"{op}_dpp v{x}, v{x}, v{x} {m} row_mask:0xf bank_mask:0xf"
def allreduce32(x, t, op):
    for m in DPP8 + ("row_mirror",): A(dpp(op, x, m))
    A(f"v_mov_b32 v{t}, v{x}\nv_permlane16_swap_b32 v{x}, v{t}\n{op} v{x}, v{x}, v{t}")
def bf16round(dst, src):
    A(f"v_cvt_pk_bf16_f32 v{dst}, v{src}, v{src}\nv_and_b32 v{dst}, 0xffff0000, v{dst}")
def retry_check(lbl):
    A(f"s_add_u32 s{sRETRY}, s{sRETRY}, 1\ns_cmp_gt_u32 s{sRETRY}, 20000\ns_cbranch_scc1 L_end")
    A(f"s_cbranch_vccnz {lbl}")
def validated(issue, check, first_wait, retry_wait=0):
    lr = A.newlabel("L_rt"); lo = A.newlabel("L_ok")
    A(f"s_waitcnt vmcnt({first_wait})"); check(); A(f"s_cbranch_vccz {lo}")
    A.label(lr)
    issue(); A(f"s_waitcnt vmcnt({retry_wait})"); check()
    retry_check(lr)
    A.label(lo)
def capture(fn):
    n = len(A.ins); fn(); out = [x.text for x in A.ins[n:]]; del A.ins[n:]
    return out
def emit(l):
    for x in l: A(x)
def split(l, n): return [l[len(l)*k//n: len(l)*(k+1)//n] for k in range(n)]
def mfma32(d, a, b, c=None):
    return f"v_mfma_f32_32x32x16_bf16 {R(d,16)}, {R(a,4)}, {R(b,4)}, {R(d,16) if c is None else c}"
def var_to_rinv(v):
    bf16round(v, v)
    A(f"v_add_f32 v{v}, {f32(1e-5)}, v{v}")
    bf16round(v, v)
    A(f"v_sqrt_f32 v{v}, v{v}")
    bf16round(v, v)
    A(f"v_rcp_f32 v{v}, v{v}")

if PROF: A("s_memrealtime s[96:97]")
if PROF == 1: A("s_memtime s[94:95]")
A("s_cmp_ge_u32 s2, 256\ns_cbranch_scc1 L_exit")
for b, off in ((SX, 0), (SW, 8), (SWR, 32), (SWS, 80)):
    A(f"s_load_dwordx2 s[{b}:{b+1}], s[0:1], {off}")
A(f"""v_lshrrev_b32 v2, 6, v0
v_and_b32 v{vL}, 63, v0
s_bfe_u32 s20, s2, 0x20001
{'s_lshr_b32 s24, s2, 5' if int(opts.get('m4', 1)) else 's_bfe_u32 s24, s2, 0x30003'}
v_readfirstlane_b32 s{sW}, v2
s_lshl3_add_u32 s{sI}, s20, s24
s_and_b32 s20, s2, 1
{'s_bfe_u32 s24, s2, 0x20003' if int(opts.get('m4', 1)) else 's_lshr_b32 s24, s2, 6'}
s_lshl2_add_u32 s{sC}, s20, s24
s_lshl3_add_u32 s{sP}, s{sI}, s{sC}""")
srd(SX, 2048 * 1024)
def late_setup():
    for b, off in ((SWO, 16), (SWG, 40), (SWU, 48), (SWD, 56), (SOUT, 64)):
        A(f"s_load_dwordx2 s[{b}:{b+1}], s[0:1], {off}")
    if opts.get("gmap"):
        lo = int(opts["gmap"])
        A(f"""s_cmp_ge_u32 s{sP}, {lo}
s_cselect_b32 s26, 80, 16
s_sub_u32 s{sGU}, s{sP}, s26
s_sub_u32 s26, s{sP}, {lo}
s_cmp_lt_u32 s26, 64
s_cselect_b32 s{sGU}, 255, s{sGU}""")
    else:
        A(f"s_sub_u32 s{sGU}, s{sP}, {GOFF}")
    A(f"""s_cmp_ge_u32 s{sW}, 4
s_cselect_b32 s26, {DNL}, {43-DNL}
s_cselect_b32 s24, 0, {DNL}
s_add_u32 s{sDI}, s{sP}, s24
s_cmp_lt_u32 s{sP}, s26
s_cselect_b32 s{sDI}, s{sDI}, 255
s_mov_b32 s{sRETRY}, 0""")
    if PROF:
        A(f"v_mov_b32 v{vTS}, 0\nv_writelane_b32 v{vTS}, s96, 63")
A(f"s_cmp_ge_u32 s{sW}, 4\ns_cbranch_scc1 L_lwave")
srd(SWR, 1024)
A(f"""v_and_b32 v2, 31, v{vL}
v_lshlrev_b32 v{vSA}, 4, v2
v_lshrrev_b32 v3, 5, v{vL}
v_lshl_add_u32 v4, v3, 10, v{vSA}
s_lshl2_add_u32 s20, s{sP}, s{sW}
s_lshl_b32 s20, s20, 1
s_lshl_b32 s21, s20, 10
s_waitcnt lgkmcnt(0)
buffer_load_dwordx4 v[8:11], v4, {SR(SX)}, s21 offen
buffer_load_dwordx4 v[12:15], v4, {SR(SX)}, s21 offen offset:512
buffer_load_dwordx4 v[16:19], v{vSA}, {SR(SWR)}, 0 offen
buffer_load_dwordx4 v[20:23], v{vSA}, {SR(SWR)}, 0 offen offset:512
""")
A("s_branch L_cwave")

def frag_addrs():
    A(f"""v_and_b32 v2, 31, v{vL}
v_lshrrev_b32 v3, 5, v{vL}
v_bfe_u32 v4, v2, 1, 3
v_xor_b32 v4, v4, v3
v_lshlrev_b32 v4, 4, v4
v_lshl_add_u32 v4, v2, 7, v4
v_add_u32 v{vXA}, s28, v4
v_xor_b32 v{vXA+1}, 32, v{vXA}
v_xor_b32 v{vXA+2}, 64, v{vXA}
v_xor_b32 v{vXA+3}, 96, v{vXA}
v_bfe_u32 v4, v{vL}, 2, 2
v_lshlrev_b32 v4, 7, v4
v_lshl_add_u32 v4, v3, 11, v4
v_bfe_u32 v5, v{vL}, 3, 1
v_lshl_add_u32 v4, v5, 6, v4
v_bfe_u32 v5, v{vL}, 4, 1
v_lshl_add_u32 v4, v5, 5, v4
v_and_b32 v5, 3, v{vL}
v_lshl_add_u32 v{vGA}, v5, 3, v4
s_lshl_b32 s20, s{sCT}, 6
v_xor_b32 v4, s20, v{vGA}
v_add_u32 v{vWA0}, s29, v4
v_add_u32 v{vWA1}, {3*16384}, v{vWA0}
v_lshrrev_b32 v4, 4, v{vL}
v_xor_b32 v4, v4, v{vL}
v_and_b32 v4, 1, v4
v_add_u32 v4, -1, v4
v_and_b32 v{SEL}, 0x3f803f80, v4
v_mov_b32 v{SEL+1}, v{SEL}
v_mov_b32 v{SEL+2}, v{SEL}
v_mov_b32 v{SEL+3}, v{SEL}""")
    for r in range(4): A(f"v_mov_b32 v{CS+r}, 0")
def wa(slot, off):
    return (vWA0, slot * 16384 + off) if slot < 3 else (vWA1, (slot - 3) * 16384 + off)
def csum_mfma(wf): return f"v_mfma_f32_16x16x32_bf16 {R(CS,4)}, {R(SEL,4)}, {R(wf,4)}, {R(CS,4)}"
def corr_w(dst):
    A(f"""s_mov_b32 s20, 0xffff0000
s_mov_b32 s21, 0xffff0000
v_cndmask_b32_e64 v2, v{CS}, v{CS+1}, s[20:21]
v_mul_f32 v2, 0.5, v2""")
    bf16round(3, 2)
    A("v_sub_f32 v2, v2, v3")
    bf16round(4, 2)
    A(f"""v_sub_f32 v2, v2, v4
v_cvt_pk_bf16_f32 v{dst}, v3, v4
v_cvt_pk_bf16_f32 v{dst+1}, v2, 0""")
def corr_x(dst, m):
    A(f"""v_cvt_pk_bf16_f32 v{dst}, -v{m}, -v{m}
v_cvt_pk_bf16_f32 v{dst+1}, -v{m}, 0
v_mov_b32 v{dst+2}, 0
v_mov_b32 v{dst+3}, 0""")
def Kf(k): return SL + 12 * k
def Vf(k, g): return SL + 12 * k + 4 + 4 * g
def attn_setup_s():
    A(f"""s_sub_u32 s20, 3, s{sROLE}
s_cmp_eq_u32 s{sROLE}, 0
s_cselect_b32 s21, 4, 1
s_sub_u32 s22, s{sI}, s20
s_lshl_b32 s22, s22, 3
s_add_u32 s22, s22, s{sC}
s_cmp_ge_u32 s{sI}, s20
s_cselect_b32 s{sH1}, -1, 0
s_cselect_b32 s22, s22, 0x10000
s_sub_u32 s23, s{sI}, s21
s_lshl_b32 s23, s23, 3
s_add_u32 s23, s23, s{sC}
s_cmp_ge_u32 s{sI}, s21
s_cselect_b32 s{sH2}, -1, 0
s_cselect_b32 s23, s23, 0x10000
s_lshl_b32 s{sRB}, s22, 14
s_add_u32 s{sRB}, s{sRB}, {WS_KV}
s_add_u32 s{sRB+1}, s{sRB}, 4096
s_lshl_b32 s{sRB+2}, s23, 14
s_add_u32 s{sRB+2}, s{sRB+2}, {WS_KV}
s_add_u32 s{sRB+3}, s{sRB+2}, 4096
s_lshl_b32 s{sRB+4}, s22, 12
s_add_u32 s{sRB+4}, s{sRB+4}, {WS_KVC}
s_lshl_b32 s{sRB+5}, s23, 12
s_add_u32 s{sRB+5}, s{sRB+5}, {WS_KVC}
s_lshl_b32 s{sWOD}, s{sW}, 16
s_and_b32 s20, s{sC}, 3
s_lshl_b32 s20, s20, 8
s_add_u32 s{sWOD}, s{sWOD}, s20
s_xor_b32 s{sM0}, s{sW}, 4
s_lshl_b32 s{sM0}, s{sM0}, 14
s_mov_b32 s{sWB}, s{sI}
s_add_u32 s{sWE}, s{sI}, 4
s_lshl_b32 s{sQK}, s{sI}, 1
s_lshr_b32 s21, s{sC}, 2
s_add_u32 s{sQK}, s{sQK}, s21
s_lshl_b32 s{sOUTO}, s{sQK}, 15
s_add_u32 s{sOUTO}, s{sOUTO}, s20
s_lshl_b32 s20, s{sHH}, 6
s_add_u32 s{sOUTO}, s{sOUTO}, s20""")
    srd(SWD, 0 if opts.get('nogw') else 1376 * 1024); srd(SOUT, 2048 * 1024); srd(SWO, 0 if opts.get('nowo') else 512 * 1024); srd(SWS, WS_SIZE)
def attn_setup_v():
    A(f"""s_lshl_b32 s20, s{sHH}, 10
v_lshlrev_b32 v{vRK}, 4, v{vL}
s_lshl_b32 s21, s{sW}, 12
s_add_u32 s21, s21, {L_TAIL}
v_add_u32 v{vEX}, s21, v{vRK}
v_add_u32 v{vRK}, s20, v{vRK}
v_lshrrev_b32 v{vRKC}, 1, v{vRK}
v_add_u32 v{vRV}, 8192, v{vRK}
v_lshrrev_b32 v2, 4, v{vL}
v_and_b32 v3, 15, v{vL}
v_lshlrev_b32 v4, 2, v2
v_xor_b32 v3, v3, v4
v_lshlrev_b32 v3, 4, v3
v_lshl_add_u32 v{vWO}, v2, 10, v3
v_add_u32 v{vWO+1}, 3072, v{vWO}
v_add_u32 v{vWO+2}, 6144, v{vWO}
v_add_u32 v{vWO+3}, 9216, v{vWO}
v_and_b32 v3, 31, v{vL}
v_lshrrev_b32 v4, 5, v{vL}
v_lshlrev_b32 v{vOUT}, 10, v3
v_lshl_add_u32 v{vOUT}, v4, 4, v{vOUT}
v_mul_u32_u24 v4, {1408*16}, v4
v_lshl_add_u32 v255, v3, 4, v4
v_mov_b32 v{vM0}, 0
v_mov_b32 v{vM1}, 0""")
def mk_setup():
    A(f"""v_and_b32 v2, 31, v{vL}
v_lshrrev_b32 v3, 5, v{vL}
v_lshlrev_b32 v3, 2, v3
v_sub_u32 v2, v2, v3
v_mov_b32 v192, -1
v_mov_b32 v193, -1""")
    for k in range(8):
        j0 = 8 * (k // 2) + 2 * (k % 2)
        A(f"""v_add_u32 v3, {1 - j0}, v2
v_med3_i32 v3, v3, 0, 2
v_lshlrev_b32 v3, 4, v3
v_lshlrev_b64 v[194:195], v3, v[192:193]
v_mov_b32 v{MK+k}, v194""")
def v_prefill(n):
    A(f"v_mov_b32 v{Vf(0,1)}, 0x3f803f80")
    for k in range(n):
        for r in range(4):
            if k or r: A(f"v_mov_b32 v{Vf(k,1)+r}, v{Vf(0,1)}")
def k_issue():
    for k in range(4):
        A(f"buffer_load_dwordx4 {R(Kf(k),4)}, v{vRK}, {SR(SWS)}, s{sRB+k} offen sc1")
    for p in range(2):
        A(f"buffer_load_dwordx2 {R(KC+2*p,2)}, v{vRKC}, {SR(SWS)}, s{sRB+4+p} offen sc1")
def v_issue():
    for k in range(4):
        A(f"buffer_load_dwordx4 {R(Vf(k,0),4)}, v{vRV}, {SR(SWS)}, s{sRB+k} offen sc1")
    for p in range(2):
        A(f"buffer_load_dwordx2 {R(VC+2*p,2)}, v{vRKC}, {SR(SWS)}, s{sRB+4+p} offen offset:2048 sc1")

A.label("L_lwave")
srd(SW, 512 * 3072)
A(f"""s_add_u32 s20, s{sC}, s{sI}
s_and_b32 s20, s20, 3
s_lshl_b32 s{sROT}, s20, 1
s_sub_u32 s{sHH}, s{sW}, 4
v_lshrrev_b32 v2, 3, v{vL}
v_and_b32 v3, 7, v{vL}
v_lshrrev_b32 v4, 1, v2
v_xor_b32 v5, v3, v4
v_lshlrev_b32 v5, 4, v5
v_lshl_add_u32 v{vX0}, v2, 10, v5
v_xor_b32 v5, 64, v5
v_lshl_add_u32 v{vX1}, v2, 10, v5
v_add_u32 v{vX1}, {8192-1024}, v{vX1}
v_and_b32 v4, 1, v4
v_lshlrev_b32 v4, 2, v4
v_xor_b32 v5, v3, v4
v_lshlrev_b32 v84, 4, v5
v_mul_u32_u24 v{vW0}, 3072, v2
v_add_u32 v{vW0}, v{vW0}, v84
v_add_u32 v{vW1}, {24576-2048}, v{vW0}
s_lshl_b32 s{sXO}, s{sI}, 16
s_lshl_b32 s20, s{sHH}, 14
s_add_u32 s{sXO}, s{sXO}, s20
s_lshl_b32 s{sWOFF}, s{sC}, 7
s_mul_i32 s20, s{sHH}, {16*3072}
s_add_u32 s{sWOFF}, s{sWOFF}, s20
s_lshl_b32 s31, s{sHH}, 11
s_lshl_b32 s32, s{sHH}, 12
s_waitcnt lgkmcnt(0)""")
if PROF == 1: A("s_memtime s[92:93]")
XOF = {u: [u] for u in range(8)}
def issue_unit(u):
    slot = slot_of(u)
    for t in XOF.get(u, []):
        A(f"""s_add_u32 s33, s{sROT}, {t}
s_and_b32 s33, s33, 7
s_lshl_b32 s34, s33, 7
s_add_u32 m0, s31, {L_X + t*8192}
s_add_u32 s34, s34, s{sXO}
buffer_load_dwordx4 v{vX0}, {SR(SX)}, s34 offen lds
buffer_load_dwordx4 v{vX1}, {SR(SX)}, s34 offen offset:1024 lds""")
    if u < 8:
        A(f"""s_add_u32 s33, s{sROT}, {u}
s_and_b32 s33, s33, 7
s_mul_i32 s35, s33, {64*3072}
s_add_u32 s35, s35, s{sWOFF}
s_add_u32 m0, s32, {L_RING + slot*16384}
s_add_u32 s35, s35, 1024
buffer_load_dwordx4 v{vW0}, {SR(SW)}, s35 offen lds
buffer_load_dwordx4 v{vW0}, {SR(SW)}, s35 offen offset:1024 lds
buffer_load_dwordx4 v{vW1}, {SR(SW)}, s35 offen offset:2048 lds
buffer_load_dwordx4 v{vW1}, {SR(SW)}, s35 offen offset:3072 lds""")
    else:
        for e in range(2):
            A(f"""s_add_u32 s33, s{sROT}, {2*(u-8)+e}
s_and_b32 s33, s33, 7
s_mul_i32 s35, s33, {64*3072}
s_add_u32 m0, s32, {L_RING + slot*16384 + e*1024}
s_add_u32 s35, s35, s{sWOFF}
buffer_load_dwordx4 v{vW0}, {SR(SW)}, s35 offen lds
buffer_load_dwordx4 v{vW1}, {SR(SW)}, s35 offen offset:2048 lds""")
def ucount(u): return 4 + 2 * len(XOF.get(u, []))
def lgw_issue():
    srd(SWG, 512 * 2752); srd(SWU, 512 * 2752)
    A(f"""v_lshrrev_b32 v2, 3, v{vL}
v_mul_u32_u24 v3, 2752, v2
v_and_b32 v4, 7, v{vL}
v_lshl_add_u32 v86, v4, 4, v3
s_and_b32 s33, s{sP}, 7
s_lshl_b32 s33, s33, 6
s_lshl_b32 s34, s{sHH}, 4
s_add_u32 s33, s33, s34
s_mul_i32 s33, s33, 2752
s_lshr_b32 s34, s{sGU}, 3
s_lshl_b32 s34, s34, 7
s_add_u32 s33, s33, s34
s_cmp_ge_u32 s{sGU}, 176
s_cselect_b32 s33, 0x40000000, s33
s_add_u32 s34, s33, {8*2752}
buffer_load_dwordx4 {R(GW,4)}, v86, {SR(SWG)}, s33 offen
buffer_load_dwordx4 {R(GW+4,4)}, v86, {SR(SWU)}, s33 offen
buffer_load_dwordx4 {R(GW+8,4)}, v86, {SR(SWG)}, s34 offen
buffer_load_dwordx4 {R(GW+12,4)}, v86, {SR(SWU)}, s34 offen""")
ops = []
for u in range(DEPTH):
    issue_unit(u); ops += [u] * ucount(u)
    if u == 0 and not opts.get("nocpf"):
        A(f"""s_getpc_b64 s[22:23]
s_lshr_b32 s20, s2, 3
s_lshl2_add_u32 s20, s20, s{sHH}
s_lshl_b32 s20, s20, 8
s_min_u32 s20, s20, CODE_PF_MAX
s_add_u32 s22, s22, s20
s_addc_u32 s23, s23, 0""")
        for o_ in (0, 64, 128, 192): A(f"s_load_dword s100, s[22:23], {o_}")
late_setup()
if PROF == 1: A(f"s_waitcnt lgkmcnt(0)\nv_writelane_b32 v{vTS}, s94, 0\nv_writelane_b32 v{vTS}, s92, 48")
TS(1)
SA = 112
A(f"""s_and_b32 s{sCT}, s{sHH}, 1
s_lshr_b32 s28, s{sHH}, 1
s_lshl_b32 s28, s28, 12
s_mov_b32 s29, {L_RING}
s_mov_b32 s{sROLE}, 0
v_lshlrev_b32 v85, 4, v{vL}
s_lshl_b32 s30, s{sI}, 10
s_add_u32 s30, s30, {WS_STATS}
s_cmp_lg_u32 s{sHH}, 0
s_cselect_b32 s30, 0x40000000, s30
s_mov_b32 s36, {WS_BEST}
s_cmp_lg_u32 s{sHH}, 1
s_cselect_b32 s36, 0x40000000, s36""")
A(f"""s_lshl2_add_u32 s20, s{sHH}, {L_QRDY}
v_mov_b32 v198, s20
v_mov_b32 v199, {L_QRDY}
v_mov_b32 v2, 0
ds_write_b32 v198, v2""")
attn_setup_s()
def sib_issue(): A(f"buffer_load_dwordx4 {R(SA,4)}, v85, {SR(SWS)}, s30 offen sc1")
lp = split(capture(lambda: (frag_addrs(), attn_setup_v(), v_prefill(6), mk_setup())), 6)
lpieces = {0: lp[0], 1: lp[1], 2: lp[2], 3: lp[3], 4: lp[4], 5: lp[5]}
def younger_than(tag): return len(ops) - 1 - max(k for k, x in enumerate(ops) if x == tag)
issued = DEPTH
for u in range(8):
    TSL(32 + u)
    A(f"s_waitcnt vmcnt({younger_than(u)})")
    TSL(16 + u)
    A("s_barrier")
    TSL(24 + u)
    if u == SIBU:
        sib_issue(); ops.append("sib")
    tgt = min(12, u + 1 + DEPTH + max(0, u - 1 - DEPTH), u + 5)
    while issued < tgt:
        issue_unit(issued); ops += [issued] * ucount(issued)
        if issued == LGW: lgw_issue(); ops += ['gw'] * 4
        issued += 1
    if u == 5: A(f"v_mov_b32 v122, {L_NONCE}\nds_read_b32 v123, v122")
    emit(lpieces.get(u, []))
    if u == 6:
        lb = A.newlabel("L_nsib")
        A(f"""s_waitcnt lgkmcnt(0)
v_readfirstlane_b32 s{sNONCE}, v123
s_cmp_lg_u32 s{sHH}, 0
s_cbranch_scc1 {lb}""")
        validated(sib_issue, lambda: A(f"v_cmp_ne_u32 vcc, s{sNONCE}, v{SA+3}"), younger_than("sib"))
        A(f"""v_lshrrev_b32 v122, 1, v85
v_lshrrev_b32 v123, 2, v85
v_add_u32 v122, {L_STAT}, v122
v_add_u32 v123, {L_RINV}, v123
ds_write_b64 v122, {R(SA,2)}
ds_write_b32 v123, v{SA+1}
s_waitcnt lgkmcnt(0)""")
        A.label(lb)
assert issued == 12, issued
TS(2)
LST, LSC, LCX, LCW = 116, 118, 120, 124
for r in range(16): A(f"v_mov_b32 v{ACC+r}, 0")
A(f"""v_and_b32 v2, 31, v{vL}
v_lshlrev_b32 v2, 3, v2
s_lshr_b32 s20, s28, 4
s_add_u32 s20, s20, {L_STAT}
v_add_u32 v2, s20, v2
ds_read_b64 {R(LST,2)}, v2
s_waitcnt lgkmcnt(0)""")
corr_x(LCX, LST)
A(f"""v_mul_f32 v{LSC}, {f32(0.25*LOG2E)}, v{LST+1}
v_mov_b32 v{LCW+2}, 0
v_mov_b32 v{LCW+3}, 0
s_lshl_b32 s30, s{sHH}, 11
s_add_u32 s30, s30, {L_QF}
v_lshlrev_b32 v5, 4, v{vL}
v_add_u32 v5, s30, v5""")
Q2 = 192
A(f"""s_lshl_b32 s20, s28, 1
s_lshr_b32 s21, s28, 2
s_xor_b32 s22, s20, 8192
s_xor_b32 s23, s21, 1024""")
for st in range(4): A(f"v_add_u32 v{Q2+st}, s22, v{vXA+st}\nv_add_u32 v{vXA+st}, s20, v{vXA+st}")
A(f"""v_add_u32 v{Q2+4}, s23, v{vWA0}
v_add_u32 v{Q2+5}, s23, v{vWA1}
v_add_u32 v{vWA0}, s21, v{vWA0}
v_add_u32 v{vWA1}, s21, v{vWA1}
s_lshl_b32 s22, s{sHH}, 8
s_add_u32 s22, s22, {L_CSX}
v_lshl_add_u32 v86, v{vL}, 2, s22
v_xor_b32 v87, 512, v86
s_mov_b32 s20, 0xffff0000
s_mov_b32 s21, 0xffff0000""")
QORD = [(0, 0), (1, 0), (2, 0), (0, 1), (1, 1), (3, 0), (2, 1), (3, 1)]
def q_reads(n):
    m, oth = QORD[n // 4]; st = n % 4; b = STB + 8 * (n % 8)
    out = [f"ds_read_b128 {R(b,4)}, v{(Q2 if oth else vXA)+st} offset:{m*16384}"]
    for j in range(2):
        r, o = wa(slot_of(8 + m), st * 4096 + j * 512)
        if oth: r = Q2 + 4 + (r - vWA0)
        out.append(f"ds_read_b64_tr_b16 {R(b+4+2*j,2)}, v{r} offset:{o}")
    return out
def rendezvous(level):
    lr = A.newlabel("L_qr")
    A.label(lr)
    A(f"""ds_read_b128 {R(220,4)}, v199
s_waitcnt lgkmcnt(0)
v_min3_u32 v3, v220, v221, v222
v_min_u32 v3, v3, v223
v_cmp_gt_u32 vcc, {level}, v3""")
    retry_check(lr)
A("v_mov_b32 v218, 1\nv_mov_b32 v219, 2\ns_waitcnt vmcnt(4)\nds_write_b32 v198, v218")
rendezvous(1)
TS(3)
QB9 = int(opts.get("qb9", 25))
lq = []
def lds(tag, txt): A(txt); lq.append(tag)
def lwait(tag): A(f"s_waitcnt lgkmcnt({min(15, len(lq) - 1 - max(k for k, x in enumerate(lq) if x == tag))})")
for n in range(4):
    for x in q_reads(n): lds(n, x)
cwl = capture(lambda: corr_w(LCW))[3:]
for n in range(32):
    lwait(n)
    b = STB + 8 * (n % 8)
    if not QORD[n // 4][1]: A(csum_mfma(b + 4))
    A(mfma32(ACC, b + 4, b))
    if n == 10:
        A("s_waitcnt vmcnt(0)"); lds("fl", "ds_write_b32 v198, v219")
    if n == 16: rendezvous(2)
    if n + 4 < 32:
        for x in q_reads(n + 4): lds(n + 4, x)
    if n == 24:
        A(f"v_cndmask_b32_e64 v2, v{CS}, v{CS+1}, s[20:21]")
        lds("cs", "ds_write_b32 v86, v2")
    if n == QB9:
        lwait("cs")
        A("s_barrier")
        lds("cp", "ds_read_b32 v4, v87")
    if n == 30:
        lwait("cp"); A("v_add_f32 v2, v2, v4"); emit(cwl[:4])
    if n == 31: emit(cwl[4:])
TS(4)
A(mfma32(ACC, LCW, LCX))
for r in range(16): A(f"v_mul_f32 v{ACC+r}, v{ACC+r}, v{LSC}")
for k in range(8): A(f"v_cvt_pk_bf16_f32 v{STB+k}, v{ACC+2*k}, v{ACC+2*k+1}")
A(f"ds_write_b128 v5, {R(STB,4)}\nds_write_b128 v5, {R(STB+4,4)} offset:1024")
TS(50)
A("s_branch L_join")

A.label("L_cwave")
A(f"s_load_dword s{sNONCE}, s[{SWS}:{SWS+1}], {WS_EPOCH}")
late_setup()
if PROF == 1: A(f"v_writelane_b32 v{vTS}, s94, 0")
srd(SWG, 512 * 2752); srd(SWU, 512 * 2752)
A(f"v_mov_b32 v{vZ}, 0\nv_add_u32 v62, s20, v3")
A(f"""s_and_b32 s{sCT}, s{sW}, 1
s_mov_b32 s28, 0
s_lshr_b32 s29, s{sW}, 1
s_lshl_b32 s29, s29, 10
s_add_u32 s29, s29, {L_RING}
s_mov_b32 s{sHH}, s{sW}
s_mov_b32 s{sROLE}, 1
v_lshlrev_b32 v{vBA}, 4, v{vL}
s_lshl_b32 s35, s{sW}, 10
s_add_u32 s35, s35, {WS_BEST}
s_lshl_b32 s33, s{sP}, 14
s_add_u32 s33, s33, {WS_KV}
s_add_u32 s36, s33, 4096
s_lshl_b32 s34, s{sP}, 12
s_add_u32 s34, s34, {WS_KVC}""")
frag_addrs()
srd(SWS, WS_SIZE)
A(f"""v_lshrrev_b32 v2, 3, v{vL}
v_mul_u32_u24 v3, 2752, v2
v_and_b32 v4, 7, v{vL}
v_lshl_add_u32 v5, v4, 4, v3
s_and_b32 s31, s{sP}, 7
s_lshl_b32 s31, s31, 6
s_lshl_b32 s32, s{sW}, 4
s_add_u32 s31, s31, s32
s_mul_i32 s31, s31, 2752
s_lshr_b32 s32, s{sGU}, 3
s_lshl_b32 s32, s32, 7
s_add_u32 s31, s31, s32
s_cmp_ge_u32 s{sGU}, {0 if (opts.get("nogw") or LGW >= 0) else 176}
s_cselect_b32 s31, 0x40000000, s31
s_add_u32 s32, s31, {8*2752}""")
def gw_issue():
    A(f"""buffer_load_dwordx4 {R(GW,4)}, v5, {SR(SWG)}, s31 offen
buffer_load_dwordx4 {R(GW+4,4)}, v5, {SR(SWU)}, s31 offen
buffer_load_dwordx4 {R(GW+8,4)}, v5, {SR(SWG)}, s32 offen
buffer_load_dwordx4 {R(GW+12,4)}, v5, {SR(SWU)}, s32 offen""")
if int(opts.get("d2", 1)):
    A(f"""v_mov_b32 v40, 0
v_mov_b32 v41, 0
v_mov_b32 v42, 0
v_mov_b32 v43, 0
v_mov_b32 v48, 0x3f803f80
v_sub_u32 v47, 2047, v62
v_and_b32 v46, 7, v62
v_lshlrev_b32 v46, 4, v46
v_add_u32 v46, {L_RT}, v46
s_mov_b32 s26, 0xffff0000""")
    PREW = int(opts.get("prew", 0))
    def prewrite():
        A(f"""s_lshl_b32 s20, s{sW}, 12
s_add_u32 s21, s33, s20
s_lshl_b32 s22, s{sW}, 10
s_add_u32 s22, s34, s22
s_lshl_b32 s23, s{sI}, 4
s_add_u32 s23, s23, s{sC}
s_and_b32 s24, s{sW}, 1
s_lshl_b32 s24, s24, 3
s_add_u32 s23, s23, s24
s_lshl_b32 s24, s23, 12
s_lshr_b32 s25, s{sW}, 1
s_lshl_b32 s25, s25, 11
s_add_u32 s24, s24, s25
s_add_u32 s24, s24, {WS_O}
s_lshl_b32 s23, s23, 10
s_add_u32 s23, s23, {WS_OC}""")
        if PREW & 1:
            for k in range(4): A(f"buffer_store_dwordx4 {R(ACC,4)}, v{vBA}, {SR(SWS)}, s21 offen offset:{k*1024} sc1")
            A(f"buffer_store_dwordx4 {R(ACC,4)}, v{vBA}, {SR(SWS)}, s22 offen sc1")
        if PREW & 2:
            for k in range(2): A(f"buffer_store_dwordx4 {R(ACC,4)}, v{vBA}, {SR(SWS)}, s24 offen offset:{k*1024} sc1")
            A(f"buffer_store_dwordx4 {R(ACC,4)}, v{vBA}, {SR(SWS)}, s23 offen sc1")
    NPW = (5 if PREW & 1 else 0) + (3 if PREW & 2 else 0)
    if PREW: prewrite()
    A(f"s_waitcnt vmcnt({2 + NPW})")
    TS(1)
    if int(opts.get("np1", 0)): A(f"s_lshl_b32 s24, s{sW}, 8\nbuffer_load_dword v60, v{vZ}, {SR(SDBG)}, s24 offen sc1")
    for k in range(8): A(f"v_dot2_f32_bf16 v40, v{8+k}, v48, v40\nv_dot2_f32_bf16 v41, v{8+k}, v{8+k}, v41")
    A("s_waitcnt vmcnt(%d)" % NPW)
    for k in range(8): A(f"v_dot2_f32_bf16 v42, v{8+k}, v{16+k}, v42\nv_dot2_f32_bf16 v43, v{16+k}, v48, v43")
    for m in DPP8 + ("row_mirror",):
        for r in range(4): A(dpp("v_add_f32", 40 + r, m))
    for r in range(4): A(f"v_mov_b32 v{24+r}, v{40+r}")
    for r in range(4): A(f"v_permlane16_swap_b32 v{40+r}, v{24+r}")
    for r in range(4): A(f"v_add_f32 v{40+r}, v{40+r}, v{24+r}")
    A(f"""v_mul_f32 v40, {f32(1.0/512)}, v40
v_mul_f32 v41, {f32(1.0/512)}, v41
v_fma_f32 v41, -v40, v40, v41
v_max_f32 v41, 0, v41""")
    bf16round(40, 40)
    A("v_fma_f32 v42, -v40, v43, v42")
    var_to_rinv(41)
    A("v_mul_f32 v42, v42, v41")
    bf16round(42, 42)
    A(f"""v_ashrrev_i32 v45, 31, v42
v_or_b32 v45, 0x80000000, v45
v_xor_b32 v42, v42, v45
v_and_or_b32 v42, v42, s26, v47
ds_write_b96 v46, v[40:42]""")
else:
    A("s_waitcnt vmcnt(2)")
    TS(1)
    XU = 24
    for k in range(8):
        A(f"v_lshlrev_b32 v{XU+2*k}, 16, v{8+k}\nv_and_b32 v{XU+2*k+1}, 0xffff0000, v{8+k}")
    A(f"v_pk_add_f32 v[40:41], {R(XU,2)}, {R(XU+2,2)}")
    for k in range(4, 16, 2): A(f"v_pk_add_f32 v[40:41], v[40:41], {R(XU+k,2)}")
    A("v_add_f32 v40, v40, v41")
    allreduce32(40, 41, "v_add_f32")
    A(f"v_mul_f32 v40, {f32(-1.0/512)}, v40")
    A("v_cvt_pk_bf16_f32 v42, -v40, -v40\nv_and_b32 v42, 0xffff0000, v42")
    A(f"v_pk_add_f32 v[46:47], {R(XU,2)}, v[40:41] op_sel_hi:[1,0]\nv_pk_mul_f32 v[44:45], v[46:47], v[46:47]")
    for k in range(2, 16, 2):
        A(f"v_pk_add_f32 v[46:47], {R(XU+k,2)}, v[40:41] op_sel_hi:[1,0]\nv_pk_fma_f32 v[44:45], v[46:47], v[46:47], v[44:45]")
    A("v_add_f32 v43, v44, v45")
    allreduce32(43, 41, "v_add_f32")
    for k in range(0, 16, 2): A(f"v_pk_add_f32 {R(XU+k,2)}, {R(XU+k,2)}, v[42:43] op_sel_hi:[1,0] neg_lo:[0,1] neg_hi:[0,1]")
    A(f"v_mul_f32 v43, {f32(1.0/512)}, v43")
    for k in range(8): A(f"v_cvt_pk_bf16_f32 v{8+k}, v{XU+2*k}, v{XU+2*k+1}")
    var_to_rinv(43)
    for k in range(8):
        A(f"v_lshlrev_b32 v{XU+2*k}, 16, v{8+k}\nv_and_b32 v{XU+2*k+1}, 0xffff0000, v{8+k}")
    for k in range(0, 16, 2): A(f"v_pk_mul_f32 {R(XU+k,2)}, {R(XU+k,2)}, v[42:43] op_sel:[0,1]")
    for k in range(8): A(f"v_cvt_pk_bf16_f32 v{8+k}, v{XU+2*k}, v{XU+2*k+1}")
    A("v_mov_b32 v44, 0\ns_waitcnt vmcnt(0)")
    for k in range(8): A(f"v_dot2_f32_bf16 v44, v{8+k}, v{16+k}, v44")
    allreduce32(44, 41, "v_add_f32")
    bf16round(44, 44)
    A(f"""v_ashrrev_i32 v45, 31, v44
v_or_b32 v45, 0x80000000, v45
v_xor_b32 v44, v44, v45
v_and_b32 v44, 0xffff0000, v44
v_sub_u32 v45, 2047, v62
v_or_b32 v44, v44, v45
v_and_b32 v46, 7, v62
v_lshlrev_b32 v46, 4, v46
v_add_u32 v46, {L_RT}, v46
ds_write_b96 v46, v[42:44]
""")
A(f"""s_waitcnt lgkmcnt(0)
s_add_u32 s{sNONCE}, s{sNONCE}, 1""")
A(f"v_mov_b32 v44, s{sNONCE}\nv_mov_b32 v45, {L_NONCE}\nds_write_b32 v45, v44")
if PWS:
    A(f"""v_mov_b32 v43, s{sNONCE}
v_lshlrev_b32 v44, 4, v62
s_mov_b32 s24, 1
s_mov_b32 s25, 1
s_mov_b32 s27, {WS_STATS}""")
    PUBG = f"s_mov_b64 exec, s[24:25]\nbuffer_store_dwordx4 v[40:43], v44, {SR(SWS)}, s27 offen sc1\ns_mov_b64 exec, -1"
    F0 = int(opts.get("f0", 2))
    if not (F0 & 1): A(PUBG)
A(f"""s_setprio {int(opts.get("prio", 2))}""")
if GWP == 2 and not (F0 & 2): gw_issue()
A('v_mov_b32 v54, v5')
TS(2)
A("s_waitcnt lgkmcnt(0)")
A(f"s_cmp_ge_u32 s{sW}, 2\ns_cbranch_scc1 L_vwave")

def kv_reads(n):
    u = n // 4; st = n % 4; b = STB + 12 * (n % 6)
    out = [f"ds_read_b128 {R(b+4*qb,4)}, v{vXA+st} offset:{u*8192 + qb*4096}" for qb in range(2)]
    for j in range(2):
        r, o = wa(slot_of(u), st * 4096 + j * 512)
        out.append(f"ds_read_b64_tr_b16 {R(b+8+2*j,2)}, v{r} offset:{o}")
    return out
def kv_mm(n, isK, cs=True):
    b = STB + 12 * (n % 6)
    out = [csum_mfma(b + 8)] if cs else []
    for qb in range(2):
        c0 = 0 if n == 0 else None
        out.append(mfma32(ACC + 16 * qb, b + 8, b + 4 * qb, c0) if isK else mfma32(ACC + 16 * qb, b + 4 * qb, b + 8, c0))
    return out
def kv_interval(u, isK, fill=(), post_reads=()):
    rd = [x for n in range(4 * u, 4 * u + 4) for x in kv_reads(n)]
    old = [x for n in (4 * u - 2, 4 * u - 1) if n >= 0 for x in kv_mm(n, isK)]
    fill = list(fill)
    per = (len(fill) + 5) // 6
    emit(rd[:4])
    rest = rd[4:]
    for m in old:
        A(m); emit(rest[:2]); rest = rest[2:]
    emit(rest)
    for k, n in enumerate((4 * u, 4 * u + 1)):
        A(f"s_waitcnt lgkmcnt({12 - 4*k})")
        for m in kv_mm(n, isK):
            A(m); emit(fill[:per]); fill = fill[per:]
    emit(fill)
    emit(post_reads)
    A("s_waitcnt lgkmcnt(0)")
BT = 68
def best_issue(): A(f"buffer_load_dwordx4 {R(BT,4)}, v{vBA}, {SR(SWS)}, s35 offen sc1")
def nonce_issue(): A(f"buffer_load_dword v60, v{vZ}, {SR(SDBG)}, 0 offen sc1")
CX0, CX1, CW = 40, 44, 56
def publish():
    lb = A.newlabel("L_np")
    A(f"s_cmp_lg_u32 s{sW}, 0\ns_cbranch_scc1 {lb}")
    A(f"""v_mov_b32 v51, s{sNONCE}
s_lshl_b32 s20, s{sP}, 4
s_add_u32 s20, s20, {WS_BEST}
s_lshl_b32 s21, s{sP}, 7
s_add_u32 s21, s21, {WS_STATS}
s_mov_b64 exec, 0xff""")
    if not PWS: A(f"buffer_store_dwordx4 v[48:51], v{vBA}, {SR(SWS)}, s21 offen sc1")
    A("v_mov_b32 v52, v50")
    for m in DPP8: A(dpp("v_max_u32", 52, m))
    A(f"""v_cmp_eq_u32 vcc, v52, v50
s_mov_b64 exec, vcc
buffer_store_dwordx4 v[48:51], v{vZ}, {SR(SWS)}, s20 offen sc1
s_mov_b64 exec, -1""")
    A.label(lb)
def cw_loop(isK):
    for u in range(8):
        TSL(16 + u)
        A("s_barrier")
        TSL(24 + u)
        fill = []; post = []
        if u == PUBU and isK:
            fill = [f"v_and_b32 v53, 0x70, v{vBA}", f"v_add_u32 v53, {L_RT}, v53"]; post = ["ds_read_b96 v[48:50], v53"]
        if u == 0: fill = fill + ([PUBG] if F0 & 1 else []) + (capture(gw_issue) if F0 & 2 else [])
        if u in (1, 2): fill = split(capture(attn_setup_s), 2)[u - 1] if False else (capture(attn_setup_s)[:25] if u == 1 else capture(attn_setup_s)[25:])
        if u == 4: fill = capture(attn_setup_v)
        if u == 3:
            fill = capture(lambda: A(f"""v_mov_b32 v{CW+2}, 0
v_mov_b32 v{CW+3}, 0
v_lshrrev_b32 v64, 1, v{vSA}
v_add_u32 v64, {L_STAT}, v64
v_mov_b32 v66, {L_NONCE}"""))
            if isK:
                fill += capture(lambda: A(f"""s_lshl_b32 s20, s{sCT}, 11
v_add_u32 v{vKA}, s20, v{vBA}
v_lshrrev_b32 v{vKC}, 1, v{vKA}"""))
            else:
                fill += capture(lambda: A(f"""v_and_b32 v2, 0x2f, v{vL}
v_bfe_u32 v3, v{vL}, 4, 1
s_lshl_b32 s20, s{sCT}, 1
v_add_u32 v3, s20, v3
v_lshlrev_b32 v{vKA}, 4, v2
v_lshl_add_u32 v{vKA}, v3, 10, v{vKA}
v_lshrrev_b32 v{vKC}, 1, v{vKA}
v_add_u32 v{vKA}, 8192, v{vKA}
v_lshrrev_b32 v65, 5, v{vL}
v_lshlrev_b32 v65, 4, v65
v_add_u32 v65, {L_RINV}, v65"""))
        if u == int(opts.get('bu', 7)): fill = fill + capture(best_issue)
        if u == 7:
            post = [f"ds_read_b64 {R(ST0,2)}, v64", f"ds_read_b64 {R(ST1,2)}, v64 offset:256"]
            if not isK:
                post += [f"ds_read_b128 {R(8+16*qb+4*a,4)}, v65 offset:{qb*128 + a*32}" for qb in range(2) for a in range(4)]
        kv_interval(u, isK, fill, post)
        TSL(32 + u)
        if u == PUBU and isK: publish()
        if GWP == 10 + u:
            A('v_mov_b32 v5, v54'); gw_issue()
    if not int(opts.get('nob8', 1)): A("s_barrier")
    TS(3)
    A(csum_mfma(STB + 12 * (30 % 6) + 8)); A(csum_mfma(STB + 12 * (31 % 6) + 8))
    mm = kv_mm(30, isK, False) + kv_mm(31, isK, False)
    A(mm[0]); corr_x(CX0, ST0)
    A(mm[1]); corr_x(CX1, ST1)
    cw = capture(lambda: corr_w(CW))
    A(mm[2]); emit(cw[:6]); A(mm[3]); emit(cw[6:])
    for qb, cx in enumerate((CX0, CX1)):
        A(mfma32(ACC + 16 * qb, CW, cx) if isK else mfma32(ACC + 16 * qb, cx, CW))
CSR = 144
def kv_store(isK):
    for qb in range(2):
        st = ST0 if qb == 0 else ST1
        for e in range(2):
            for r in range(8 * e, 8 * e + 8):
                A(f"v_mul_f32 v{ACC+16*qb+r}, v{ACC+16*qb+r}, v{st+1 if isK else 8+16*qb+r}")
            for k in range(4 * e, 4 * e + 4): A(f"v_cvt_pk_bf16_f32 v{OWN+8*qb+k}, v{ACC+16*qb+2*k}, v{ACC+16*qb+2*k+1}")
            b = OWN + 8 * qb + 4 * e; c_ = CSR + 2 * e + qb
            A(f"buffer_store_dwordx4 {R(b,4)}, v{vKA}, {SR(SWS)}, s{33 if qb == 0 else 36} offen offset:{e*(1024 if isK else 256)} sc1")
            A(f"v_add3_u32 v{c_}, v{b}, v{b+1}, v{b+2}\nv_add3_u32 v{c_}, v{c_}, v{b+3}, s{sNONCE}")
    for e in range(2):
        A(f"buffer_store_dwordx2 {R(CSR+2*e,2)}, v{vKC}, {SR(SWS)}, s34 offen offset:{e*512 if isK else 2048+e*128} sc1")

cw_loop(True); kv_store(True)
A("s_mov_b32 s39, 1024\ns_branch L_cpost")
A.label("L_vwave")
cw_loop(False); kv_store(False)
A("s_mov_b32 s39, 256")
A.label("L_cpost")
TS(4)
A("s_setprio %d" % int(opts.get("cp2", 0)))
WOW = int(opts.get("wow", 0))
if WOW:
    A(f"""s_and_b32 s20, s{sI}, 7
s_lshl_b32 s20, s20, 2
s_add_u32 s20, s20, s{sW}
s_lshl_b32 s20, s20, 14
s_and_b32 s21, s{sC}, 3
s_lshl_b32 s21, s21, 8
s_add_u32 s20, s20, s21""")
    for k in range(4): A(f"buffer_load_dwordx4 {R(176+4*k,4)}, v{vWO+k}, {SR(SWO)}, s20 offen offset:{k*1024}")
validated(best_issue, lambda: A(f"v_cmp_ne_u32 vcc, s{sNONCE}, v{BT+3}"), 6 + 4 * WOW)
A(f"v_mov_b32 v{BT+4}, v{BT+2}")
allreduce32(BT + 4, BT + 5, "v_max_u32")
A(f"""v_mov_b32 v{BT+5}, v{BT+4}
v_permlane32_swap_b32 v{BT+4}, v{BT+5}
v_max_u32 v{BT+4}, v{BT+4}, v{BT+5}
s_lshl_b32 s20, s{sW}, 4
s_add_u32 s20, s20, {L_IDX}
v_mov_b32 v2, s20
v_cmp_eq_u32 vcc, v{BT+4}, v{BT+2}
s_mov_b64 exec, vcc
ds_write_b128 v2, {R(BT,4)}
s_mov_b64 exec, -1
""")
def winner():
    A(f"v_mov_b32 v5, v{SB+2}")
    for m in DPP8[:2]: A(dpp("v_max_u32", 5, m))
    A(f"""v_cmp_eq_u32 vcc, v5, v{SB+2}
v_readfirstlane_b32 s{sKEY}, v5
s_ff1_i32_b32 s20, vcc_lo
v_readlane_b32 s{sSM}, v{SB}, s20
v_readlane_b32 s{sSR}, v{SB+1}, s20""")
A(f"""v_and_b32 v4, 3, v{vL}
v_lshlrev_b32 v4, 4, v4
v_add_u32 v4, {L_IDX}, v4
v_add_u32 v2, {L_OWN}, v{vKA}
v_add_u32 v3, s39, v2
v_and_b32 v72, 7, v{vL}
v_lshlrev_b32 v72, 2, v72
v_mov_b32 v74, v{vSA}
s_waitcnt lgkmcnt(0)
s_barrier""")
TS(48)
A(f"""ds_read_b128 {R(SB,4)}, v4
ds_write_b128 v2, {R(OWN,4)}
ds_write_b128 v3, {R(OWN+4,4)}
ds_write_b128 v2, {R(OWN+8,4)} offset:4096
ds_write_b128 v3, {R(OWN+12,4)} offset:4096
s_waitcnt lgkmcnt(4)""")
winner()
A(f"""s_and_b32 s24, s{sKEY}, 0x7ff
s_sub_u32 s24, 2047, s24
s_lshl_b32 s24, s24, 10
s_and_b32 s25, s{sP}, 7
s_lshl_b32 s25, s25, 7
s_add_u32 s24, s24, s25
s_lshl_b32 s25, s{sW}, 5
s_add_u32 s24, s24, s25
buffer_load_dword v73, v72, {SR(SX)}, s24 offen""")
A(f"""s_cmp_ge_u32 s{sC}, 4
s_cselect_b64 s[20:21], -1, 0
v_cndmask_b32_e64 v{vPM}, v{ST0}, v{ST1}, s[20:21]
v_cndmask_b32_e64 v{vPR}, v{ST0+1}, v{ST1+1}, s[20:21]
""")
A(f"""v_bfe_u32 v4, v{vL}, 4, 1
v_lshlrev_b32 v4, 6, v4
v_xor_b32 v2, v{vEX}, v4""")
if LGW < 0:
    for k in range(4): A(f"ds_write_b128 v2, {R(GW+4*k,4)} offset:{k*1024}")
v_prefill(4)
A("s_waitcnt vmcnt(1)")
TS(49)
k_issue()
TS(50)
if not int(opts.get('vl', 1)): v_issue()
TS(51)
A(f"""s_waitcnt vmcnt({6 if int(opts.get('vl', 1)) else 12})
v_lshlrev_b32 v2, 16, v73
v_and_b32 v3, 0xffff0000, v73
v_subrev_f32 v2, s{sSM}, v2
v_subrev_f32 v3, s{sSM}, v3
v_cvt_pk_bf16_f32 v4, v2, v3
v_lshlrev_b32 v2, 16, v4
v_and_b32 v3, 0xffff0000, v4
v_mul_f32 v2, s{sSR}, v2
v_mul_f32 v3, s{sSR}, v3
v_cvt_pk_bf16_f32 v4, v2, v3
s_add_u32 s25, s25, {L_XSEL}
v_add_u32 v72, s25, v72
ds_write_b32 v72, v4
v_mov_b32 v75, v{vWA1}""")

A.label("L_join")
A("s_setprio 0")
TS(5); RC(41)
A("s_waitcnt lgkmcnt(0)\ns_barrier")
A(f"""s_lshl_b32 s20, s{sROLE}, 12
s_add_u32 s21, s20, {L_QF}
s_xor_b32 s20, s20, 4096
s_add_u32 s20, s20, {L_QF}
v_add_u32 v2, s21, v{vRK}
v_add_u32 v3, s20, v{vRK}
ds_read_b128 {R(QF,4)}, v2
ds_read_b128 {R(QF+4,4)}, v3""")
lb = A.newlabel("L_noown"); lb2 = A.newlabel("L_noown2")
A(f"s_cmp_lg_u32 s{sROLE}, 0\ns_cbranch_scc1 {lb}")
A(f"""v_add_u32 v2, {L_OWN}, v{vRK}
v_and_b32 v4, 3, v{vL}
v_lshlrev_b32 v4, 4, v4
v_add_u32 v4, {L_IDX}, v4
ds_read_b128 {R(SB,4)}, v4
ds_read_b128 {R(Kf(4),4)}, v2
ds_read_b128 {R(Kf(5),4)}, v2 offset:4096
ds_read_b128 {R(Vf(4,0),4)}, v2 offset:8192
ds_read_b128 {R(Vf(5,0),4)}, v2 offset:12288
s_branch {lb2}""")
A.label(lb)
GX = 144; GF = 160
if int(opts.get('vl', 1)): v_issue()
A(f"""s_cmp_ge_u32 s{sGU}, 176
s_cbranch_scc1 {lb2}
s_cmp_ge_u32 s{sW}, 2
s_cbranch_scc1 {lb2}
v_lshrrev_b32 v2, 5, v{vL}
v_lshlrev_b32 v2, 4, v2
v_add_u32 v2, {L_XSEL}, v2""")
for st in range(4): A(f"ds_read_b128 {R(GX+4*st,4)}, v2 offset:{st*32}")
for st in range(4):
    for m in range(2):
        for j in range(2):
            A(f"ds_read_b64_tr_b16 {R(GF+8*st+4*m+2*j,2)}, v75 offset:{16384 + m*1024 + st*4096 + j*512}")
A.label(lb2)
A("s_waitcnt lgkmcnt(0)")
TS(6)
def g_stage():
    lb = A.newlabel("L_nog"); lb2 = A.newlabel("L_nog2")
    A(f"s_cmp_ge_u32 s{sGU}, 176\ns_cbranch_scc1 {lb}\ns_cmp_ge_u32 s{sW}, 2\ns_cbranch_scc1 {lb}")
    for st in range(4):
        for m in range(2): A(mfma32(ACC + 16 * m, GX + 4 * st, GF + 8 * st + 4 * m, None if st else 0))
    A(f"""s_and_b32 s20, s{sP}, 7
s_mul_i32 s20, s20, {1408*16}
s_lshr_b32 s21, s{sGU}, 3
s_lshl_b32 s21, s21, 10
s_add_u32 s20, s20, s21
s_lshl_b32 s21, s{sW}, 9
s_add_u32 s20, s20, s21
s_add_u32 s20, s20, {WS_GP}
v_mov_b32 v{GW+2}, s{sNONCE}
v_mov_b32 v{GW+3}, s{sNONCE}
s_mov_b32 s22, -1
s_mov_b32 s23, 0
v_mov_b32 v{GW}, v{ACC}
v_mov_b32 v{GW+1}, v{ACC+16}
s_mov_b64 exec, s[22:23]
buffer_store_dwordx4 {R(GW,4)}, v74, {SR(SWS)}, s20 offen sc1
s_mov_b64 exec, -1
s_branch {lb2}""")
    A.label(lb)
    A(f"s_mov_b32 s20, 0x40000000\nbuffer_load_dword v254, v74, {SR(SWS)}, s20 offen")
    A.label(lb2)

GPR = 208
def gp_issue():
    A(f"s_lshl_b32 s36, s{sDI}, 9\ns_add_u32 s36, s36, {WS_GP}")
    for q in range(4): A(f"buffer_load_dwordx4 {R(GPR+4*q,4)}, v255, {SR(SWS)}, s36 offen sc1\ns_add_u32 s36, s36, {2*1408*16}")
def gp_check():
    for q in range(4): A(f"v_xor_b32 v{2+q}, s{sNONCE}, v{GPR+4*q+2}")
    A("v_or3_b32 v2, v2, v3, v4\nv_or_b32 v2, v2, v5\nv_cmp_ne_u32 vcc, 0, v2")
def wd_loads():
    A(f"""s_lshl_b32 s37, s{sDI}, 15
s_lshl_b32 s20, s{sHH}, 8
s_add_u32 s37, s37, s20
v_lshrrev_b32 v2, 4, v{vL}
v_and_b32 v3, 15, v{vL}
v_lshlrev_b32 v3, 4, v3
v_lshl_add_u32 v2, v2, 10, v3""")
    for n in range(8): A(f"buffer_load_dwordx4 {R(DG[n],4)}, v2, {SR(SWD)}, s37 offen\ns_add_u32 s37, s37, 4096")
def wd_issue():
    lb = A.newlabel("L_nwd")
    A(f"s_cmp_ge_u32 s{sDI}, 43\ns_cbranch_scc1 {lb}")
    wd_loads()
    A.label(lb)
def gp_request(pad):
    def h():
        lb = A.newlabel("L_ngp")
        A(f"s_cmp_ge_u32 s{sDI}, 43\ns_cbranch_scc1 {lb}")
        gp_issue()
        if pad and DPOS == 0: A("s_waitcnt vmcnt(0)")
        A.label(lb)
    return h
def d_block():
    A(f"s_cmp_ge_u32 s{sDI}, 43\ns_cbranch_scc1 L_dend")
    A(f"""v_lshrrev_b32 v3, 4, v{vL}
v_lshlrev_b32 v3, 6, v3
v_lshlrev_b32 v2, 4, v{vL}
v_xor_b32 v24, v2, v3
v_lshrrev_b32 v3, 5, v{vL}
v_bfe_u32 v4, v{vL}, 2, 2
v_lshlrev_b32 v5, 8, v4
v_lshl_add_u32 v5, v3, 11, v5
v_lshl_add_u32 v5, v4, 6, v5
v_bfe_u32 v3, v{vL}, 4, 1
v_lshl_add_u32 v5, v3, 5, v5
v_and_b32 v3, 3, v{vL}
v_lshl_add_u32 v5, v3, 3, v5
s_lshl_b32 s38, s{sHH}, {12 if DPOS == 0 else 14}
s_add_u32 s38, s38, {114688 if DPOS == 0 else 65536}
v_add_u32 v24, s38, v24
v_add_u32 v25, s38, v5
v_xor_b32 v26, 64, v25
v_xor_b32 v27, 128, v25
v_xor_b32 v28, 192, v25
s_waitcnt vmcnt(DWAIT+4)""".replace('DWAIT+4', str(DW + 4 if DPOS == 0 else 63)))
    for rd in range(2):
        for k in range(4): A(f"ds_write_b128 v24, {R(DG[4*rd+k],4)} offset:{k*1024}")
        for t in range(4):
            for j in range(2): A(f"ds_read_b64_tr_b16 {R(DG[4*rd+t]+2*j,2)}, v{25+t} offset:{j*1024}")
    validated(gp_issue, gp_check, DW if DPOS == 0 else 2)
    A(f"""v_add_f32 v2, v{GPR}, v{GPR+4}
v_add_f32 v3, v{GPR+1}, v{GPR+5}
v_add_f32 v4, v{GPR+8}, v{GPR+12}
v_add_f32 v5, v{GPR+9}, v{GPR+13}
v_add_f32 v2, v2, v4
v_add_f32 v3, v3, v5
v_mov_b32 v4, v2
v_mov_b32 v5, v3
v_permlane32_swap_b32 v2, v4
v_permlane32_swap_b32 v3, v5
v_add_f32 v2, v2, v4
v_add_f32 v3, v3, v5""")
    bf16round(2, 2); bf16round(3, 3)
    A(f"""v_mul_f32 v4, {f32(-LOG2E)}, v2
v_exp_f32 v4, v4
v_add_f32 v4, 1.0, v4
v_rcp_f32 v4, v4
v_mul_f32 v2, v2, v4""")
    bf16round(2, 2)
    A(f"""v_mul_f32 v2, v2, v3
v_cvt_pk_bf16_f32 v2, v2, v2
v_and_b32 v3, 31, v{vL}
v_lshl_add_u32 v3, v3, 1, s38
ds_write_b16 v3, v2
v_lshrrev_b32 v3, 5, v{vL}
v_lshl_add_u32 v3, v3, 4, s38
ds_read_b128 {R(32,4)}, v3
ds_read_b128 {R(36,4)}, v3 offset:32
s_lshl_b32 s20, s{sDI}, 12
s_lshl_b32 s21, s{sHH}, 10
s_add_u32 s20, s20, s21
s_add_u32 s20, s20, {WS_YP}
s_mov_b32 s22, 0
s_mov_b32 s23, -1
v_lshlrev_b32 v2, 4, v{vL}
v_mov_b32 v42, s{sNONCE}
v_mov_b32 v43, s{sNONCE}
s_waitcnt lgkmcnt(0)""")
    DB = [SB, SB + 16, SB + 32, 48]
    for st in range(2):
        for t in range(4): A(mfma32(DB[t], 32 + 4 * st, DG[4 * st + t], None if st else 0))
    A(f"""v_cndmask_b32_e64 v40, v{DB[0]}, v{DB[2]}, s[22:23]
v_cndmask_b32_e64 v41, v{DB[1]}, v{DB[3]}, s[22:23]
buffer_store_dwordx4 {R(40,4)}, v2, {SR(SWS)}, s20 offen sc1
""")
    A.label("L_dend")
def wo_dma4():
    return [f"""s_and_b32 s26, s{sWB}, 3
s_add_u32 s{sWB}, s{sWB}, 1
s_lshl_b32 s27, s26, 12
s_add_u32 m0, s27, s{sM0}
s_lshl_b32 s27, s26, 14
s_add_u32 s27, s27, s{sWOD}"""] + [f"buffer_load_dwordx4 v{vWO+k}, {SR(SWO)}, s27 offen offset:{k*1024} lds" for k in range(4)]
def kv_check(base, cs):
    for k in range(4):
        b = base(k)
        A(f"v_add3_u32 v{2+k}, v{b}, v{b+1}, v{b+2}\nv_add3_u32 v{2+k}, v{2+k}, v{b+3}, s{sNONCE}\nv_xor_b32 v{2+k}, v{2+k}, v{cs+k}")
    A(f"""v_or_b32 v2, v2, v3
v_or_b32 v4, v4, v5
v_and_b32 v2, s{sH1}, v2
v_and_or_b32 v2, v4, s{sH2}, v2
v_cmp_ne_u32 vcc, 0, v2""")
def k_check(): kv_check(Kf, KC)
def v_check(): kv_check(lambda k: Vf(k, 0), VC)
def vswap(ks):
    for k in ks:
        for r in range(4): A(f"v_permlane16_swap_b32 v{Vf(k,0)+r}, v{Vf(k,1)+r}")
def Q(q): return QF + 4 * q
def smf(dst, k, q, c): return mfma32(dst, Kf(k), Q(q), c)
SEG = lambda k0: [(k0, 0, None), (k0, 1, None), (k0 + 1, 0, None), (k0 + 1, 1, None)]
B3 = [SB, SB + 16, SB + 32]
def nm(q): return R(NM + 16 * q, 16)
def p2_run(jobs, cfun, fresh, extra={}, mem={}):
    n = len(jobs)
    pend = []
    A(smf(B3[0], jobs[0][0], jobs[0][1], cfun(jobs[0][1])))
    for t in range(n):
        k, q, mask = jobs[t]; b = B3[t % 3]
        side = []
        if t + 1 < n: side.append(smf(B3[(t + 1) % 3], jobs[t + 1][0], jobs[t + 1][1], cfun(jobs[t + 1][1])))
        side += pend
        val = [f"v_exp_f32 v{b+r}, v{b+r}" for r in range(16)]
        val += [f"v_cvt_pk_bf16_f32 v{b+j}, v{b+2*j}, v{b+2*j+1}" for j in range(8)]
        if mask == "old": val += [f"v_and_b32 v{b+j}, v{b+j}, v{MK+j}" for j in range(8)]
        if mask == "diag": val += [f"v_bfi_b32 v{b+j}, v{MK+j}, 0, v{b+j}" for j in range(8)]
        mm_ = mem.get(t, [])
        if mm_:
            step = len(val) // len(mm_)
            for q_, x in enumerate(mm_): val[q_ * step + step // 2] += "\n" + x
        vi = 0
        for sx in side:
            A(sx); emit(val[vi:vi + 5]); vi += 5
        emit(val[vi:])
        for fn in extra.get(t, []): fn()
        pend = [mfma32(OA + 16 * q, Vf(k, g), b + 4 * g, 0 if (q in fresh and g == 0) else None) for g in range(2)]
        fresh.discard(q)
    emit(pend)
zero = lambda q: 0
XR = 80
dma = lambda: emit(wo_dma4())
def wo_ops():
    out = []
    for b in range(4):
        l = wo_dma4(); out += [l[0] + "\n" + l[1]] + l[2:]
    return out
def dma_upto(n):
    lt = A.newlabel("L_du"); le = A.newlabel("L_de")
    A.label(lt)
    A(f"s_sub_u32 s20, s{sWE}, {4-n}\ns_cmp_ge_u32 s{sWB}, s20\ns_cbranch_scc1 {le}")
    dma()
    A(f"s_branch {lt}")
    A.label(le)
def after_v(isC, wait):
    def h():
        validated(v_issue, v_check, wait)
        vswap(range(4))
        if isC:
            for pr in range(2):
                A(f"buffer_load_dwordx4 {R(XR+4*pr,4)}, v{vOUT}, {SR(SX)}, s{sOUTO} offen offset:{pr*32}")
            if int(opts.get("opt", 0)) == 1:
                A(f"""s_lshl_b32 s20, s{sI}, 4
s_add_u32 s20, s20, s{sC}
s_and_b32 s21, s{sW}, 1
s_lshl_b32 s21, s21, 3
s_add_u32 s20, s20, s21
s_cmp_ge_u32 s{sW}, 2
s_cselect_b32 s21, 10, 12
s_mov_b32 s22, {WS_O}
s_cselect_b32 s22, {WS_OC}, s22
s_cselect_b32 s24, 0xff, -1
s_mov_b32 s25, 0
s_lshl_b32 s20, s20, s21
s_add_u32 s20, s20, s22
v_lshlrev_b32 v2, 7, v{vL}
s_mov_b64 exec, s[24:25]
buffer_load_dword v254, v2, {SR(SWS)}, s20 offen sc1
s_mov_b64 exec, -1""")
        if int(opts.get("opt", 0)) == 4:
            A(f"""s_lshl_b32 s20, s{sI}, 1
s_add_u32 s20, s20, s{sROLE}
s_lshl_b32 s20, s20, 3
s_add_u32 s20, s20, s{sC}
s_lshl_b32 s21, s20, 10
s_add_u32 s21, s21, {WS_OC}
s_lshl_b32 s20, s20, 12
s_add_u32 s20, s20, {WS_O}
v_lshrrev_b32 v5, 2, v{vRK}
v_add3_u32 v4, v{QF}, v{QF+1}, v{QF+2}
v_add3_u32 v4, v4, v{QF+3}, s{sNONCE}
v_add_u32 v4, 1, v4
buffer_store_dwordx4 {R(QF,4)}, v{vRK}, {SR(SWS)}, s20 offen sc1
buffer_store_dword v4, v5, {SR(SWS)}, s21 offen sc1""")
        TS(9); RC(43)
    return h
def k_valid(first_wait):
    validated(lambda: (k_issue(), v_issue()), k_check, first_wait)
    TS(7); RC(42)
def sched(ops, plan):
    out = {}; k = 0
    for t, n in plan:
        out[t] = ops[k:k + n]; k += n
    assert k == len(ops)
    return out
OWNJ = [(4, 0, "diag"), (5, 1, "diag"), (4, 1, None)]
OLDJ = [(3, 0, None), (2, 0, "old"), (3, 1, "old")]
CPL = eval(opts.get('cpl', '[]')); LPL = eval(opts.get('lpl', '[(1,4),(5,4),(6,4)]'))
NCB = sum(n for t, n in CPL) // 4
A(f"s_cmp_eq_u32 s{sROLE}, 0\ns_cbranch_scc1 L_fA")
g_stage()
TS(8)
k_valid(7)
lb = A.newlabel("L_fb1"); lb2 = A.newlabel("L_fb0")
A(f"s_cmp_eq_u32 s{sH1}, 0\ns_cbranch_scc1 {lb}")
WRM = int(opts.get("wrm", -1)); WRN = int(opts.get("wrn", 4))
def wo_warm():
    if WRN == 4:
        A(f"s_and_b32 s26, s{sI}, 3\ns_lshl_b32 s27, s26, 14\ns_add_u32 s27, s27, s{sWOD}")
    else:
        A(f"s_and_b32 s26, s{sI}, 7\ns_lshl_b32 s27, s26, 13\ns_add_u32 s27, s27, s{sWOD}")
    for k in range(WRN): A(f"buffer_load_dwordx4 {R(224+4*k,4)}, v{vWO+k}, {SR(SWO)}, s27 offen offset:{k*1024}")
exs = {0: [after_v(1, 1)]}
if WRM >= 0: exs.setdefault(WRM, []).append(wo_warm)
p2_run(SEG(0) + SEG(2), zero, {0, 1}, exs)
A("s_branch L_fchk")
A.label(lb)
A(f"s_cmp_eq_u32 s{sH2}, 0\ns_cbranch_scc1 {lb2}")
p2_run(SEG(2), zero, {0, 1}, {0: [after_v(1, 1), wd_issue]})
dma_upto(NCB)
A("s_branch L_fchk")
A.label(lb2)
after_v(1, 1)()
wd_issue()
dma_upto(NCB)
for r in range(32): A(f"v_mov_b32 v{OA+r}, 0")
A(f"v_mov_b32 v{vM0}, {f32(-1e30)}\nv_mov_b32 v{vM1}, {f32(-1e30)}")
A("s_branch L_p2done")
A.label("L_fA")
GQ = int(opts.get("gq", 4)); DW = sum(n for t, n in LPL if t > GQ)
winner()
vswap((4, 5))
A('s_setprio %d' % int(opts.get('lprio', 1)))
lb = A.newlabel("L_fa1"); lb2 = A.newlabel("L_fa0")
A(f"s_cmp_eq_u32 s{sH1}, 0\ns_cbranch_scc1 {lb2}")
p2_run(OWNJ, zero, {0, 1}, {}, sched(capture(k_issue) + capture(v_issue), eval(opts.get('lkp', '[(0,6),(1,3),(2,3)]'))))
TS(8)
k_valid(6)
A(f"s_cmp_eq_u32 s{sH2}, 0\ns_cbranch_scc1 {lb}")
p2_run(SEG(0) + OLDJ, zero, set(), {0: [after_v(0, 0), wd_issue], GQ: [gp_request(0)]}, sched(wo_ops()[:sum(n for t, n in LPL)], LPL))
A("s_branch L_fchk")
A.label(lb)
p2_run(SEG(0), zero, set(), {0: [after_v(0, 0), wd_issue]})
if int(opts.get('s3', 2)): dma_upto(int(opts.get('s3', 2)))
gp_request(1)()
A("s_branch L_fchk")
A.label(lb2)
wd_issue()
p2_run(OWNJ, zero, {0, 1})
dma_upto(int(opts.get("sb", 3)))
A("s_waitcnt vmcnt(0)")
gp_request(1)()
A.label("L_fchk")
LO = (127 - 40) << 23; RNG = 80 << 23
if not FAST: LO, RNG = 0, 0
A(f"""v_subrev_u32 v2, {hex(LO)}, v{OA+8}
v_subrev_u32 v3, {hex(LO)}, v{OA+24}
v_max_u32 v2, v2, v3
v_cmp_le_u32 vcc, {hex(RNG) if RNG else 0}, v2
s_cbranch_vccnz L_slow""")
A.label("L_p2done")
if DPOS == 0: d_block()
PB0 = int(opts.get("pb0", 0)); NB1 = int(opts.get("nb1", 4)); MB = int(opts.get("mb", 5))
A(f"""s_cmp_lt_u32 s{sW}, 4
s_cbranch_scc1 L_npb0""")
dma_upto(4)
A(f"""s_sub_u32 s{sWOD}, s{sWOD}, {4 << 16}
s_add_u32 s{sM0}, s{sM0}, {4 << 14}
s_add_u32 s{sWE}, s{sWE}, 4
s_add_u32 s{sWB}, s{sWB}, {NCB}""")
if PB0: dma_upto(NCB + PB0)
A.label("L_npb0")
TS(10)

def slow_path():
    A.label("L_slow")
    A("s_waitcnt vmcnt(0)")
    A(f"v_mov_b32 v{vM0}, {f32(-1e30)}\nv_mov_b32 v{vM1}, {f32(-1e30)}\nv_mov_b32 v5, {f32(-1e30)}")
    def max_run(jobs):
        for (k, q, mask) in jobs:
            m = vM0 if q == 0 else vM1
            A(smf(SB, k, q, 0))
            if mask:
                for r in range(16):
                    j0 = 8 * (r // 4) + r % 4
                    A(f"s_lshl_b32 s20, -1, {j0}\ns_lshl_b32 s21, -1, {j0+4}")
                    if mask == "diag": A(f"v_cndmask_b32_e64 v{SB+r}, v5, v{SB+r}, s[20:21]")
                    else: A(f"v_cndmask_b32_e64 v{SB+r}, v{SB+r}, v5, s[20:21]")
            for r in range(0, 16, 2): A(f"v_max3_f32 v{m}, v{SB+r}, v{SB+r+1}, v{m}")
    def groups(fn):
        l1 = A.newlabel("L_s"); l2 = A.newlabel("L_s"); l3 = A.newlabel("L_s")
        A(f"s_cmp_eq_u32 s{sH1}, 0\ns_cbranch_scc1 {l1}")
        fn(SEG(0))
        A.label(l1)
        A(f"s_cmp_eq_u32 s{sROLE}, 0\ns_cbranch_scc1 {l2}")
        fn(SEG(2))
        A(f"s_branch {l3}")
        A.label(l2)
        fn(OWNJ)
        A(f"s_cmp_eq_u32 s{sH2}, 0\ns_cbranch_scc1 {l3}")
        fn(OLDJ)
        A.label(l3)
    groups(max_run)
    A(f"""v_mov_b32 v2, v{vM0}
v_mov_b32 v3, v{vM1}
v_permlane32_swap_b32 v{vM0}, v2
v_permlane32_swap_b32 v{vM1}, v3
v_max_f32 v{vM0}, v{vM0}, v2
v_max_f32 v{vM1}, v{vM1}, v3""")
    for q, m in enumerate((vM0, vM1)):
        for r in range(16): A(f"v_sub_f32 v{NM+16*q+r}, 0, v{m}")
    for r in range(32): A(f"v_mov_b32 v{OA+r}, 0")
    groups(lambda jobs: p2_run(jobs, nm, set()))
    wd_issue()
    A("s_waitcnt vmcnt(0)\ns_branch L_p2done")

A(f"""v_xor_b32 v3, 0x4000, v{vEX}
v_add_u32 v3, {81920 - L_TAIL}, v3
v_add_u32 v2, {81920 - L_TAIL}, v{vEX}
s_lshl_b32 s20, s{sI}, 1
s_add_u32 s20, s20, s{sROLE}
s_lshl_b32 s20, s20, 3
s_add_u32 s20, s20, s{sC}
s_lshl_b32 s21, s20, 10
s_add_u32 s21, s21, {WS_OC}
s_lshl_b32 s20, s20, 12
s_add_u32 s20, s20, {WS_O}
v_lshrrev_b32 v5, 2, v{vRK}
v_mov_b32 v{OA+25}, v{vM1}
ds_write_b64 v3, {R(OA+24,2)} offset:2048
ds_write_b128 v3, {R(OA+16,4)}
ds_write_b128 v3, {R(OA+20,4)} offset:1024
s_waitcnt lgkmcnt(0)
s_barrier
ds_read_b64 {R(SB+8,2)}, v2 offset:2048
ds_read_b128 {R(SB,4)}, v2
ds_read_b128 {R(SB+4,4)}, v2 offset:1024
s_waitcnt lgkmcnt(2)
v_max_f32 v3, v{vM0}, v{SB+9}
v_sub_f32 v{SB+10}, v{vM0}, v3
v_sub_f32 v{SB+11}, v{SB+9}, v3
v_exp_f32 v{SB+10}, v{SB+10}
v_exp_f32 v{SB+11}, v{SB+11}
v_mul_f32 v4, v{SB+10}, v{OA+8}
v_fmac_f32 v4, v{SB+11}, v{SB+8}
v_rcp_f32 v4, v4
v_mul_f32 v{SB+10}, v{SB+10}, v4
v_mul_f32 v{SB+11}, v{SB+11}, v4
s_waitcnt lgkmcnt(0)""")
for r in range(0, 8, 2):
    A(f"v_pk_mul_f32 {R(OA+r,2)}, {R(OA+r,2)}, {R(SB+10,2)} op_sel_hi:[1,0]")
    A(f"v_pk_fma_f32 {R(OA+r,2)}, {R(SB+r,2)}, {R(SB+10,2)}, {R(OA+r,2)} op_sel:[0,1,0]")
for k in range(4): A(f"v_cvt_pk_bf16_f32 v{SB+12+k}, v{OA+2*k}, v{OA+2*k+1}")
A(f"""buffer_store_dwordx4 {R(SB+12,4)}, v{vRK}, {SR(SWS)}, s20 offen sc1
v_add3_u32 v4, v{SB+12}, v{SB+13}, v{SB+14}
v_add3_u32 v4, v4, v{SB+15}, s{sNONCE}
buffer_store_dword v4, v5, {SR(SWS)}, s21 offen sc1""")
TS(11)

A("s_waitcnt vmcnt(2)\ns_barrier")
TS(12); RC(44)

WOF = 8; XB = 136; PA = 160; OF = 176; OL = 208; OLC = 224
A(f"""s_lshl_b32 s20, s{sQK}, 3
s_add_u32 s20, s20, s{sW}
s_lshl_b32 s32, s20, 10
s_add_u32 s32, s32, {WS_OC}
s_lshl_b32 s31, s20, 12
s_add_u32 s31, s31, {WS_O}
v_lshlrev_b32 v2, 4, v{vL}
v_lshlrev_b32 v{vRV}, 2, v{vL}
s_and_b32 s33, s{sKEY}, 0x7ff
s_sub_u32 s33, 2047, s33
s_lshr_b32 s34, s33, 5""")
def o_issue():
    for k in range(4):
        A(f"buffer_load_dwordx4 {R(OL+4*k,4)}, v2, {SR(SWS)}, s31 offen offset:{k*1024} sc1")
    for k in range(4):
        A(f"buffer_load_dword v{OLC+k}, v{vRV}, {SR(SWS)}, s32 offen offset:{k*256} sc1")
def o_check():
    for k in range(4):
        b = OL + 4 * k
        A(f"v_add3_u32 v{228+k}, v{b}, v{b+1}, v{b+2}\nv_add3_u32 v{228+k}, v{228+k}, v{b+3}, s{sNONCE}\nv_xor_b32 v{228+k}, v{228+k}, v{OLC+k}")
    A("v_or3_b32 v228, v228, v229, v230\nv_or_b32 v228, v228, v231\nv_cmp_ne_u32 vcc, 0, v228")
lb = A.newlabel("L_p3l")
A(f"s_cmp_lt_u32 s{sW}, 4\ns_cbranch_scc1 L_nphb")
BPB = int(opts.get("bpb", 0))
if DPOS == 3: d_block()
if BPB:
    dma_upto(BPB)
    if opts.get("bpw"): A("s_waitcnt vmcnt(%d)" % int(opts["bpw"]))
    A("s_barrier")
dma_upto(NB1)
A.label("L_nphb")
if DPOS == 1: d_block()
A(f"v_lshlrev_b32 v2, 4, v{vL}")
A(f"s_cmp_ge_u32 s{sW}, 4\ns_cbranch_scc1 {lb}w")
for pr in range(2):
    b = XR + 4 * pr
    A(f"v_permlane32_swap_b32 v{b}, v{b+2}\nv_permlane32_swap_b32 v{b+1}, v{b+3}")
for k in range(8):
    x = XR + k; p = PA + 2 * k
    A(f"""v_lshlrev_b32 v{p}, 16, v{x}
v_and_b32 v{p+1}, 0xffff0000, v{x}
v_pk_add_f32 {R(XB+8,2)}, {R(p,2)}, {R(vPM,2)} op_sel_hi:[1,0] neg_lo:[0,1] neg_hi:[0,1]
v_cvt_pk_bf16_f32 v{XB+10}, v{XB+8}, v{XB+9}
v_lshlrev_b32 v{XB+8}, 16, v{XB+10}
v_and_b32 v{XB+9}, 0xffff0000, v{XB+10}
v_pk_mul_f32 {R(XB+8,2)}, {R(XB+8,2)}, {R(vPM,2)} op_sel:[0,1]
v_cvt_pk_bf16_f32 v{XB+10}, v{XB+8}, v{XB+9}
v_lshlrev_b32 v{XB+8}, 16, v{XB+10}
v_and_b32 v{XB+9}, 0xffff0000, v{XB+10}
v_pk_add_f32 {R(p,2)}, {R(p,2)}, {R(XB+8,2)}""")
A(f"""v_lshlrev_b32 v2, 4, v{vL}
v_lshrrev_b32 v4, 5, v{vL}
v_bfe_u32 v3, v{vL}, 2, 2
v_lshl_add_u32 v5, v4, 2, v3
v_lshlrev_b32 v5, 8, v5
v_xor_b32 v3, s{sW}, v3
v_lshl_add_u32 v5, v3, 6, v5
v_bfe_u32 v3, v{vL}, 4, 1
v_lshl_add_u32 v5, v3, 5, v5
v_and_b32 v3, 3, v{vL}
v_lshl_add_u32 v5, v3, 3, v5
v_add_u32 v3, 65536, v5""")
def wo_read(g): return [f"ds_read_b64_tr_b16 {R(WOF+4*g+2*j,2)}, v{3 if g < 16 else 5} offset:{(g*4096 + j*2048) % 65536}" for j in range(2)]
for g in range(16, 32): emit(wo_read(g))
if BPB: A("s_barrier")
A(f"s_waitcnt vmcnt(0)\ns_branch {lb}")
A.label(lb + "w")
A(f"s_waitcnt vmcnt({4*max(0, NB1-NCB-PB0)})")
def yp_issue():
    A(f"""s_and_b32 s20, s{sC}, 3
s_lshl_b32 s20, s20, 10
s_add_u32 s20, s20, {WS_YP}
s_add_u32 s21, s20, {42*4096}
s_mul_i32 s22, s{sHH}, {11*4096}
s_add_u32 s20, s20, s22""")
    for k in range(11):
        if k == 10: A("s_min_u32 s20, s20, s21")
        A(f"buffer_load_dwordx4 {R(8+4*k,4)}, v2, {SR(SWS)}, s20 offen sc1\ns_add_u32 s20, s20, 4096")
NR = 4 * (4 - max(NB1, NCB + PB0))
TS(46)
o_issue()
if NR: dma_upto(4)
YL = int(opts.get("yl", 1))
if not YL:
    A(f"s_cmp_lg_u32 s34, s{sQK}\ns_cbranch_scc1 {lb}z")
    yp_issue()
    A(f"s_waitcnt vmcnt({11+NR})\ns_branch {lb}y")
    A.label(lb + "z")
A(f"s_waitcnt vmcnt({NR})\ns_branch {lb}y")
A.label(lb)
TS(46)
o_issue()
TS(47)
A("s_waitcnt vmcnt(0)")
A.label(lb + "y")
o_check()
retry_check(lb)
for k in range(4):
    A(f"ds_write_b128 v{vEX}, {R(OL+4*k,4)} offset:{k*1024}")
if YL:
    A(f"s_cmp_lg_u32 s34, s{sQK}\ns_cbranch_scc1 L_nyl\ns_cmp_lt_u32 s{sW}, 4\ns_cbranch_scc1 L_nyl")
    yp_issue()
    A.label("L_nyl")
TS(13); RC(45)
A("s_waitcnt lgkmcnt(0)\ns_barrier")
TS(14)
A(f"s_cmp_ge_u32 s{sW}, 4\ns_cbranch_scc1 L_p3help")
A(f"v_add_u32 v2, {L_TAIL}, v2")
order = list(range(16, 32)) + list(range(16))
lq = []
def ofr(n): lds(("o", n), f"ds_read_b128 {R(OF+4*(n%8),4)}, v2 offset:{order[n]*1024}")
for n in range(6): ofr(n)
wq = [x for g in range(16) for x in wo_read(g)]
for n in range(32):
    lwait(("o", n))
    A(mfma32(PA, WOF + 4 * order[n], OF + 4 * (n % 8)))
    if NR:
        if n == MB: A("s_barrier")
        if n >= MB:
            for x in wq[:3]: lds("w", x)
            wq = wq[3:]
    elif n < 16:
        for x in wo_read(n): lds("w", x)
    if n + 6 < 32: ofr(n + 6)
    if n == int(opts.get("zb", 27)):
        A(f"s_cmp_lg_u32 s34, s{sQK}\ns_cbranch_scc1 L_nzb\ns_barrier\nL_nzb:")
lb = A.newlabel("L_noz")
A(f"s_cmp_lg_u32 s34, s{sQK}\ns_cbranch_scc1 {lb}")
A(f"""s_barrier
s_lshl_b32 s20, s{sW}, 7
v_lshlrev_b32 v3, 4, v4
v_add_u32 v3, s20, v3""")
for a in range(4): A(f"ds_read_b128 {R(OF+4*a,4)}, v3 offset:{a*32}")
A(f"""s_and_b32 s20, s33, 31
v_and_b32 v3, 31, v{vL}
v_cmp_eq_u32 vcc, s20, v3
s_and_saveexec_b64 s[{sEX}:{sEX+1}], vcc
s_waitcnt lgkmcnt(0)""")
for r in range(16): A(f"v_add_f32 v{PA+r}, v{PA+r}, v{OF+r}")
A(f"s_mov_b64 exec, s[{sEX}:{sEX+1}]")
A.label(lb)
for k in range(8): A(f"v_cvt_pk_bf16_f32 v{XB+k}, v{PA+2*k}, v{PA+2*k+1}")
for pr in range(2):
    b = XB + 4 * pr
    A(f"v_permlane32_swap_b32 v{b}, v{b+2}\nv_permlane32_swap_b32 v{b+1}, v{b+3}")
    A(f"buffer_store_dwordx4 {R(b,4)}, v{vOUT}, {SR(SOUT)}, s{sOUTO} offen offset:{pr*32}")
A("s_branch L_end")
A.label("L_p3help")
if NR:
    A(f"s_cmp_lg_u32 s34, s{sQK}\ns_cbranch_scc1 L_hw0\ns_waitcnt vmcnt(11)\ns_branch L_hw1\nL_hw0:\ns_waitcnt vmcnt(0)\nL_hw1:\ns_barrier")
A(f"""s_or_b32 s20, s2, s{sHH}
s_cmp_lg_u32 s20, 0
s_cbranch_scc1 L_noep
v_mov_b32 v200, s{sNONCE}
v_mov_b32 v201, {WS_EPOCH}
s_mov_b64 exec, 1
buffer_store_dword v200, v201, {SR(SWS)}, 0 offen sc1
s_mov_b64 exec, -1
L_noep:""")
A(f"s_cmp_lg_u32 s34, s{sQK}\ns_cbranch_scc1 L_end")
def yp_check():
    A(f"v_min3_u32 v3, v10, v14, v18\nv_max3_u32 v4, v10, v14, v18")
    for k in range(3, 11, 2): A(f"v_min3_u32 v3, v3, v{10+4*k}, v{14+4*k}\nv_max3_u32 v4, v4, v{10+4*k}, v{14+4*k}")
    A(f"v_xor_b32 v3, s{sNONCE}, v3\nv_xor_b32 v4, s{sNONCE}, v4\nv_or_b32 v3, v3, v4\nv_cmp_ne_u32 vcc, 0, v3")
validated(yp_issue, yp_check, 0)
A(f"s_cmp_eq_u32 s{sHH}, 3\ns_cselect_b32 s20, 0, 1.0")
for k in range(1, 10): A(f"v_add_f32 v8, v8, v{8+4*k}\nv_add_f32 v9, v9, v{9+4*k}")
A(f"""v_fmac_f32 v8, s20, v48
v_fmac_f32 v9, s20, v49
s_lshl_b32 s20, s{sHH}, 9
s_add_u32 s20, s20, 1024
v_lshl_add_u32 v3, v{vL}, 3, s20
ds_write_b64 v3, v[8:9]
s_waitcnt lgkmcnt(0)
s_barrier""")
lb = A.newlabel("L_hb")
A(f"""s_cmp_lg_u32 s{sW}, 4
s_cbranch_scc1 {lb}
ds_read_b64 v[10:11], v3 offset:512
ds_read_b64 v[12:13], v3 offset:1024
ds_read_b64 v[14:15], v3 offset:1536
s_waitcnt lgkmcnt(0)
v_add_f32 v8, v8, v10
v_add_f32 v9, v9, v11
v_add_f32 v12, v12, v14
v_add_f32 v13, v13, v15
v_add_f32 v8, v8, v12
v_add_f32 v9, v9, v13""")
bf16round(8, 8); bf16round(9, 9)
A(f"""s_and_b32 s20, s{sKEY}, 0xffff0000
s_ashr_i32 s21, s20, 31
s_not_b32 s21, s21
s_or_b32 s21, s21, 0x80000000
s_xor_b32 s20, s20, s21
s_and_b32 s20, s20, 0xffff0000
v_mov_b32 v3, s20
v_mul_f32 v3, {f32(-LOG2E)}, v3
v_exp_f32 v3, v3
v_add_f32 v3, 1.0, v3
v_rcp_f32 v3, v3""")
bf16round(3, 3)
A("v_mul_f32 v8, v8, v3\nv_mul_f32 v9, v9, v3")
bf16round(8, 8); bf16round(9, 9)
A(f"""v_lshrrev_b32 v3, 5, v{vL}
v_lshlrev_b32 v3, 8, v3
v_and_b32 v4, 31, v{vL}
v_lshl_add_u32 v3, v4, 2, v3
ds_write_b32 v3, v8
ds_write_b32 v3, v9 offset:128
s_waitcnt lgkmcnt(0)""")
A.label(lb)
A("s_barrier")
A.label("L_end")
if PROF:
    TS(15)
    srd(SWS, WS_SIZE)
    A(f"""s_mov_b64 exec, -1
v_writelane_b32 v{vTS}, s{sRETRY}, 62
s_memrealtime s[96:97]
s_waitcnt lgkmcnt(0)
v_writelane_b32 v{vTS}, s96, 61
s_lshl_b32 s20, s2, 3
s_add_u32 s20, s20, s{sW}
s_lshl_b32 s20, s20, 8
s_add_u32 s20, s20, {WS_TS}
v_lshlrev_b32 v2, 2, v{vL}
buffer_store_dword v{vTS}, v2, {SR(SWS)}, s20 offen""")
A.label("L_exit")
A("s_endpgm")
A.label("L_codeend")
slow_path()

body = A.finalize()
import re as _re
def addflag(srd_, flag, kind="load"):
    global body
    pat = _re.compile(r"^(\s*buffer_%s_\w+ .*s\[%d:%d\], \S+ offen(?: offset:\d+)?)( lds)?$" % (kind, srd_, srd_ + 3), _re.M)
    body = pat.sub(lambda m: m.group(1) + " " + flag + (m.group(2) or ""), body)
for b_ in (SWG, SWU, SWD): addflag(b_, "nt")
if opts.get("ntx"): addflag(SX, "nt")
if opts.get("ntw"): addflag(SW, "nt")
if opts.get("nto"): addflag(SWO, "nt")
if opts.get("outf"): addflag(SOUT, opts["outf"].replace("+", " "), "store")
hdr = open("cdna_kernels/" + NAME + ".s.ref").read().split("; Override launch")[0]
out = hdr + f"""; Fused single kernel: LN stats + router, QKV GEMM, sliding-window attention, MoD FFN, output projection.
; Generated by gen/gen.py (hand-written generator).
; @launch grid=(256,1,1) block=(512,1,1) lds=163840
.amdgcn_target "amdgcn-amd-amdhsa--gfx950"
.text
.globl {NAME}_kernel
.p2align 8
.type {NAME}_kernel,@function
{NAME}_kernel:
L_start:
{body}
.section .rodata,"a"
.p2align 6
.amdhsa_kernel {NAME}_kernel
  .amdhsa_next_free_vgpr 256
  .amdhsa_next_free_sgpr 102
  .amdhsa_accum_offset 256
  .amdhsa_group_segment_fixed_size 0
  .amdhsa_kernarg_size 88
  .amdhsa_user_sgpr_count 2
  .amdhsa_user_sgpr_kernarg_segment_ptr 1
  .amdhsa_system_sgpr_workgroup_id_x 1
  .amdhsa_float_denorm_mode_32 3
.end_amdhsa_kernel
"""
import subprocess, re
def labels(text):
    open("_g.s", "w").write(text)
    r = subprocess.run(["clang", "-x", "assembler", "-target", "amdgcn-amd-amdhsa", "-mcpu=gfx950", "-c", "_g.s", "-o", "_g.o"], capture_output=True, text=True)
    if r.returncode:
        print("\n".join(r.stderr.split("\n")[:30])); sys.exit(1)
    t = subprocess.run(["llvm-objdump", "-t", "_g.o"], capture_output=True, text=True).stdout
    return {m.group(2): int(m.group(1), 16) for m in re.finditer(r"^([0-9a-f]{16}) .*\s(L_\w+)$", t, re.M)}
lab = labels(out.replace("CODE_PF_MAX", "0x11111"))
out = out.replace("CODE_PF_MAX", hex((lab["L_codeend"] - 1024) & ~127))
assert labels(out) == lab
print("code bytes", lab["L_codeend"], "instrs", len(A.ins), "nops", A.nnop)
open(sys.argv[1], "w").write(out)
```

```python
import sys, struct
from asmlib import Asm

NAME = "parallel_sum__sliding_block__moe_arch_mod__prompt"
opts = dict(a.split("=") if "=" in a else (a, "1") for a in sys.argv[2:])
PROF = int(opts.get("prof", 0))
LOOPTS = int(opts.get('loopts', 0))
DEPTH = int(opts.get('depth', 3))
FAST = int(opts.get('fast', 1))
SIBU = int(opts.get('sibu', 4))
GWP = int(opts.get('gwp', 2))
DOFF = int(opts.get('doff', 245))
DSH = int(opts.get('dsh', 0))
DNL = int(opts.get('dnl', 43))
DPOS = int(opts.get('dpos', 0))
PWS = int(opts.get('pws', 1))
LGW = int(opts.get('lgw', -1))
PUBU = int(opts.get('pubu', 0))

def f32(x): return "0x%08x" % struct.unpack("<I", struct.pack("<f", x))[0]
LOG2E = 1.4426950408889634

WS_BEST  = 0x0
WS_EPOCH = 0x4000
WS_STATS = 0x8000
WS_YP    = 0x10000
WS_GP    = 0x40000
WS_KV    = 0x100000
WS_KVC   = 0x500000
WS_O     = 0x600000
WS_OC    = 0x800000
WS_TS    = 0x900000
WS_SIZE  = 0x1000000
L_X = 0; L_RING = 65536; L_MISC = 147456; L_TAIL = 131072
def slot_of(u): return (u + 2) % 5
L_QF = L_MISC
L_SM = L_MISC + 8192
L_RT = L_SM
L_NONCE = L_SM + 128
L_IDX = L_SM + 144
L_XSEL = L_SM + 1024
L_QRDY = L_SM + 224
L_CSX = L_SM + 2048
L_STAT = L_SM + 256
L_RINV = L_SM + 768
L_GW = L_RING + 4 * 16384
L_OWN = L_RING + slot_of(8) * 16384
SX, SW, SWS, SDBG, SWR = 40, 44, 48, 52, 56
SWO, SOUT, SWG, SWU, SWD = 60, 64, 68, 72, 76
sI, sC, sW, sROT, sNONCE, sP, sKEY = 3, 4, 5, 6, 7, 8, 9
sXO, sWOFF, sCT, sWB, sHH, sROLE, sH1, sH2 = 10, 11, 12, 13, 14, 15, 16, 17
sSM, sSR = 18, 19
sOUTO, sQK, sWOD, sM0, sWE, sEX, sRETRY = 80, 81, 82, 83, 84, 86, 88
sGU = 89
sDI = 85
DG = [96 + 4 * n for n in range(8)]
GOFF = int(opts.get('goff', 80))
sRB = 90
vL, vZ, vTS = 1, 6, 7
vXA, vWA0, vWA1 = 88, 92, 93
vX0, vX1, vW0, vW1 = 80, 81, 82, 83
vSA, vKA, vKC, vBA = 80, 81, 82, 83
ACC = 96; STB = 128; CS = 200; SEL = 204; GW = 208; ST0, ST1 = 224, 226; XS = 228
OWN = 128; SL = 8
KC, VC, QF, NM, OA, SB, WD, MK = 80, 84, 88, 96, 128, 160, 208, 232
vM0, vM1, vRK, vRV, vRKC, vGA, vEX, vOUT, vPM, vPR, vWO = 240, 241, 242, 243, 244, 245, 246, 247, 248, 249, 250
A = Asm()

def TS(n):
    if PROF == 1: A(f"s_memtime s[98:99]\ns_waitcnt lgkmcnt(0)\nv_writelane_b32 v{vTS}, s98, {n}")
def TSL(n):
    if LOOPTS: TS(n)
def RC(n):
    if PROF == 1: A(f"v_writelane_b32 v{vTS}, s{sRETRY}, {n}")
def srd(base, size): A(f"s_mov_b32 s{base+2}, {size}\ns_mov_b32 s{base+3}, 0x20000")
def R(b, n): return f"v[{b}:{b+n-1}]"
def SR(b): return f"s[{b}:{b+3}]"
DPP8 = ("quad_perm:[1,0,3,2]", "quad_perm:[2,3,0,1]", "row_half_mirror")
def dpp(op, x, m): return f"{op}_dpp v{x}, v{x}, v{x} {m} row_mask:0xf bank_mask:0xf"
def allreduce32(x, t, op):
    for m in DPP8 + ("row_mirror",): A(dpp(op, x, m))
    A(f"v_mov_b32 v{t}, v{x}\nv_permlane16_swap_b32 v{x}, v{t}\n{op} v{x}, v{x}, v{t}")
def bf16round(dst, src):
    A(f"v_cvt_pk_bf16_f32 v{dst}, v{src}, v{src}\nv_and_b32 v{dst}, 0xffff0000, v{dst}")
def retry_check(lbl):
    A(f"s_add_u32 s{sRETRY}, s{sRETRY}, 1\ns_cmp_gt_u32 s{sRETRY}, 20000\ns_cbranch_scc1 L_end")
    A(f"s_cbranch_vccnz {lbl}")
def validated(issue, check, first_wait, retry_wait=0):
    lr = A.newlabel("L_rt"); lo = A.newlabel("L_ok")
    A(f"s_waitcnt vmcnt({first_wait})"); check(); A(f"s_cbranch_vccz {lo}")
    A.label(lr)
    issue(); A(f"s_waitcnt vmcnt({retry_wait})"); check()
    retry_check(lr)
    A.label(lo)
def capture(fn):
    n = len(A.ins); fn(); out = [x.text for x in A.ins[n:]]; del A.ins[n:]
    return out
def emit(l):
    for x in l: A(x)
def split(l, n): return [l[len(l)*k//n: len(l)*(k+1)//n] for k in range(n)]
def mfma32(d, a, b, c=None):
    return f"v_mfma_f32_32x32x16_bf16 {R(d,16)}, {R(a,4)}, {R(b,4)}, {R(d,16) if c is None else c}"
def var_to_rinv(v):
    bf16round(v, v)
    A(f"v_add_f32 v{v}, {f32(1e-5)}, v{v}")
    bf16round(v, v)
    A(f"v_sqrt_f32 v{v}, v{v}")
    bf16round(v, v)
    A(f"v_rcp_f32 v{v}, v{v}")

if PROF: A("s_memrealtime s[96:97]")
if PROF == 1: A("s_memtime s[94:95]")
A("s_cmp_ge_u32 s2, 256\ns_cbranch_scc1 L_exit")
for b, off in ((SX, 0), (SW, 8), (SWR, 32), (SWS, 80)):
    A(f"s_load_dwordx2 s[{b}:{b+1}], s[0:1], {off}")
A(f"""v_lshrrev_b32 v2, 6, v0
v_and_b32 v{vL}, 63, v0
s_bfe_u32 s20, s2, 0x20001
s_bfe_u32 s24, s2, 0x30003
v_readfirstlane_b32 s{sW}, v2
s_lshl3_add_u32 s{sI}, s20, s24
s_and_b32 s20, s2, 1
s_lshr_b32 s24, s2, 6
s_lshl2_add_u32 s{sC}, s20, s24
s_lshl3_add_u32 s{sP}, s{sI}, s{sC}""")
srd(SX, 2048 * 1024)
def late_setup():
    for b, off in ((SWO, 16), (SWG, 40), (SWU, 48), (SWD, 56), (SOUT, 64)):
        A(f"s_load_dwordx2 s[{b}:{b+1}], s[0:1], {off}")
    if opts.get("gmap"):
        lo = int(opts["gmap"])
        A(f"""s_cmp_ge_u32 s{sP}, {lo}
s_cselect_b32 s26, 80, 16
s_sub_u32 s{sGU}, s{sP}, s26
s_sub_u32 s26, s{sP}, {lo}
s_cmp_lt_u32 s26, 64
s_cselect_b32 s{sGU}, 255, s{sGU}""")
    else:
        A(f"s_sub_u32 s{sGU}, s{sP}, {GOFF}")
    A(f"""s_cmp_ge_u32 s{sW}, 4
s_cselect_b32 s26, {DNL}, {43-DNL}
s_cselect_b32 s24, 0, {DNL}
s_add_u32 s{sDI}, s{sP}, s24
s_cmp_lt_u32 s{sP}, s26
s_cselect_b32 s{sDI}, s{sDI}, 255
s_mov_b32 s{sRETRY}, 0""")
    if PROF:
        A(f"v_mov_b32 v{vTS}, 0\nv_writelane_b32 v{vTS}, s96, 63")
A(f"s_cmp_ge_u32 s{sW}, 4\ns_cbranch_scc1 L_lwave")
srd(SWR, 1024)
A(f"""v_and_b32 v2, 31, v{vL}
v_lshlrev_b32 v{vSA}, 4, v2
v_lshrrev_b32 v3, 5, v{vL}
v_lshl_add_u32 v4, v3, 10, v{vSA}
s_lshl2_add_u32 s20, s{sP}, s{sW}
s_lshl_b32 s20, s20, 1
s_lshl_b32 s21, s20, 10
s_waitcnt lgkmcnt(0)
buffer_load_dwordx4 v[8:11], v4, {SR(SX)}, s21 offen
buffer_load_dwordx4 v[12:15], v4, {SR(SX)}, s21 offen offset:512
buffer_load_dwordx4 v[16:19], v{vSA}, {SR(SWR)}, 0 offen
buffer_load_dwordx4 v[20:23], v{vSA}, {SR(SWR)}, 0 offen offset:512
""")
A("s_branch L_cwave")

def frag_addrs():
    A(f"""v_and_b32 v2, 31, v{vL}
v_lshrrev_b32 v3, 5, v{vL}
v_bfe_u32 v4, v2, 1, 3
v_xor_b32 v4, v4, v3
v_lshlrev_b32 v4, 4, v4
v_lshl_add_u32 v4, v2, 7, v4
v_add_u32 v{vXA}, s28, v4
v_xor_b32 v{vXA+1}, 32, v{vXA}
v_xor_b32 v{vXA+2}, 64, v{vXA}
v_xor_b32 v{vXA+3}, 96, v{vXA}
v_bfe_u32 v4, v{vL}, 2, 2
v_lshlrev_b32 v4, 7, v4
v_lshl_add_u32 v4, v3, 11, v4
v_bfe_u32 v5, v{vL}, 3, 1
v_lshl_add_u32 v4, v5, 6, v4
v_bfe_u32 v5, v{vL}, 4, 1
v_lshl_add_u32 v4, v5, 5, v4
v_and_b32 v5, 3, v{vL}
v_lshl_add_u32 v{vGA}, v5, 3, v4
s_lshl_b32 s20, s{sCT}, 6
v_xor_b32 v4, s20, v{vGA}
v_add_u32 v{vWA0}, s29, v4
v_add_u32 v{vWA1}, {3*16384}, v{vWA0}
v_lshrrev_b32 v4, 4, v{vL}
v_xor_b32 v4, v4, v{vL}
v_and_b32 v4, 1, v4
v_add_u32 v4, -1, v4
v_and_b32 v{SEL}, 0x3f803f80, v4
v_mov_b32 v{SEL+1}, v{SEL}
v_mov_b32 v{SEL+2}, v{SEL}
v_mov_b32 v{SEL+3}, v{SEL}""")
    for r in range(4): A(f"v_mov_b32 v{CS+r}, 0")
def wa(slot, off):
    return (vWA0, slot * 16384 + off) if slot < 3 else (vWA1, (slot - 3) * 16384 + off)
def csum_mfma(wf): return f"v_mfma_f32_16x16x32_bf16 {R(CS,4)}, {R(SEL,4)}, {R(wf,4)}, {R(CS,4)}"
def corr_w(dst):
    A(f"""s_mov_b32 s20, 0xffff0000
s_mov_b32 s21, 0xffff0000
v_cndmask_b32_e64 v2, v{CS}, v{CS+1}, s[20:21]
v_mul_f32 v2, 0.5, v2""")
    bf16round(3, 2)
    A("v_sub_f32 v2, v2, v3")
    bf16round(4, 2)
    A(f"""v_sub_f32 v2, v2, v4
v_cvt_pk_bf16_f32 v{dst}, v3, v4
v_cvt_pk_bf16_f32 v{dst+1}, v2, 0""")
def corr_x(dst, m):
    A(f"""v_cvt_pk_bf16_f32 v{dst}, -v{m}, -v{m}
v_cvt_pk_bf16_f32 v{dst+1}, -v{m}, 0
v_mov_b32 v{dst+2}, 0
v_mov_b32 v{dst+3}, 0""")
def Kf(k): return SL + 12 * k
def Vf(k, g): return SL + 12 * k + 4 + 4 * g
def attn_setup_s():
    A(f"""s_sub_u32 s20, 3, s{sROLE}
s_cmp_eq_u32 s{sROLE}, 0
s_cselect_b32 s21, 4, 1
s_sub_u32 s22, s{sI}, s20
s_lshl_b32 s22, s22, 3
s_add_u32 s22, s22, s{sC}
s_cmp_ge_u32 s{sI}, s20
s_cselect_b32 s{sH1}, -1, 0
s_cselect_b32 s22, s22, 0x10000
s_sub_u32 s23, s{sI}, s21
s_lshl_b32 s23, s23, 3
s_add_u32 s23, s23, s{sC}
s_cmp_ge_u32 s{sI}, s21
s_cselect_b32 s{sH2}, -1, 0
s_cselect_b32 s23, s23, 0x10000
s_lshl_b32 s{sRB}, s22, 14
s_add_u32 s{sRB}, s{sRB}, {WS_KV}
s_add_u32 s{sRB+1}, s{sRB}, 4096
s_lshl_b32 s{sRB+2}, s23, 14
s_add_u32 s{sRB+2}, s{sRB+2}, {WS_KV}
s_add_u32 s{sRB+3}, s{sRB+2}, 4096
s_lshl_b32 s{sRB+4}, s22, 12
s_add_u32 s{sRB+4}, s{sRB+4}, {WS_KVC}
s_lshl_b32 s{sRB+5}, s23, 12
s_add_u32 s{sRB+5}, s{sRB+5}, {WS_KVC}
s_lshl_b32 s{sWOD}, s{sW}, 16
s_and_b32 s20, s{sC}, 3
s_lshl_b32 s20, s20, 8
s_add_u32 s{sWOD}, s{sWOD}, s20
s_xor_b32 s{sM0}, s{sW}, 4
s_lshl_b32 s{sM0}, s{sM0}, 14
s_mov_b32 s{sWB}, s{sI}
s_add_u32 s{sWE}, s{sI}, 4
s_lshl_b32 s{sQK}, s{sI}, 1
s_lshr_b32 s21, s{sC}, 2
s_add_u32 s{sQK}, s{sQK}, s21
s_lshl_b32 s{sOUTO}, s{sQK}, 15
s_add_u32 s{sOUTO}, s{sOUTO}, s20
s_lshl_b32 s20, s{sHH}, 6
s_add_u32 s{sOUTO}, s{sOUTO}, s20""")
    srd(SWD, 0 if opts.get('nogw') else 1376 * 1024); srd(SOUT, 2048 * 1024); srd(SWO, 0 if opts.get('nowo') else 512 * 1024); srd(SWS, WS_SIZE)
def attn_setup_v():
    A(f"""s_lshl_b32 s20, s{sHH}, 10
v_lshlrev_b32 v{vRK}, 4, v{vL}
s_lshl_b32 s21, s{sW}, 12
s_add_u32 s21, s21, {L_TAIL}
v_add_u32 v{vEX}, s21, v{vRK}
v_add_u32 v{vRK}, s20, v{vRK}
v_lshrrev_b32 v{vRKC}, 1, v{vRK}
v_add_u32 v{vRV}, 8192, v{vRK}
v_lshrrev_b32 v2, 4, v{vL}
v_and_b32 v3, 15, v{vL}
v_lshlrev_b32 v4, 2, v2
v_xor_b32 v3, v3, v4
v_lshlrev_b32 v3, 4, v3
v_lshl_add_u32 v{vWO}, v2, 10, v3
v_add_u32 v{vWO+1}, 3072, v{vWO}
v_add_u32 v{vWO+2}, 6144, v{vWO}
v_add_u32 v{vWO+3}, 9216, v{vWO}
v_and_b32 v3, 31, v{vL}
v_lshrrev_b32 v4, 5, v{vL}
v_lshlrev_b32 v{vOUT}, 10, v3
v_lshl_add_u32 v{vOUT}, v4, 4, v{vOUT}
v_mul_u32_u24 v4, {1408*16}, v4
v_lshl_add_u32 v255, v3, 4, v4
v_mov_b32 v{vM0}, 0
v_mov_b32 v{vM1}, 0""")
def mk_setup():
    A(f"""v_and_b32 v2, 31, v{vL}
v_lshrrev_b32 v3, 5, v{vL}
v_lshlrev_b32 v3, 2, v3
v_sub_u32 v2, v2, v3
v_mov_b32 v192, -1
v_mov_b32 v193, -1""")
    for k in range(8):
        j0 = 8 * (k // 2) + 2 * (k % 2)
        A(f"""v_add_u32 v3, {1 - j0}, v2
v_med3_i32 v3, v3, 0, 2
v_lshlrev_b32 v3, 4, v3
v_lshlrev_b64 v[194:195], v3, v[192:193]
v_mov_b32 v{MK+k}, v194""")
def v_prefill(n):
    A(f"v_mov_b32 v{Vf(0,1)}, 0x3f803f80")
    for k in range(n):
        for r in range(4):
            if k or r: A(f"v_mov_b32 v{Vf(k,1)+r}, v{Vf(0,1)}")
def k_issue():
    for k in range(4):
        A(f"buffer_load_dwordx4 {R(Kf(k),4)}, v{vRK}, {SR(SWS)}, s{sRB+k} offen sc1")
    for p in range(2):
        A(f"buffer_load_dwordx2 {R(KC+2*p,2)}, v{vRKC}, {SR(SWS)}, s{sRB+4+p} offen sc1")
def v_issue():
    for k in range(4):
        A(f"buffer_load_dwordx4 {R(Vf(k,0),4)}, v{vRV}, {SR(SWS)}, s{sRB+k} offen sc1")
    for p in range(2):
        A(f"buffer_load_dwordx2 {R(VC+2*p,2)}, v{vRKC}, {SR(SWS)}, s{sRB+4+p} offen offset:2048 sc1")

A.label("L_lwave")
srd(SW, 512 * 3072)
A(f"""s_add_u32 s20, s{sC}, s{sI}
s_and_b32 s20, s20, 3
s_lshl_b32 s{sROT}, s20, 1
s_sub_u32 s{sHH}, s{sW}, 4
v_lshrrev_b32 v2, 3, v{vL}
v_and_b32 v3, 7, v{vL}
v_lshrrev_b32 v4, 1, v2
v_xor_b32 v5, v3, v4
v_lshlrev_b32 v5, 4, v5
v_lshl_add_u32 v{vX0}, v2, 10, v5
v_xor_b32 v5, 64, v5
v_lshl_add_u32 v{vX1}, v2, 10, v5
v_add_u32 v{vX1}, {8192-1024}, v{vX1}
v_and_b32 v4, 1, v4
v_lshlrev_b32 v4, 2, v4
v_xor_b32 v5, v3, v4
v_lshlrev_b32 v84, 4, v5
v_mul_u32_u24 v{vW0}, 3072, v2
v_add_u32 v{vW0}, v{vW0}, v84
v_add_u32 v{vW1}, {24576-2048}, v{vW0}
s_lshl_b32 s{sXO}, s{sI}, 16
s_lshl_b32 s20, s{sHH}, 14
s_add_u32 s{sXO}, s{sXO}, s20
s_lshl_b32 s{sWOFF}, s{sC}, 7
s_mul_i32 s20, s{sHH}, {16*3072}
s_add_u32 s{sWOFF}, s{sWOFF}, s20
s_lshl_b32 s31, s{sHH}, 11
s_lshl_b32 s32, s{sHH}, 12
s_waitcnt lgkmcnt(0)""")
if PROF == 1: A("s_memtime s[92:93]")
XOF = {u: [u] for u in range(8)}
def issue_unit(u):
    slot = slot_of(u)
    for t in XOF.get(u, []):
        A(f"""s_add_u32 s33, s{sROT}, {t}
s_and_b32 s33, s33, 7
s_lshl_b32 s34, s33, 7
s_add_u32 m0, s31, {L_X + t*8192}
s_add_u32 s34, s34, s{sXO}
buffer_load_dwordx4 v{vX0}, {SR(SX)}, s34 offen lds
buffer_load_dwordx4 v{vX1}, {SR(SX)}, s34 offen offset:1024 lds""")
    if u < 8:
        A(f"""s_add_u32 s33, s{sROT}, {u}
s_and_b32 s33, s33, 7
s_mul_i32 s35, s33, {64*3072}
s_add_u32 s35, s35, s{sWOFF}
s_add_u32 m0, s32, {L_RING + slot*16384}
s_add_u32 s35, s35, 1024
buffer_load_dwordx4 v{vW0}, {SR(SW)}, s35 offen lds
buffer_load_dwordx4 v{vW0}, {SR(SW)}, s35 offen offset:1024 lds
buffer_load_dwordx4 v{vW1}, {SR(SW)}, s35 offen offset:2048 lds
buffer_load_dwordx4 v{vW1}, {SR(SW)}, s35 offen offset:3072 lds""")
    else:
        for e in range(2):
            A(f"""s_add_u32 s33, s{sROT}, {2*(u-8)+e}
s_and_b32 s33, s33, 7
s_mul_i32 s35, s33, {64*3072}
s_add_u32 m0, s32, {L_RING + slot*16384 + e*1024}
s_add_u32 s35, s35, s{sWOFF}
buffer_load_dwordx4 v{vW0}, {SR(SW)}, s35 offen lds
buffer_load_dwordx4 v{vW1}, {SR(SW)}, s35 offen offset:2048 lds""")
def ucount(u): return 4 + 2 * len(XOF.get(u, []))
def lgw_issue():
    srd(SWG, 512 * 2752); srd(SWU, 512 * 2752)
    A(f"""v_lshrrev_b32 v2, 3, v{vL}
v_mul_u32_u24 v3, 2752, v2
v_and_b32 v4, 7, v{vL}
v_lshl_add_u32 v86, v4, 4, v3
s_and_b32 s33, s{sP}, 7
s_lshl_b32 s33, s33, 6
s_lshl_b32 s34, s{sHH}, 4
s_add_u32 s33, s33, s34
s_mul_i32 s33, s33, 2752
s_lshr_b32 s34, s{sGU}, 3
s_lshl_b32 s34, s34, 7
s_add_u32 s33, s33, s34
s_cmp_ge_u32 s{sGU}, 176
s_cselect_b32 s33, 0x40000000, s33
s_add_u32 s34, s33, {8*2752}
buffer_load_dwordx4 {R(GW,4)}, v86, {SR(SWG)}, s33 offen
buffer_load_dwordx4 {R(GW+4,4)}, v86, {SR(SWU)}, s33 offen
buffer_load_dwordx4 {R(GW+8,4)}, v86, {SR(SWG)}, s34 offen
buffer_load_dwordx4 {R(GW+12,4)}, v86, {SR(SWU)}, s34 offen""")
ops = []
for u in range(DEPTH):
    issue_unit(u); ops += [u] * ucount(u)
    if u == 0 and not opts.get("nocpf"):
        A(f"""s_getpc_b64 s[22:23]
s_lshr_b32 s20, s2, 3
s_lshl2_add_u32 s20, s20, s{sHH}
s_lshl_b32 s20, s20, 8
s_min_u32 s20, s20, CODE_PF_MAX
s_add_u32 s22, s22, s20
s_addc_u32 s23, s23, 0""")
        for o_ in (0, 64, 128, 192): A(f"s_load_dword s100, s[22:23], {o_}")
late_setup()
if PROF == 1: A(f"s_waitcnt lgkmcnt(0)\nv_writelane_b32 v{vTS}, s94, 0\nv_writelane_b32 v{vTS}, s92, 48")
TS(1)
SA = 112
A(f"""s_and_b32 s{sCT}, s{sHH}, 1
s_lshr_b32 s28, s{sHH}, 1
s_lshl_b32 s28, s28, 12
s_mov_b32 s29, {L_RING}
s_mov_b32 s{sROLE}, 0
v_lshlrev_b32 v85, 4, v{vL}
s_lshl_b32 s30, s{sI}, 10
s_add_u32 s30, s30, {WS_STATS}
s_cmp_lg_u32 s{sHH}, 0
s_cselect_b32 s30, 0x40000000, s30
s_mov_b32 s36, {WS_BEST}
s_cmp_lg_u32 s{sHH}, 1
s_cselect_b32 s36, 0x40000000, s36""")
A(f"""s_lshl2_add_u32 s20, s{sHH}, {L_QRDY}
v_mov_b32 v198, s20
v_mov_b32 v199, {L_QRDY}
v_mov_b32 v2, 0
ds_write_b32 v198, v2""")
attn_setup_s()
def sib_issue(): A(f"buffer_load_dwordx4 {R(SA,4)}, v85, {SR(SWS)}, s30 offen sc1")
lp = split(capture(lambda: (frag_addrs(), attn_setup_v(), v_prefill(6), mk_setup())), 6)
lpieces = {0: lp[0], 1: lp[1], 2: lp[2], 3: lp[3], 4: lp[4], 5: lp[5]}
def younger_than(tag): return len(ops) - 1 - max(k for k, x in enumerate(ops) if x == tag)
issued = DEPTH
for u in range(8):
    TSL(32 + u)
    A(f"s_waitcnt vmcnt({younger_than(u)})")
    TSL(16 + u)
    A("s_barrier")
    TSL(24 + u)
    if u == SIBU:
        sib_issue(); ops.append("sib")
    tgt = min(12, u + 1 + DEPTH + max(0, u - 1 - DEPTH), u + 5)
    while issued < tgt:
        issue_unit(issued); ops += [issued] * ucount(issued)
        if issued == LGW: lgw_issue(); ops += ['gw'] * 4
        issued += 1
    if u == 5: A(f"v_mov_b32 v122, {L_NONCE}\nds_read_b32 v123, v122")
    emit(lpieces.get(u, []))
    if u == 6:
        lb = A.newlabel("L_nsib")
        A(f"""s_waitcnt lgkmcnt(0)
v_readfirstlane_b32 s{sNONCE}, v123
s_cmp_lg_u32 s{sHH}, 0
s_cbranch_scc1 {lb}""")
        validated(sib_issue, lambda: A(f"v_cmp_ne_u32 vcc, s{sNONCE}, v{SA+3}"), younger_than("sib"))
        A(f"""v_lshrrev_b32 v122, 1, v85
v_lshrrev_b32 v123, 2, v85
v_add_u32 v122, {L_STAT}, v122
v_add_u32 v123, {L_RINV}, v123
ds_write_b64 v122, {R(SA,2)}
ds_write_b32 v123, v{SA+1}
s_waitcnt lgkmcnt(0)""")
        A.label(lb)
assert issued == 12, issued
TS(2)
LST, LSC, LCX, LCW = 116, 118, 120, 124
for r in range(16): A(f"v_mov_b32 v{ACC+r}, 0")
A(f"""v_and_b32 v2, 31, v{vL}
v_lshlrev_b32 v2, 3, v2
s_lshr_b32 s20, s28, 4
s_add_u32 s20, s20, {L_STAT}
v_add_u32 v2, s20, v2
ds_read_b64 {R(LST,2)}, v2
s_waitcnt lgkmcnt(0)""")
corr_x(LCX, LST)
A(f"""v_mul_f32 v{LSC}, {f32(0.25*LOG2E)}, v{LST+1}
v_mov_b32 v{LCW+2}, 0
v_mov_b32 v{LCW+3}, 0
s_lshl_b32 s30, s{sHH}, 11
s_add_u32 s30, s30, {L_QF}
v_lshlrev_b32 v5, 4, v{vL}
v_add_u32 v5, s30, v5""")
Q2 = 192
A(f"""s_lshl_b32 s20, s28, 1
s_lshr_b32 s21, s28, 2
s_xor_b32 s22, s20, 8192
s_xor_b32 s23, s21, 1024""")
for st in range(4): A(f"v_add_u32 v{Q2+st}, s22, v{vXA+st}\nv_add_u32 v{vXA+st}, s20, v{vXA+st}")
A(f"""v_add_u32 v{Q2+4}, s23, v{vWA0}
v_add_u32 v{Q2+5}, s23, v{vWA1}
v_add_u32 v{vWA0}, s21, v{vWA0}
v_add_u32 v{vWA1}, s21, v{vWA1}
s_lshl_b32 s22, s{sHH}, 8
s_add_u32 s22, s22, {L_CSX}
v_lshl_add_u32 v86, v{vL}, 2, s22
v_xor_b32 v87, 512, v86
s_mov_b32 s20, 0xffff0000
s_mov_b32 s21, 0xffff0000""")
def q_reads(n):
    oth = n // 16; m = (n // 4) % 4; st = n % 4; b = STB + 8 * (n % 8)
    out = [f"ds_read_b128 {R(b,4)}, v{(Q2 if oth else vXA)+st} offset:{m*16384}"]
    for j in range(2):
        r, o = wa(slot_of(8 + m), st * 4096 + j * 512)
        if oth: r = Q2 + 4 + (r - vWA0)
        out.append(f"ds_read_b64_tr_b16 {R(b+4+2*j,2)}, v{r} offset:{o}")
    return out
if int(opts.get('nob8', 1)):
    lr = A.newlabel("L_qr")
    A(f"s_waitcnt vmcnt(0)\nds_write_b32 v198, v198")
    A.label(lr)
    A(f"""ds_read_b128 {R(STB,4)}, v199
s_waitcnt lgkmcnt(0)
v_min3_u32 v2, v{STB}, v{STB+1}, v{STB+2}
v_min_u32 v2, v2, v{STB+3}
v_cmp_eq_u32 vcc, 0, v2""")
    retry_check(lr)
else:
    A("s_waitcnt vmcnt(0)\ns_barrier")
TS(3)
QB9 = int(opts.get("qb9", 21))
lq = []
def lds(tag, txt): A(txt); lq.append(tag)
def lwait(tag): A(f"s_waitcnt lgkmcnt({min(15, len(lq) - 1 - max(k for k, x in enumerate(lq) if x == tag))})")
for n in range(4):
    for x in q_reads(n): lds(n, x)
cwl = capture(lambda: corr_w(LCW))[3:]
for n in range(32):
    lwait(n)
    b = STB + 8 * (n % 8)
    if n < 16: A(csum_mfma(b + 4))
    A(mfma32(ACC, b + 4, b))
    if n + 4 < 32:
        for x in q_reads(n + 4): lds(n + 4, x)
    if n == 17:
        A(f"v_cndmask_b32_e64 v2, v{CS}, v{CS+1}, s[20:21]")
        lds("cs", "ds_write_b32 v86, v2")
    if n == QB9:
        lwait("cs")
        A("s_barrier")
        lds("cp", "ds_read_b32 v4, v87")
    if n == QB9 + 4:
        lwait("cp"); A("v_add_f32 v2, v2, v4"); emit(cwl[:4])
    if n == QB9 + 5: emit(cwl[4:])
TS(4)
A(mfma32(ACC, LCW, LCX))
for r in range(16): A(f"v_mul_f32 v{ACC+r}, v{ACC+r}, v{LSC}")
for k in range(8): A(f"v_cvt_pk_bf16_f32 v{STB+k}, v{ACC+2*k}, v{ACC+2*k+1}")
A(f"ds_write_b128 v5, {R(STB,4)}\nds_write_b128 v5, {R(STB+4,4)} offset:1024")
TS(50)
A("s_branch L_join")

A.label("L_cwave")
A(f"s_load_dword s{sNONCE}, s[{SWS}:{SWS+1}], {WS_EPOCH}")
late_setup()
if PROF == 1: A(f"v_writelane_b32 v{vTS}, s94, 0")
srd(SWG, 512 * 2752); srd(SWU, 512 * 2752)
A(f"v_mov_b32 v{vZ}, 0\nv_add_u32 v62, s20, v3")
A(f"""s_and_b32 s{sCT}, s{sW}, 1
s_mov_b32 s28, 0
s_lshr_b32 s29, s{sW}, 1
s_lshl_b32 s29, s29, 10
s_add_u32 s29, s29, {L_RING}
s_mov_b32 s{sHH}, s{sW}
s_mov_b32 s{sROLE}, 1
v_lshlrev_b32 v{vBA}, 4, v{vL}
s_lshl_b32 s35, s{sW}, 10
s_add_u32 s35, s35, {WS_BEST}
s_lshl_b32 s33, s{sP}, 14
s_add_u32 s33, s33, {WS_KV}
s_add_u32 s36, s33, 4096
s_lshl_b32 s34, s{sP}, 12
s_add_u32 s34, s34, {WS_KVC}""")
frag_addrs()
srd(SWS, WS_SIZE)
A(f"""v_lshrrev_b32 v2, 3, v{vL}
v_mul_u32_u24 v3, 2752, v2
v_and_b32 v4, 7, v{vL}
v_lshl_add_u32 v5, v4, 4, v3
s_and_b32 s31, s{sP}, 7
s_lshl_b32 s31, s31, 6
s_lshl_b32 s32, s{sW}, 4
s_add_u32 s31, s31, s32
s_mul_i32 s31, s31, 2752
s_lshr_b32 s32, s{sGU}, 3
s_lshl_b32 s32, s32, 7
s_add_u32 s31, s31, s32
s_cmp_ge_u32 s{sGU}, {0 if (opts.get("nogw") or LGW >= 0) else 176}
s_cselect_b32 s31, 0x40000000, s31
s_add_u32 s32, s31, {8*2752}""")
def gw_issue():
    A(f"""buffer_load_dwordx4 {R(GW,4)}, v5, {SR(SWG)}, s31 offen
buffer_load_dwordx4 {R(GW+4,4)}, v5, {SR(SWU)}, s31 offen
buffer_load_dwordx4 {R(GW+8,4)}, v5, {SR(SWG)}, s32 offen
buffer_load_dwordx4 {R(GW+12,4)}, v5, {SR(SWU)}, s32 offen""")
if int(opts.get("d2", 1)):
    A(f"""v_mov_b32 v40, 0
v_mov_b32 v41, 0
v_mov_b32 v42, 0
v_mov_b32 v43, 0
v_mov_b32 v48, 0x3f803f80
v_sub_u32 v47, 2047, v62
v_and_b32 v46, 7, v62
v_lshlrev_b32 v46, 4, v46
v_add_u32 v46, {L_RT}, v46
s_mov_b32 s26, 0xffff0000""")
    PREW = int(opts.get("prew", 0))
    def prewrite():
        A(f"""s_lshl_b32 s20, s{sW}, 12
s_add_u32 s21, s33, s20
s_lshl_b32 s22, s{sW}, 10
s_add_u32 s22, s34, s22
s_lshl_b32 s23, s{sI}, 4
s_add_u32 s23, s23, s{sC}
s_and_b32 s24, s{sW}, 1
s_lshl_b32 s24, s24, 3
s_add_u32 s23, s23, s24
s_lshl_b32 s24, s23, 12
s_lshr_b32 s25, s{sW}, 1
s_lshl_b32 s25, s25, 11
s_add_u32 s24, s24, s25
s_add_u32 s24, s24, {WS_O}
s_lshl_b32 s23, s23, 10
s_add_u32 s23, s23, {WS_OC}""")
        if PREW & 1:
            for k in range(4): A(f"buffer_store_dwordx4 {R(ACC,4)}, v{vBA}, {SR(SWS)}, s21 offen offset:{k*1024} sc1")
            A(f"buffer_store_dwordx4 {R(ACC,4)}, v{vBA}, {SR(SWS)}, s22 offen sc1")
        if PREW & 2:
            for k in range(2): A(f"buffer_store_dwordx4 {R(ACC,4)}, v{vBA}, {SR(SWS)}, s24 offen offset:{k*1024} sc1")
            A(f"buffer_store_dwordx4 {R(ACC,4)}, v{vBA}, {SR(SWS)}, s23 offen sc1")
    NPW = (5 if PREW & 1 else 0) + (3 if PREW & 2 else 0)
    if PREW: prewrite()
    A(f"s_waitcnt vmcnt({2 + NPW})")
    TS(1)
    if int(opts.get("np1", 0)): A(f"s_lshl_b32 s24, s{sW}, 8\nbuffer_load_dword v60, v{vZ}, {SR(SDBG)}, s24 offen sc1")
    for k in range(8): A(f"v_dot2_f32_bf16 v40, v{8+k}, v48, v40\nv_dot2_f32_bf16 v41, v{8+k}, v{8+k}, v41")
    A("s_waitcnt vmcnt(%d)" % NPW)
    for k in range(8): A(f"v_dot2_f32_bf16 v42, v{8+k}, v{16+k}, v42\nv_dot2_f32_bf16 v43, v{16+k}, v48, v43")
    for m in DPP8 + ("row_mirror",):
        for r in range(4): A(dpp("v_add_f32", 40 + r, m))
    for r in range(4): A(f"v_mov_b32 v{24+r}, v{40+r}")
    for r in range(4): A(f"v_permlane16_swap_b32 v{40+r}, v{24+r}")
    for r in range(4): A(f"v_add_f32 v{40+r}, v{40+r}, v{24+r}")
    A(f"""v_mul_f32 v40, {f32(1.0/512)}, v40
v_mul_f32 v41, {f32(1.0/512)}, v41
v_fma_f32 v41, -v40, v40, v41
v_max_f32 v41, 0, v41""")
    bf16round(40, 40)
    A("v_fma_f32 v42, -v40, v43, v42")
    var_to_rinv(41)
    A("v_mul_f32 v42, v42, v41")
    bf16round(42, 42)
    A(f"""v_ashrrev_i32 v45, 31, v42
v_or_b32 v45, 0x80000000, v45
v_xor_b32 v42, v42, v45
v_and_or_b32 v42, v42, s26, v47
ds_write_b96 v46, v[40:42]""")
else:
    A("s_waitcnt vmcnt(2)")
    TS(1)
    XU = 24
    for k in range(8):
        A(f"v_lshlrev_b32 v{XU+2*k}, 16, v{8+k}\nv_and_b32 v{XU+2*k+1}, 0xffff0000, v{8+k}")
    A(f"v_pk_add_f32 v[40:41], {R(XU,2)}, {R(XU+2,2)}")
    for k in range(4, 16, 2): A(f"v_pk_add_f32 v[40:41], v[40:41], {R(XU+k,2)}")
    A("v_add_f32 v40, v40, v41")
    allreduce32(40, 41, "v_add_f32")
    A(f"v_mul_f32 v40, {f32(-1.0/512)}, v40")
    A("v_cvt_pk_bf16_f32 v42, -v40, -v40\nv_and_b32 v42, 0xffff0000, v42")
    A(f"v_pk_add_f32 v[46:47], {R(XU,2)}, v[40:41] op_sel_hi:[1,0]\nv_pk_mul_f32 v[44:45], v[46:47], v[46:47]")
    for k in range(2, 16, 2):
        A(f"v_pk_add_f32 v[46:47], {R(XU+k,2)}, v[40:41] op_sel_hi:[1,0]\nv_pk_fma_f32 v[44:45], v[46:47], v[46:47], v[44:45]")
    A("v_add_f32 v43, v44, v45")
    allreduce32(43, 41, "v_add_f32")
    for k in range(0, 16, 2): A(f"v_pk_add_f32 {R(XU+k,2)}, {R(XU+k,2)}, v[42:43] op_sel_hi:[1,0] neg_lo:[0,1] neg_hi:[0,1]")
    A(f"v_mul_f32 v43, {f32(1.0/512)}, v43")
    for k in range(8): A(f"v_cvt_pk_bf16_f32 v{8+k}, v{XU+2*k}, v{XU+2*k+1}")
    var_to_rinv(43)
    for k in range(8):
        A(f"v_lshlrev_b32 v{XU+2*k}, 16, v{8+k}\nv_and_b32 v{XU+2*k+1}, 0xffff0000, v{8+k}")
    for k in range(0, 16, 2): A(f"v_pk_mul_f32 {R(XU+k,2)}, {R(XU+k,2)}, v[42:43] op_sel:[0,1]")
    for k in range(8): A(f"v_cvt_pk_bf16_f32 v{8+k}, v{XU+2*k}, v{XU+2*k+1}")
    A("v_mov_b32 v44, 0\ns_waitcnt vmcnt(0)")
    for k in range(8): A(f"v_dot2_f32_bf16 v44, v{8+k}, v{16+k}, v44")
    allreduce32(44, 41, "v_add_f32")
    bf16round(44, 44)
    A(f"""v_ashrrev_i32 v45, 31, v44
v_or_b32 v45, 0x80000000, v45
v_xor_b32 v44, v44, v45
v_and_b32 v44, 0xffff0000, v44
v_sub_u32 v45, 2047, v62
v_or_b32 v44, v44, v45
v_and_b32 v46, 7, v62
v_lshlrev_b32 v46, 4, v46
v_add_u32 v46, {L_RT}, v46
ds_write_b96 v46, v[42:44]
""")
A(f"""s_waitcnt lgkmcnt(0)
s_add_u32 s{sNONCE}, s{sNONCE}, 1""")
A(f"v_mov_b32 v44, s{sNONCE}\nv_mov_b32 v45, {L_NONCE}\nds_write_b32 v45, v44")
if PWS:
    A(f"""v_mov_b32 v43, s{sNONCE}
v_lshlrev_b32 v44, 4, v62
s_mov_b32 s24, 1
s_mov_b32 s25, 1
s_mov_b32 s27, {WS_STATS}
s_mov_b64 exec, s[24:25]
buffer_store_dwordx4 v[40:43], v44, {SR(SWS)}, s27 offen sc1
s_mov_b64 exec, -1""")
A(f"""s_setprio {int(opts.get("prio", 2))}""")
if GWP == 2: gw_issue()
A('v_mov_b32 v54, v5')
TS(2)
A("s_waitcnt lgkmcnt(0)")
A(f"s_cmp_ge_u32 s{sW}, 2\ns_cbranch_scc1 L_vwave")

def kv_reads(n):
    u = n // 4; st = n % 4; b = STB + 12 * (n % 6)
    out = [f"ds_read_b128 {R(b+4*qb,4)}, v{vXA+st} offset:{u*8192 + qb*4096}" for qb in range(2)]
    for j in range(2):
        r, o = wa(slot_of(u), st * 4096 + j * 512)
        out.append(f"ds_read_b64_tr_b16 {R(b+8+2*j,2)}, v{r} offset:{o}")
    return out
def kv_mm(n, isK, cs=True):
    b = STB + 12 * (n % 6)
    out = [csum_mfma(b + 8)] if cs else []
    for qb in range(2):
        c0 = 0 if n == 0 else None
        out.append(mfma32(ACC + 16 * qb, b + 8, b + 4 * qb, c0) if isK else mfma32(ACC + 16 * qb, b + 4 * qb, b + 8, c0))
    return out
def kv_interval(u, isK, fill=(), post_reads=()):
    rd = [x for n in range(4 * u, 4 * u + 4) for x in kv_reads(n)]
    old = [x for n in (4 * u - 2, 4 * u - 1) if n >= 0 for x in kv_mm(n, isK)]
    fill = list(fill)
    per = (len(fill) + 5) // 6
    emit(rd[:4])
    rest = rd[4:]
    for m in old:
        A(m); emit(rest[:2]); rest = rest[2:]
    emit(rest)
    for k, n in enumerate((4 * u, 4 * u + 1)):
        A(f"s_waitcnt lgkmcnt({12 - 4*k})")
        for m in kv_mm(n, isK):
            A(m); emit(fill[:per]); fill = fill[per:]
    emit(fill)
    emit(post_reads)
    A("s_waitcnt lgkmcnt(0)")
BT = 68
def best_issue(): A(f"buffer_load_dwordx4 {R(BT,4)}, v{vBA}, {SR(SWS)}, s35 offen sc1")
def nonce_issue(): A(f"buffer_load_dword v60, v{vZ}, {SR(SDBG)}, 0 offen sc1")
CX0, CX1, CW = 40, 44, 56
def publish():
    lb = A.newlabel("L_np")
    A(f"s_cmp_lg_u32 s{sW}, 0\ns_cbranch_scc1 {lb}")
    A(f"""v_mov_b32 v51, s{sNONCE}
s_lshl_b32 s20, s{sP}, 4
s_add_u32 s20, s20, {WS_BEST}
s_lshl_b32 s21, s{sP}, 7
s_add_u32 s21, s21, {WS_STATS}
s_mov_b64 exec, 0xff""")
    if not PWS: A(f"buffer_store_dwordx4 v[48:51], v{vBA}, {SR(SWS)}, s21 offen sc1")
    A("v_mov_b32 v52, v50")
    for m in DPP8: A(dpp("v_max_u32", 52, m))
    A(f"""v_cmp_eq_u32 vcc, v52, v50
s_mov_b64 exec, vcc
buffer_store_dwordx4 v[48:51], v{vZ}, {SR(SWS)}, s20 offen sc1
s_mov_b64 exec, -1""")
    A.label(lb)
def cw_loop(isK):
    for u in range(8):
        TSL(16 + u)
        A("s_barrier")
        TSL(24 + u)
        fill = []; post = []
        if u == PUBU and isK:
            fill = [f"v_and_b32 v53, 0x70, v{vBA}", f"v_add_u32 v53, {L_RT}, v53"]; post = ["ds_read_b96 v[48:50], v53"]
        if u in (1, 2): fill = split(capture(attn_setup_s), 2)[u - 1] if False else (capture(attn_setup_s)[:25] if u == 1 else capture(attn_setup_s)[25:])
        if u == 4: fill = capture(attn_setup_v)
        if u == 3:
            fill = capture(lambda: A(f"""v_mov_b32 v{CW+2}, 0
v_mov_b32 v{CW+3}, 0
v_lshrrev_b32 v64, 1, v{vSA}
v_add_u32 v64, {L_STAT}, v64
v_mov_b32 v66, {L_NONCE}"""))
            if isK:
                fill += capture(lambda: A(f"""s_lshl_b32 s20, s{sCT}, 11
v_add_u32 v{vKA}, s20, v{vBA}
v_lshrrev_b32 v{vKC}, 1, v{vKA}"""))
            else:
                fill += capture(lambda: A(f"""v_and_b32 v2, 0x2f, v{vL}
v_bfe_u32 v3, v{vL}, 4, 1
s_lshl_b32 s20, s{sCT}, 1
v_add_u32 v3, s20, v3
v_lshlrev_b32 v{vKA}, 4, v2
v_lshl_add_u32 v{vKA}, v3, 10, v{vKA}
v_lshrrev_b32 v{vKC}, 1, v{vKA}
v_add_u32 v{vKA}, 8192, v{vKA}
v_lshrrev_b32 v65, 5, v{vL}
v_lshlrev_b32 v65, 4, v65
v_add_u32 v65, {L_RINV}, v65"""))
        if u == int(opts.get('bu', 7)): fill = fill + capture(best_issue)
        if u == 7:
            post = [f"ds_read_b64 {R(ST0,2)}, v64", f"ds_read_b64 {R(ST1,2)}, v64 offset:256"]
            if not isK:
                post += [f"ds_read_b128 {R(8+16*qb+4*a,4)}, v65 offset:{qb*128 + a*32}" for qb in range(2) for a in range(4)]
        kv_interval(u, isK, fill, post)
        TSL(32 + u)
        if u == PUBU and isK: publish()
        if GWP == 10 + u:
            A('v_mov_b32 v5, v54'); gw_issue()
    if not int(opts.get('nob8', 1)): A("s_barrier")
    TS(3)
    A(csum_mfma(STB + 12 * (30 % 6) + 8)); A(csum_mfma(STB + 12 * (31 % 6) + 8))
    mm = kv_mm(30, isK, False) + kv_mm(31, isK, False)
    A(mm[0]); corr_x(CX0, ST0)
    A(mm[1]); corr_x(CX1, ST1)
    cw = capture(lambda: corr_w(CW))
    A(mm[2]); emit(cw[:6]); A(mm[3]); emit(cw[6:])
    for qb, cx in enumerate((CX0, CX1)):
        A(mfma32(ACC + 16 * qb, CW, cx) if isK else mfma32(ACC + 16 * qb, cx, CW))
CSR = 144
def kv_store(isK):
    for qb in range(2):
        st = ST0 if qb == 0 else ST1
        for e in range(2):
            for r in range(8 * e, 8 * e + 8):
                A(f"v_mul_f32 v{ACC+16*qb+r}, v{ACC+16*qb+r}, v{st+1 if isK else 8+16*qb+r}")
            for k in range(4 * e, 4 * e + 4): A(f"v_cvt_pk_bf16_f32 v{OWN+8*qb+k}, v{ACC+16*qb+2*k}, v{ACC+16*qb+2*k+1}")
            b = OWN + 8 * qb + 4 * e; c_ = CSR + 2 * e + qb
            A(f"buffer_store_dwordx4 {R(b,4)}, v{vKA}, {SR(SWS)}, s{33 if qb == 0 else 36} offen offset:{e*(1024 if isK else 256)} sc1")
            A(f"v_add3_u32 v{c_}, v{b}, v{b+1}, v{b+2}\nv_add3_u32 v{c_}, v{c_}, v{b+3}, s{sNONCE}")
    for e in range(2):
        A(f"buffer_store_dwordx2 {R(CSR+2*e,2)}, v{vKC}, {SR(SWS)}, s34 offen offset:{e*512 if isK else 2048+e*128} sc1")

cw_loop(True); kv_store(True)
A("s_mov_b32 s39, 1024\ns_branch L_cpost")
A.label("L_vwave")
cw_loop(False); kv_store(False)
A("s_mov_b32 s39, 256")
A.label("L_cpost")
TS(4)
A("s_setprio %d" % int(opts.get("cp2", 0)))
WOW = int(opts.get("wow", 0))
if WOW:
    A(f"""s_and_b32 s20, s{sI}, 7
s_lshl_b32 s20, s20, 2
s_add_u32 s20, s20, s{sW}
s_lshl_b32 s20, s20, 14
s_and_b32 s21, s{sC}, 3
s_lshl_b32 s21, s21, 8
s_add_u32 s20, s20, s21""")
    for k in range(4): A(f"buffer_load_dwordx4 {R(176+4*k,4)}, v{vWO+k}, {SR(SWO)}, s20 offen offset:{k*1024}")
validated(best_issue, lambda: A(f"v_cmp_ne_u32 vcc, s{sNONCE}, v{BT+3}"), 6 + 4 * WOW)
A(f"v_mov_b32 v{BT+4}, v{BT+2}")
allreduce32(BT + 4, BT + 5, "v_max_u32")
A(f"""v_mov_b32 v{BT+5}, v{BT+4}
v_permlane32_swap_b32 v{BT+4}, v{BT+5}
v_max_u32 v{BT+4}, v{BT+4}, v{BT+5}
s_lshl_b32 s20, s{sW}, 4
s_add_u32 s20, s20, {L_IDX}
v_mov_b32 v2, s20
v_cmp_eq_u32 vcc, v{BT+4}, v{BT+2}
s_mov_b64 exec, vcc
ds_write_b128 v2, {R(BT,4)}
s_mov_b64 exec, -1
""")
def winner():
    A(f"v_mov_b32 v5, v{SB+2}")
    for m in DPP8[:2]: A(dpp("v_max_u32", 5, m))
    A(f"""v_cmp_eq_u32 vcc, v5, v{SB+2}
v_readfirstlane_b32 s{sKEY}, v5
s_ff1_i32_b32 s20, vcc_lo
v_readlane_b32 s{sSM}, v{SB}, s20
v_readlane_b32 s{sSR}, v{SB+1}, s20""")
A(f"""v_and_b32 v4, 3, v{vL}
v_lshlrev_b32 v4, 4, v4
v_add_u32 v4, {L_IDX}, v4
v_add_u32 v2, {L_OWN}, v{vKA}
v_add_u32 v3, s39, v2
v_and_b32 v72, 7, v{vL}
v_lshlrev_b32 v72, 2, v72
v_mov_b32 v74, v{vSA}
s_waitcnt lgkmcnt(0)
s_barrier""")
TS(48)
A(f"""ds_read_b128 {R(SB,4)}, v4
ds_write_b128 v2, {R(OWN,4)}
ds_write_b128 v3, {R(OWN+4,4)}
ds_write_b128 v2, {R(OWN+8,4)} offset:4096
ds_write_b128 v3, {R(OWN+12,4)} offset:4096
s_waitcnt lgkmcnt(4)""")
winner()
A(f"""s_and_b32 s24, s{sKEY}, 0x7ff
s_sub_u32 s24, 2047, s24
s_lshl_b32 s24, s24, 10
s_and_b32 s25, s{sP}, 7
s_lshl_b32 s25, s25, 7
s_add_u32 s24, s24, s25
s_lshl_b32 s25, s{sW}, 5
s_add_u32 s24, s24, s25
buffer_load_dword v73, v72, {SR(SX)}, s24 offen""")
A(f"""s_cmp_ge_u32 s{sC}, 4
s_cselect_b64 s[20:21], -1, 0
v_cndmask_b32_e64 v{vPM}, v{ST0}, v{ST1}, s[20:21]
v_cndmask_b32_e64 v{vPR}, v{ST0+1}, v{ST1+1}, s[20:21]
""")
A(f"""v_bfe_u32 v4, v{vL}, 4, 1
v_lshlrev_b32 v4, 6, v4
v_xor_b32 v2, v{vEX}, v4""")
if LGW < 0:
    for k in range(4): A(f"ds_write_b128 v2, {R(GW+4*k,4)} offset:{k*1024}")
v_prefill(4)
A("s_waitcnt vmcnt(1)")
TS(49)
k_issue()
TS(50)
if not int(opts.get('vl', 1)): v_issue()
TS(51)
A(f"""s_waitcnt vmcnt({6 if int(opts.get('vl', 1)) else 12})
v_lshlrev_b32 v2, 16, v73
v_and_b32 v3, 0xffff0000, v73
v_subrev_f32 v2, s{sSM}, v2
v_subrev_f32 v3, s{sSM}, v3
v_cvt_pk_bf16_f32 v4, v2, v3
v_lshlrev_b32 v2, 16, v4
v_and_b32 v3, 0xffff0000, v4
v_mul_f32 v2, s{sSR}, v2
v_mul_f32 v3, s{sSR}, v3
v_cvt_pk_bf16_f32 v4, v2, v3
s_add_u32 s25, s25, {L_XSEL}
v_add_u32 v72, s25, v72
ds_write_b32 v72, v4
v_mov_b32 v75, v{vWA1}""")

A.label("L_join")
A("s_setprio 0")
TS(5); RC(41)
A("s_waitcnt lgkmcnt(0)\ns_barrier")
A(f"""s_lshl_b32 s20, s{sROLE}, 12
s_add_u32 s21, s20, {L_QF}
s_xor_b32 s20, s20, 4096
s_add_u32 s20, s20, {L_QF}
v_add_u32 v2, s21, v{vRK}
v_add_u32 v3, s20, v{vRK}
ds_read_b128 {R(QF,4)}, v2
ds_read_b128 {R(QF+4,4)}, v3""")
lb = A.newlabel("L_noown"); lb2 = A.newlabel("L_noown2")
A(f"s_cmp_lg_u32 s{sROLE}, 0\ns_cbranch_scc1 {lb}")
A(f"""v_add_u32 v2, {L_OWN}, v{vRK}
v_and_b32 v4, 3, v{vL}
v_lshlrev_b32 v4, 4, v4
v_add_u32 v4, {L_IDX}, v4
ds_read_b128 {R(SB,4)}, v4
ds_read_b128 {R(Kf(4),4)}, v2
ds_read_b128 {R(Kf(5),4)}, v2 offset:4096
ds_read_b128 {R(Vf(4,0),4)}, v2 offset:8192
ds_read_b128 {R(Vf(5,0),4)}, v2 offset:12288
s_branch {lb2}""")
A.label(lb)
GX = 144; GF = 160
if int(opts.get('vl', 1)): v_issue()
A(f"""s_cmp_ge_u32 s{sGU}, 176
s_cbranch_scc1 {lb2}
s_cmp_ge_u32 s{sW}, 2
s_cbranch_scc1 {lb2}
v_lshrrev_b32 v2, 5, v{vL}
v_lshlrev_b32 v2, 4, v2
v_add_u32 v2, {L_XSEL}, v2""")
for st in range(4): A(f"ds_read_b128 {R(GX+4*st,4)}, v2 offset:{st*32}")
for st in range(4):
    for m in range(2):
        for j in range(2):
            A(f"ds_read_b64_tr_b16 {R(GF+8*st+4*m+2*j,2)}, v75 offset:{16384 + m*1024 + st*4096 + j*512}")
A.label(lb2)
A("s_waitcnt lgkmcnt(0)")
TS(6)
def g_stage():
    lb = A.newlabel("L_nog"); lb2 = A.newlabel("L_nog2")
    A(f"s_cmp_ge_u32 s{sGU}, 176\ns_cbranch_scc1 {lb}\ns_cmp_ge_u32 s{sW}, 2\ns_cbranch_scc1 {lb}")
    for st in range(4):
        for m in range(2): A(mfma32(ACC + 16 * m, GX + 4 * st, GF + 8 * st + 4 * m, None if st else 0))
    A(f"""s_and_b32 s20, s{sP}, 7
s_mul_i32 s20, s20, {1408*16}
s_lshr_b32 s21, s{sGU}, 3
s_lshl_b32 s21, s21, 10
s_add_u32 s20, s20, s21
s_lshl_b32 s21, s{sW}, 9
s_add_u32 s20, s20, s21
s_add_u32 s20, s20, {WS_GP}
v_mov_b32 v{GW+2}, s{sNONCE}
v_mov_b32 v{GW+3}, s{sNONCE}
s_mov_b32 s22, -1
s_mov_b32 s23, 0
v_mov_b32 v{GW}, v{ACC}
v_mov_b32 v{GW+1}, v{ACC+16}
s_mov_b64 exec, s[22:23]
buffer_store_dwordx4 {R(GW,4)}, v74, {SR(SWS)}, s20 offen sc1
s_mov_b64 exec, -1
s_branch {lb2}""")
    A.label(lb)
    A(f"s_mov_b32 s20, 0x40000000\nbuffer_load_dword v254, v74, {SR(SWS)}, s20 offen")
    A.label(lb2)

GPR = 208
def gp_issue():
    A(f"s_lshl_b32 s36, s{sDI}, 9\ns_add_u32 s36, s36, {WS_GP}")
    for q in range(4): A(f"buffer_load_dwordx4 {R(GPR+4*q,4)}, v255, {SR(SWS)}, s36 offen sc1\ns_add_u32 s36, s36, {2*1408*16}")
def gp_check():
    for q in range(4): A(f"v_xor_b32 v{2+q}, s{sNONCE}, v{GPR+4*q+2}")
    A("v_or3_b32 v2, v2, v3, v4\nv_or_b32 v2, v2, v5\nv_cmp_ne_u32 vcc, 0, v2")
def wd_loads():
    A(f"""s_lshl_b32 s37, s{sDI}, 15
s_lshl_b32 s20, s{sHH}, 8
s_add_u32 s37, s37, s20
v_lshrrev_b32 v2, 4, v{vL}
v_and_b32 v3, 15, v{vL}
v_lshlrev_b32 v3, 4, v3
v_lshl_add_u32 v2, v2, 10, v3""")
    for n in range(8): A(f"buffer_load_dwordx4 {R(DG[n],4)}, v2, {SR(SWD)}, s37 offen\ns_add_u32 s37, s37, 4096")
def wd_issue():
    lb = A.newlabel("L_nwd")
    A(f"s_cmp_ge_u32 s{sDI}, 43\ns_cbranch_scc1 {lb}")
    wd_loads()
    A.label(lb)
def gp_request(pad):
    def h():
        lb = A.newlabel("L_ngp")
        A(f"s_cmp_ge_u32 s{sDI}, 43\ns_cbranch_scc1 {lb}")
        gp_issue()
        if pad: A("s_waitcnt vmcnt(0)")
        A.label(lb)
    return h
def d_block():
    A(f"s_cmp_ge_u32 s{sDI}, 43\ns_cbranch_scc1 L_dend")
    A(f"""v_lshrrev_b32 v3, 4, v{vL}
v_lshlrev_b32 v3, 6, v3
v_lshlrev_b32 v2, 4, v{vL}
v_xor_b32 v24, v2, v3
v_lshrrev_b32 v3, 5, v{vL}
v_bfe_u32 v4, v{vL}, 2, 2
v_lshlrev_b32 v5, 8, v4
v_lshl_add_u32 v5, v3, 11, v5
v_lshl_add_u32 v5, v4, 6, v5
v_bfe_u32 v3, v{vL}, 4, 1
v_lshl_add_u32 v5, v3, 5, v5
v_and_b32 v3, 3, v{vL}
v_lshl_add_u32 v5, v3, 3, v5
s_lshl_b32 s38, s{sHH}, 12
s_add_u32 s38, s38, 114688
v_add_u32 v24, s38, v24
v_add_u32 v25, s38, v5
v_xor_b32 v26, 64, v25
v_xor_b32 v27, 128, v25
v_xor_b32 v28, 192, v25
s_waitcnt vmcnt(DWAIT+4)""".replace('DWAIT+4', str(DW + 4)))
    for rd in range(2):
        for k in range(4): A(f"ds_write_b128 v24, {R(DG[4*rd+k],4)} offset:{k*1024}")
        for t in range(4):
            for j in range(2): A(f"ds_read_b64_tr_b16 {R(DG[4*rd+t]+2*j,2)}, v{25+t} offset:{j*1024}")
    validated(gp_issue, gp_check, DW)
    A(f"""v_add_f32 v2, v{GPR}, v{GPR+4}
v_add_f32 v3, v{GPR+1}, v{GPR+5}
v_add_f32 v4, v{GPR+8}, v{GPR+12}
v_add_f32 v5, v{GPR+9}, v{GPR+13}
v_add_f32 v2, v2, v4
v_add_f32 v3, v3, v5
v_mov_b32 v4, v2
v_mov_b32 v5, v3
v_permlane32_swap_b32 v2, v4
v_permlane32_swap_b32 v3, v5
v_add_f32 v2, v2, v4
v_add_f32 v3, v3, v5""")
    bf16round(2, 2); bf16round(3, 3)
    A(f"""v_mul_f32 v4, {f32(-LOG2E)}, v2
v_exp_f32 v4, v4
v_add_f32 v4, 1.0, v4
v_rcp_f32 v4, v4
v_mul_f32 v2, v2, v4""")
    bf16round(2, 2)
    A(f"""v_mul_f32 v2, v2, v3
v_cvt_pk_bf16_f32 v2, v2, v2
v_and_b32 v3, 31, v{vL}
v_lshl_add_u32 v3, v3, 1, s38
ds_write_b16 v3, v2
v_lshrrev_b32 v3, 5, v{vL}
v_lshl_add_u32 v3, v3, 4, s38
ds_read_b128 {R(32,4)}, v3
ds_read_b128 {R(36,4)}, v3 offset:32
s_lshl_b32 s20, s{sDI}, 12
s_lshl_b32 s21, s{sHH}, 10
s_add_u32 s20, s20, s21
s_add_u32 s20, s20, {WS_YP}
s_mov_b32 s22, 0
s_mov_b32 s23, -1
v_lshlrev_b32 v2, 4, v{vL}
v_mov_b32 v42, s{sNONCE}
v_mov_b32 v43, s{sNONCE}
s_waitcnt lgkmcnt(0)""")
    DB = [SB, SB + 16, SB + 32, 48]
    for st in range(2):
        for t in range(4): A(mfma32(DB[t], 32 + 4 * st, DG[4 * st + t], None if st else 0))
    A(f"""v_cndmask_b32_e64 v40, v{DB[0]}, v{DB[2]}, s[22:23]
v_cndmask_b32_e64 v41, v{DB[1]}, v{DB[3]}, s[22:23]
buffer_store_dwordx4 {R(40,4)}, v2, {SR(SWS)}, s20 offen sc1
""")
    A.label("L_dend")
def wo_dma4():
    return [f"""s_and_b32 s26, s{sWB}, 3
s_add_u32 s{sWB}, s{sWB}, 1
s_lshl_b32 s27, s26, 12
s_add_u32 m0, s27, s{sM0}
s_lshl_b32 s27, s26, 14
s_add_u32 s27, s27, s{sWOD}"""] + [f"buffer_load_dwordx4 v{vWO+k}, {SR(SWO)}, s27 offen offset:{k*1024} lds" for k in range(4)]
def kv_check(base, cs):
    for k in range(4):
        b = base(k)
        A(f"v_add3_u32 v{2+k}, v{b}, v{b+1}, v{b+2}\nv_add3_u32 v{2+k}, v{2+k}, v{b+3}, s{sNONCE}\nv_xor_b32 v{2+k}, v{2+k}, v{cs+k}")
    A(f"""v_or_b32 v2, v2, v3
v_or_b32 v4, v4, v5
v_and_b32 v2, s{sH1}, v2
v_and_or_b32 v2, v4, s{sH2}, v2
v_cmp_ne_u32 vcc, 0, v2""")
def k_check(): kv_check(Kf, KC)
def v_check(): kv_check(lambda k: Vf(k, 0), VC)
def vswap(ks):
    for k in ks:
        for r in range(4): A(f"v_permlane16_swap_b32 v{Vf(k,0)+r}, v{Vf(k,1)+r}")
def Q(q): return QF + 4 * q
def smf(dst, k, q, c): return mfma32(dst, Kf(k), Q(q), c)
SEG = lambda k0: [(k0, 0, None), (k0, 1, None), (k0 + 1, 0, None), (k0 + 1, 1, None)]
B3 = [SB, SB + 16, SB + 32]
def nm(q): return R(NM + 16 * q, 16)
def p2_run(jobs, cfun, fresh, extra={}, mem={}):
    n = len(jobs)
    pend = []
    A(smf(B3[0], jobs[0][0], jobs[0][1], cfun(jobs[0][1])))
    for t in range(n):
        k, q, mask = jobs[t]; b = B3[t % 3]
        side = []
        if t + 1 < n: side.append(smf(B3[(t + 1) % 3], jobs[t + 1][0], jobs[t + 1][1], cfun(jobs[t + 1][1])))
        side += pend
        val = [f"v_exp_f32 v{b+r}, v{b+r}" for r in range(16)]
        val += [f"v_cvt_pk_bf16_f32 v{b+j}, v{b+2*j}, v{b+2*j+1}" for j in range(8)]
        if mask == "old": val += [f"v_and_b32 v{b+j}, v{b+j}, v{MK+j}" for j in range(8)]
        if mask == "diag": val += [f"v_bfi_b32 v{b+j}, v{MK+j}, 0, v{b+j}" for j in range(8)]
        mm_ = mem.get(t, [])
        if mm_:
            step = len(val) // len(mm_)
            for q_, x in enumerate(mm_): val[q_ * step + step // 2] += "\n" + x
        vi = 0
        for sx in side:
            A(sx); emit(val[vi:vi + 5]); vi += 5
        emit(val[vi:])
        for fn in extra.get(t, []): fn()
        pend = [mfma32(OA + 16 * q, Vf(k, g), b + 4 * g, 0 if (q in fresh and g == 0) else None) for g in range(2)]
        fresh.discard(q)
    emit(pend)
zero = lambda q: 0
XR = 80
dma = lambda: emit(wo_dma4())
def wo_ops():
    out = []
    for b in range(4):
        l = wo_dma4(); out += [l[0] + "\n" + l[1]] + l[2:]
    return out
def dma_upto(n):
    lt = A.newlabel("L_du"); le = A.newlabel("L_de")
    A.label(lt)
    A(f"s_sub_u32 s20, s{sWE}, {4-n}\ns_cmp_ge_u32 s{sWB}, s20\ns_cbranch_scc1 {le}")
    dma()
    A(f"s_branch {lt}")
    A.label(le)
def after_v(isC, wait):
    def h():
        validated(v_issue, v_check, wait)
        vswap(range(4))
        if isC:
            for pr in range(2):
                A(f"buffer_load_dwordx4 {R(XR+4*pr,4)}, v{vOUT}, {SR(SX)}, s{sOUTO} offen offset:{pr*32}")
            if int(opts.get("opt", 0)) == 1:
                A(f"""s_lshl_b32 s20, s{sI}, 4
s_add_u32 s20, s20, s{sC}
s_and_b32 s21, s{sW}, 1
s_lshl_b32 s21, s21, 3
s_add_u32 s20, s20, s21
s_cmp_ge_u32 s{sW}, 2
s_cselect_b32 s21, 10, 12
s_mov_b32 s22, {WS_O}
s_cselect_b32 s22, {WS_OC}, s22
s_cselect_b32 s24, 0xff, -1
s_mov_b32 s25, 0
s_lshl_b32 s20, s20, s21
s_add_u32 s20, s20, s22
v_lshlrev_b32 v2, 7, v{vL}
s_mov_b64 exec, s[24:25]
buffer_load_dword v254, v2, {SR(SWS)}, s20 offen sc1
s_mov_b64 exec, -1""")
        if int(opts.get("opt", 0)) == 4:
            A(f"""s_lshl_b32 s20, s{sI}, 1
s_add_u32 s20, s20, s{sROLE}
s_lshl_b32 s20, s20, 3
s_add_u32 s20, s20, s{sC}
s_lshl_b32 s21, s20, 10
s_add_u32 s21, s21, {WS_OC}
s_lshl_b32 s20, s20, 12
s_add_u32 s20, s20, {WS_O}
v_lshrrev_b32 v5, 2, v{vRK}
v_add3_u32 v4, v{QF}, v{QF+1}, v{QF+2}
v_add3_u32 v4, v4, v{QF+3}, s{sNONCE}
v_add_u32 v4, 1, v4
buffer_store_dwordx4 {R(QF,4)}, v{vRK}, {SR(SWS)}, s20 offen sc1
buffer_store_dword v4, v5, {SR(SWS)}, s21 offen sc1""")
        TS(9); RC(43)
    return h
def k_valid(first_wait):
    validated(lambda: (k_issue(), v_issue()), k_check, first_wait)
    TS(7); RC(42)
def sched(ops, plan):
    out = {}; k = 0
    for t, n in plan:
        out[t] = ops[k:k + n]; k += n
    assert k == len(ops)
    return out
OWNJ = [(4, 0, "diag"), (5, 1, "diag"), (4, 1, None)]
OLDJ = [(3, 0, None), (2, 0, "old"), (3, 1, "old")]
CPL = eval(opts.get('cpl', '[]')); LPL = eval(opts.get('lpl', '[(1,4),(5,4),(6,4)]'))
NCB = sum(n for t, n in CPL) // 4
A(f"s_cmp_eq_u32 s{sROLE}, 0\ns_cbranch_scc1 L_fA")
g_stage()
TS(8)
k_valid(7)
lb = A.newlabel("L_fb1"); lb2 = A.newlabel("L_fb0")
A(f"s_cmp_eq_u32 s{sH1}, 0\ns_cbranch_scc1 {lb}")
p2_run(SEG(0) + SEG(2), zero, {0, 1}, {0: [after_v(1, 1)]}, sched(wo_ops()[:4*NCB], CPL))
A("s_branch L_fchk")
A.label(lb)
A(f"s_cmp_eq_u32 s{sH2}, 0\ns_cbranch_scc1 {lb2}")
p2_run(SEG(2), zero, {0, 1}, {0: [after_v(1, 1), wd_issue]})
dma_upto(NCB)
A("s_branch L_fchk")
A.label(lb2)
after_v(1, 1)()
wd_issue()
dma_upto(NCB)
for r in range(32): A(f"v_mov_b32 v{OA+r}, 0")
A(f"v_mov_b32 v{vM0}, {f32(-1e30)}\nv_mov_b32 v{vM1}, {f32(-1e30)}")
A("s_branch L_p2done")
A.label("L_fA")
GQ = int(opts.get("gq", 4)); DW = sum(n for t, n in LPL if t > GQ)
winner()
vswap((4, 5))
A('s_setprio %d' % int(opts.get('lprio', 1)))
lb = A.newlabel("L_fa1"); lb2 = A.newlabel("L_fa0")
A(f"s_cmp_eq_u32 s{sH1}, 0\ns_cbranch_scc1 {lb2}")
p2_run(OWNJ, zero, {0, 1}, {}, sched(capture(k_issue) + capture(v_issue), [(0, 6), (1, 3), (2, 3)]))
TS(8)
k_valid(6)
A(f"s_cmp_eq_u32 s{sH2}, 0\ns_cbranch_scc1 {lb}")
p2_run(SEG(0) + OLDJ, zero, set(), {0: [after_v(0, 0), wd_issue], GQ: [gp_request(0)]}, sched(wo_ops()[:sum(n for t, n in LPL)], LPL))
A("s_branch L_fchk")
A.label(lb)
p2_run(SEG(0), zero, set(), {0: [after_v(0, 0), wd_issue]})
if int(opts.get('s3', 2)): dma_upto(int(opts.get('s3', 2)))
gp_request(1)()
A("s_branch L_fchk")
A.label(lb2)
wd_issue()
p2_run(OWNJ, zero, {0, 1})
dma_upto(int(opts.get("sb", 3)))
A("s_waitcnt vmcnt(0)")
gp_request(1)()
A.label("L_fchk")
LO = (127 - 40) << 23; RNG = 80 << 23
if not FAST: LO, RNG = 0, 0
A(f"""v_subrev_u32 v2, {hex(LO)}, v{OA+8}
v_subrev_u32 v3, {hex(LO)}, v{OA+24}
v_max_u32 v2, v2, v3
v_cmp_le_u32 vcc, {hex(RNG) if RNG else 0}, v2
s_cbranch_vccnz L_slow""")
A.label("L_p2done")
if DPOS == 0: d_block()
PB0 = int(opts.get("pb0", 0)); NB1 = int(opts.get("nb1", 4)); MB = int(opts.get("mb", 5))
A(f"""s_cmp_lt_u32 s{sW}, 4
s_cbranch_scc1 L_npb0""")
dma_upto(4)
A(f"""s_sub_u32 s{sWOD}, s{sWOD}, {4 << 16}
s_add_u32 s{sM0}, s{sM0}, {4 << 14}
s_add_u32 s{sWE}, s{sWE}, 4
s_add_u32 s{sWB}, s{sWB}, {NCB}""")
if PB0: dma_upto(NCB + PB0)
A.label("L_npb0")
TS(10)

def slow_path():
    A.label("L_slow")
    A("s_waitcnt vmcnt(0)")
    A(f"v_mov_b32 v{vM0}, {f32(-1e30)}\nv_mov_b32 v{vM1}, {f32(-1e30)}\nv_mov_b32 v5, {f32(-1e30)}")
    def max_run(jobs):
        for (k, q, mask) in jobs:
            m = vM0 if q == 0 else vM1
            A(smf(SB, k, q, 0))
            if mask:
                for r in range(16):
                    j0 = 8 * (r // 4) + r % 4
                    A(f"s_lshl_b32 s20, -1, {j0}\ns_lshl_b32 s21, -1, {j0+4}")
                    if mask == "diag": A(f"v_cndmask_b32_e64 v{SB+r}, v5, v{SB+r}, s[20:21]")
                    else: A(f"v_cndmask_b32_e64 v{SB+r}, v{SB+r}, v5, s[20:21]")
            for r in range(0, 16, 2): A(f"v_max3_f32 v{m}, v{SB+r}, v{SB+r+1}, v{m}")
    def groups(fn):
        l1 = A.newlabel("L_s"); l2 = A.newlabel("L_s"); l3 = A.newlabel("L_s")
        A(f"s_cmp_eq_u32 s{sH1}, 0\ns_cbranch_scc1 {l1}")
        fn(SEG(0))
        A.label(l1)
        A(f"s_cmp_eq_u32 s{sROLE}, 0\ns_cbranch_scc1 {l2}")
        fn(SEG(2))
        A(f"s_branch {l3}")
        A.label(l2)
        fn(OWNJ)
        A(f"s_cmp_eq_u32 s{sH2}, 0\ns_cbranch_scc1 {l3}")
        fn(OLDJ)
        A.label(l3)
    groups(max_run)
    A(f"""v_mov_b32 v2, v{vM0}
v_mov_b32 v3, v{vM1}
v_permlane32_swap_b32 v{vM0}, v2
v_permlane32_swap_b32 v{vM1}, v3
v_max_f32 v{vM0}, v{vM0}, v2
v_max_f32 v{vM1}, v{vM1}, v3""")
    for q, m in enumerate((vM0, vM1)):
        for r in range(16): A(f"v_sub_f32 v{NM+16*q+r}, 0, v{m}")
    for r in range(32): A(f"v_mov_b32 v{OA+r}, 0")
    groups(lambda jobs: p2_run(jobs, nm, set()))
    wd_issue()
    A("s_waitcnt vmcnt(0)\ns_branch L_p2done")

A(f"""v_xor_b32 v3, 0x4000, v{vEX}
v_add_u32 v3, {81920 - L_TAIL}, v3
v_add_u32 v2, {81920 - L_TAIL}, v{vEX}
s_lshl_b32 s20, s{sI}, 1
s_add_u32 s20, s20, s{sROLE}
s_lshl_b32 s20, s20, 3
s_add_u32 s20, s20, s{sC}
s_lshl_b32 s21, s20, 10
s_add_u32 s21, s21, {WS_OC}
s_lshl_b32 s20, s20, 12
s_add_u32 s20, s20, {WS_O}
v_lshrrev_b32 v5, 2, v{vRK}
v_mov_b32 v{OA+25}, v{vM1}
ds_write_b64 v3, {R(OA+24,2)} offset:2048
ds_write_b128 v3, {R(OA+16,4)}
ds_write_b128 v3, {R(OA+20,4)} offset:1024
s_waitcnt lgkmcnt(0)
s_barrier
ds_read_b64 {R(SB+8,2)}, v2 offset:2048
ds_read_b128 {R(SB,4)}, v2
ds_read_b128 {R(SB+4,4)}, v2 offset:1024
s_waitcnt lgkmcnt(2)
v_max_f32 v3, v{vM0}, v{SB+9}
v_sub_f32 v{SB+10}, v{vM0}, v3
v_sub_f32 v{SB+11}, v{SB+9}, v3
v_exp_f32 v{SB+10}, v{SB+10}
v_exp_f32 v{SB+11}, v{SB+11}
v_mul_f32 v4, v{SB+10}, v{OA+8}
v_fmac_f32 v4, v{SB+11}, v{SB+8}
v_rcp_f32 v4, v4
v_mul_f32 v{SB+10}, v{SB+10}, v4
v_mul_f32 v{SB+11}, v{SB+11}, v4
s_waitcnt lgkmcnt(0)""")
for r in range(0, 8, 2):
    A(f"v_pk_mul_f32 {R(OA+r,2)}, {R(OA+r,2)}, {R(SB+10,2)} op_sel_hi:[1,0]")
    A(f"v_pk_fma_f32 {R(OA+r,2)}, {R(SB+r,2)}, {R(SB+10,2)}, {R(OA+r,2)} op_sel:[0,1,0]")
for k in range(4): A(f"v_cvt_pk_bf16_f32 v{SB+12+k}, v{OA+2*k}, v{OA+2*k+1}")
A(f"""buffer_store_dwordx4 {R(SB+12,4)}, v{vRK}, {SR(SWS)}, s20 offen sc1
v_add3_u32 v4, v{SB+12}, v{SB+13}, v{SB+14}
v_add3_u32 v4, v4, v{SB+15}, s{sNONCE}
buffer_store_dword v4, v5, {SR(SWS)}, s21 offen sc1""")
TS(11)

A("s_waitcnt vmcnt(2)\ns_barrier")
TS(12); RC(44)

WOF = 8; XB = 136; PA = 160; OF = 176; OL = 208; OLC = 224
A(f"""s_lshl_b32 s20, s{sQK}, 3
s_add_u32 s20, s20, s{sW}
s_lshl_b32 s32, s20, 10
s_add_u32 s32, s32, {WS_OC}
s_lshl_b32 s31, s20, 12
s_add_u32 s31, s31, {WS_O}
v_lshlrev_b32 v2, 4, v{vL}
v_lshlrev_b32 v{vRV}, 2, v{vL}
s_and_b32 s33, s{sKEY}, 0x7ff
s_sub_u32 s33, 2047, s33
s_lshr_b32 s34, s33, 5""")
def o_issue():
    for k in range(4):
        A(f"buffer_load_dwordx4 {R(OL+4*k,4)}, v2, {SR(SWS)}, s31 offen offset:{k*1024} sc1")
    for k in range(4):
        A(f"buffer_load_dword v{OLC+k}, v{vRV}, {SR(SWS)}, s32 offen offset:{k*256} sc1")
def o_check():
    for k in range(4):
        b = OL + 4 * k
        A(f"v_add3_u32 v{228+k}, v{b}, v{b+1}, v{b+2}\nv_add3_u32 v{228+k}, v{228+k}, v{b+3}, s{sNONCE}\nv_xor_b32 v{228+k}, v{228+k}, v{OLC+k}")
    A("v_or3_b32 v228, v228, v229, v230\nv_or_b32 v228, v228, v231\nv_cmp_ne_u32 vcc, 0, v228")
lb = A.newlabel("L_p3l")
A(f"s_cmp_lt_u32 s{sW}, 4\ns_cbranch_scc1 L_nphb")
dma_upto(NB1)
A.label("L_nphb")
if DPOS == 1: d_block()
A(f"v_lshlrev_b32 v2, 4, v{vL}")
A(f"s_cmp_ge_u32 s{sW}, 4\ns_cbranch_scc1 {lb}w")
for pr in range(2):
    b = XR + 4 * pr
    A(f"v_permlane32_swap_b32 v{b}, v{b+2}\nv_permlane32_swap_b32 v{b+1}, v{b+3}")
for k in range(8):
    x = XR + k; p = PA + 2 * k
    A(f"""v_lshlrev_b32 v{p}, 16, v{x}
v_and_b32 v{p+1}, 0xffff0000, v{x}
v_pk_add_f32 {R(XB+8,2)}, {R(p,2)}, {R(vPM,2)} op_sel_hi:[1,0] neg_lo:[0,1] neg_hi:[0,1]
v_cvt_pk_bf16_f32 v{XB+10}, v{XB+8}, v{XB+9}
v_lshlrev_b32 v{XB+8}, 16, v{XB+10}
v_and_b32 v{XB+9}, 0xffff0000, v{XB+10}
v_pk_mul_f32 {R(XB+8,2)}, {R(XB+8,2)}, {R(vPM,2)} op_sel:[0,1]
v_cvt_pk_bf16_f32 v{XB+10}, v{XB+8}, v{XB+9}
v_lshlrev_b32 v{XB+8}, 16, v{XB+10}
v_and_b32 v{XB+9}, 0xffff0000, v{XB+10}
v_pk_add_f32 {R(p,2)}, {R(p,2)}, {R(XB+8,2)}""")
A(f"""v_lshlrev_b32 v2, 4, v{vL}
v_lshrrev_b32 v4, 5, v{vL}
v_bfe_u32 v3, v{vL}, 2, 2
v_lshl_add_u32 v5, v4, 2, v3
v_lshlrev_b32 v5, 8, v5
v_xor_b32 v3, s{sW}, v3
v_lshl_add_u32 v5, v3, 6, v5
v_bfe_u32 v3, v{vL}, 4, 1
v_lshl_add_u32 v5, v3, 5, v5
v_and_b32 v3, 3, v{vL}
v_lshl_add_u32 v5, v3, 3, v5
v_add_u32 v3, 65536, v5""")
def wo_read(g): return [f"ds_read_b64_tr_b16 {R(WOF+4*g+2*j,2)}, v{3 if g < 16 else 5} offset:{(g*4096 + j*2048) % 65536}" for j in range(2)]
for g in range(16, 32): emit(wo_read(g))
A(f"s_waitcnt vmcnt(0)\ns_branch {lb}")
A.label(lb + "w")
A(f"s_waitcnt vmcnt({4*max(0, NB1-NCB-PB0)})")
def yp_issue():
    A(f"""s_and_b32 s20, s{sC}, 3
s_lshl_b32 s20, s20, 10
s_add_u32 s20, s20, {WS_YP}
s_add_u32 s21, s20, {42*4096}
s_mul_i32 s22, s{sHH}, {11*4096}
s_add_u32 s20, s20, s22""")
    for k in range(11):
        if k == 10: A("s_min_u32 s20, s20, s21")
        A(f"buffer_load_dwordx4 {R(8+4*k,4)}, v2, {SR(SWS)}, s20 offen sc1\ns_add_u32 s20, s20, 4096")
NR = 4 * (4 - max(NB1, NCB + PB0))
TS(46)
o_issue()
if NR: dma_upto(4)
YL = int(opts.get("yl", 1))
if not YL:
    A(f"s_cmp_lg_u32 s34, s{sQK}\ns_cbranch_scc1 {lb}z")
    yp_issue()
    A(f"s_waitcnt vmcnt({11+NR})\ns_branch {lb}y")
    A.label(lb + "z")
A(f"s_waitcnt vmcnt({NR})\ns_branch {lb}y")
A.label(lb)
TS(46)
o_issue()
TS(47)
A("s_waitcnt vmcnt(0)")
A.label(lb + "y")
o_check()
retry_check(lb)
for k in range(4):
    A(f"ds_write_b128 v{vEX}, {R(OL+4*k,4)} offset:{k*1024}")
if YL:
    A(f"s_cmp_lg_u32 s34, s{sQK}\ns_cbranch_scc1 L_nyl\ns_cmp_lt_u32 s{sW}, 4\ns_cbranch_scc1 L_nyl")
    yp_issue()
    A.label("L_nyl")
TS(13); RC(45)
A("s_waitcnt lgkmcnt(0)\ns_barrier")
TS(14)
A(f"s_cmp_ge_u32 s{sW}, 4\ns_cbranch_scc1 L_p3help")
A(f"v_add_u32 v2, {L_TAIL}, v2")
order = list(range(16, 32)) + list(range(16))
lq = []
def ofr(n): lds(("o", n), f"ds_read_b128 {R(OF+4*(n%8),4)}, v2 offset:{order[n]*1024}")
for n in range(6): ofr(n)
wq = [x for g in range(16) for x in wo_read(g)]
for n in range(32):
    lwait(("o", n))
    A(mfma32(PA, WOF + 4 * order[n], OF + 4 * (n % 8)))
    if NR:
        if n == MB: A("s_barrier")
        if n >= MB:
            for x in wq[:3]: lds("w", x)
            wq = wq[3:]
    elif n < 16:
        for x in wo_read(n): lds("w", x)
    if n + 6 < 32: ofr(n + 6)
    if n == int(opts.get("zb", 27)):
        A(f"s_cmp_lg_u32 s34, s{sQK}\ns_cbranch_scc1 L_nzb\ns_barrier\nL_nzb:")
lb = A.newlabel("L_noz")
A(f"s_cmp_lg_u32 s34, s{sQK}\ns_cbranch_scc1 {lb}")
A(f"""s_barrier
s_lshl_b32 s20, s{sW}, 7
v_lshlrev_b32 v3, 4, v4
v_add_u32 v3, s20, v3""")
for a in range(4): A(f"ds_read_b128 {R(OF+4*a,4)}, v3 offset:{a*32}")
A(f"""s_and_b32 s20, s33, 31
v_and_b32 v3, 31, v{vL}
v_cmp_eq_u32 vcc, s20, v3
s_and_saveexec_b64 s[{sEX}:{sEX+1}], vcc
s_waitcnt lgkmcnt(0)""")
for r in range(16): A(f"v_add_f32 v{PA+r}, v{PA+r}, v{OF+r}")
A(f"s_mov_b64 exec, s[{sEX}:{sEX+1}]")
A.label(lb)
for k in range(8): A(f"v_cvt_pk_bf16_f32 v{XB+k}, v{PA+2*k}, v{PA+2*k+1}")
for pr in range(2):
    b = XB + 4 * pr
    A(f"v_permlane32_swap_b32 v{b}, v{b+2}\nv_permlane32_swap_b32 v{b+1}, v{b+3}")
    A(f"buffer_store_dwordx4 {R(b,4)}, v{vOUT}, {SR(SOUT)}, s{sOUTO} offen offset:{pr*32}")
A("s_branch L_end")
A.label("L_p3help")
if NR:
    A(f"s_cmp_lg_u32 s34, s{sQK}\ns_cbranch_scc1 L_hw0\ns_waitcnt vmcnt(11)\ns_branch L_hw1\nL_hw0:\ns_waitcnt vmcnt(0)\nL_hw1:\ns_barrier")
A(f"""s_or_b32 s20, s2, s{sHH}
s_cmp_lg_u32 s20, 0
s_cbranch_scc1 L_noep
v_mov_b32 v200, s{sNONCE}
v_mov_b32 v201, {WS_EPOCH}
s_mov_b64 exec, 1
buffer_store_dword v200, v201, {SR(SWS)}, 0 offen sc1
s_mov_b64 exec, -1
L_noep:""")
A(f"s_cmp_lg_u32 s34, s{sQK}\ns_cbranch_scc1 L_end")
def yp_check():
    A(f"v_min3_u32 v3, v10, v14, v18\nv_max3_u32 v4, v10, v14, v18")
    for k in range(3, 11, 2): A(f"v_min3_u32 v3, v3, v{10+4*k}, v{14+4*k}\nv_max3_u32 v4, v4, v{10+4*k}, v{14+4*k}")
    A(f"v_xor_b32 v3, s{sNONCE}, v3\nv_xor_b32 v4, s{sNONCE}, v4\nv_or_b32 v3, v3, v4\nv_cmp_ne_u32 vcc, 0, v3")
validated(yp_issue, yp_check, 0)
A(f"s_cmp_eq_u32 s{sHH}, 3\ns_cselect_b32 s20, 0, 1.0")
for k in range(1, 10): A(f"v_add_f32 v8, v8, v{8+4*k}\nv_add_f32 v9, v9, v{9+4*k}")
A(f"""v_fmac_f32 v8, s20, v48
v_fmac_f32 v9, s20, v49
s_lshl_b32 s20, s{sHH}, 9
s_add_u32 s20, s20, 1024
v_lshl_add_u32 v3, v{vL}, 3, s20
ds_write_b64 v3, v[8:9]
s_waitcnt lgkmcnt(0)
s_barrier""")
lb = A.newlabel("L_hb")
A(f"""s_cmp_lg_u32 s{sW}, 4
s_cbranch_scc1 {lb}
ds_read_b64 v[10:11], v3 offset:512
ds_read_b64 v[12:13], v3 offset:1024
ds_read_b64 v[14:15], v3 offset:1536
s_waitcnt lgkmcnt(0)
v_add_f32 v8, v8, v10
v_add_f32 v9, v9, v11
v_add_f32 v12, v12, v14
v_add_f32 v13, v13, v15
v_add_f32 v8, v8, v12
v_add_f32 v9, v9, v13""")
bf16round(8, 8); bf16round(9, 9)
A(f"""s_and_b32 s20, s{sKEY}, 0xffff0000
s_ashr_i32 s21, s20, 31
s_not_b32 s21, s21
s_or_b32 s21, s21, 0x80000000
s_xor_b32 s20, s20, s21
s_and_b32 s20, s20, 0xffff0000
v_mov_b32 v3, s20
v_mul_f32 v3, {f32(-LOG2E)}, v3
v_exp_f32 v3, v3
v_add_f32 v3, 1.0, v3
v_rcp_f32 v3, v3""")
bf16round(3, 3)
A("v_mul_f32 v8, v8, v3\nv_mul_f32 v9, v9, v3")
bf16round(8, 8); bf16round(9, 9)
A(f"""v_lshrrev_b32 v3, 5, v{vL}
v_lshlrev_b32 v3, 8, v3
v_and_b32 v4, 31, v{vL}
v_lshl_add_u32 v3, v4, 2, v3
ds_write_b32 v3, v8
ds_write_b32 v3, v9 offset:128
s_waitcnt lgkmcnt(0)""")
A.label(lb)
A("s_barrier")
A.label("L_end")
if PROF:
    TS(15)
    srd(SWS, WS_SIZE)
    A(f"""s_mov_b64 exec, -1
v_writelane_b32 v{vTS}, s{sRETRY}, 62
s_memrealtime s[96:97]
s_waitcnt lgkmcnt(0)
v_writelane_b32 v{vTS}, s96, 61
s_lshl_b32 s20, s2, 3
s_add_u32 s20, s20, s{sW}
s_lshl_b32 s20, s20, 8
s_add_u32 s20, s20, {WS_TS}
v_lshlrev_b32 v2, 2, v{vL}
buffer_store_dword v{vTS}, v2, {SR(SWS)}, s20 offen""")
A.label("L_exit")
A("s_endpgm")
A.label("L_codeend")
slow_path()

body = A.finalize()
import re as _re
def addflag(srd_, flag, kind="load"):
    global body
    pat = _re.compile(r"^(\s*buffer_%s_\w+ .*s\[%d:%d\], \S+ offen(?: offset:\d+)?)( lds)?$" % (kind, srd_, srd_ + 3), _re.M)
    body = pat.sub(lambda m: m.group(1) + " " + flag + (m.group(2) or ""), body)
for b_ in (SWG, SWU, SWD): addflag(b_, "nt")
if opts.get("ntx"): addflag(SX, "nt")
if opts.get("ntw"): addflag(SW, "nt")
if opts.get("nto"): addflag(SWO, "nt")
if opts.get("outf"): addflag(SOUT, opts["outf"].replace("+", " "), "store")
hdr = open("cdna_kernels/" + NAME + ".s.ref").read().split("; Override launch")[0]
out = hdr + f"""; One fused launch, 256 workgroups x 8 waves; workgroup = (64 rows, 4 heads).
;   phase 1  QKV GEMM on raw x (LDS-DMA ring; LayerNorm folded in as a rank-1 correction + row scale), router scores
;   phase 2  sliding-window attention; unshifted exponentials, row sums range-checked at run time, exact two-pass
;            true-max softmax as fallback (L_slow)
;   FFN      gate/up partials -> down-projection partials -> owner workgroups of the routed row
;   phase 3  output projection + residuals
; Hand-offs between workgroups go through d_ws with write-through stores and carry tags / checksums built from a
; generation word kept in d_ws, so they are valid under any placement; every spin is bounded.
; Generated by gen/gen.py + gen/asmlib.py (own generator scripts).
; @launch grid=(256,1,1) block=(512,1,1) lds=163840
.amdgcn_target "amdgcn-amd-amdhsa--gfx950"
.text
.globl {NAME}_kernel
.p2align 8
.type {NAME}_kernel,@function
{NAME}_kernel:
L_start:
{body}
.section .rodata,"a"
.p2align 6
.amdhsa_kernel {NAME}_kernel
  .amdhsa_next_free_vgpr 256
  .amdhsa_next_free_sgpr 102
  .amdhsa_accum_offset 256
  .amdhsa_group_segment_fixed_size 0
  .amdhsa_kernarg_size 88
  .amdhsa_user_sgpr_count 2
  .amdhsa_user_sgpr_kernarg_segment_ptr 1
  .amdhsa_system_sgpr_workgroup_id_x 1
  .amdhsa_float_denorm_mode_32 3
.end_amdhsa_kernel
"""
import subprocess, re
def labels(text):
    open("_g.s", "w").write(text)
    r = subprocess.run(["clang", "-x", "assembler", "-target", "amdgcn-amd-amdhsa", "-mcpu=gfx950", "-c", "_g.s", "-o", "_g.o"], capture_output=True, text=True)
    if r.returncode:
        print("\n".join(r.stderr.split("\n")[:30])); sys.exit(1)
    t = subprocess.run(["llvm-objdump", "-t", "_g.o"], capture_output=True, text=True).stdout
    return {m.group(2): int(m.group(1), 16) for m in re.finditer(r"^([0-9a-f]{16}) .*\s(L_\w+)$", t, re.M)}
lab = labels(out.replace("CODE_PF_MAX", "0x11111"))
out = out.replace("CODE_PF_MAX", hex((lab["L_codeend"] - 512) & ~63))
assert labels(out) == lab
print("code bytes", lab["L_codeend"], "instrs", len(A.ins), "nops", A.nnop)
open(sys.argv[1], "w").write(out)
```
